```python
import torch

def _softmax(x, axis=-1):
    return torch.softmax(x, dim=axis)
def _gelu(x):
    return torch.nn.functional.gelu(x, approximate="tanh")
def _silu(x):
    return torch.nn.functional.silu(x)
def _sigmoid(x):
    return torch.sigmoid(x)
def _layernorm(x, axis=-1, eps=1e-5):
    m = x.mean(dim=axis, keepdim=True)
    v = x.var(dim=axis, keepdim=True, unbiased=False)
    return (x - m) / torch.sqrt(v + eps)
def _scatter_add(tgt, idx, src, axis=0):
    return tgt.clone().index_add_(axis, idx, src)
def _segment_sum(src, seg, n):
    out = torch.zeros((n,) + src.shape[1:], dtype=src.dtype)
    return out.index_add_(0, seg, src)
def _pad(x, pw):
    flat = tuple(v for pair in reversed(pw) for v in pair)
    return torch.nn.functional.pad(x, flat)

kernel_name = 'sequential_preLN__ssm_conv_s4d__glu_gated_swiglu__prompt'

def setup_inputs():

    _w = (lambda a: (lambda t: t.to(torch.bfloat16) if t.is_floating_point() else t)(torch.as_tensor(a)))
    def _A_setup():
        Bsz, L, D, N = 1, 2048, 640, 192
        return {
            "u": _w((lambda *s: torch.randn(*s, dtype=torch.bfloat16) * 0.05)(Bsz, L, D)),
            "log_A_real": _w((lambda *s: torch.randn(*s, dtype=torch.bfloat16) * 6.4)(D, N) * 0.5),
            "A_imag": _w((lambda *s: torch.randn(*s, dtype=torch.bfloat16) * 0.05)(D, N) * 3.14),
            "C_real": _w((lambda *s: torch.randn(*s, dtype=torch.bfloat16) * 0.05)(D, N) / N ** 0.5),
            "C_imag": _w((lambda *s: torch.randn(*s, dtype=torch.bfloat16) * 0.05)(D, N) / N ** 0.5),
            "log_dt": _w((lambda *s: torch.randn(*s, dtype=torch.bfloat16) * 0.05)(D) * 0.5 - 4.0),
            "D_skip": _w((lambda *s: torch.randn(*s, dtype=torch.bfloat16) * 0.05)(D)),
        }
    _A_in = _A_setup()

    def _B_setup():
        B, S, D, F = 1, 2048, 640, 1536
        return {
            "x": _w((lambda *s: torch.randn(*s, dtype=torch.bfloat16) * 0.05)(B, S, D)),
            "w1": _w((lambda *s: torch.randn(*s, dtype=torch.bfloat16) * 0.4)(D, F) * (2.0 / D) ** 0.5),
            "w3": _w((lambda *s: torch.randn(*s, dtype=torch.bfloat16) * 0.4)(D, F) * (2.0 / D) ** 0.5),
            "w2": _w((lambda *s: torch.randn(*s, dtype=torch.bfloat16) * 0.4)(F, D) * (2.0 / F) ** 0.5),
        }
    _B_in = _B_setup()

    return {
        "A_u": _A_in["u"],
        "A_log_A_real": _A_in["log_A_real"],
        "A_A_imag": _A_in["A_imag"],
        "A_C_real": _A_in["C_real"],
        "A_C_imag": _A_in["C_imag"],
        "A_log_dt": _A_in["log_dt"],
        "A_D_skip": _A_in["D_skip"],
        "B_x": _B_in["x"],
        "B_w1": _B_in["w1"],
        "B_w3": _B_in["w3"],
        "B_w2": _B_in["w2"],
    }

def reference(A_u, A_log_A_real, A_A_imag, A_C_real, A_C_imag, A_log_dt, A_D_skip, B_x, B_w1, B_w3, B_w2):
    def _A_ref(u, log_A_real, A_imag, C_real, C_imag, log_dt, D_skip):
        L = u.shape[1]
        dt = torch.exp(log_dt)
        A = -torch.exp(log_A_real) + 1j * A_imag
        C = (C_real + 1j * C_imag) * dt[:, None]
        pos = (lambda x, dt: x.to(dt))(torch.arange(L), log_dt.dtype)
        P = torch.exp((A * dt[:, None])[:, :, None] * pos[None, None, :])
        K = 2.0 * torch.einsum("dn,dnl->dl", C, P).real
        L2 = 2 * L
        u_t = (lambda x, *d: x.permute(*d))(u, 0, 2, 1)
        Kf = (lambda x, *a, **k: torch.fft.rfft(x.float(), *a, **k))(K, L2)
        Uf = (lambda x, *a, **k: torch.fft.rfft(x.float(), *a, **k))(u_t, L2)
        y = (lambda x, *a, **k: torch.fft.irfft(x, *a, **k).to(torch.bfloat16))(Uf * Kf[None, :, :], L2)[:, :, :L]
        y = (lambda x, *d: x.permute(*d))(y, 0, 2, 1)
        return y + u * D_skip[None, None, :]

    def _B_ref(x, w1, w3, w2):
        gate = torch.einsum("bsd,df->bsf", x, w1)
        up = torch.einsum("bsd,df->bsf", x, w3)
        h = _silu(gate) * up
        out = torch.einsum("bsf,fd->bsd", h, w2)
        return out

    x = A_u
    h = x + _A_ref(_layernorm(x, axis=-1), A_log_A_real, A_A_imag, A_C_real, A_C_imag, A_log_dt, A_D_skip)
    h2 = h + _B_ref(_layernorm(h, axis=-1), B_w1, B_w3, B_w2)
    return h2
```

```python
import sys

NAME = "sequential_preLN__ssm_conv_s4d__glu_gated_swiglu__prompt"

KA_X, KA_LOGA, KA_AIM, KA_CRE, KA_CIM, KA_LOGDT, KA_DSKIP = 0, 8, 16, 24, 32, 40, 48
KA_W1, KA_W3, KA_W2, KA_OUT, KA_DBG, KA_WS = 64, 72, 80, 88, 96, 104

WS_UT = 0x000000
WS_XT = 0x300000
WS_HT = 0x600000
WS_HM = 0x900000
WS_W13 = 0x1000000
WS_W2 = 0x1800000
WS_CSP = 0x2000000
SZ_T = 640 * 4096
SZ_HM = 32 * 4 * 48 * 1024
SZ_WCOPY = 983040
COPY_STRIDE = 0x100000
CSP_STRIDE = 0x8000

WS_DBG = 0x3000000
import os
DEBUG_K = int(os.environ.get('DEBUG_K', '0'))
LOG2E = 0x3FB8AA3B
NLOG2E = 0xBFB8AA3B
INV2PI = 0x3E22F983
INV640 = 0x3ACCCCCD
EPS = 0x3727C5AC
ONES_BF = 0x3F803F80


class Asm:
    def __init__(self):
        self.l = []
        self.vm = []
        self.uid = 0

    def __call__(self, s):
        for x in s.split("\n"):
            x = x.strip()
            if x:
                self.l.append("    " + x)

    def label(self, s):
        self.l.append(s + ":")

    def raw(self, s):
        self.l.append(s)

    def newlabel(self, p="L"):
        self.uid += 1
        return f"{p}_{self.uid}"

    def vmem(self, s, tag=None):
        self(s)
        self.vm.append(tag)

    def wait_vm(self, tag):
        idx = max(i for i, t in enumerate(self.vm) if t == tag)
        n = len(self.vm) - 1 - idx
        assert n <= 63, n
        self(f"s_waitcnt vmcnt({n})")

    def srd(self, sd, lo, off, size):
        if off == 0:
            self(f"s_mov_b32 s{sd}, s{lo}\ns_mov_b32 s{sd+1}, s{lo+1}")
        else:
            o = off if isinstance(off, str) else hex(off)
            self(f"s_add_u32 s{sd}, s{lo}, {o}\ns_addc_u32 s{sd+1}, s{lo+1}, 0")
        self(f"s_mov_b32 s{sd+2}, {size}\ns_mov_b32 s{sd+3}, 0x20000")

    def kstart(self, name):
        self.raw(f".globl {name}\n.p2align 8\n.type {name},@function\n{name}:")
        self.vm = []

    def unpack(self, dlo, src):
        self(f"v_lshlrev_b32 v{dlo}, 16, v{src}\nv_and_b32 v{dlo+1}, 0xffff0000, v{src}")

    def rnd(self, d, s):
        self(f"v_cvt_pk_bf16_f32 v{d}, v{s}, v{s}\nv_lshlrev_b32 v{d}, 16, v{d}")


def q(r, n=4):
    return f"v[{r}:{r+n-1}]"


def desc(a, name, vgpr, sgpr=96):
    v = (vgpr + 3) // 4 * 4
    a.raw(f""".amdhsa_kernel {name}
  .amdhsa_next_free_vgpr {vgpr}
  .amdhsa_next_free_sgpr {sgpr}
  .amdhsa_accum_offset {v}
  .amdhsa_group_segment_fixed_size 0
  .amdhsa_kernarg_size 112
  .amdhsa_user_sgpr_count 2
  .amdhsa_user_sgpr_kernarg_segment_ptr 1
  .amdhsa_system_sgpr_workgroup_id_x 1
.end_amdhsa_kernel""")


def ln_finish(a, vs, vq, vt, vnegm, vrinv):
    a(f"v_mul_f32 v{vs}, {hex(INV640)}, v{vs}")
    a(f"v_mul_f32 v{vq}, {hex(INV640)}, v{vq}")
    a(f"v_fma_f32 v{vq}, -v{vs}, v{vs}, v{vq}")
    a(f"v_max_f32 v{vq}, 0, v{vq}")
    a.rnd(vnegm, vs)
    a(f"v_xor_b32 v{vnegm}, 0x80000000, v{vnegm}")
    a.rnd(vt, vq)
    a(f"v_add_f32 v{vt}, {hex(EPS)}, v{vt}")
    a.rnd(vt, vt)
    a(f"v_sqrt_f32 v{vt}, v{vt}\ns_nop 0")
    a.rnd(vt, vt)
    a(f"v_rcp_f32 v{vrinv}, v{vt}\ns_nop 0")


LN_RS = 1312
LN_UOFF = 32 * LN_RS


def role_ln1(a):
    a(f"s_load_dwordx2 s[4:5], s[0:1], {KA_X}\ns_load_dwordx2 s[6:7], s[0:1], {KA_WS}")
    a("v_and_b32 v1, 63, v0\nv_lshrrev_b32 v2, 6, v0\nv_lshrrev_b32 v3, 4, v1")
    a("v_lshl_add_u32 v4, v2, 3, v3\nv_and_b32 v5, 15, v1")
    a(f"s_mul_i32 s21, s2, {32*1280}")
    a("v_mul_u32_u24 v6, 1280, v4\nv_lshl_add_u32 v6, v5, 4, v6\nv_add_u32 v6, s21, v6")
    a(f"v_mul_u32_u24 v7, {LN_RS}, v4\nv_lshl_add_u32 v7, v5, 4, v7")
    a("s_movk_i32 s22, 5120")
    a(f"s_mov_b32 s23, {hex(ONES_BF)}")
    a("s_waitcnt lgkmcnt(0)")
    a.srd(8, 4, 0, SZ_T)
    a.srd(12, 6, WS_UT, SZ_T)
    a.srd(16, 6, WS_XT, SZ_T)
    X = [16, 36]
    for p in range(2):
        for j in range(5):
            a.vmem(f"buffer_load_dwordx4 {q(X[p]+4*j)}, v6, s[8:11], {'s22' if p else '0'} offen offset:{j*256}", ("x", p))
    U = 56
    T = 76
    S0, S1, Q0, Q1, NM, RI, TT = 80, 81, 82, 83, 84, 86, 88
    for p in range(2):
        a.wait_vm(("x", p))
        for j in range(5):
            a(f"ds_write_b128 v7, {q(X[p]+4*j)} offset:{p*4*LN_RS + j*256}")
        a(f"v_mov_b32 v{S0}, 0\nv_mov_b32 v{S1}, 0\nv_mov_b32 v{Q0}, 0\nv_mov_b32 v{Q1}, 0")
        for i in range(20):
            r = X[p] + i
            a(f"v_dot2c_f32_bf16 v{S0 + (i&1)}, s23, v{r}")
            a(f"v_dot2c_f32_bf16 v{Q0 + (i&1)}, v{r}, v{r}")
        a("s_nop 3")
        a(f"v_add_f32 v{S0}, v{S0}, v{S1}\nv_add_f32 v{Q0}, v{Q0}, v{Q1}")
        for sh in (8, 4, 2, 1):
            a("s_nop 1")
            a(f"v_add_f32_dpp v{S0}, v{S0}, v{S0} row_ror:{sh} row_mask:0xf bank_mask:0xf")
            a(f"v_add_f32_dpp v{Q0}, v{Q0}, v{Q0} row_ror:{sh} row_mask:0xf bank_mask:0xf")
        ln_finish(a, S0, Q0, TT, NM, RI)
        for i in range(20):
            r = X[p] + i
            t = T + 2 * (i & 1)
            a.unpack(t, r)
            a(f"v_pk_add_f32 {q(t,2)}, {q(t,2)}, {q(NM,2)} op_sel_hi:[1,0]")
            a(f"v_cvt_pk_bf16_f32 v{U+i}, v{t}, v{t+1}")
            a.unpack(t, U + i)
            a(f"v_pk_mul_f32 {q(t,2)}, {q(t,2)}, {q(RI,2)} op_sel_hi:[1,0]")
            a(f"v_cvt_pk_bf16_f32 v{U+i}, v{t}, v{t+1}")
        for j in range(5):
            a(f"ds_write_b128 v7, {q(U+4*j)} offset:{LN_UOFF + p*4*LN_RS + j*256}")
    a("s_waitcnt lgkmcnt(0)\ns_barrier")
    a("v_bfe_u32 v8, v1, 2, 2\nv_lshl_add_u32 v8, v3, 3, v8")
    a(f"v_mul_u32_u24 v8, {LN_RS}, v8\nv_and_b32 v9, 3, v1\nv_lshl_add_u32 v8, v9, 3, v8")
    a("v_mul_u32_u24 v9, 320, v2\nv_add_u32 v8, v8, v9")
    a("v_mul_u32_u24 v9, 160, v2\nv_add_u32 v9, v9, v5\nv_lshlrev_b32 v9, 12, v9\nv_lshl_add_u32 v9, v3, 4, v9")
    a("s_lshl_b32 s21, s2, 6\nv_add_u32 v9, s21, v9")
    for arr in range(2):
        base = LN_UOFF if arr == 0 else 0
        R = 16 + 40 * arr
        for i in range(10):
            a(f"ds_read_b64_tr_b16 {q(R+4*i,2)}, v8 offset:{base + 32*i}")
            a(f"ds_read_b64_tr_b16 {q(R+4*i+2,2)}, v8 offset:{base + 32*i + 4*LN_RS}")
        a("s_waitcnt lgkmcnt(0)")
        for i in range(10):
            a(f"s_mov_b32 s24, {i*65536}")
            a.vmem(f"buffer_store_dwordx4 {q(R+4*i)}, v9, s[{12+4*arr}:{15+4*arr}], s24 offen")


W13_J = [[0, 1, 2], [4, 5, 3]]


def role_repack(a, done):
    a(f"s_load_dwordx4 s[4:7], s[0:1], {KA_W1}\ns_load_dwordx2 s[8:9], s[0:1], {KA_W2}\ns_load_dwordx2 s[10:11], s[0:1], {KA_WS}")
    a("v_and_b32 v1, 63, v0\nv_lshrrev_b32 v2, 6, v0\nv_lshrrev_b32 v3, 4, v1")
    a("v_readfirstlane_b32 s12, v2")
    a("s_and_b32 s13, s2, 7")
    a("s_sub_u32 s14, s2, 64\ns_lshr_b32 s14, s14, 3\ns_lshl_b32 s14, s14, 2")
    a("s_nop 1\ns_add_u32 s14, s14, s12")
    a("s_mul_i32 s15, s12, 24576")
    a("v_lshlrev_b32 v4, 4, v1")
    a("v_bfe_u32 v5, v1, 2, 2\nv_lshl_add_u32 v5, v3, 2, v5\nv_and_b32 v6, 3, v1")
    a("s_lshl_b32 s16, s13, 20")
    a("s_waitcnt lgkmcnt(0)")
    lw2 = a.newlabel("L_w2")
    a(f"s_cmp_ge_u32 s14, 40\ns_cbranch_scc1 {lw2}")
    a("s_mul_i32 s17, s14, 26\ns_lshr_b32 s17, s17, 8")
    a("s_mul_i32 s18, s17, 10\ns_sub_u32 s18, s14, s18")
    a.srd(20, 4, 0, 640 * 3072)
    a.srd(24, 6, 0, 640 * 3072)
    a(f"s_add_u32 s19, s16, {hex(WS_W13)}")
    a.srd(28, 10, "s19", SZ_WCOPY)
    a(f"s_lshl_b32 s19, s13, 15\ns_add_u32 s19, s19, {hex(WS_CSP)}")
    a.srd(32, 10, "s19", CSP_STRIDE)
    for i in range(6):
        a(f"v_add_u32 v7, {64*i}, v1\nv_mul_u32_u24 v8, 43691, v7\nv_lshrrev_b32 v8, 19, v8")
        a(f"v_mul_u32_u24 v9, 12, v8\nv_sub_u32 v9, v7, v9\nv_mul_u32_u24 v8, 3072, v8\nv_lshl_add_u32 v{10+i}, v9, 4, v8")
    a("s_lshr_b32 s36, s13, 1\ns_lshl_b32 s36, s36, 2\ns_add_u32 s36, s36, s17\ns_mul_i32 s36, s36, 192")
    a(f"s_mul_i32 s37, s18, {2*32*3072}\ns_add_u32 s36, s36, s37")
    for un in range(2):
        if un:
            a(f"s_add_u32 s36, s36, {32*3072}")
        for mat in range(2):
            for i in range(6):
                a(f"s_add_u32 m0, s15, {(un*2+mat)*6144 + i*1024}\ns_nop 0")
                a.vmem(f"buffer_load_dwordx4 v{10+i}, s[{20+4*mat}:{23+4*mat}], s36 offen lds", ("w13", un, mat))
    OH = 32
    a("v_and_b32 v7, 15, v1")
    a(f"v_mov_b32 v8, {hex(ONES_BF)}")
    for t in range(12):
        a(f"v_cmp_eq_u32 vcc, {t}, v7\ns_nop 1")
        for i in range(4):
            a(f"v_cndmask_b32 v{OH+4*t+i}, 0, v8, vcc")
    ACC = 80
    for i in range(4):
        a(f"v_mov_b32 v{ACC+i}, 0")
    a("v_mul_u32_u24 v16, 192, v5\nv_lshl_add_u32 v16, v6, 3, v16\nv_add_u32 v16, s15, v16")
    a("s_mul_i32 s37, s17, 20\ns_lshl_b32 s38, s18, 1\ns_add_u32 s37, s37, s38\ns_mul_i32 s37, s37, 12288")
    for un in range(2):
        for mat in range(2):
            F = 84 + 24 * (un * 2 + mat)
            a.wait_vm(("w13", un, mat))
            for wn in range(2):
                for jj in range(3):
                    j = W13_J[wn][jj]
                    r = F + 4 * (wn * 3 + jj)
                    off = (un * 2 + mat) * 6144 + 32 * j
                    a(f"ds_read_b64_tr_b16 {q(r,2)}, v16 offset:{off}")
                    a(f"ds_read_b64_tr_b16 {q(r+2,2)}, v16 offset:{off + 16*192}")
            a("s_waitcnt lgkmcnt(0)")
            for wn in range(2):
                for jj in range(3):
                    t = wn * 6 + mat * 3 + jj
                    r = F + 4 * (wn * 3 + jj)
                    a(f"v_mfma_f32_16x16x32_bf16 {q(ACC)}, {q(r)}, {q(OH+4*t)}, {q(ACC)}")
                    a(f"s_add_u32 s38, s37, {un*12288 + t*1024}")
                    a.vmem(f"buffer_store_dwordx4 {q(r)}, v4, s[28:31], s38 offen")
    a("s_nop 7")
    a("v_lshlrev_b32 v9, 6, v7\nv_lshl_add_u32 v9, v3, 4, v9")
    a("s_mul_i32 s38, s14, 768")
    a("v_cmp_gt_u32 vcc, 12, v7\ns_and_saveexec_b64 s[40:41], vcc")
    a(f"buffer_store_dwordx4 {q(ACC)}, v9, s[32:35], s38 offen")
    a("s_mov_b64 exec, s[40:41]")
    a(f"s_branch {done}")
    a.label(lw2)
    a.vm = []
    a(f"s_cmp_ge_u32 s14, 88\ns_cbranch_scc1 {done}")
    a("s_sub_u32 s14, s14, 40")
    a("s_mul_i32 s17, s14, 43\ns_lshr_b32 s17, s17, 9")
    a("s_mul_i32 s18, s17, 12\ns_sub_u32 s18, s14, s18")
    a.srd(20, 8, 0, 1536 * 1280)
    a(f"s_add_u32 s19, s16, {hex(WS_W2)}")
    a.srd(28, 10, "s19", SZ_WCOPY)
    for i in range(5):
        a(f"v_add_u32 v7, {64*i}, v1\nv_mul_u32_u24 v8, 52429, v7\nv_lshrrev_b32 v8, 19, v8")
        a(f"v_mul_u32_u24 v9, 10, v8\nv_sub_u32 v9, v7, v9\nv_mul_u32_u24 v8, 1280, v8\nv_lshl_add_u32 v{10+i}, v9, 4, v8")
    a("s_and_b32 s36, s13, 1\ns_lshl_b32 s36, s36, 2\ns_add_u32 s36, s36, s17\ns_mul_i32 s36, s36, 160")
    a(f"s_mul_i32 s37, s18, {128*1280}\ns_add_u32 s36, s36, s37")
    for un in range(4):
        if un:
            a(f"s_add_u32 s36, s36, {32*1280}")
        for i in range(5):
            a(f"s_add_u32 m0, s15, {un*5120 + i*1024}\ns_nop 0")
            a.vmem(f"buffer_load_dwordx4 v{10+i}, s[20:23], s36 offen lds", ("w2", un))
    a("v_mul_u32_u24 v16, 160, v5\nv_add_u32 v16, s15, v16")
    a("v_lshl_add_u32 v17, v6, 4, v16")
    a("v_lshl_add_u32 v16, v6, 3, v16")
    a("s_mul_i32 s37, s17, 48\ns_lshl_b32 s38, s18, 2\ns_add_u32 s37, s37, s38\ns_mul_i32 s37, s37, 5120")
    for un in range(4):
        a.wait_vm(("w2", un))
        F = 32 + 20 * un
        for t in range(5):
            r = F + 4 * t
            if t < 4:
                ad, off = "v17", un * 5120 + (t >> 1) * 64 + (t & 1) * 8
            else:
                ad, off = "v16", un * 5120 + 128
            a(f"ds_read_b64_tr_b16 {q(r,2)}, {ad} offset:{off}")
            a(f"ds_read_b64_tr_b16 {q(r+2,2)}, {ad} offset:{off + 16*160}")
        a("s_waitcnt lgkmcnt(0)")
        for t in range(5):
            a(f"s_add_u32 s38, s37, {un*5120 + t*1024}")
            a.vmem(f"buffer_store_dwordx4 {q(F+4*t)}, v4, s[28:31], s38 offen")


def k1(a):
    a.kstart("prep_kernel")
    done = "L_prep_done"
    a(f"s_cmp_ge_u32 s2, 256\ns_cbranch_scc1 {done}")
    a("s_cmp_ge_u32 s2, 64\ns_cbranch_scc1 L_prep_repack")
    role_ln1(a)
    a(f"s_branch {done}")
    a.label("L_prep_repack")
    a.vm = []
    role_repack(a, done)
    a.label(done)
    a("s_endpgm")


CV_KP = 0
CV_A = 4160
CV_CS = 4160
CV_U = CV_A + 4 * CV_CS
CV_WAVE = CV_U + 4608
TB_RS = 272


def cmul(a, d, x, y, t):
    a(f"v_pk_mul_f32 {q(t,2)}, {q(x,2)}, {q(y,2)} op_sel_hi:[1,0]")
    a(f"v_pk_fma_f32 {q(d,2)}, {q(x,2)}, {q(y,2)}, {q(t,2)} op_sel:[1,1,0] op_sel_hi:[0,1,1] neg_lo:[1,0,0]")


def k2(a):
    a.kstart("conv_kernel")
    done = "L_conv_done"
    a(f"s_cmp_ge_u32 s2, 160\ns_cbranch_scc1 {done}")
    a(f"s_load_dwordx8 s[4:11], s[0:1], {KA_LOGA}")
    a(f"s_load_dwordx4 s[12:15], s[0:1], {KA_LOGDT}")
    a(f"s_load_dwordx2 s[16:17], s[0:1], {KA_WS}")
    a("v_and_b32 v1, 63, v0\nv_lshrrev_b32 v2, 6, v0\nv_lshrrev_b32 v3, 4, v1\nv_and_b32 v4, 15, v1")
    a("v_readfirstlane_b32 s18, v2")
    a("s_lshl_b32 s19, s2, 2\ns_nop 2\ns_add_u32 s19, s19, s18")
    a(f"s_mul_i32 s20, s18, {CV_WAVE}")
    a("s_waitcnt lgkmcnt(0)")
    for i in range(4):
        a.srd(24 + 4 * i, 4 + 2 * i, 0, 640 * 192 * 2)
    a.srd(40, 12, 0, 1280)
    a.srd(44, 14, 0, 1280)
    a.srd(48, 16, WS_UT, SZ_T)
    a.srd(52, 16, WS_XT, SZ_T)
    a.srd(56, 16, WS_HT, SZ_T)
    PR = 100
    a("s_mul_i32 s21, s19, 384\nv_lshlrev_b32 v5, 1, v1")
    a("s_lshl_b32 s22, s19, 1\nv_mov_b32 v6, 0")
    a.vmem("buffer_load_ushort v112, v6, s[40:43], s22 offen", "par")
    a.vmem("buffer_load_ushort v113, v6, s[44:47], s22 offen", "par")
    for ng in range(3):
        for i in range(4):
            a.vmem(f"buffer_load_ushort v{PR+4*ng+i}, v5, s[{24+4*i}:{27+4*i}], s21 offen offset:{128*ng}", "par")
    a("s_lshl_b32 s23, s19, 12\nv_lshlrev_b32 v7, 4, v1")
    a(f"s_add_u32 m0, s20, {CV_U + 480}\ns_nop 0")
    for i in range(4):
        a.vmem(f"buffer_load_dwordx4 v7, s[48:51], s23 offen offset:{1024*i} lds", "u")
    XR = 232
    a("v_lshlrev_b32 v8, 5, v4\nv_lshl_add_u32 v8, v3, 3, v8")
    for nb in range(8):
        a.vmem(f"buffer_load_dwordx2 {q(XR+2*nb,2)}, v8, s[52:55], s23 offen offset:{512*nb}", "xt")
    a("v_mov_b32 v12, 0\nv_mov_b32 v13, 0\nv_mov_b32 v14, 0\nv_mov_b32 v15, 0")
    a(f"v_add_u32 v9, s20, v7")
    a("v_cmp_gt_u32 vcc, 30, v1\ns_and_saveexec_b64 s[60:61], vcc")
    a(f"ds_write_b128 v9, v[12:15] offset:{CV_U}")
    a("s_mov_b64 exec, s[60:61]")
    a(f"v_lshlrev_b32 v10, 2, v1\nv_add_u32 v10, s20, v10")
    a(f"v_mul_u32_u24 v11, {TB_RS}, v4\nv_lshl_add_u32 v11, v3, 4, v11\nv_add_u32 v11, s20, v11")
    DK = 116
    for i in range(12):
        a(f"v_mov_b32 v{DK+i}, 0")
    a.wait_vm("par")
    DT, DS = 112, 113
    a(f"v_lshlrev_b32 v{DT}, 16, v{DT}\nv_mul_f32 v{DT}, {hex(LOG2E)}, v{DT}\nv_exp_f32 v{DT}, v{DT}\ns_nop 0")
    a.rnd(DT, DT)
    a(f"v_lshlrev_b32 v{DS}, 16, v{DS}")
    a("s_mov_b32 s62, 0")
    a.label("L_kgen")
    A2, W, Z8, Y, GC, T0, T1, T2, XT = 16, 17, 18, 20, 22, 24, 26, 28, 30
    E = [None] + [32 + 2 * i for i in range(7)]
    G1 = 46
    PK = [48, 49, 50, 51]
    pkc = [0]

    def put(row, re, im):
        r = PK[pkc[0] % 4]
        pkc[0] += 1
        a(f"v_cvt_pk_bf16_f32 v{r}, {re}, {im}")
        a(f"ds_write_b32 v10, v{r} offset:{CV_A + row*TB_RS}")

    def putp(row, p):
        put(row, f"v{p}", f"v{p+1}")

    for i in range(4):
        a(f"v_lshlrev_b32 v{PR+i}, 16, v{PR+i}")
    a(f"v_mul_f32 v{A2}, {hex(LOG2E)}, v{PR}\nv_exp_f32 v{A2}, v{A2}")
    a(f"v_mul_f32 v{W}, v{PR+1}, v{DT}")
    a.rnd(A2, A2)
    a(f"v_mul_f32 v{W}, {hex(INV2PI)}, v{W}")
    a(f"v_mul_f32 v{A2}, v{A2}, v{DT}")
    a(f"v_rndne_f32 v{T0}, v{W}")
    a(f"v_mul_f32 v{A2}, {hex(NLOG2E)}, v{A2}")
    a(f"v_sub_f32 v{W}, v{W}, v{T0}")
    a(f"v_mul_f32 v{Y}, v{PR+2}, v{DT}\nv_mul_f32 v{Y+1}, v{PR+3}, v{DT}")
    a(f"v_mul_f32 v{Y}, 2.0, v{Y}\nv_mul_f32 v{Y+1}, -2.0, v{Y+1}")

    def base(dst, mult, conj):
        m = {1: "1.0", 8: hex(0x41000000), 128: hex(0x43000000)}[mult]
        a(f"v_mul_f32 v{T0}, {m}, v{A2}\nv_mul_f32 v{T0+1}, {m}, v{W}")
        a(f"v_exp_f32 v{T0}, v{T0}\nv_cos_f32 v{dst}, v{T0+1}\nv_sin_f32 v{dst+1}, v{T0+1}\ns_nop 0")
        a(f"v_mul_f32 v{dst}, v{dst}, v{T0}")
        a(f"v_mul_f32 v{dst+1}, {'-' if conj else ''}v{dst+1}, v{T0}")

    base(E[1], 1, False)
    base(Z8, 8, True)
    base(G1, 128, False)
    for i in range(8):
        a(f"v_mov_b32 v{PR+i}, v{PR+4+i}")
    put(0, "1.0", "0")
    putp(1, E[1])
    putp(41, Y)
    cmul(a, E[2], E[1], E[1], T0)
    putp(8, G1)
    cmul(a, E[3], E[2], E[1], T0)
    cmul(a, E[4], E[2], E[2], T1)
    putp(2, E[2])
    cmul(a, E[5], E[4], E[1], T0)
    cmul(a, E[6], E[4], E[2], T1)
    cmul(a, E[7], E[4], E[3], T2)
    for e in range(3, 8):
        putp(e, E[e])
    ops = []
    for e in range(1, 8):
        ops.append(("x", 8 + e, G1, E[e]))
    gprev = G1
    for g in range(2, 17):
        ops.append(("g", g))
        if g in (2, 3):
            for i, e in enumerate((2, 4, 6)):
                ops.append(("x", 16 + (g - 2) * 4 + 1 + i, GC, E[e]))
        elif g < 8:
            ops.append(("x", 24 + (g - 4) * 2 + 1, GC, E[4]))
    yb = 1
    for k, op in enumerate(ops):
        if op[0] == "x":
            x = XT if (k & 1) else T2
            cmul(a, x, op[2], op[3], x)
            putp(op[1], x)
        else:
            g = op[1]
            cmul(a, GC, G1 if g == 2 else GC, G1, T1)
            row = 16 + (g - 2) * 4 if g < 4 else (24 + (g - 4) * 2 if g < 8 else 32 + (g - 8))
            putp(row, GC)
        if (k & 1) and yb < 16:
            cmul(a, Y, Y, Z8, T0)
            putp(41 + yb, Y)
            yb += 1
    while yb < 16:
        cmul(a, Y, Y, Z8, T0)
        putp(41 + yb, Y)
        yb += 1
    FR = 52
    a("s_waitcnt lgkmcnt(0)")
    for st in range(4):
        f = FR + 16 * (st & 1)
        a(f"ds_read_b128 {q(f)}, v11 offset:{CV_A + 41*TB_RS + 64*st}")
        for t in range(3):
            a(f"ds_read_b128 {q(f+4+4*t)}, v11 offset:{CV_A + 16*t*TB_RS + 64*st}")
        if st:
            a("s_waitcnt lgkmcnt(4)")
            fp = FR + 16 * ((st - 1) & 1)
            for t in range(3):
                a(f"v_mfma_f32_16x16x32_bf16 {q(DK+4*t)}, {q(fp+4+4*t)}, {q(fp)}, {q(DK+4*t)}")
    a("s_waitcnt lgkmcnt(0)")
    fp = FR + 16
    for t in range(3):
        a(f"v_mfma_f32_16x16x32_bf16 {q(DK+4*t)}, {q(fp+4+4*t)}, {q(fp)}, {q(DK+4*t)}")
    a("s_add_u32 s62, s62, 1\ns_cmp_lt_u32 s62, 3\ns_cbranch_scc1 L_kgen")
    a("v_lshrrev_b32 v16, 1, v3\nv_and_b32 v17, 1, v3")
    a("v_lshlrev_b32 v18, 4, v4\nv_add_u32 v18, s20, v18")
    a("v_lshlrev_b32 v19, 8, v16\nv_lshl_add_u32 v19, v17, 3, v19\nv_add_u32 v19, v19, v18")
    a("v_cmp_gt_u32 vcc, 2, v3")
    a("v_lshlrev_b32 v20, 8, v3\nv_add_u32 v20, 512, v20")
    a("v_lshlrev_b32 v21, 9, v3")
    a("v_cndmask_b32 v20, v21, v20, vcc\nv_add_u32 v20, v20, v18")
    for i in range(1, 4):
        a(f"v_mov_b32 v22, {4*i}\nv_mov_b32 v23, {256*(i>>1) + 8*(i&1)}")
        a(f"v_cndmask_b32 v22, v23, v22, vcc\nv_add_u32 v{23+i}, v20, v22")
    a("v_lshlrev_b32 v27, 10, v3\nv_lshl_add_u32 v27, v4, 4, v27\nv_add_u32 v27, 2048, v27")
    a("s_movk_i32 s63, 4112")
    for i in range(4):
        a(f"v_add_u32 v{28+i}, {256*i}, v27\nv_min_u32 v{28+i}, s63, v{28+i}\nv_add_u32 v{28+i}, s20, v{28+i}")
    a("s_nop 4")
    a(f"v_cvt_pk_bf16_f32 v32, v{DK}, v{DK+1}\nv_cvt_pk_bf16_f32 v33, v{DK+2}, v{DK+3}")
    a(f"v_cvt_pk_bf16_f32 v34, v{DK+4}, v{DK+5}\nv_cvt_pk_bf16_f32 v35, v{DK+6}, v{DK+7}")
    a(f"v_cvt_pk_bf16_f32 v36, v{DK+8}, v{DK+9}\nv_cvt_pk_bf16_f32 v37, v{DK+10}, v{DK+11}")
    a(f"ds_write_b64 v19, v[32:33] offset:{CV_KP}")
    a(f"ds_write_b16 v20, v34 offset:{CV_KP}\nds_write_b16_d16_hi v24, v34 offset:{CV_KP}")
    a(f"ds_write_b16 v25, v35 offset:{CV_KP}\nds_write_b16_d16_hi v26, v35 offset:{CV_KP}")
    a(f"ds_write_b16 v28, v36 offset:{CV_KP}\nds_write_b16_d16_hi v29, v36 offset:{CV_KP}")
    a(f"ds_write_b16 v30, v37 offset:{CV_KP}\nds_write_b16_d16_hi v31, v37 offset:{CV_KP}")
    a(f"v_lshrrev_b32 v16, 1, v1\nv_mul_u32_u24 v16, {CV_CS}, v16\nv_and_b32 v17, 1, v1\nv_lshl_add_u32 v16, v17, 4, v16\nv_add_u32 v16, s20, v16")
    a("v_cmp_gt_u32 vcc, 8, v1\ns_and_saveexec_b64 s[60:61], vcc")
    a(f"ds_write_b128 v16, v[12:15] offset:{CV_A + 4096}")
    a("s_mov_b64 exec, s[60:61]")
    a("v_lshlrev_b32 v16, 4, v1\nv_sub_u32 v16, 4094, v16\nv_cvt_f32_u32 v16, v16")
    a("v_cmp_eq_u32 s[64:65], 63, v1")
    a("s_mov_b32 s62, 0")
    a("v_mov_b32 v17, v9")
    a("s_waitcnt lgkmcnt(0)")
    a.label("L_expand")
    AD = 20
    for m in range(0, 12, 2):
        f0 = 64 + m
        a(f"v_add_f32 v{f0}, {hex(f32bits(-2.0*m))}, v16\nv_add_f32 v{f0+1}, {hex(f32bits(-2.0*(m+1)))}, v16")
        a(f"v_cvt_pk_bf16_f32 v{f0}, v{f0}, v{f0+1}")
        a(f"v_and_b32 v{f0+1}, 0xffff0000, v{f0}\nv_lshlrev_b32 v{f0}, 16, v{f0}")
        a(f"v_cvt_u32_f32 v{AD+m}, v{f0}\nv_cvt_u32_f32 v{AD+m+1}, v{f0+1}")
        a(f"v_add_u32 v{AD+m}, s20, v{AD+m}\nv_add_u32 v{AD+m+1}, s20, v{AD+m+1}")
    D = 32
    for m in range(6):
        a(f"ds_read_u16 v{D+m}, v{AD+2*m} offset:{CV_KP}")
        a(f"ds_read_u16 v{52+m}, v{AD+2*m+1} offset:{CV_KP}")
    a("s_cmp_eq_u32 s62, 3\ns_cselect_b64 s[66:67], s[64:65], 0")
    a(f"v_add_f32 v16, {hex(f32bits(-1024.0))}, v16")
    a("s_waitcnt lgkmcnt(0)")
    for m in range(6):
        a(f"v_lshl_or_b32 v{D+m}, v{52+m}, 16, v{D+m}")
    a(f"v_cndmask_b32 v{D+4}, v{D+4}, 0, s[66:67]\nv_cndmask_b32 v{D+5}, v{D+5}, 0, s[66:67]")
    C1, C2, C0 = 40, 44, 48
    for m in range(4):
        a(f"v_mov_b32 v{C1+m}, v{D+1+m}")
        a(f"v_alignbit_b32 v{C2+m}, v{D+m+1}, v{D+m}, 16")
        a(f"v_alignbit_b32 v{C0+m}, v{D+m+2}, v{D+m+1}, 16")
    a(f"ds_write_b128 v17, {q(C0)} offset:{CV_A}")
    a(f"ds_write_b128 v17, {q(C1)} offset:{CV_A + CV_CS}")
    a(f"ds_write_b128 v17, {q(C2)} offset:{CV_A + 2*CV_CS}")
    a(f"ds_write_b128 v17, {q(D)} offset:{CV_A + 3*CV_CS}")
    a("v_add_u32 v17, 1024, v17")
    a("s_add_u32 s62, s62, 1\ns_cmp_lt_u32 s62, 4\ns_cbranch_scc1 L_expand")
    if DEBUG_K:
        a.srd(68, 16, WS_DBG, 640*16640)
        a("s_waitcnt lgkmcnt(0)\ns_mul_i32 s72, s19, 16640")
        for i in range(16):
            a(f"ds_read_b128 v[20:23], v9 offset:{CV_A + 1024*i}\ns_waitcnt lgkmcnt(0)")
            a.vmem(f"buffer_store_dwordx4 v[20:23], v7, s[68:71], s72 offen")
            a("s_waitcnt vmcnt(0)\ns_add_u32 s72, s72, 1024")
    ACC = 16
    AS = [48, 112]
    FS = [80, 144]
    VA, VF = 10, 11
    a(f"v_and_b32 v5, 3, v4\nv_mul_u32_u24 v5, {CV_CS}, v5\nv_lshrrev_b32 v6, 2, v4\nv_lshlrev_b32 v6, 3, v6\nv_sub_u32 v5, v5, v6")
    a(f"v_lshlrev_b32 v6, 4, v3\nv_sub_u32 v5, v5, v6\nv_add_u32 v5, {CV_A + 4104 - 3584}, v5\nv_add_u32 v{VA}, s20, v5")
    a(f"v_lshlrev_b32 v5, 5, v4\nv_sub_u32 v5, v5, v6\nv_add_u32 v5, {CV_U + 496}, v5\nv_add_u32 v{VF}, s20, v5")
    DSV = 250
    a(f"v_mov_b32 v{DSV}, v{DS}")
    for i in range(32):
        a(f"v_mov_b32 v{ACC+i}, 0")

    def reads(s, extra):
        o = []
        for k in range(8):
            o.append(f"ds_read_b128 {q(FS[s]+4*k)}, v{VF} offset:{512*k + extra}")
            o.append(f"ds_read_b64 {q(AS[s]+4*k,2)}, v{VA} offset:{512*(7-k) + extra}")
            o.append(f"ds_read_b64 {q(AS[s]+4*k+2,2)}, v{VA} offset:{512*(7-k) + 8 + extra}")
        return o

    def mfmas(s):
        o = []
        for aa in range(8):
            for m in range(8 - aa):
                o.append(f"v_mfma_f32_16x16x32_bf16 {q(ACC+4*(aa+m))}, {q(AS[s]+4*aa)}, {q(FS[s]+4*m)}, {q(ACC+4*(aa+m))}")
        return o

    a.wait_vm("u")
    a("s_waitcnt lgkmcnt(0)")
    a(f"v_subrev_u32 v{VA}, 128, v{VA}\nv_subrev_u32 v{VF}, 128, v{VF}")
    for r in reads(0, 128):
        a(r)
    a("s_mov_b32 s62, 0")
    a.label("L_conv")
    for s in range(2):
        a("s_waitcnt lgkmcnt(0)")
        rd = reads(1 - s, 64 if s == 0 else 0)
        mf = mfmas(s)
        for i, m in enumerate(mf):
            a(m)
            if i < len(rd):
                a(rd[i])
    a(f"v_subrev_u32 v{VA}, 128, v{VA}\nv_subrev_u32 v{VF}, 128, v{VF}")
    a("s_add_u32 s62, s62, 1\ns_cmp_lt_u32 s62, 4\ns_cbranch_scc1 L_conv")
    UR = 48
    a(f"v_add_u32 v5, s20, v8")
    a("s_waitcnt lgkmcnt(0)")
    for nb in range(8):
        a(f"ds_read_b64 {q(UR+2*nb,2)}, v5 offset:{CV_U + 480 + 512*nb}")
    a("v_lshrrev_b32 v6, 3, v4\ns_mov_b32 s63, 163840\nv_mul_lo_u32 v6, v6, s63")
    a("v_and_b32 v7, 7, v4\nv_lshl_add_u32 v6, v7, 5, v6\nv_lshl_add_u32 v6, v3, 3, v6")
    a("s_lshl_b32 s23, s19, 8")
    a.wait_vm("xt")
    a("s_waitcnt lgkmcnt(0)")
    T = 64
    for nb in range(8):
        y = ACC + 4 * nb
        o = 80 + 2 * nb
        for hh in range(2):
            t, t2 = T + 4 * hh, T + 4 * hh + 2
            a(f"v_cvt_pk_bf16_f32 v{o+hh}, v{y+2*hh}, v{y+2*hh+1}")
            a.unpack(t2, UR + 2 * nb + hh)
            a.unpack(t, o + hh)
            a(f"v_pk_mul_f32 {q(t2,2)}, {q(t2,2)}, {q(DSV,2)} op_sel_hi:[1,0]")
            a(f"v_cvt_pk_bf16_f32 v{o+hh}, v{t2}, v{t2+1}")
            a.unpack(t2, o + hh)
            a(f"v_pk_add_f32 {q(t,2)}, {q(t,2)}, {q(t2,2)}")
            a(f"v_cvt_pk_bf16_f32 v{o+hh}, v{t}, v{t+1}")
            a.unpack(t2, XR + 2 * nb + hh)
            a.unpack(t, o + hh)
            a(f"v_pk_add_f32 {q(t,2)}, {q(t,2)}, {q(t2,2)}")
            a(f"v_cvt_pk_bf16_f32 v{o+hh}, v{t}, v{t+1}")
        a.vmem(f"buffer_store_dwordx2 {q(o,2)}, v6, s[56:59], s23 offen")
        a(f"s_add_u32 s23, s23, {2*163840}")
    a.label(done)
    a("s_endpgm")


def f32bits(x):
    import struct
    return struct.unpack("<I", struct.pack("<f", x))[0]


G1_NS = 7
G1_ST = 20480
G1_MISC = 0
G1_SB = 5120
G1_LDS = G1_SB + G1_NS * G1_ST


def k3(a):
    a.kstart("gemm1_kernel")
    done = "L_g1_done"
    a(f"s_cmp_ge_u32 s2, 256\ns_cbranch_scc1 {done}")
    a(f"s_load_dwordx2 s[4:5], s[0:1], {KA_WS}")
    a("v_and_b32 v1, 63, v0\nv_lshrrev_b32 v2, 6, v0\nv_lshrrev_b32 v3, 4, v1\nv_and_b32 v4, 15, v1")
    a("v_readfirstlane_b32 s6, v2")
    a("s_and_b32 s7, s2, 7\ns_lshr_b32 s24, s2, 3")
    a("s_and_b32 s25, s7, 1\ns_lshl_b32 s25, s25, 3\ns_and_b32 s26, s24, 7\ns_add_u32 s25, s25, s26")
    a("s_lshr_b32 s26, s24, 3")
    a("s_lshr_b32 s27, s7, 1\ns_lshl_b32 s27, s27, 2\ns_add_u32 s27, s27, s26")
    a("s_and_b32 s28, s6, 1\ns_lshr_b32 s29, s6, 1")
    a("s_mul_i32 s30, s25, 163840")
    a(f"s_mul_i32 s31, s26, {20*12288}")
    a("s_lshl_b32 s32, s6, 11")
    a("s_mul_i32 s33, s6, 3072\ns_add_u32 s33, s33, 8192")
    a("v_lshrrev_b32 v5, 1, v4\nv_xor_b32 v6, v5, v3\nv_lshlrev_b32 v6, 5, v6")
    a("v_and_b32 v7, 1, v4\nv_lshlrev_b32 v7, 4, v7\nv_lshl_add_u32 v7, v3, 8, v7\nv_add_u32 v7, s32, v7")
    a("v_add_u32 v8, v7, v6")
    a("v_xor_b32 v6, 128, v6\nv_add_u32 v9, v7, v6")
    a("v_lshlrev_b32 v10, 4, v1\ns_mul_i32 s34, s6, 3072\nv_add_u32 v10, s34, v10")
    a("s_waitcnt lgkmcnt(0)")
    a.srd(8, 4, WS_HT, SZ_T)
    a(f"s_lshl_b32 s34, s7, 20\ns_add_u32 s34, s34, {hex(WS_W13)}")
    a.srd(12, 4, "s34", SZ_WCOPY)
    a(f"s_lshl_b32 s34, s7, 15\ns_add_u32 s34, s34, {hex(WS_CSP)}")
    a.srd(16, 4, "s34", CSP_STRIDE)
    a.srd(20, 4, WS_HM, SZ_HM)

    def dma(slot_sgpr_or_const):
        o = []
        if isinstance(slot_sgpr_or_const, int):
            o.append(f"s_add_u32 m0, s32, {slot_sgpr_or_const}")
        else:
            o.append(f"s_add_u32 m0, s32, {slot_sgpr_or_const}")
        o.append("buffer_load_dwordx4 v8, s[8:11], s30 offen lds")
        o.append("buffer_load_dwordx4 v9, s[8:11], s30 offen offset:1024 lds")
        o.append(f"s_add_u32 m0, s33, {slot_sgpr_or_const}")
        o.append("buffer_load_dwordx4 v10, s[12:15], s31 offen lds")
        o.append("buffer_load_dwordx4 v10, s[12:15], s31 offen offset:1024 lds")
        o.append("buffer_load_dwordx4 v10, s[12:15], s31 offen offset:2048 lds")
        o.append("s_add_u32 s30, s30, 8192\ns_add_u32 s31, s31, 12288")
        return o

    CS = 208
    a("v_lshlrev_b32 v11, 2, v0\ns_mul_i32 s34, s26, 7680\ns_add_u32 s35, s34, 3840")
    for kp in range(10):
        a(f"buffer_load_dword v{CS+kp}, v11, s[16:19], {'s34' if kp < 5 else 's35'} offen offset:{768*(kp % 5)}")
    for st in range(G1_NS):
        d = dma(G1_SB + st * G1_ST)
        a(d[0]); a("s_nop 0"); a(d[1]); a(d[2]); a(d[3]); a("s_nop 0")
        for x in d[4:]:
            a(x)
    a("v_bfe_u32 v5, v1, 2, 2")
    a("v_lshl_add_u32 v6, v3, 2, v5\nv_lshlrev_b32 v6, 8, v6")
    a("v_and_b32 v7, 3, v1\nv_lshl_add_u32 v6, v7, 3, v6")
    a("v_and_b32 v7, 1, v3\nv_xor_b32 v7, s28, v7\nv_lshl_add_u32 v6, v7, 7, v6")
    a("s_lshl_b32 s34, s29, 1\nv_xor_b32 v5, s34, v5")
    for nt in range(4):
        a(f"v_xor_b32 v7, {nt}, v5\nv_lshl_add_u32 v{12+nt}, v7, 5, v6")
    a("v_lshlrev_b32 v16, 4, v1\ns_mul_i32 s34, s29, 6144\ns_add_u32 s34, s34, 8192\nv_add_u32 v16, s34, v16")
    ACC = 24
    HS = [120, 160]
    ST = 200
    AD = 17
    for i in range(96):
        a(f"v_mov_b32 v{ACC+i}, 0")
    for i in range(4):
        a(f"v_mov_b32 v{ST+i}, 0")
    a(f"s_mov_b32 s36, {hex(ONES_BF)}")

    def reads(s):
        o = []
        for nt in range(4):
            r = HS[s] + 4 * nt
            o.append(f"ds_read_b64_tr_b16 {q(r,2)}, v{AD+nt}")
            o.append(f"ds_read_b64_tr_b16 {q(r+2,2)}, v{AD+nt} offset:4096")
        for t in range(6):
            o.append(f"ds_read_b128 {q(HS[s]+16+4*t)}, v{AD+4} offset:{1024*t}")
        return o

    def setad(slot):
        return [f"v_add_u32 v{AD+i}, {slot}, v{12+i}" for i in range(5)]

    a("s_waitcnt vmcnt(30)\ns_barrier")
    for x in setad(G1_SB):
        a(x)
    for x in reads(0):
        a(x)
    a(f"s_mov_b32 s38, {G1_SB}")
    a(f"s_mov_b32 s39, {G1_SB + G1_ST}")
    a("s_mov_b32 s40, 0")
    a.label("L_g1")
    for s in range(2):
        a("s_cmp_lt_u32 s40, 13")
        a(f"s_cselect_b32 s10, {SZ_T}, 0\ns_cselect_b32 s14, {SZ_WCOPY}, 0")
        a("s_waitcnt vmcnt(25) lgkmcnt(0)\ns_barrier")
        fill = []
        fill += setad("s39")
        d = dma("s38")
        rd = reads(1 - s)
        seq = fill + [d[0], rd[0], d[1], rd[1], d[2], rd[2], d[3], rd[3], d[4], rd[4], d[5], rd[5], d[6]] + rd[6:] + [d[7]]
        dots = []
        for nt in range(2):
            for i in range(4):
                r = HS[s] + 4 * nt + i
                dots.append(f"v_dot2c_f32_bf16 v{ST+2*nt}, s36, v{r}")
                dots.append(f"v_dot2c_f32_bf16 v{ST+2*nt+1}, v{r}, v{r}")
        mf = []
        for t in range(6):
            for nt in range(4):
                ac = ACC + 4 * (t * 4 + nt)
                mf.append(f"v_mfma_f32_16x16x32_bf16 {q(ac)}, {q(HS[s]+16+4*t)}, {q(HS[s]+4*nt)}, {q(ac)}")
        for x in seq[:5]:
            a(x)
        rest = seq[5:]
        for i, m in enumerate(mf):
            a(m)
            if i < len(rest):
                a(rest[i])
            if i >= 8 and i - 8 < len(dots):
                a(dots[i - 8])
        a("s_mov_b32 s38, s39")
        a(f"s_add_u32 s39, s39, {G1_ST}\ns_cmp_eq_u32 s39, {G1_LDS}\ns_cselect_b32 s39, {G1_SB}, s39")
        a("s_add_u32 s40, s40, 1")
    a("s_cmp_lt_u32 s40, 20\ns_cbranch_scc1 L_g1")
    a("s_waitcnt vmcnt(0) lgkmcnt(0)")
    for kp in range(1, 10):
        a(f"v_add_f32 v{CS}, v{CS}, v{CS+kp}")
    a(f"v_lshlrev_b32 v5, 2, v0\nv_add_u32 v5, {G1_MISC + 4096}, v5")
    a(f"ds_write_b32 v5, v{CS}")
    a("s_lshl_b32 s34, s29, 10\ns_lshl_b32 s35, s28, 11\ns_add_u32 s34, s34, s35\ns_xor_b32 s35, s34, 1024")
    a(f"v_lshlrev_b32 v5, 4, v4\nv_add_u32 v7, s35, v5\nv_add_u32 v5, s34, v5\nv_lshl_add_u32 v6, v3, 2, v5")
    for i in range(4):
        a(f"ds_write_b32 v6, v{ST+i} offset:{G1_MISC + 256*i}")
    a("s_waitcnt lgkmcnt(0)\ns_barrier")
    R = 120
    for nt in range(4):
        ad = "v5" if nt < 2 else "v7"
        a(f"ds_read_b128 {q(R+8*nt)}, {ad} offset:{G1_MISC + 512*(nt&1)}")
        a(f"ds_read_b128 {q(R+8*nt+4)}, {ad} offset:{G1_MISC + 512*(nt&1) + 256}")
    CSR = 160
    a(f"s_mul_i32 s34, s29, 384\nv_lshlrev_b32 v6, 4, v3\nv_add_u32 v6, s34, v6")
    for t in range(6):
        a(f"ds_read_b128 {q(CSR+4*t)}, v6 offset:{G1_MISC + 4096 + 64*t}")
    a("s_waitcnt lgkmcnt(0)")
    RI, MR = 184, 192
    for nt in range(4):
        b = R + 8 * nt
        a(f"v_add_f32 v{b}, v{b}, v{b+1}\nv_add_f32 v{b+2}, v{b+2}, v{b+3}\nv_add_f32 v{b}, v{b}, v{b+2}")
        a(f"v_add_f32 v{b+4}, v{b+4}, v{b+5}\nv_add_f32 v{b+6}, v{b+6}, v{b+7}\nv_add_f32 v{b+4}, v{b+4}, v{b+6}")
        ln_finish(a, b, b + 4, b + 1, MR + 2 * nt, RI + 2 * nt)
        a(f"v_mul_f32 v{MR+2*nt}, v{MR+2*nt}, v{RI+2*nt}")
    a("s_lshl_b32 s34, s25, 1\ns_add_u32 s34, s34, s28\ns_mul_i32 s34, s34, 192")
    a("s_mul_i32 s35, s27, 3\ns_add_u32 s34, s34, s35")
    a("s_lshl_b32 s35, s29, 1\ns_add_u32 s35, s35, s34\ns_lshl_b32 s35, s35, 10")
    a("s_add_u32 s34, s34, 1\ns_lshl_b32 s34, s34, 10\ns_lshl_b32 s41, s29, 3\ns_add_u32 s34, s34, s41")
    a("v_lshlrev_b32 v5, 4, v1")
    a(f"s_mov_b32 s42, {hex(NLOG2E)}")
    a(f"s_mul_i32 s41, s29, {2*48*1024}\ns_add_u32 s34, s34, s41\ns_add_u32 s35, s35, s41")
    a(f"s_mul_i32 s41, s29, {4*48*1024}\ns_sub_u32 s41, {48*1024}, s41")
    T = 120
    for nt in range(4):
        O = 144 + 8 * (nt & 1)
        for jj in range(3):
            g = ACC + 4 * (jj * 4 + nt)
            u = ACC + 4 * ((3 + jj) * 4 + nt)
            for hh in range(2):
                g2, u2 = g + 2 * hh, u + 2 * hh
                t = T + 4 * hh
                a(f"v_pk_mul_f32 {q(g2,2)}, {q(g2,2)}, {q(RI+2*nt,2)} op_sel_hi:[1,0]")
                a(f"v_pk_mul_f32 {q(u2,2)}, {q(u2,2)}, {q(RI+2*nt,2)} op_sel_hi:[1,0]")
                a(f"v_pk_fma_f32 {q(g2,2)}, {q(CSR+4*jj+2*hh,2)}, {q(MR+2*nt,2)}, {q(g2,2)} op_sel_hi:[1,0,1]")
                a(f"v_pk_fma_f32 {q(u2,2)}, {q(CSR+4*(3+jj)+2*hh,2)}, {q(MR+2*nt,2)}, {q(u2,2)} op_sel_hi:[1,0,1]")
                a(f"v_mul_f32 v{t}, s42, v{g2}\nv_mul_f32 v{t+1}, s42, v{g2+1}")
                a(f"v_exp_f32 v{t}, v{t}\nv_exp_f32 v{t+1}, v{t+1}")
                a(f"v_pk_mul_f32 {q(g2,2)}, {q(g2,2)}, {q(u2,2)}")
                a(f"v_add_f32 v{t}, 1.0, v{t}\nv_add_f32 v{t+1}, 1.0, v{t+1}")
                a(f"v_rcp_f32 v{t}, v{t}\nv_rcp_f32 v{t+1}, v{t+1}\ns_nop 0")
                a(f"v_pk_mul_f32 {q(g2,2)}, {q(g2,2)}, {q(t,2)}")
                a(f"v_cvt_pk_bf16_f32 v{O+2*jj+hh}, v{g2}, v{g2+1}")
        a(f"buffer_store_dwordx4 {q(O)}, v5, s[20:23], s35 offen")
        a(f"buffer_store_dwordx2 {q(O+4,2)}, v5, s[20:23], s34 offen")
        stp = "s41" if nt == 1 else str(48 * 1024)
        a(f"s_add_u32 s34, s34, {stp}\ns_add_u32 s35, s35, {stp}")
    a.label(done)
    a("s_endpgm")


G2_NS = 7
G2_ST = 20480
G2_LDS = G2_NS * G2_ST


def k4(a):
    a.kstart("gemm2_kernel")
    done = "L_g2_done"
    a(f"s_cmp_ge_u32 s2, 256\ns_cbranch_scc1 {done}")
    a(f"s_load_dwordx2 s[4:5], s[0:1], {KA_WS}\ns_load_dwordx2 s[6:7], s[0:1], {KA_OUT}")
    a("v_and_b32 v1, 63, v0\nv_lshrrev_b32 v2, 6, v0\nv_lshrrev_b32 v3, 4, v1\nv_and_b32 v4, 15, v1")
    a("v_readfirstlane_b32 s24, v2")
    a("s_and_b32 s25, s2, 7\ns_lshr_b32 s26, s2, 3")
    a("s_lshr_b32 s27, s25, 1\ns_lshl_b32 s27, s27, 3\ns_and_b32 s28, s26, 7\ns_add_u32 s27, s27, s28")
    a("s_lshr_b32 s28, s26, 3")
    a("s_and_b32 s29, s25, 1\ns_lshl_b32 s29, s29, 2\ns_add_u32 s29, s29, s28")
    a(f"s_mul_i32 s30, s28, {48*5120}")
    a(f"s_lshl_b32 s31, s27, 2\ns_add_u32 s31, s31, s24\ns_mul_i32 s31, s31, {48*1024}")
    a("s_mul_i32 s32, s24, 5120")
    a("v_lshlrev_b32 v5, 4, v1\nv_add_u32 v6, s32, v5\nv_add_u32 v7, 4096, v6")
    a("s_waitcnt lgkmcnt(0)")
    a(f"s_lshl_b32 s34, s25, 20\ns_add_u32 s34, s34, {hex(WS_W2)}")
    a.srd(8, 4, "s34", SZ_WCOPY)
    a.srd(12, 4, WS_HM, SZ_HM)
    a.srd(16, 4, WS_HT, SZ_T)
    a.srd(20, 6, 0, SZ_T)
    HB = 64
    ACC = 16
    WS_ = [36, 192]
    RES = 212

    def group(st):
        slot = (st % G2_NS) * G2_ST
        a(f"s_add_u32 m0, s32, {slot}\ns_nop 0")
        for i in range(4):
            a.vmem(f"buffer_load_dwordx4 v6, s[8:11], s30 offen offset:{1024*i} lds", ("w", st))
        a(f"s_add_u32 m0, s32, {slot + 4096}\ns_nop 0")
        a.vmem("buffer_load_dwordx4 v7, s[8:11], s30 offen lds", ("w", st))
        for i in range(4):
            kb = 4 * st + i
            a.vmem(f"buffer_load_dwordx4 {q(HB + 4*(kb % 32))}, v5, s[12:15], s31 offen offset:{1024*i}", ("h", kb))
        a(f"s_add_u32 s30, s30, {G2_ST}\ns_add_u32 s31, s31, 4096")

    for st in range(G2_NS):
        group(st)
    for i in range(20):
        a(f"v_mov_b32 v{ACC+i}, 0")
    a("v_add_u32 v8, 61440, v5\nv_add_u32 v9, 122880, v5")

    def wread(ks, s):
        st, kk = divmod(ks, 4)
        slot = st % G2_NS
        reg = ["v5", "v8", "v9"][slot // 3]
        base = (slot % 3) * G2_ST + kk * 5120
        return [f"ds_read_b128 {q(WS_[s]+4*t)}, {reg} offset:{base + 1024*t}" for t in range(5)]

    a("s_lshr_b32 s34, s27, 1\ns_mul_i32 s34, s34, 163840\ns_mul_i32 s35, s29, 20480\ns_add_u32 s34, s34, s35")
    a("s_and_b32 s35, s27, 1\ns_lshl_b32 s35, s35, 7\ns_add_u32 s34, s34, s35\ns_lshl_b32 s35, s24, 5\ns_add_u32 s34, s34, s35")
    a("v_lshlrev_b32 v10, 1, v4\nv_lshl_add_u32 v11, v3, 10, v10\nv_lshl_add_u32 v10, v3, 11, v10")
    a("s_add_u32 s36, s34, 8192\ns_add_u32 s37, s34, 16384")

    def resloads():
        for p in range(2):
            for e in range(8):
                a.vmem(f"buffer_load_ushort v{RES+8*p+e}, v10, s[16:19], {'s36' if p else 's34'} offen offset:{256*e}", "res")
        for e in range(4):
            a.vmem(f"buffer_load_ushort v{RES+16+e}, v11, s[16:19], s37 offen offset:{256*e}", "res")

    a.wait_vm(("w", 0))
    a("s_barrier")
    for x in wread(0, 0):
        a(x)
    for ks in range(48):
        s = ks & 1
        st, kk = divmod(ks, 4)
        a.wait_vm(("h", ks))
        if kk == 3 and st + 1 < 12:
            a.wait_vm(("w", st + 1))
            a("s_waitcnt lgkmcnt(0)\ns_barrier")
            if st + G2_NS < 12:
                group(st + G2_NS)
            elif st == 7:
                resloads()
        else:
            a("s_waitcnt lgkmcnt(0)")
        rd = wread(ks + 1, 1 - s) if ks + 1 < 48 else []
        for t in range(5):
            if t < len(rd):
                a(rd[t])
            a(f"v_mfma_f32_16x16x32_bf16 {q(ACC+4*t)}, {q(WS_[s]+4*t)}, {q(HB+4*(ks % 32))}, {q(ACC+4*t)}")
    a("s_lshl_b32 s34, s27, 6\ns_lshl_b32 s35, s24, 4\ns_add_u32 s34, s34, s35\ns_mul_i32 s34, s34, 1280\ns_mul_i32 s35, s29, 160\ns_add_u32 s34, s34, s35")
    a("v_mul_u32_u24 v10, 1280, v4\nv_lshl_add_u32 v11, v3, 3, v10\nv_lshl_add_u32 v10, v3, 4, v10")
    a.wait_vm("res")
    a("s_nop 7")
    O = 64
    for i in range(10):
        y = ACC + 2 * i
        t = 80 + 4 * (i & 1)
        a(f"v_cvt_pk_bf16_f32 v{O+i}, v{y}, v{y+1}")
        a(f"v_lshlrev_b32 v{t+2}, 16, v{RES+2*i}\nv_lshlrev_b32 v{t+3}, 16, v{RES+2*i+1}")
        a.unpack(t, O + i)
        a(f"v_pk_add_f32 {q(t,2)}, {q(t,2)}, {q(t+2,2)}")
        a(f"v_cvt_pk_bf16_f32 v{O+i}, v{t}, v{t+1}")
    a(f"buffer_store_dwordx4 {q(O)}, v10, s[20:23], s34 offen")
    a(f"buffer_store_dwordx4 {q(O+4)}, v10, s[20:23], s34 offen offset:64")
    a(f"buffer_store_dwordx2 {q(O+8,2)}, v11, s[20:23], s34 offen offset:128")
    a.label(done)
    a("s_endpgm")


def main():
    a = Asm()
    hdr = open(f"cdna_kernels/{NAME}.s.ref").read().split("\n")
    for line in hdr:
        if line.startswith("; Override") or line.startswith("; grid=") or "@launch" in line:
            continue
        if not line.startswith(";"):
            break
        a.raw(line)
    a.raw(f"; @launch kernel=prep_kernel grid=(256,1,1) block=(256,1,1) lds=98304")
    a.raw(f"; @launch kernel=conv_kernel grid=(160,1,1) block=(256,1,1) lds={4*CV_WAVE}")
    a.raw(f"; @launch kernel=gemm1_kernel grid=(256,1,1) block=(256,1,1) lds={G1_LDS}")
    a.raw(f"; @launch kernel=gemm2_kernel grid=(256,1,1) block=(256,1,1) lds={G2_LDS}")
    a.raw('.amdgcn_target "amdgcn-amd-amdhsa--gfx950"\n.text')
    k1(a); k2(a); k3(a); k4(a)
    a.raw('.section .rodata,"a"')
    for n, v in [("prep_kernel", 184), ("conv_kernel", 252), ("gemm1_kernel", 220), ("gemm2_kernel", 232)]:
        a.raw(".p2align 6")
        desc(a, n, v)
    out = sys.argv[1] if len(sys.argv) > 1 else f"cdna_kernels/{NAME}.s"
    open(out, "w").write("\n".join(a.l) + "\n")


if __name__ == "__main__":
    main()
```

```python
import sys, os, struct

NAME = "sequential_preLN__ssm_conv_s4d__glu_gated_swiglu__prompt"
KNAME = NAME + "_kernel"
KA_WS = 104

WS_FLG = 0
FS_ = 128
F_L, F_R, F_C, F_G = 0x1000, 0x4000, 0x8000, 0x10000
SZ_FLG = 0x20000
WS_UT = 0x100000
WS_XT = 0x400000
WS_HT = 0x700000
WS_HM = 0xA00000
WS_W13 = 0x1000000
WS_W2 = 0x1400000
WS_CSP = 0x1600000
WS_STAMP = 0x4000000
SZ_T = 640 * 4096
SZ_HM = 32 * 48 * 4096
SZ_W13 = 16 * 20 * 12288
SZ_W2 = 8 * 48 * 5120
SZ_CSP = 320 * 768 + 1024

STAMPS = int(os.environ.get('STAMPS', '0'))
EXP = int(os.environ.get('EXP', '0'))
LOG2E, NLOG2E, INV2PI, INV640, EPS, ONES_BF = 0x3FB8AA3B, 0xBFB8AA3B, 0x3E22F983, 0x3ACCCCCD, 0x3727C5AC, 0x3F803F80
POLL_MAX = 400000
SLEEP = int(os.environ.get('SLEEP', '1'))
SC = "sc1"


def f32bits(x):
    return struct.unpack("<I", struct.pack("<f", x))[0]


def q(r, n=4):
    return f"v[{r}:{r+n-1}]"


class Asm:
    def __init__(self):
        self.l = []
        self.vm = []
        self.uid = 0

    def __call__(self, s):
        for x in s.split("\n"):
            x = x.strip()
            if x:
                self.l.append("    " + x)

    def label(self, s):
        self.l.append(s + ":")

    def raw(self, s):
        self.l.append(s)

    def newlabel(self, p="L"):
        self.uid += 1
        return f"{p}_{self.uid}"

    def vmem(self, s, tag=None):
        self(s)
        self.vm.append(tag)

    def wait_vm(self, tag):
        idx = max(i for i, t in enumerate(self.vm) if t == tag)
        n = len(self.vm) - 1 - idx
        assert n <= 63, n
        self(f"s_waitcnt vmcnt({n})")

    def srd(self, sd, lo, off, size):
        if off == 0:
            self(f"s_mov_b32 s{sd}, s{lo}\ns_mov_b32 s{sd+1}, s{lo+1}")
        else:
            self(f"s_add_u32 s{sd}, s{lo}, {hex(off)}\ns_addc_u32 s{sd+1}, s{lo+1}, 0")
        self(f"s_mov_b32 s{sd+2}, {size}\ns_mov_b32 s{sd+3}, 0x20000")

    def stamp(self, i):
        if STAMPS:
            self(f"s_memrealtime s[80:81]\ns_waitcnt lgkmcnt(0)\ns_mov_b32 s{64+i}, s80")

    def unpack(self, dlo, src):
        if dlo == src:
            self(f"v_and_b32 v{dlo+1}, 0xffff0000, v{src}\nv_lshlrev_b32 v{dlo}, 16, v{src}")
        else:
            self(f"v_lshlrev_b32 v{dlo}, 16, v{src}\nv_and_b32 v{dlo+1}, 0xffff0000, v{src}")

    def rnd(self, d, s):
        self(f"v_cvt_pk_bf16_f32 v{d}, v{s}, v{s}\nv_lshlrev_b32 v{d}, 16, v{d}")

    def poll(self, off, n, vt, soff=None):
        L, D = self.newlabel("L_poll"), self.newlabel("L_polld")
        nl = (n + 63) // 64
        for i in range(nl):
            self(f"v_add_u32 v{vt+i}, {64*i}, v1\nv_min_u32 v{vt+i}, {n-1}, v{vt+i}\nv_mul_u32_u24 v{vt+i}, {FS_}, v{vt+i}")
        if soff is None:
            self(f"s_mov_b32 s86, {off}")
        else:
            self(f"s_add_u32 s86, {soff}, {off}")
        self("s_mov_b32 s84, 0")
        self.label(L)
        for i in range(nl):
            self(f"buffer_load_dword v{vt+3+i}, v{vt+i}, s[92:95], s86 offen {SC}")
        self("s_add_u32 s84, s84, 1\ns_waitcnt vmcnt(0)")
        for i in range(nl):
            self(f"v_xor_b32 v{vt+3+i}, s3, v{vt+3+i}")
        for i in range(1, nl):
            self(f"v_or_b32 v{vt+3}, v{vt+3}, v{vt+3+i}")
        self(f"v_cmp_ne_u32 vcc, 0, v{vt+3}\ns_cbranch_vccz {D}")
        self(f"s_sleep {SLEEP}\ns_cmp_lt_u32 s84, {POLL_MAX}\ns_cbranch_scc1 {L}")
        self.label(D)
        self.vm = []

    def publish(self, off, sidx, vt):
        self(f"s_mul_i32 s85, s{sidx}, {FS_}\ns_add_u32 s85, s85, {off}\nv_mov_b32 v{vt}, s3\nv_mov_b32 v{vt+1}, s85\ns_mov_b64 exec, 1")
        self.vmem(f"buffer_store_dword v{vt}, v{vt+1}, s[92:95], 0 offen {SC}")
        self("s_mov_b64 exec, -1")


def ln_finish(a, vs, vq, vt, vnegm, vrinv):
    a(f"v_mul_f32 v{vs}, {hex(INV640)}, v{vs}")
    a(f"v_mul_f32 v{vq}, {hex(INV640)}, v{vq}")
    a(f"v_fma_f32 v{vq}, -v{vs}, v{vs}, v{vq}")
    a(f"v_max_f32 v{vq}, 0, v{vq}")
    a.rnd(vnegm, vs)
    a(f"v_xor_b32 v{vnegm}, 0x80000000, v{vnegm}")
    a.rnd(vt, vq)
    a(f"v_add_f32 v{vt}, {hex(EPS)}, v{vt}")
    a.rnd(vt, vt)
    a(f"v_sqrt_f32 v{vt}, v{vt}\ns_nop 0")
    a.rnd(vt, vt)
    a(f"v_rcp_f32 v{vrinv}, v{vt}\ns_nop 0")


def cmul(a, d, x, y, t):
    a(f"v_pk_mul_f32 {q(t,2)}, {q(x,2)}, {q(y,2)} op_sel_hi:[1,0]")
    a(f"v_pk_fma_f32 {q(d,2)}, {q(x,2)}, {q(y,2)}, {q(t,2)} op_sel:[1,1,0] op_sel_hi:[0,1,1] neg_lo:[1,0,0]")


def epoch_ready(a):
    a("s_waitcnt lgkmcnt(0)\ns_add_u32 s3, s3, 1")


LN_RS = 1312
LN_U = 32 * LN_RS


def role_ln1(a):
    a("v_lshl_add_u32 v5, v2, 2, v3")
    a(f"s_mul_i32 s53, s52, {32*1280}")
    a("v_mul_u32_u24 v6, 1280, v5\nv_lshl_add_u32 v6, v4, 4, v6\nv_add_u32 v6, s53, v6")
    a.srd(32, 8, 0, SZ_T)
    X = 16
    for j in range(5):
        a.vmem(f"buffer_load_dwordx4 {q(X+4*j)}, v6, s[32:35], 0 offen offset:{j*256}", "x")
    a(f"v_mul_u32_u24 v7, {LN_RS}, v5\nv_lshl_add_u32 v7, v4, 4, v7")
    a(f"s_mov_b32 s54, {hex(ONES_BF)}")
    a.srd(36, 4, WS_UT, SZ_T)
    a.srd(40, 4, WS_XT, SZ_T)
    a("v_bfe_u32 v8, v1, 2, 2\nv_lshl_add_u32 v8, v3, 3, v8")
    a(f"v_mul_u32_u24 v8, {LN_RS}, v8\nv_and_b32 v9, 3, v1\nv_lshl_add_u32 v8, v9, 3, v8")
    a("v_mul_u32_u24 v9, 160, v2\nv_add_u32 v8, v8, v9")
    a("v_mul_u32_u24 v9, 80, v2\nv_add_u32 v9, v9, v4\nv_lshlrev_b32 v9, 12, v9\nv_lshl_add_u32 v9, v3, 4, v9")
    a("s_lshl_b32 s53, s52, 6\nv_add_u32 v9, s53, v9")
    U, R, T = 36, 56, 76
    S0, S1, Q0, Q1, NM, RI, TT = 80, 81, 82, 83, 84, 86, 88
    a(f"v_mov_b32 v{S0}, 0\nv_mov_b32 v{S1}, 0\nv_mov_b32 v{Q0}, 0\nv_mov_b32 v{Q1}, 0")
    epoch_ready(a)
    a.wait_vm("x")
    a.stamp(1)
    for j in range(5):
        a(f"ds_write_b128 v7, {q(X+4*j)} offset:{j*256}")
    for i in range(20):
        a(f"v_dot2c_f32_bf16 v{S0 + (i&1)}, s54, v{X+i}")
        a(f"v_dot2c_f32_bf16 v{Q0 + (i&1)}, v{X+i}, v{X+i}")
    a("s_waitcnt lgkmcnt(0)\ns_barrier")
    for i in range(5):
        a(f"ds_read_b64_tr_b16 {q(R+4*i,2)}, v8 offset:{32*i}")
        a(f"ds_read_b64_tr_b16 {q(R+4*i+2,2)}, v8 offset:{32*i + 4*LN_RS}")
    a(f"v_add_f32 v{S0}, v{S0}, v{S1}\nv_add_f32 v{Q0}, v{Q0}, v{Q1}")
    for sh in (8, 4, 2, 1):
        a("s_nop 1")
        a(f"v_add_f32_dpp v{S0}, v{S0}, v{S0} row_ror:{sh} row_mask:0xf bank_mask:0xf")
        a(f"v_add_f32_dpp v{Q0}, v{Q0}, v{Q0} row_ror:{sh} row_mask:0xf bank_mask:0xf")
    ln_finish(a, S0, Q0, TT, NM, RI)
    a("s_waitcnt lgkmcnt(0)")
    for i in range(20):
        t = T + 2 * (i & 1)
        a.unpack(t, X + i)
        a(f"v_pk_add_f32 {q(t,2)}, {q(t,2)}, {q(NM,2)} op_sel_hi:[1,0]")
        a(f"v_cvt_pk_bf16_f32 v{t}, v{t}, v{t+1}")
        a.unpack(t, t)
        a(f"v_pk_mul_f32 {q(t,2)}, {q(t,2)}, {q(RI,2)} op_sel_hi:[1,0]")
        a(f"v_cvt_pk_bf16_f32 v{U+i}, v{t}, v{t+1}")
        if (i & 3) == 3:
            a(f"ds_write_b128 v7, {q(U+i-3)} offset:{LN_U + (i//4)*256}")
        if (i & 3) == 1:
            a(f"s_mov_b32 s53, {(i//4)*65536}")
            a.vmem(f"buffer_store_dwordx4 {q(R+4*(i//4))}, v9, s[40:43], s53 offen {SC}")
    a("s_waitcnt lgkmcnt(0)\ns_barrier")
    a.stamp(2)
    for i in range(5):
        a(f"ds_read_b64_tr_b16 {q(X+4*i,2)}, v8 offset:{LN_U + 32*i}")
        a(f"ds_read_b64_tr_b16 {q(X+4*i+2,2)}, v8 offset:{LN_U + 32*i + 4*LN_RS}")
    for i in range(5):
        a(f"s_mov_b32 s53, {i*65536}\ns_waitcnt lgkmcnt({8-2*i})")
        a.vmem(f"buffer_store_dwordx4 {q(X+4*i)}, v9, s[36:39], s53 offen {SC}")
    a("s_waitcnt vmcnt(0)\ns_barrier")
    a.stamp(3)
    sk = a.newlabel("L_lnp")
    a(f"s_cmp_lg_u32 s6, 7\ns_cbranch_scc1 {sk}")
    a.publish(F_L, 52, 10)
    a.label(sk)


W13_J = [[0, 1, 2], [4, 5, 3]]


def role_repack(a, done):
    a.vm = []
    a("s_mul_i32 s54, s6, 12288")
    a("v_lshlrev_b32 v5, 4, v1")
    a("v_bfe_u32 v6, v1, 2, 2\nv_lshl_add_u32 v6, v3, 2, v6\nv_and_b32 v7, 3, v1")
    lw2 = a.newlabel("L_w2")
    a(f"s_cmp_ge_u32 s53, 320\ns_cbranch_scc1 {lw2}")
    a("s_mul_i32 s55, s53, 205\ns_lshr_b32 s55, s55, 12")
    a("s_mul_i32 s56, s55, 20\ns_sub_u32 s56, s53, s56")
    a.srd(32, 24, 0, 640 * 3072)
    a.srd(36, 26, 0, 640 * 3072)
    a(f"s_mul_i32 s57, s55, 192\ns_mul_i32 s58, s56, {32*3072}\ns_add_u32 s57, s57, s58")
    for i in range(6):
        a(f"v_add_u32 v8, {64*i}, v1\nv_mul_u32_u24 v9, 43691, v8\nv_lshrrev_b32 v9, 19, v9")
        a(f"v_mul_u32_u24 v16, 12, v9\nv_sub_u32 v16, v8, v16\nv_mul_u32_u24 v9, 3072, v9\nv_lshl_add_u32 v{10+i}, v16, 4, v9")
        for mat in range(2):
            a(f"s_add_u32 m0, s54, {mat*6144 + i*1024}\ns_nop 0")
            a.vmem(f"buffer_load_dwordx4 v{10+i}, s[{32+4*mat}:{35+4*mat}], s57 offen lds", "w")
    a.srd(40, 4, WS_W13, SZ_W13)
    a.srd(44, 4, WS_CSP, SZ_CSP)
    OH, ACC, F = 32, 80, 84
    a(f"v_mov_b32 v8, {hex(ONES_BF)}")
    for t in range(12):
        a(f"v_cmp_eq_u32 vcc, {t}, v4\ns_nop 1")
        for i in range(4):
            a(f"v_cndmask_b32 v{OH+4*t+i}, 0, v8, vcc")
    a("v_mul_u32_u24 v16, 192, v6\nv_lshl_add_u32 v16, v7, 3, v16\nv_add_u32 v16, s54, v16")
    a("s_mul_i32 s57, s53, 12288\ns_add_u32 s58, s57, 4096\ns_add_u32 s59, s57, 8192")
    a("v_lshlrev_b32 v9, 6, v4\nv_lshl_add_u32 v9, v3, 4, v9\ns_mul_i32 s60, s53, 768")
    a.wait_vm("w")
    for t in range(12):
        wn, mat, jj = t // 6, (t % 6) // 3, t % 3
        off = mat * 6144 + 32 * W13_J[wn][jj]
        a(f"ds_read_b64_tr_b16 {q(F+4*t,2)}, v16 offset:{off}")
        a(f"ds_read_b64_tr_b16 {q(F+4*t+2,2)}, v16 offset:{off + 16*192}")
        if t == 6:
            a("s_waitcnt lgkmcnt(6)")
    a("s_waitcnt lgkmcnt(0)")
    for t in range(12):
        a(f"v_mfma_f32_16x16x32_bf16 {q(ACC)}, {q(F+4*t)}, {q(OH+4*t)}, {q(ACC) if t else 0}")
        a.vmem(f"buffer_store_dwordx4 {q(F+4*t)}, v5, s[40:43], s{57 + t//4} offen offset:{1024*(t%4)} {SC}")
    a("s_nop 7\nv_cmp_gt_u32 vcc, 12, v4\ns_and_saveexec_b64 s[82:83], vcc")
    a(f"buffer_store_dwordx4 {q(ACC)}, v9, s[44:47], s60 offen {SC}")
    a(f"s_mov_b64 exec, s[82:83]\ns_branch {done}")
    a.label(lw2)
    a.vm = []
    a("s_sub_u32 s53, s53, 320")
    a("s_mul_i32 s55, s53, 171\ns_lshr_b32 s55, s55, 12")
    a("s_mul_i32 s56, s55, 24\ns_sub_u32 s56, s53, s56")
    a.srd(32, 28, 0, 1536 * 1280)
    a(f"s_mul_i32 s57, s55, 160\ns_mul_i32 s58, s56, {64*1280}\ns_add_u32 s57, s57, s58\ns_add_u32 s58, s57, {32*1280}")
    for i in range(5):
        a(f"v_add_u32 v8, {64*i}, v1\nv_mul_u32_u24 v9, 52429, v8\nv_lshrrev_b32 v9, 19, v9")
        a(f"v_mul_u32_u24 v16, 10, v9\nv_sub_u32 v16, v8, v16\nv_mul_u32_u24 v9, 1280, v9\nv_lshl_add_u32 v{10+i}, v16, 4, v9")
        for un in range(2):
            a(f"s_add_u32 m0, s54, {un*5120 + i*1024}\ns_nop 0")
            a.vmem(f"buffer_load_dwordx4 v{10+i}, s[32:35], s{57+un} offen lds", "w")
    a.srd(40, 4, WS_W2, SZ_W2)
    a("v_mul_u32_u24 v16, 160, v6\nv_add_u32 v16, s54, v16")
    a("v_lshl_add_u32 v17, v7, 4, v16\nv_lshl_add_u32 v16, v7, 3, v16")
    a("s_mul_i32 s57, s53, 10240\ns_add_u32 s58, s57, 4096\ns_add_u32 s59, s57, 8192")
    a.wait_vm("w")
    F = 32
    for k in range(10):
        un, t = divmod(k, 5)
        if t < 4:
            ad, off = "v17", un * 5120 + (t >> 1) * 64 + (t & 1) * 8
        else:
            ad, off = "v16", un * 5120 + 128
        a(f"ds_read_b64_tr_b16 {q(F+4*k,2)}, {ad} offset:{off}")
        a(f"ds_read_b64_tr_b16 {q(F+4*k+2,2)}, {ad} offset:{off + 16*160}")
        if k == 6:
            a("s_waitcnt lgkmcnt(6)")
    a("s_waitcnt lgkmcnt(0)")
    for k in range(10):
        a.vmem(f"buffer_store_dwordx4 {q(F+4*k)}, v5, s[40:43], s{57 + k//4} offen offset:{1024*(k%4)} {SC}")


TB_RS = 272
TB_SZ = 57 * TB_RS
CV_A = 64
CV_CS = 4160
CV_U = CV_A + 4 * CV_CS
CV_WAVE = CV_U + 4608
KP_BASE = 126976
PART_BASE = 145408


def kgen(a):
    a.vm = []
    a(f"s_mul_i32 s53, s6, {TB_SZ}")
    a("s_lshr_b32 s54, s6, 2")
    a("s_mul_i32 s55, s52, 384\ns_lshl_b32 s56, s54, 7\ns_add_u32 s55, s55, s56\nv_lshlrev_b32 v5, 1, v1")
    a("s_lshl_b32 s56, s52, 1\nv_mov_b32 v6, 0")
    PR, DT = 8, 92
    PR2 = 96
    a.srd(48, 18, 0, 1280)
    a.vmem(f"buffer_load_ushort v{DT}, v6, s[48:51], s56 offen", "par")
    for i in range(4):
        a.srd(32 + 4 * i, 10 + 2 * i, 0, 640 * 192 * 2)
        a.vmem(f"buffer_load_ushort v{PR+i}, v5, s[{32+4*i}:{35+4*i}], s55 offen", "par")
    for i in range(4):
        a.vmem(f"buffer_load_ushort v{PR2+i}, v5, s[{32+4*i}:{35+4*i}], s55 offen offset:256", "par2")
    a.srd(48, 20, 0, 1280)
    a.vmem("buffer_load_ushort v240, v6, s[48:51], s56 offen", "par2")
    VW, VR, DK = 6, 7, 80
    a(f"v_lshlrev_b32 v{VW}, 2, v1\nv_add_u32 v{VW}, s53, v{VW}")
    a(f"v_mul_u32_u24 v{VR}, {TB_RS}, v4\nv_lshl_add_u32 v{VR}, v3, 4, v{VR}\nv_add_u32 v{VR}, s53, v{VR}")
    for i in range(12):
        a(f"v_mov_b32 v{DK+i}, 0")
    epoch_ready(a)
    a.wait_vm("par")
    a.stamp(1)
    a(f"v_lshlrev_b32 v{DT}, 16, v{DT}\nv_mul_f32 v{DT}, {hex(LOG2E)}, v{DT}\nv_exp_f32 v{DT}, v{DT}\ns_nop 0")
    a.rnd(DT, DT)
    a.label("L_kgen")
    A2, W, Z8, Y, GC, T0, T1, T2, XT = 16, 17, 18, 20, 22, 24, 26, 28, 30
    E = [None] + [32 + 2 * i for i in range(7)]
    G1 = 46
    PK = [48, 49, 50, 51]
    pkc = [0]

    def put(row, re, im):
        r = PK[pkc[0] % 4]
        pkc[0] += 1
        a(f"v_cvt_pk_bf16_f32 v{r}, {re}, {im}")
        a(f"ds_write_b32 v{VW}, v{r} offset:{row*TB_RS}")

    def putp(row, p):
        put(row, f"v{p}", f"v{p+1}")

    a(f"v_lshlrev_b32 v{PR}, 16, v{PR}\nv_mul_f32 v{A2}, {hex(LOG2E)}, v{PR}\nv_exp_f32 v{A2}, v{A2}")
    for i in range(1, 4):
        a(f"v_lshlrev_b32 v{PR+i}, 16, v{PR+i}")
    a.rnd(A2, A2)
    a(f"v_mul_f32 v{W}, v{PR+1}, v{DT}")
    a(f"v_mul_f32 v{A2}, v{A2}, v{DT}")
    a(f"v_mul_f32 v{W}, {hex(INV2PI)}, v{W}")
    a(f"v_mul_f32 v{A2}, {hex(NLOG2E)}, v{A2}")
    a(f"v_rndne_f32 v{T0}, v{W}")
    a(f"v_mul_f32 v{Y}, v{PR+2}, v{DT}\nv_mul_f32 v{Y+1}, v{PR+3}, v{DT}")
    a(f"v_sub_f32 v{W}, v{W}, v{T0}")
    a(f"v_mul_f32 v{Y}, 2.0, v{Y}\nv_mul_f32 v{Y+1}, -2.0, v{Y+1}")

    def base(dst, mult, conj, T):
        m = {1: "1.0", 8: hex(0x41000000), 128: hex(0x43000000)}[mult]
        a(f"v_mul_f32 v{T}, {m}, v{A2}\nv_mul_f32 v{T+1}, {m}, v{W}")
        a(f"v_exp_f32 v{T}, v{T}\nv_cos_f32 v{dst}, v{T+1}\nv_sin_f32 v{dst+1}, v{T+1}\ns_nop 0")
        a(f"v_mul_f32 v{dst}, v{dst}, v{T}")
        a(f"v_mul_f32 v{dst+1}, {'-' if conj else ''}v{dst+1}, v{T}")

    base(E[1], 1, False, T0)
    base(Z8, 8, True, T1)
    base(G1, 128, False, T2)
    put(0, "1.0", "0")
    putp(1, E[1])
    putp(41, Y)
    cmul(a, E[2], E[1], E[1], T0)
    putp(8, G1)
    cmul(a, E[3], E[2], E[1], T0)
    cmul(a, E[4], E[2], E[2], T1)
    putp(2, E[2])
    cmul(a, E[5], E[4], E[1], T0)
    cmul(a, E[6], E[4], E[2], T1)
    cmul(a, E[7], E[4], E[3], T2)
    for e in range(3, 8):
        putp(e, E[e])
    ops = []
    for e in range(1, 8):
        ops.append(("x", 8 + e, G1, E[e]))
    for g in range(2, 17):
        ops.append(("g", g))
        if g in (2, 3):
            for i, e in enumerate((2, 4, 6)):
                ops.append(("x", 16 + (g - 2) * 4 + 1 + i, GC, E[e]))
        elif g < 8:
            ops.append(("x", 24 + (g - 4) * 2 + 1, GC, E[4]))
    yb = 1
    for k, op in enumerate(ops):
        if op[0] == "x":
            x = XT if (k & 1) else T2
            cmul(a, x, op[2], op[3], x)
            putp(op[1], x)
        else:
            g = op[1]
            cmul(a, GC, G1 if g == 2 else GC, G1, T1)
            row = 16 + (g - 2) * 4 if g < 4 else (24 + (g - 4) * 2 if g < 8 else 32 + (g - 8))
            putp(row, GC)
        if (k & 1) and yb < 16:
            cmul(a, Y, Y, Z8, T0)
            putp(41 + yb, Y)
            yb += 1
    assert yb == 16
    FR = 16
    a("s_waitcnt lgkmcnt(0)")
    for st in range(4):
        f = FR + 16 * st
        if st == 3:
            a("s_waitcnt lgkmcnt(8)")
        a(f"ds_read_b128 {q(f)}, v{VR} offset:{41*TB_RS + 64*st}")
        for t in range(3):
            a(f"ds_read_b128 {q(f+4+4*t)}, v{VR} offset:{16*t*TB_RS + 64*st}")
    a("s_waitcnt vmcnt(0)")
    for i in range(4):
        a(f"v_mov_b32 v{PR+i}, v{PR2+i}")
    for st in range(4):
        f = FR + 16 * st
        a(f"s_waitcnt lgkmcnt({12 - 4*st})")
        for t in range(3):
            a(f"v_mfma_f32_16x16x32_bf16 {q(DK+4*t)}, {q(f+4+4*t)}, {q(f)}, {q(DK+4*t)}")
    a("s_add_u32 s54, s54, 1\ns_cmp_lt_u32 s54, 2\ns_cbranch_scc1 L_kgen")
    a.vm = []


def conv_main(a):
    DK = 80
    a(f"s_mul_i32 s53, s7, {CV_WAVE}")
    a(f"s_mul_i32 s54, s7, 4224\ns_add_u32 s54, s54, {KP_BASE}")
    a(f"s_mul_i32 s55, s7, 3072\ns_add_u32 s55, s55, {PART_BASE}")
    a("v_lshlrev_b32 v7, 4, v1\nv_add_u32 v5, s55, v7")
    a("v_lshlrev_b32 v18, 4, v4\nv_add_u32 v18, s54, v18")
    a("v_lshrrev_b32 v16, 1, v3\nv_and_b32 v17, 1, v3")
    a("v_lshlrev_b32 v19, 8, v16\nv_lshl_add_u32 v19, v17, 3, v19\nv_add_u32 v19, v19, v18")
    a("v_cmp_gt_u32 vcc, 2, v3")
    a("v_lshlrev_b32 v20, 8, v3\nv_add_u32 v20, 512, v20\nv_lshlrev_b32 v21, 9, v3")
    a("v_cndmask_b32 v20, v21, v20, vcc\nv_add_u32 v20, v20, v18")
    for i in range(1, 4):
        a(f"v_mov_b32 v22, {4*i}\nv_mov_b32 v23, {256*(i>>1) + 8*(i&1)}")
        a(f"v_cndmask_b32 v22, v23, v22, vcc\nv_add_u32 v{23+i}, v20, v22")
    a("v_lshlrev_b32 v27, 10, v3\nv_lshl_add_u32 v27, v4, 4, v27\nv_add_u32 v27, 2048, v27\ns_movk_i32 s56, 4112")
    for i in range(4):
        a(f"v_add_u32 v{28+i}, {256*i}, v27\nv_min_u32 v{28+i}, s56, v{28+i}\nv_add_u32 v{28+i}, s54, v{28+i}")
    a("v_sub_u32 v16, 4094, v7\nv_cvt_f32_u32 v16, v16")
    a("v_cmp_eq_u32 s[58:59], 63, v1")
    a("v_add_u32 v17, s53, v7")
    a.stamp(2)
    a("s_barrier")
    for t in range(3):
        a(f"ds_read_b128 {q(40+4*t)}, v5 offset:{1024*t}")
    a("s_waitcnt lgkmcnt(0)")
    for i in range(6):
        a(f"v_pk_add_f32 {q(DK+2*i,2)}, {q(DK+2*i,2)}, {q(40+2*i,2)}")
    for i in range(6):
        a(f"v_cvt_pk_bf16_f32 v{32+i}, v{DK+2*i}, v{DK+2*i+1}")
    a("ds_write_b64 v19, v[32:33]")
    a("ds_write_b16 v20, v34\nds_write_b16_d16_hi v24, v34\nds_write_b16 v25, v35\nds_write_b16_d16_hi v26, v35")
    a("ds_write_b16 v28, v36\nds_write_b16_d16_hi v29, v36\nds_write_b16 v30, v37\nds_write_b16_d16_hi v31, v37")
    a("s_mov_b32 s56, 0")
    a.label("L_expand")
    AD = 20
    for m in range(0, 12, 2):
        f0 = 64 + m
        a(f"v_add_f32 v{f0}, {hex(f32bits(-2.0*m))}, v16\nv_add_f32 v{f0+1}, {hex(f32bits(-2.0*(m+1)))}, v16")
        a(f"v_cvt_pk_bf16_f32 v{f0}, v{f0}, v{f0+1}")
        a.unpack(f0, f0)
        a(f"v_cvt_u32_f32 v{AD+m}, v{f0}\nv_cvt_u32_f32 v{AD+m+1}, v{f0+1}")
        a(f"v_add_u32 v{AD+m}, s54, v{AD+m}\nv_add_u32 v{AD+m+1}, s54, v{AD+m+1}")
    D = 32
    a("s_waitcnt lgkmcnt(0)")
    for m in range(6):
        a(f"ds_read_u16 v{D+m}, v{AD+2*m}")
        if m < 5:
            a(f"ds_read_u16 v{52+m}, v{AD+2*m+1}")
    a("s_cmp_eq_u32 s56, 3\ns_cselect_b64 s[60:61], s[58:59], 0")
    a(f"v_add_f32 v16, {hex(f32bits(-1024.0))}, v16")
    a("s_waitcnt lgkmcnt(0)")
    for m in range(5):
        a(f"v_lshl_or_b32 v{D+m}, v{52+m}, 16, v{D+m}")
    a(f"v_cndmask_b32 v{D+4}, v{D+4}, 0, s[60:61]\nv_cndmask_b32 v{D+5}, v{D+5}, 0, s[60:61]")
    C1, C2, C0 = 40, 44, 48
    for m in range(4):
        a(f"v_mov_b32 v{C1+m}, v{D+1+m}")
        a(f"v_alignbit_b32 v{C2+m}, v{D+m+1}, v{D+m}, 16")
        a(f"v_alignbit_b32 v{C0+m}, v{D+m+2}, v{D+m+1}, 16")
    a(f"ds_write_b128 v17, {q(C0)} offset:{CV_A}")
    a(f"ds_write_b128 v17, {q(C1)} offset:{CV_A + CV_CS}")
    a(f"ds_write_b128 v17, {q(C2)} offset:{CV_A + 2*CV_CS}")
    a(f"ds_write_b128 v17, {q(D)} offset:{CV_A + 3*CV_CS}")
    a("v_add_u32 v17, 1024, v17")
    a("s_add_u32 s56, s56, 1\ns_cmp_lt_u32 s56, 4\ns_cbranch_scc1 L_expand")
    ACC, AS, FS, VA, VF = 16, [48, 112], [80, 144], 10, 11
    T1, XF, DSV = 176, 208, 240
    a(f"v_and_b32 v5, 3, v4\nv_mul_u32_u24 v5, {CV_CS}, v5\nv_lshrrev_b32 v6, 2, v4\nv_lshlrev_b32 v6, 3, v6\nv_sub_u32 v5, v5, v6")
    a(f"v_lshlrev_b32 v6, 4, v3\nv_sub_u32 v5, v5, v6\nv_add_u32 v5, {CV_A + 4104 - 3584 - 448}, v5\nv_add_u32 v{VA}, s53, v5")
    a(f"v_lshlrev_b32 v5, 5, v4\nv_sub_u32 v5, v5, v6\nv_add_u32 v5, {CV_U + 496 - 448}, v5\nv_add_u32 v{VF}, s53, v5")
    a("v_lshlrev_b32 v8, 5, v4\nv_lshl_add_u32 v8, v3, 3, v8\nv_add_u32 v9, s53, v8")
    a("v_lshrrev_b32 v6, 3, v4\ns_mov_b32 s56, 163840\nv_mul_lo_u32 v6, v6, s56")
    a("v_and_b32 v7, 7, v4\nv_lshl_add_u32 v6, v7, 5, v6\nv_lshl_add_u32 v6, v3, 3, v6")
    a(f"v_lshlrev_b32 v{DSV}, 16, v{DSV}")
    a.srd(32, 4, WS_XT, SZ_T)
    a.srd(36, 4, WS_HT, SZ_T)
    a("s_lshl_b32 s54, s52, 12\ns_lshl_b32 s55, s52, 8")
    a("s_waitcnt lgkmcnt(0)")
    a.stamp(3)
    a("s_barrier")
    a.stamp(4)

    def reads(s, c):
        o = []
        ex = 64 * (7 - c)
        for k in range(8):
            o.append(f"ds_read_b128 {q(FS[s]+4*k)}, v{VF} offset:{512*k + ex}")
            o.append(f"ds_read_b64 {q(AS[s]+4*k,2)}, v{VA} offset:{512*(7-k) + ex}")
            o.append(f"ds_read_b64 {q(AS[s]+4*k+2,2)}, v{VA} offset:{512*(7-k) + 8 + ex}")
        return o

    rd0 = reads(0, 0)
    for i, r in enumerate(rd0):
        a(r)
        if i == 11:
            a("s_waitcnt lgkmcnt(6)")
    for nb in range(8):
        a.vmem(f"buffer_load_dwordx2 {q(XF+4*nb+2,2)}, v8, s[32:35], s54 offen offset:{512*nb} {SC}", "xt")
    fu, fx = [], []
    for nb in range(8):
        for hh in range(2):
            p = T1 + 4 * nb + 2 * hh
            src = T1 + 4 * nb + 2 + hh
            if hh == 0:
                fu += [f"v_lshlrev_b32 v{p}, 16, v{src}", f"v_and_b32 v{p+1}, 0xffff0000, v{src}"]
            else:
                fu += [f"v_lshlrev_b32 v{p}, 16, v{src}", f"v_and_b32 v{p+1}, 0xffff0000, v{src}"]
            fu += [f"v_pk_mul_f32 {q(p,2)}, {q(p,2)}, {q(DSV,2)} op_sel_hi:[1,0]",
                   f"v_cvt_pk_bf16_f32 v{p}, v{p}, v{p+1}",
                   f"v_and_b32 v{p+1}, 0xffff0000, v{p}", f"v_lshlrev_b32 v{p}, 16, v{p}"]
            p = XF + 4 * nb + 2 * hh
            src = XF + 4 * nb + 2 + hh
            fx += [f"v_lshlrev_b32 v{p}, 16, v{src}", f"v_and_b32 v{p+1}, 0xffff0000, v{src}"]
    fill = {c: fu[16 * (c - 1):16 * c] for c in range(1, 7)}
    fill[0] = [f"ds_read_b64 {q(T1+4*nb+2,2)}, v9 offset:{CV_U + 480 + 512*nb}" for nb in range(8)]
    fill[7] = fx
    for c in range(8):
        s = c & 1
        a("s_waitcnt lgkmcnt(0)")
        if c == 7:
            a.wait_vm("xt")
        rd = reads(1 - s, c + 1) if c < 7 else []
        fl = list(fill[c])
        i = 0
        for aa in range(8):
            for m in range(8 - aa):
                cc = q(ACC + 4 * (aa + m)) if (c or aa) else "0"
                a(f"v_mfma_f32_16x16x32_bf16 {q(ACC+4*(aa+m))}, {q(AS[s]+4*aa)}, {q(FS[s]+4*m)}, {cc}")
                if i < len(rd):
                    a(rd[i])
                    if i in (11, 19):
                        a("s_waitcnt lgkmcnt(8)")
                if (i >= 20 or c == 7) and fl:
                    a(fl.pop(0))
                i += 1
        assert not fl
    a.stamp(5)
    a("s_nop 4")
    for nb in range(8):
        y = ACC + 4 * nb
        o = 48 + 2 * nb
        for hh in range(2):
            t = y + 2 * hh
            a(f"v_cvt_pk_bf16_f32 v{t}, v{t}, v{t+1}")
            a.unpack(t, t)
            a(f"v_pk_add_f32 {q(t,2)}, {q(t,2)}, {q(T1+4*nb+2*hh,2)}")
            a(f"v_cvt_pk_bf16_f32 v{t}, v{t}, v{t+1}")
            a.unpack(t, t)
            a(f"v_pk_add_f32 {q(t,2)}, {q(t,2)}, {q(XF+4*nb+2*hh,2)}")
            a(f"v_cvt_pk_bf16_f32 v{o+hh}, v{t}, v{t+1}")
        a.vmem(f"buffer_store_dwordx2 {q(o,2)}, v6, s[36:39], s55 offen {SC}")
        a(f"s_add_u32 s55, s55, {2*163840}")
    a.stamp(6)
    a("s_waitcnt vmcnt(0)")


def conv_partner(a):
    DK = 80
    a(f"s_mul_i32 s53, s7, {CV_WAVE}")
    a(f"s_mul_i32 s55, s7, 3072\ns_add_u32 s55, s55, {PART_BASE}")
    a("v_lshlrev_b32 v7, 4, v1\nv_add_u32 v5, s55, v7")
    a("v_mov_b32 v12, 0\nv_mov_b32 v13, 0\nv_mov_b32 v14, 0\nv_mov_b32 v15, 0")
    a("v_add_u32 v9, s53, v7")
    a(f"v_lshrrev_b32 v16, 1, v1\nv_mul_u32_u24 v16, {CV_CS}, v16\nv_and_b32 v17, 1, v1\nv_lshl_add_u32 v16, v17, 4, v16\nv_add_u32 v16, s53, v16")
    for t in range(3):
        a(f"ds_write_b128 v5, {q(DK+4*t)} offset:{1024*t}")
    a.srd(32, 4, WS_UT, SZ_T)
    a("s_lshl_b32 s54, s52, 12")
    a.stamp(2)
    a("s_waitcnt lgkmcnt(0)\ns_barrier")
    a.poll(F_L, 64, 20)
    a.stamp(3)
    a(f"s_add_u32 m0, s53, {CV_U + 480}\ns_nop 0")
    for i in range(4):
        a.vmem(f"buffer_load_dwordx4 v7, s[32:35], s54 offen offset:{1024*i} {SC} lds")
    a("s_mov_b64 exec, 0x3fffffff")
    a(f"ds_write_b128 v9, v[12:15] offset:{CV_U}")
    a("s_mov_b64 exec, 0xff")
    a(f"ds_write_b128 v16, v[12:15] offset:{CV_A + 4096}")
    a("s_mov_b64 exec, -1")
    a("s_waitcnt vmcnt(0) lgkmcnt(0)")
    a.stamp(4)
    a("s_barrier")


G1_H = 5120
G1_HN = 5
G1_W = 87040
G1_WN = 3
G1_CONST = 0
G1_CS = 2048
G2_H = 5120
G2_HN = 4
G2_W = G2_H + G2_HN * 16384
G2_WN = 4
LDS_TOTAL = 163840


def tile_ids(a):
    a("s_and_b32 s12, s2, 7\ns_lshr_b32 s13, s2, 3\ns_and_b32 s14, s13, 7\ns_lshr_b32 s15, s13, 3")
    a("s_and_b32 s8, s12, 1\ns_lshl_b32 s8, s8, 3\ns_add_u32 s8, s8, s14")
    a("s_lshr_b32 s9, s12, 1\ns_lshl_b32 s10, s9, 3\ns_lshl_b32 s9, s9, 2\ns_add_u32 s9, s9, s15")
    a("s_add_u32 s10, s10, s14")
    a("s_and_b32 s11, s12, 1\ns_lshl_b32 s11, s11, 2\ns_add_u32 s11, s11, s15")
    a("v_bfe_u32 v5, v1, 2, 2")
    a("v_lshl_add_u32 v6, v3, 2, v5\nv_lshlrev_b32 v6, 8, v6")
    a("v_and_b32 v7, 3, v1\nv_lshl_add_u32 v6, v7, 3, v6")
    a("v_and_b32 v7, 1, v3\nv_lshl_add_u32 v5, v7, 2, v5")


def gemm_mfma_waves(a, done):
    tile_ids(a)
    a("s_barrier")
    a("s_and_b32 s16, s7, 1\ns_lshr_b32 s17, s7, 1")
    a("s_lshl_b32 s18, s16, 2\nv_xor_b32 v5, s18, v5")
    for nt in range(4):
        a(f"v_xor_b32 v7, {nt}, v5\nv_lshl_add_u32 v{12+nt}, v7, 5, v6")
    a("v_lshlrev_b32 v16, 4, v1\ns_mul_i32 s18, s17, 6144\nv_add_u32 v16, s18, v16")
    ACC, HS, AD = 24, [120, 160], 17
    for i in range(96):
        a(f"v_mov_b32 v{ACC+i}, 0")

    def reads(s, half):
        o = []
        for nt in range(4):
            r = HS[s] + 4 * nt
            o.append(f"ds_read_b64_tr_b16 {q(r,2)}, v{AD+nt} offset:{8192*half}")
            o.append(f"ds_read_b64_tr_b16 {q(r+2,2)}, v{AD+nt} offset:{8192*half + 4096}")
        for t in range(6):
            o.append(f"ds_read_b128 {q(HS[s]+16+4*t)}, v{AD+4} offset:{12288*half + 1024*t}")
        return o

    def setad(hs, ws):
        return [f"v_add_u32 v{AD+i}, {hs}, v{12+i}" for i in range(4)] + [f"v_add_u32 v{AD+4}, {ws}, v16"]

    for x in setad(G1_H, G1_W):
        a(x)
    a(f"s_mov_b32 s19, {G1_H}\ns_mov_b32 s20, {G1_W}\ns_mov_b32 s21, 0")
    a.srd(32, 4, WS_HM, SZ_HM)
    a.stamp(7)
    a("s_barrier")
    a.stamp(8)
    a("s_barrier")
    a.stamp(9)
    for x in reads(0, 0):
        a(x)
    a.label("L_g1")
    for s in range(2):
        if s == 0:
            a(f"s_add_u32 s19, s19, 16384\ns_cmp_eq_u32 s19, {G1_H + G1_HN*16384}\ns_cselect_b32 s19, {G1_H}, s19")
            a(f"s_add_u32 s20, s20, 24576\ns_cmp_eq_u32 s20, {G1_W + G1_WN*24576}\ns_cselect_b32 s20, {G1_W}, s20")
            a("s_waitcnt lgkmcnt(0)")
            rest = reads(1, 1) + setad("s19", "s20")
        else:
            a("s_waitcnt lgkmcnt(0)\ns_barrier")
            rest = reads(0, 0)
        i = 0
        for t in range(6):
            for nt in range(4):
                ac = ACC + 4 * (t * 4 + nt)
                a(f"v_mfma_f32_16x16x32_bf16 {q(ac)}, {q(HS[s]+16+4*t)}, {q(HS[s]+4*nt)}, {q(ac)}")
                if i < len(rest):
                    a(rest[i])
                i += 1
    a("s_add_u32 s21, s21, 1\ns_cmp_lt_u32 s21, 10\ns_cbranch_scc1 L_g1")
    a.stamp(10)
    a("s_lshl_b32 s18, s16, 10\nv_lshlrev_b32 v5, 4, v4\nv_add_u32 v5, s18, v5")
    a("s_mul_i32 s18, s17, 384\nv_lshlrev_b32 v6, 4, v3\nv_add_u32 v6, s18, v6")
    a("s_lshl_b32 s22, s8, 1\ns_add_u32 s22, s22, s16\ns_mul_i32 s22, s22, 48")
    a("s_mul_i32 s23, s9, 3\ns_add_u32 s22, s22, s23")
    a("s_lshl_b32 s23, s17, 1\ns_add_u32 s23, s23, s22\ns_lshl_b32 s23, s23, 12")
    a("s_add_u32 s22, s22, 1\ns_lshl_b32 s22, s22, 12\ns_lshl_b32 s18, s17, 3\ns_add_u32 s22, s22, s18")
    a("s_waitcnt lgkmcnt(0)\ns_barrier")
    KC, CSR = 184, 160
    for nt in range(4):
        a(f"ds_read_b128 {q(KC+4*nt)}, v5 offset:{G1_CONST + 256*nt}")
    for t in range(6):
        a(f"ds_read_b128 {q(CSR+4*t)}, v6 offset:{G1_CS + 64*t}")
    a("v_lshlrev_b32 v5, 4, v1")
    a("s_waitcnt lgkmcnt(0)")
    a.stamp(11)
    T = 120
    for nt in range(4):
        O = 144 + 8 * (nt & 1)
        k = KC + 4 * nt
        for jj in range(3):
            g = ACC + 4 * (jj * 4 + nt)
            u = ACC + 4 * ((3 + jj) * 4 + nt)
            for hh in range(2):
                g2, u2 = g + 2 * hh, u + 2 * hh
                a(f"v_pk_fma_f32 {q(g2,2)}, {q(CSR+4*jj+2*hh,2)}, {q(k,2)}, {q(g2,2)} op_sel_hi:[1,0,1]")
                a(f"v_pk_fma_f32 {q(u2,2)}, {q(CSR+4*(3+jj)+2*hh,2)}, {q(k,2)}, {q(u2,2)} op_sel_hi:[1,0,1]")
            for hh in range(2):
                a(f"v_pk_mul_f32 {q(T+2*hh,2)}, {q(g+2*hh,2)}, {q(k,2)} op_sel:[0,1] op_sel_hi:[1,1]")
            for i in range(4):
                a(f"v_exp_f32 v{T+i}, v{T+i}")
            for hh in range(2):
                a(f"v_pk_mul_f32 {q(g+2*hh,2)}, {q(g+2*hh,2)}, {q(u+2*hh,2)}")
            for hh in range(2):
                a(f"v_pk_fma_f32 {q(T+2*hh,2)}, {q(T+2*hh,2)}, {q(k+2,2)}, {q(k+2,2)} op_sel_hi:[1,0,0]")
            for i in range(4):
                a(f"v_rcp_f32 v{T+i}, v{T+i}")
            a("s_nop 0")
            for hh in range(2):
                a(f"v_pk_mul_f32 {q(g+2*hh,2)}, {q(g+2*hh,2)}, {q(T+2*hh,2)}")
            for hh in range(2):
                a(f"v_cvt_pk_bf16_f32 v{O+2*jj+hh}, v{g+2*hh}, v{g+2*hh+1}")
        a(f"buffer_store_dwordx4 {q(O)}, v5, s[32:35], s23 offen offset:{1024*nt} {SC}")
        a(f"buffer_store_dwordx2 {q(O+4,2)}, v5, s[32:35], s22 offen offset:{1024*nt} {SC}")
    a.stamp(12)
    a.vm = []
    ACC, FS, RES, VW, VH = 16, [36, 60], 84, 104, 108
    a("s_lshr_b32 s18, s10, 1\ns_mul_i32 s18, s18, 163840\ns_mul_i32 s19, s11, 20480\ns_add_u32 s18, s18, s19")
    a("s_and_b32 s19, s10, 1\ns_lshl_b32 s19, s19, 7\ns_add_u32 s18, s18, s19\ns_lshl_b32 s19, s7, 5\ns_add_u32 s18, s18, s19")
    a("v_lshlrev_b32 v10, 1, v4\nv_lshl_add_u32 v11, v3, 10, v10\nv_lshl_add_u32 v10, v3, 11, v10")
    a("s_add_u32 s19, s18, 8192\ns_add_u32 s20, s18, 16384")
    a.srd(36, 4, WS_HT, SZ_T)
    a.srd(40, 30, 0, SZ_T)
    a("s_waitcnt vmcnt(0)\ns_barrier")
    a.stamp(13)
    for p in range(2):
        for e in range(8):
            a.vmem(f"buffer_load_ushort v{RES+8*p+e}, v10, s[36:39], s{18+p} offen offset:{256*e} {SC}", "res")
    for e in range(4):
        a.vmem(f"buffer_load_ushort v{RES+16+e}, v11, s[36:39], s20 offen offset:{256*e} {SC}", "res")
    for i in range(20):
        a(f"v_mov_b32 v{ACC+i}, 0")
    a(f"s_lshl_b32 s19, s7, 10\ns_add_u32 s19, s19, {G2_H}\nv_add_u32 v{VH}, s19, v5")
    for sl in range(4):
        a(f"v_add_u32 v{VW+sl}, {G2_W + sl*20480}, v5")

    def reads2(ks, s):
        st, kk = divmod(ks % 16, 4)
        o = [f"ds_read_b128 {q(FS[s]+20)}, v{VH} offset:{st*16384 + kk*4096}"]
        o += [f"ds_read_b128 {q(FS[s]+4*t)}, v{VW+st} offset:{kk*5120 + 1024*t}" for t in range(5)]
        return o

    a("s_lshl_b32 s18, s10, 6\ns_lshl_b32 s19, s7, 4\ns_add_u32 s18, s18, s19\ns_mul_i32 s18, s18, 1280\ns_mul_i32 s19, s11, 160\ns_add_u32 s18, s18, s19")
    a("v_mul_u32_u24 v10, 1280, v4\nv_lshl_add_u32 v11, v3, 3, v10\nv_lshl_add_u32 v10, v3, 4, v10")
    a("s_mov_b32 s21, 0")
    a("s_barrier")
    a("s_barrier")
    a.stamp(14)
    for x in reads2(0, 0):
        a(x)
    a.label("L_g2")
    for ks in range(16):
        s = ks & 1
        a("s_waitcnt lgkmcnt(0)")
        if ks % 4 == 3:
            a("s_barrier")
        rd = reads2(ks + 1, 1 - s)
        a(rd[0])
        for t in range(5):
            a(rd[t + 1])
            a(f"v_mfma_f32_16x16x32_bf16 {q(ACC+4*t)}, {q(FS[s]+4*t)}, {q(FS[s]+20)}, {q(ACC+4*t)}")
    a("s_add_u32 s21, s21, 1\ns_cmp_lt_u32 s21, 3\ns_cbranch_scc1 L_g2")
    a.wait_vm("res")
    a("s_nop 4")
    O = 120
    for i in range(10):
        y = ACC + 2 * i
        t = 112 + 2 * (i & 1)
        a(f"v_cvt_pk_bf16_f32 v{y}, v{y}, v{y+1}")
        a(f"v_lshlrev_b32 v{t}, 16, v{RES+2*i}\nv_lshlrev_b32 v{t+1}, 16, v{RES+2*i+1}")
        a.unpack(y, y)
        a(f"v_pk_add_f32 {q(y,2)}, {q(y,2)}, {q(t,2)}")
        a(f"v_cvt_pk_bf16_f32 v{O+i}, v{y}, v{y+1}")
    a(f"buffer_store_dwordx4 {q(O)}, v10, s[40:43], s18 offen")
    a(f"buffer_store_dwordx4 {q(O+4)}, v10, s[40:43], s18 offen offset:64")
    a(f"buffer_store_dwordx2 {q(O+8,2)}, v11, s[40:43], s18 offen offset:128")
    a(f"s_branch {done}")


def gemm_loader_waves(a, done):
    a.vm = []
    tile_ids(a)
    a("s_mul_i32 s16, s8, 163840")
    a(f"s_mul_i32 s17, s9, {20*12288}")
    a("s_lshl_b32 s18, s7, 12\ns_mul_i32 s19, s7, 6144")
    a("v_lshrrev_b32 v12, 1, v4\nv_xor_b32 v12, v12, v3\nv_lshlrev_b32 v12, 5, v12")
    a("v_and_b32 v7, 1, v4\nv_lshlrev_b32 v7, 4, v7\nv_lshl_add_u32 v7, v3, 8, v7\nv_add_u32 v7, s18, v7")
    a("v_add_u32 v8, v7, v12\nv_xor_b32 v12, 128, v12\nv_add_u32 v9, v7, v12")
    a("v_lshlrev_b32 v10, 4, v1\nv_add_u32 v10, s19, v10\nv_add_u32 v11, 4096, v10")
    a.srd(32, 4, WS_HT, SZ_T)
    a.srd(36, 4, WS_W13, SZ_W13)
    a.srd(40, 4, WS_CSP, SZ_CSP)
    a.poll(F_R, 96, 20)
    a.stamp(5)

    def issue_w(st):
        slot = G1_W + (st % G1_WN) * 24576
        a(f"s_add_u32 m0, s19, {slot}\ns_nop 0")
        for i in range(4):
            a.vmem(f"buffer_load_dwordx4 v10, s[36:39], s17 offen offset:{1024*i} {SC} lds", ("w", st))
        a(f"s_add_u32 m0, s19, {slot + 4096}\ns_nop 0")
        for i in range(2):
            a.vmem(f"buffer_load_dwordx4 v11, s[36:39], s17 offen offset:{1024*i} {SC} lds", ("w", st))
        a("s_add_u32 s17, s17, 24576")

    def issue_h(st):
        slot = G1_H + (st % G1_HN) * 16384
        a(f"s_add_u32 m0, s18, {slot}\ns_nop 0")
        for i in range(4):
            a.vmem(f"buffer_load_dwordx4 v{8 + (i&1)}, s[32:35], s16 offen offset:{1024*i} {SC} lds", ("h", st))
        a("s_add_u32 s16, s16, 16384")

    CS = 40
    a("v_and_b32 v13, 255, v0\nv_lshlrev_b32 v13, 2, v13\ns_mul_i32 s20, s9, 15360")
    for ks in range(20):
        if ks and ks % 5 == 0:
            a("s_add_u32 s20, s20, 3840")
        a.vmem(f"buffer_load_dword v{CS+ks}, v13, s[40:43], s20 offen offset:{768*(ks % 5)} {SC}", "cs")
    for st in range(G1_WN):
        issue_w(st)
    SA = 14
    a("s_lshl_b32 s20, s7, 1\nv_xor_b32 v5, s20, v5")
    for j in range(2):
        a(f"v_xor_b32 v7, {j}, v5\nv_lshl_add_u32 v{SA+j}, v7, 5, v6\nv_add_u32 v{SA+2+j}, {3*16384}, v{SA+j}")
    ONE, SACC, SF = 20, 24, 64
    for i in range(4):
        a(f"v_mov_b32 v{ONE+i}, {hex(ONES_BF)}")
    for i in range(16):
        a(f"v_mov_b32 v{SACC+i}, 0")
    a.wait_vm("cs")
    for ks in range(1, 20):
        a(f"v_add_f32 v{CS}, v{CS}, v{CS+ks}")
    a("v_and_b32 v7, 3, v4\nv_cmp_eq_u32 s[52:53], 1, v7\nv_cmp_eq_u32 s[54:55], 2, v7\nv_cmp_eq_u32 s[56:57], 3, v7")
    a("v_lshrrev_b32 v7, 2, v4\nv_cmp_eq_u32 s[58:59], v7, v3")
    a.stamp(6)
    a("s_barrier")
    a(f"ds_write_b32 v13, v{CS} offset:{G1_CS}")
    sk = a.newlabel("L_nopoll")
    a(f"s_cmp_lg_u32 s6, 4\ns_cbranch_scc1 {sk}")
    sk2 = a.newlabel("L_nopub")
    a(f"s_cmp_ge_u32 s2, 160\ns_cbranch_scc1 {sk2}")
    a.publish(F_C, 2, 60)
    a.label(sk2)
    vm_save = list(a.vm)
    a.poll(F_C, 160, 80)
    sk3 = a.newlabel("L_noep")
    a(f"s_cmp_lg_u32 s2, 0\ns_cbranch_scc1 {sk3}")
    a("v_mov_b32 v60, s3\nv_mov_b32 v61, 0\ns_mov_b64 exec, 1")
    a("buffer_store_dword v60, v61, s[92:95], 0 offen\ns_mov_b64 exec, -1\ns_waitcnt vmcnt(0)")
    a.label(sk3)
    a.label(sk)
    a.vm = vm_save[:-1]
    a.stamp(7)
    a("s_barrier")
    issue_h(0); issue_h(1)
    a.wait_vm(("h", 0))
    a.stamp(8)
    a("s_barrier")
    issue_h(2); issue_h(3); issue_h(4)
    for s in range(10):
        slot = s % G1_HN
        for kk in range(2):
            for j in range(2):
                r = SF + 8 * kk + 4 * j
                off = G1_H + (slot % 3) * 16384 + 8192 * kk
                a(f"ds_read_b64_tr_b16 {q(r,2)}, v{SA + 2*(slot//3) + j} offset:{off}")
                a(f"ds_read_b64_tr_b16 {q(r+2,2)}, v{SA + 2*(slot//3) + j} offset:{off + 4096}")
        if s >= 1:
            if s + 2 < 10:
                issue_w(s + 2)
            if s + 4 < 10:
                issue_h(s + 4)
        a("s_waitcnt lgkmcnt(0)")
        for kk in range(2):
            for j in range(2):
                r = SF + 8 * kk + 4 * j
                a(f"v_mfma_f32_16x16x32_bf16 {q(SACC+8*j)}, {q(ONE)}, {q(r)}, {q(SACC+8*j)}")
                a(f"v_mfma_f32_16x16x32_bf16 {q(SACC+8*j+4)}, {q(r)}, {q(r)}, {q(SACC+8*j+4)}")
        if s + 1 < 10:
            a.wait_vm(("h", s + 1))
            if s + 1 >= G1_WN:
                a.wait_vm(("w", s + 1))
        a("s_barrier")
    a("s_lshl_b32 s20, s7, 9\nv_lshlrev_b32 v7, 4, v4\nv_add_u32 v7, s20, v7")
    a(f"s_mul_i32 s16, s11, {48*5120}\ns_mul_i32 s17, s10, {48*4096}\ns_mul_i32 s19, s7, 5120")
    a("v_lshlrev_b32 v8, 4, v1\nv_add_u32 v9, s18, v8\nv_add_u32 v8, s19, v8\nv_add_u32 v10, 4096, v8")
    for j in range(2):
        sm, sq, k = SACC + 8 * j, SACC + 8 * j + 4, 40 + 4 * j
        a(f"v_cndmask_b32 v{sq}, v{sq}, v{sq+1}, s[52:53]\nv_cndmask_b32 v{sq}, v{sq}, v{sq+2}, s[54:55]\nv_cndmask_b32 v{sq}, v{sq}, v{sq+3}, s[56:57]")
        ln_finish(a, sm, sq, sm + 1, k, k + 1)
        a(f"v_mul_f32 v{k+1}, {hex(NLOG2E)}, v{k+1}\nv_mul_f32 v{k+2}, v{sm+1}, v{sm+1}\nv_mov_b32 v{k+3}, 0")
    a("s_mov_b64 exec, s[58:59]")
    for j in range(2):
        a(f"ds_write_b128 v7, {q(40+4*j)} offset:{G1_CONST + 256*j}")
    a("s_mov_b64 exec, -1")
    a.srd(32, 4, WS_W2, SZ_W2)
    a.srd(36, 4, WS_HM, SZ_HM)
    a("s_waitcnt lgkmcnt(0)")
    a.stamp(10)
    a("s_barrier")
    a.vm = []

    def issue_w2(st):
        slot = G2_W + (st % G2_WN) * 20480
        a(f"s_add_u32 m0, s19, {slot}\ns_nop 0")
        for i in range(4):
            a.vmem(f"buffer_load_dwordx4 v8, s[32:35], s16 offen offset:{1024*i} {SC} lds", ("w", st))
        a(f"s_add_u32 m0, s19, {slot + 4096}\ns_nop 0")
        a.vmem(f"buffer_load_dwordx4 v10, s[32:35], s16 offen {SC} lds", ("w", st))
        a("s_add_u32 s16, s16, 20480")

    def issue_hm(st):
        slot = G2_H + (st % G2_HN) * 16384
        a(f"s_add_u32 m0, s18, {slot}\ns_nop 0")
        for i in range(4):
            a.vmem(f"buffer_load_dwordx4 v9, s[36:39], s17 offen offset:{1024*i} {SC} lds", ("h", st))
        a("s_add_u32 s17, s17, 16384")

    for st in range(G2_WN):
        issue_w2(st)
    a("s_barrier")
    sk = a.newlabel("L_nopoll")
    a(f"s_cmp_lg_u32 s6, 4\ns_cbranch_scc1 {sk}")
    a("s_lshl_b32 s20, s8, 4\ns_add_u32 s20, s20, s9")
    vm_save = list(a.vm)
    a.publish(F_G, 20, 60)
    a(f"s_lshr_b32 s20, s10, 1\ns_mul_i32 s20, s20, {16*FS_}")
    a.poll(F_G, 16, 80, "s20")
    a.label(sk)
    a.vm = vm_save
    a.stamp(13)
    a("s_barrier")
    issue_hm(0); issue_hm(1)
    a.wait_vm(("h", 0))
    a("s_barrier")
    issue_hm(2); issue_hm(3)
    for s in range(12):
        if s + 1 < 12:
            a.wait_vm(("h", s + 1))
            if s + 1 >= G2_WN:
                a.wait_vm(("w", s + 1))
        a("s_barrier")
        if s + 4 < 12:
            issue_hm(s + 4)
            issue_w2(s + 4)


def main():
    a = Asm()
    hdr = open(f"cdna_kernels/{NAME}.s.ref").read().split("\n")
    for line in hdr:
        if line.startswith("; Override") or line.startswith("; grid=") or "@launch" in line:
            continue
        if not line.startswith(";"):
            break
        a.raw(line)
    if STAMPS:
        a.raw(f"; @launch kernel={KNAME} grid=(256,1,1) block=(512,1,1) lds={LDS_TOTAL}")
    else:
        a.raw(f"; @launch grid=(256,1,1) block=(512,1,1) lds={LDS_TOTAL}")
    a.raw('.amdgcn_target "amdgcn-amd-amdhsa--gfx950"\n.text')
    a.raw(f".globl {KNAME}\n.p2align 8\n.type {KNAME},@function\n{KNAME}:")
    done = "L_done"
    a("s_cmp_ge_u32 s2, 256\ns_cbranch_scc1 L_exit")
    if STAMPS:
        for i in range(16):
            a(f"s_mov_b32 s{64+i}, 0")
        a.stamp(0)
    a(f"s_load_dwordx2 s[4:5], s[0:1], {KA_WS}\ns_load_dwordx16 s[8:23], s[0:1], 0\ns_load_dwordx8 s[24:31], s[0:1], 64")
    a("v_and_b32 v1, 63, v0\nv_lshrrev_b32 v2, 6, v0\nv_lshrrev_b32 v3, 4, v1\nv_and_b32 v4, 15, v1")
    a("v_readfirstlane_b32 s6, v2")
    a("s_waitcnt lgkmcnt(0)")
    a("s_load_dword s3, s[4:5], 0")
    a("s_and_b32 s7, s6, 3")
    a.srd(92, 4, WS_FLG, SZ_FLG)
    a("s_cmp_ge_u32 s2, 160\ns_cbranch_scc1 L_aux")
    a("s_lshl_b32 s52, s2, 2\ns_add_u32 s52, s52, s7")
    kgen(a)
    a("s_cmp_ge_u32 s6, 4\ns_cbranch_scc1 L_partner")
    conv_main(a)
    a("s_branch L_mfma")
    a.label("L_partner")
    conv_partner(a)
    a("s_branch L_loader")
    a.label("L_aux")
    a.vm = []
    a("s_cmp_ge_u32 s2, 224\ns_cbranch_scc1 L_aux_rp")
    a("s_sub_u32 s52, s2, 160")
    role_ln1(a)
    a("s_cmp_ge_u32 s6, 4\ns_cbranch_scc1 L_aux_end")
    a("s_lshl_b32 s53, s52, 2\ns_add_u32 s53, s53, s6\ns_add_u32 s53, s53, 256\ns_branch L_aux_rp2")
    a.label("L_aux_rp")
    a("s_sub_u32 s53, s2, 224\ns_lshl_b32 s53, s53, 3\ns_add_u32 s53, s53, s6")
    epoch_ready(a)
    a.label("L_aux_rp2")
    role_repack(a, "L_aux_end")
    a.label("L_aux_end")
    a("s_waitcnt vmcnt(0)\ns_barrier")
    a.stamp(4)
    a("s_cmp_ge_u32 s6, 4\ns_cbranch_scc1 L_aux_ld\ns_branch L_mfma")
    a.label("L_aux_ld")
    a("s_cmp_lg_u32 s6, 4\ns_cbranch_scc1 L_loader\ns_sub_u32 s52, s2, 160")
    a.publish(F_R, 52, 10)
    a.label("L_loader")
    gemm_loader_waves(a, done)
    a(f"s_branch {done}")
    a.label("L_mfma")
    gemm_mfma_waves(a, done)
    a.label(done)
    if STAMPS:
        a("s_waitcnt vmcnt(0)")
        a.stamp(15)
        a.srd(88, 4, WS_STAMP, 262144)
        a("v_lshrrev_b32 v1, 6, v0\nv_lshlrev_b32 v1, 6, v1\ns_lshl_b32 s82, s2, 9\nv_add_u32 v1, s82, v1")
        for i in range(16):
            a(f"v_mov_b32 v{4+i}, s{64+i}")
        a("s_mov_b64 exec, 1")
        for i in range(4):
            a(f"buffer_store_dwordx4 {q(4+4*i)}, v1, s[88:91], 0 offen offset:{16*i}")
    a.label("L_exit")
    a("s_endpgm")
    a.raw(f""".section .rodata,"a"
.p2align 6
.amdhsa_kernel {KNAME}
  .amdhsa_next_free_vgpr 244
  .amdhsa_next_free_sgpr 96
  .amdhsa_accum_offset 244
  .amdhsa_group_segment_fixed_size 0
  .amdhsa_kernarg_size 112
  .amdhsa_user_sgpr_count 2
  .amdhsa_user_sgpr_kernarg_segment_ptr 1
  .amdhsa_system_sgpr_workgroup_id_x 1
.end_amdhsa_kernel""")
    out = sys.argv[1] if len(sys.argv) > 1 else f"cdna_kernels/{NAME}.s"
    open(out, "w").write("\n".join(a.l) + "\n")


if __name__ == "__main__":
    main()
```

```python
import sys, os, struct

NAME = "sequential_preLN__ssm_conv_s4d__glu_gated_swiglu__prompt"
KNAME = NAME + "_kernel"
KA_WS = 104

WS_FLG = 0
FS_ = 128
F_L, F_X, F_R2, F_C, F_G, F_R = 0x1000, 0x3000, 0x5000, 0x8000, 0x10000, 0x18000
SZ_FLG = 0x30000
WS_UT = 0x100000
WS_XT = 0x400000
WS_HT = 0x700000
WS_HM = 0xA00000
WS_W13 = 0x1000000
WS_W2 = 0x1400000
WS_CSP = 0x1600000
WS_STAMP = 0x4000000
SZ_T = 640 * 4096
SZ_TP = SZ_T
T_BLK = 40960
SZ_HM = 32 * 48 * 4096
SZ_W13 = 16 * 20 * 12288
SZ_W2 = 8 * 48 * 5120
SZ_CSP = 320 * 768 + 1024

STAMPS = int(os.environ.get('STAMPS', '0'))
EXP = int(os.environ.get('EXP', '0'))
LOG2E, NLOG2E, INV2PI, INV640, EPS, ONES_BF = 0x3FB8AA3B, 0xBFB8AA3B, 0x3E22F983, 0x3ACCCCCD, 0x3727C5AC, 0x3F803F80
POLL_MAX = 400000
CODE_KB = 30
SLEEP = int(os.environ.get('SLEEP', '1'))
SC = "sc1"
SCL = "" if EXP & 8 else "sc1"


def f32bits(x):
    return struct.unpack("<I", struct.pack("<f", x))[0]


def q(r, n=4):
    return f"v[{r}:{r+n-1}]"


class Asm:
    def __init__(self):
        self.l = []
        self.vm = []
        self.uid = 0

    def __call__(self, s):
        for x in s.split("\n"):
            x = x.strip()
            if x:
                self.l.append("    " + x)

    def label(self, s):
        self.l.append(s + ":")

    def raw(self, s):
        self.l.append(s)

    def newlabel(self, p="L"):
        self.uid += 1
        return f"{p}_{self.uid}"

    def vmem(self, s, tag=None):
        self(s)
        self.vm.append(tag)

    def wait_vm(self, tag):
        idx = max(i for i, t in enumerate(self.vm) if t == tag)
        n = len(self.vm) - 1 - idx
        assert n <= 63, n
        self(f"s_waitcnt vmcnt({n})")

    def srd(self, sd, lo, off, size):
        if off == 0:
            self(f"s_mov_b32 s{sd}, s{lo}\ns_mov_b32 s{sd+1}, s{lo+1}")
        else:
            self(f"s_add_u32 s{sd}, s{lo}, {hex(off)}\ns_addc_u32 s{sd+1}, s{lo+1}, 0")
        self(f"s_mov_b32 s{sd+2}, {size}\ns_mov_b32 s{sd+3}, 0x20000")

    def stamp(self, i):
        if STAMPS:
            self(f"s_memrealtime s[80:81]\ns_waitcnt lgkmcnt(0)\ns_mov_b32 s{64+i}, s80")

    def unpack(self, dlo, src):
        if dlo == src:
            self(f"v_and_b32 v{dlo+1}, 0xffff0000, v{src}\nv_lshlrev_b32 v{dlo}, 16, v{src}")
        else:
            self(f"v_lshlrev_b32 v{dlo}, 16, v{src}\nv_and_b32 v{dlo+1}, 0xffff0000, v{src}")

    def rnd(self, d, s):
        self(f"v_cvt_pk_bf16_f32 v{d}, v{s}, v{s}\nv_lshlrev_b32 v{d}, 16, v{d}")

    def poll(self, off, n, vt, soff=None):
        L, D = self.newlabel("L_poll"), self.newlabel("L_polld")
        nl = (n + 63) // 64
        for i in range(nl):
            self(f"v_add_u32 v{vt+i}, {64*i}, v1\nv_min_u32 v{vt+i}, {n-1}, v{vt+i}\nv_mul_u32_u24 v{vt+i}, {FS_}, v{vt+i}")
        if soff is None:
            self(f"s_mov_b32 s86, {off}")
        else:
            self(f"s_add_u32 s86, {soff}, {off}")
        self("s_mov_b32 s84, 0")
        self.label(L)
        for i in range(nl):
            self(f"buffer_load_dword v{vt+3+i}, v{vt+i}, s[92:95], s86 offen {SC}")
        self("s_add_u32 s84, s84, 1\ns_waitcnt vmcnt(0)")
        for i in range(nl):
            self(f"v_xor_b32 v{vt+3+i}, s3, v{vt+3+i}")
        for i in range(1, nl):
            self(f"v_or_b32 v{vt+3}, v{vt+3}, v{vt+3+i}")
        self(f"v_cmp_ne_u32 vcc, 0, v{vt+3}\ns_cbranch_vccz {D}")
        self(f"s_sleep {SLEEP}\ns_cmp_lt_u32 s84, {POLL_MAX}\ns_cbranch_scc1 {L}")
        self.label(D)
        self.vm = []

    def publish(self, off, sidx, vt):
        self(f"s_mul_i32 s85, s{sidx}, {FS_}\ns_add_u32 s85, s85, {off}\nv_mov_b32 v{vt}, s3\nv_mov_b32 v{vt+1}, s85\ns_mov_b64 exec, 1")
        self.vmem(f"buffer_store_dword v{vt}, v{vt+1}, s[92:95], 0 offen {SC}")
        self("s_mov_b64 exec, -1")


def ln_finish(a, vs, vq, vt, vnegm, vrinv):
    a(f"v_mul_f32 v{vs}, {hex(INV640)}, v{vs}")
    a(f"v_mul_f32 v{vq}, {hex(INV640)}, v{vq}")
    a(f"v_fma_f32 v{vq}, -v{vs}, v{vs}, v{vq}")
    a(f"v_max_f32 v{vq}, 0, v{vq}")
    a.rnd(vnegm, vs)
    a(f"v_xor_b32 v{vnegm}, 0x80000000, v{vnegm}")
    a.rnd(vt, vq)
    a(f"v_add_f32 v{vt}, {hex(EPS)}, v{vt}")
    a.rnd(vt, vt)
    a(f"v_sqrt_f32 v{vt}, v{vt}\ns_nop 0")
    a.rnd(vt, vt)
    a(f"v_rcp_f32 v{vrinv}, v{vt}\ns_nop 0")


def cmul(a, d, x, y, t):
    a(f"v_pk_mul_f32 {q(t,2)}, {q(x,2)}, {q(y,2)} op_sel_hi:[1,0]")
    a(f"v_pk_fma_f32 {q(d,2)}, {q(x,2)}, {q(y,2)}, {q(t,2)} op_sel:[1,1,0] op_sel_hi:[0,1,1] neg_lo:[1,0,0]")


def epoch_ready(a):
    a("s_waitcnt lgkmcnt(0)\ns_add_u32 s3, s3, 1")


LDS_CNT = 163824


def last_of4_publish(a, word, off, sidx, vt):
    sk = a.newlabel("L_notlast")
    a(f"v_mov_b32 v{vt}, {LDS_CNT + 4*word}\nv_mov_b32 v{vt+1}, 1\ns_mov_b64 exec, 1")
    a(f"ds_add_rtn_u32 v{vt+1}, v{vt}, v{vt+1}\ns_mov_b64 exec, -1\ns_waitcnt lgkmcnt(0)")
    a(f"v_readfirstlane_b32 s85, v{vt+1}\ns_nop 3\ns_cmp_lg_u32 s85, 3\ns_cbranch_scc1 {sk}")
    a.publish(off, sidx, vt)
    a.label(sk)


LN_RS = 1312
LN_U = 32 * LN_RS


def role_ln1(a):
    a("v_lshl_add_u32 v5, v2, 2, v3")
    a(f"s_mul_i32 s53, s52, {32*1280}")
    a("v_mul_u32_u24 v6, 1280, v5\nv_lshl_add_u32 v6, v4, 4, v6\nv_add_u32 v6, s53, v6")
    a.srd(32, 8, 0, SZ_T)
    X = 16
    for j in range(5):
        a.vmem(f"buffer_load_dwordx4 {q(X+4*j)}, v6, s[32:35], 0 offen offset:{j*256}", ("x", j))
    a(f"v_mul_u32_u24 v7, {LN_RS}, v5\nv_lshl_add_u32 v7, v4, 4, v7")
    a(f"s_mov_b32 s54, {hex(ONES_BF)}")
    a.srd(36, 4, WS_UT, SZ_TP)
    a.srd(40, 4, WS_XT, SZ_TP)
    a("v_bfe_u32 v8, v1, 2, 2\nv_lshl_add_u32 v8, v3, 3, v8")
    a(f"v_mul_u32_u24 v8, {LN_RS}, v8\nv_and_b32 v9, 3, v1\nv_lshl_add_u32 v8, v9, 3, v8")
    a("v_mul_u32_u24 v9, 160, v2\nv_add_u32 v8, v8, v9")
    a("v_mul_u32_u24 v9, 80, v2\nv_add_u32 v9, v9, v4\nv_lshlrev_b32 v9, 6, v9\nv_lshl_add_u32 v9, v3, 4, v9")
    a(f"s_mul_i32 s53, s52, {T_BLK}\ns_add_u32 s55, s53, 4096")
    U, R, XF = 36, 56, 96
    S0, S1, Q0, Q1, NM, RI, TT = 80, 81, 82, 83, 84, 86, 88
    a(f"v_mov_b32 v{S0}, 0\nv_mov_b32 v{S1}, 0\nv_mov_b32 v{Q0}, 0\nv_mov_b32 v{Q1}, 0")
    epoch_ready(a)
    for j in range(5):
        a.wait_vm(("x", j))
        if j == 0:
            a.stamp(1)
        for i in range(4 * j, 4 * j + 4):
            a(f"v_dot2c_f32_bf16 v{S0 + (i&1)}, s54, v{X+i}")
            a(f"v_dot2c_f32_bf16 v{Q0 + (i&1)}, v{X+i}, v{X+i}")
            a.unpack(XF + 2 * i, X + i)
        a(f"ds_write_b128 v7, {q(X+4*j)} offset:{j*256}")
    a("s_nop 1")
    a(f"v_add_f32 v{S0}, v{S0}, v{S1}\nv_add_f32 v{Q0}, v{Q0}, v{Q1}")
    for sh in (8, 4, 2, 1):
        a("s_nop 1")
        a(f"v_add_f32_dpp v{S0}, v{S0}, v{S0} row_ror:{sh} row_mask:0xf bank_mask:0xf")
        a(f"v_add_f32_dpp v{Q0}, v{Q0}, v{Q0} row_ror:{sh} row_mask:0xf bank_mask:0xf")
    ln_finish(a, S0, Q0, TT, NM, RI)
    for i in range(20):
        t = XF + 2 * i
        a(f"v_pk_add_f32 {q(t,2)}, {q(t,2)}, {q(NM,2)} op_sel_hi:[1,0]")
        a(f"v_cvt_pk_bf16_f32 v{t}, v{t}, v{t+1}")
        a.unpack(t, t)
        a(f"v_pk_mul_f32 {q(t,2)}, {q(t,2)}, {q(RI,2)} op_sel_hi:[1,0]")
        a(f"v_cvt_pk_bf16_f32 v{U+i}, v{t}, v{t+1}")
        if (i & 3) == 3:
            a(f"ds_write_b128 v7, {q(U+i-3)} offset:{LN_U + (i//4)*256}")
    a("s_waitcnt lgkmcnt(0)\ns_barrier")
    a.stamp(2)
    for arr in range(2):
        RR = R if arr == 0 else X
        for i in range(5):
            a(f"ds_read_b64_tr_b16 {q(RR+4*i,2)}, v8 offset:{LN_U*(1-arr) + 32*i}")
            a(f"ds_read_b64_tr_b16 {q(RR+4*i+2,2)}, v8 offset:{LN_U*(1-arr) + 32*i + 4*LN_RS}")
        if arr == 0:
            for i in range(5):
                a(f"s_waitcnt lgkmcnt({8-2*i})")
                a.vmem(f"buffer_store_dwordx4 {q(RR+4*i)}, v9, s[36:39], {'s53' if i < 4 else 's55'} offen offset:{1024*(i%4)} {SC}")
    for arr in range(2):
        a("s_waitcnt vmcnt(0) lgkmcnt(0)\ns_barrier")
        if arr == 0:
            a.stamp(3)
        sk = a.newlabel("L_lnp")
        a(f"s_cmp_lg_u32 s6, 7\ns_cbranch_scc1 {sk}")
        a.publish(F_X if arr else F_L, 52, 10)
        a.label(sk)
        if arr == 0:
            a("s_barrier")
            for i in range(5):
                a.vmem(f"buffer_store_dwordx4 {q(X+4*i)}, v9, s[40:43], {'s53' if i < 4 else 's55'} offen offset:{1024*(i%4)} {SC}")


W13_J = [[0, 1, 2], [4, 5, 3]]


RP_BASE = 2 * LN_U


def rp13_issue(a):
    a("s_mul_i32 s57, s55, 205\ns_lshr_b32 s57, s57, 12")
    a("s_mul_i32 s58, s57, 20\ns_sub_u32 s58, s55, s58")
    a.srd(44, 24, 0, 640 * 3072)
    a.srd(48, 26, 0, 640 * 3072)
    a(f"s_mul_i32 s57, s57, 192\ns_mul_i32 s58, s58, {32*3072}\ns_add_u32 s57, s57, s58")
    for i in range(6):
        a(f"v_add_u32 v10, {64*i}, v1\nv_mul_u32_u24 v11, 43691, v10\nv_lshrrev_b32 v11, 19, v11")
        a(f"v_mul_u32_u24 v12, 12, v11\nv_sub_u32 v12, v10, v12\nv_mul_u32_u24 v11, 3072, v11\nv_lshl_add_u32 v13, v12, 4, v11")
        for mat in range(2):
            a(f"s_add_u32 m0, s56, {mat*6144 + i*1024}\ns_nop 0")
            a(f"buffer_load_dwordx4 v13, s[{44+4*mat}:{47+4*mat}], s57 offen lds")


def rp13_finish(a):
    a("v_lshlrev_b32 v5, 4, v1")
    a("v_bfe_u32 v6, v1, 2, 2\nv_lshl_add_u32 v6, v3, 2, v6\nv_and_b32 v7, 3, v1")
    a("v_mul_u32_u24 v16, 192, v6\nv_lshl_add_u32 v16, v7, 3, v16\nv_add_u32 v16, s56, v16")
    OH, ACC, F = 32, 80, 84
    for t in range(12):
        wn, mat, jj = t // 6, (t % 6) // 3, t % 3
        off = mat * 6144 + 32 * W13_J[wn][jj]
        a(f"ds_read_b64_tr_b16 {q(F+4*t,2)}, v16 offset:{off}")
        a(f"ds_read_b64_tr_b16 {q(F+4*t+2,2)}, v16 offset:{off + 16*192}")
    a.srd(40, 4, WS_W13, SZ_W13)
    a.srd(44, 4, WS_CSP, SZ_CSP)
    a("s_mul_i32 s57, s55, 12288\ns_add_u32 s58, s57, 4096\ns_add_u32 s59, s57, 8192")
    a("s_waitcnt lgkmcnt(0)")
    for t in range(12):
        a(f"buffer_store_dwordx4 {q(F+4*t)}, v5, s[40:43], s{57 + t//4} offen offset:{1024*(t%4)} {SC}")
    a(f"v_mov_b32 v8, {hex(ONES_BF)}")
    a("v_lshlrev_b32 v9, 6, v4\nv_lshl_add_u32 v9, v3, 4, v9\ns_mul_i32 s60, s55, 768")
    for t in range(12):
        a(f"v_cmp_eq_u32 vcc, {t}, v4\ns_nop 1")
        for i in range(4):
            a(f"v_cndmask_b32 v{OH+4*t+i}, 0, v8, vcc")
    a("s_nop 1")
    for t in range(12):
        a(f"v_mfma_f32_16x16x32_bf16 {q(ACC)}, {q(F+4*t)}, {q(OH+4*t)}, {q(ACC) if t else 0}")
    a("s_nop 7\nv_cmp_gt_u32 vcc, 12, v4\ns_and_saveexec_b64 s[82:83], vcc")
    a(f"buffer_store_dwordx4 {q(ACC)}, v9, s[44:47], s60 offen {SC}")
    a(f"s_mov_b64 exec, s[82:83]")


def role_rp2(a):
    a.vm = []
    a("s_mul_i32 s54, s6, 12288")
    a("v_lshlrev_b32 v5, 4, v1")
    a("v_bfe_u32 v6, v1, 2, 2\nv_lshl_add_u32 v6, v3, 2, v6\nv_and_b32 v7, 3, v1")
    a("s_mul_i32 s55, s53, 171\ns_lshr_b32 s55, s55, 12")
    a("s_mul_i32 s56, s55, 24\ns_sub_u32 s56, s53, s56")
    a.srd(32, 28, 0, 1536 * 1280)
    a(f"s_mul_i32 s57, s55, 160\ns_mul_i32 s58, s56, {64*1280}\ns_add_u32 s57, s57, s58\ns_add_u32 s58, s57, {32*1280}")
    for i in range(5):
        a(f"v_add_u32 v8, {64*i}, v1\nv_mul_u32_u24 v9, 52429, v8\nv_lshrrev_b32 v9, 19, v9")
        a(f"v_mul_u32_u24 v16, 10, v9\nv_sub_u32 v16, v8, v16\nv_mul_u32_u24 v9, 1280, v9\nv_lshl_add_u32 v{10+i}, v16, 4, v9")
        for un in range(2):
            a(f"s_add_u32 m0, s54, {un*5120 + i*1024}\ns_nop 0")
            a.vmem(f"buffer_load_dwordx4 v{10+i}, s[32:35], s{57+un} offen lds", "w")
    a.srd(40, 4, WS_W2, SZ_W2)
    a("s_mul_i32 s60, s56, 171\ns_lshr_b32 s60, s60, 9\ns_mul_i32 s60, s60, 3\ns_sub_u32 s60, s56, s60")
    for un in range(2):
        a(f"s_cmp_eq_u32 s60, {2 if un == 0 else 0}\ns_cselect_b32 s61, 640, 0\ns_mul_i32 s62, s61, 3\ns_sub_u32 s62, 2560, s62")
        a(f"v_mul_u32_u24 v16, 160, v6\nv_mul_u32_u24 v8, s61, v3\nv_add3_u32 v16, v16, v8, s54")
        b = 18 + 4 * un
        a(f"v_lshl_add_u32 v{b}, v7, 4, v16\nv_lshl_add_u32 v{b+1}, v7, 3, v16\nv_add_u32 v{b+2}, s62, v{b}\nv_add_u32 v{b+3}, s62, v{b+1}")
    a("s_mul_i32 s57, s53, 10240\ns_add_u32 s58, s57, 4096\ns_add_u32 s59, s57, 8192")
    a.poll(F_L, 64, 26)
    F = 32
    for k in range(10):
        un, t = divmod(k, 5)
        b = 18 + 4 * un + (0 if t < 4 else 1)
        off = un * 5120 + ((t >> 1) * 64 + (t & 1) * 8 if t < 4 else 128)
        a(f"ds_read_b64_tr_b16 {q(F+4*k,2)}, v{b} offset:{off}")
        a(f"ds_read_b64_tr_b16 {q(F+4*k+2,2)}, v{b+2} offset:{off}")
    a("s_waitcnt lgkmcnt(0)")
    for k in range(10):
        a.vmem(f"buffer_store_dwordx4 {q(F+4*k)}, v5, s[40:43], s{57 + k//4} offen offset:{1024*(k%4)} {SC}")


TB_RS = 272
TB_SZ = 57 * TB_RS
CV_A = 64
CV_CS = 4160
CV_U = CV_A + 4 * CV_CS
CV_WAVE = CV_U + 4608
KP_BASE = 126976
PART_BASE = 145408


def kgen(a):
    a.vm = []
    a(f"s_mul_i32 s53, s6, {TB_SZ}")
    a("s_lshr_b32 s54, s6, 2")
    a("s_mul_i32 s55, s52, 384\ns_lshl_b32 s56, s54, 7\ns_add_u32 s55, s55, s56\nv_lshlrev_b32 v5, 1, v1")
    a("s_lshl_b32 s56, s52, 1\nv_mov_b32 v6, 0")
    PR, DT = 8, 92
    PR2 = 96
    a.srd(48, 18, 0, 1280)
    a.vmem(f"buffer_load_ushort v{DT}, v6, s[48:51], s56 offen", "par")
    for i in range(4):
        a.srd(32 + 4 * i, 10 + 2 * i, 0, 640 * 192 * 2)
        a.vmem(f"buffer_load_ushort v{PR+i}, v5, s[{32+4*i}:{35+4*i}], s55 offen", "par")
    for i in range(4):
        a.vmem(f"buffer_load_ushort v{PR2+i}, v5, s[{32+4*i}:{35+4*i}], s55 offen offset:256", "par2")
    a.srd(48, 20, 0, 1280)
    a.vmem("buffer_load_ushort v240, v6, s[48:51], s56 offen", "par2")
    VW, VR, DK = 6, 7, 80
    a(f"v_lshlrev_b32 v{VW}, 2, v1\nv_add_u32 v{VW}, s53, v{VW}")
    a(f"v_mul_u32_u24 v{VR}, {TB_RS}, v4\nv_lshl_add_u32 v{VR}, v3, 4, v{VR}\nv_add_u32 v{VR}, s53, v{VR}")
    for i in range(12):
        a(f"v_mov_b32 v{DK+i}, 0")
    epoch_ready(a)
    a.wait_vm("par")
    a.stamp(1)
    a(f"v_lshlrev_b32 v{DT}, 16, v{DT}\nv_mul_f32 v{DT}, {hex(LOG2E)}, v{DT}\nv_exp_f32 v{DT}, v{DT}\ns_nop 0")
    a.rnd(DT, DT)
    a.label("L_kgen")
    A2, W, Z8, Y, GC, T0, T1, T2, XT = 16, 17, 18, 20, 22, 24, 26, 28, 30
    E = [None] + [32 + 2 * i for i in range(7)]
    G1 = 46
    PK = [48, 49, 50, 51]
    pkc = [0]

    def put(row, re, im):
        r = PK[pkc[0] % 4]
        pkc[0] += 1
        a(f"v_cvt_pk_bf16_f32 v{r}, {re}, {im}")
        a(f"ds_write_b32 v{VW}, v{r} offset:{row*TB_RS}")

    def putp(row, p):
        put(row, f"v{p}", f"v{p+1}")

    a(f"v_lshlrev_b32 v{PR}, 16, v{PR}\nv_mul_f32 v{A2}, {hex(LOG2E)}, v{PR}\nv_exp_f32 v{A2}, v{A2}")
    for i in range(1, 4):
        a(f"v_lshlrev_b32 v{PR+i}, 16, v{PR+i}")
    a.rnd(A2, A2)
    a(f"v_mul_f32 v{W}, v{PR+1}, v{DT}")
    a(f"v_mul_f32 v{A2}, v{A2}, v{DT}")
    a(f"v_mul_f32 v{W}, {hex(INV2PI)}, v{W}")
    a(f"v_mul_f32 v{A2}, {hex(NLOG2E)}, v{A2}")
    a(f"v_rndne_f32 v{T0}, v{W}")
    a(f"v_mul_f32 v{Y}, v{PR+2}, v{DT}\nv_mul_f32 v{Y+1}, v{PR+3}, v{DT}")
    a(f"v_sub_f32 v{W}, v{W}, v{T0}")
    a(f"v_mul_f32 v{Y}, 2.0, v{Y}\nv_mul_f32 v{Y+1}, -2.0, v{Y+1}")

    def base(dst, mult, conj, T):
        m = {1: "1.0", 8: hex(0x41000000), 128: hex(0x43000000)}[mult]
        a(f"v_mul_f32 v{T}, {m}, v{A2}\nv_mul_f32 v{T+1}, {m}, v{W}")
        a(f"v_exp_f32 v{T}, v{T}\nv_cos_f32 v{dst}, v{T+1}\nv_sin_f32 v{dst+1}, v{T+1}\ns_nop 0")
        a(f"v_mul_f32 v{dst}, v{dst}, v{T}")
        a(f"v_mul_f32 v{dst+1}, {'-' if conj else ''}v{dst+1}, v{T}")

    base(E[1], 1, False, T0)
    base(Z8, 8, True, T1)
    base(G1, 128, False, T2)
    put(0, "1.0", "0")
    putp(1, E[1])
    putp(41, Y)
    cmul(a, E[2], E[1], E[1], T0)
    putp(8, G1)
    cmul(a, E[3], E[2], E[1], T0)
    cmul(a, E[4], E[2], E[2], T1)
    putp(2, E[2])
    cmul(a, E[5], E[4], E[1], T0)
    cmul(a, E[6], E[4], E[2], T1)
    cmul(a, E[7], E[4], E[3], T2)
    for e in range(3, 8):
        putp(e, E[e])
    ops = []
    for e in range(1, 8):
        ops.append(("x", 8 + e, G1, E[e]))
    for g in range(2, 17):
        ops.append(("g", g))
        if g in (2, 3):
            for i, e in enumerate((2, 4, 6)):
                ops.append(("x", 16 + (g - 2) * 4 + 1 + i, GC, E[e]))
        elif g < 8:
            ops.append(("x", 24 + (g - 4) * 2 + 1, GC, E[4]))
    yb = 1
    for k, op in enumerate(ops):
        if op[0] == "x":
            x = XT if (k & 1) else T2
            cmul(a, x, op[2], op[3], x)
            putp(op[1], x)
        else:
            g = op[1]
            cmul(a, GC, G1 if g == 2 else GC, G1, T1)
            row = 16 + (g - 2) * 4 if g < 4 else (24 + (g - 4) * 2 if g < 8 else 32 + (g - 8))
            putp(row, GC)
        if (k & 1) and yb < 16:
            cmul(a, Y, Y, Z8, T0)
            putp(41 + yb, Y)
            yb += 1
    assert yb == 16
    FR = 16
    a("s_waitcnt lgkmcnt(0)")
    for st in range(4):
        f = FR + 16 * st
        if st == 3:
            a("s_waitcnt lgkmcnt(8)")
        a(f"ds_read_b128 {q(f)}, v{VR} offset:{41*TB_RS + 64*st}")
        for t in range(3):
            a(f"ds_read_b128 {q(f+4+4*t)}, v{VR} offset:{16*t*TB_RS + 64*st}")
    a("s_waitcnt vmcnt(0)")
    for i in range(4):
        a(f"v_mov_b32 v{PR+i}, v{PR2+i}")
    for st in range(4):
        f = FR + 16 * st
        a(f"s_waitcnt lgkmcnt({12 - 4*st})")
        for t in range(3):
            a(f"v_mfma_f32_16x16x32_bf16 {q(DK+4*t)}, {q(f+4+4*t)}, {q(f)}, {q(DK+4*t)}")
    a("s_add_u32 s54, s54, 1\ns_cmp_lt_u32 s54, 2\ns_cbranch_scc1 L_kgen")
    a.vm = []


def conv_main(a):
    DK = 80
    a(f"s_mul_i32 s53, s7, {CV_WAVE}")
    a(f"s_mul_i32 s54, s7, 4224\ns_add_u32 s54, s54, {KP_BASE}")
    a(f"s_mul_i32 s55, s7, 3072\ns_add_u32 s55, s55, {PART_BASE}")
    a("v_lshlrev_b32 v7, 4, v1\nv_add_u32 v5, s55, v7")
    a("v_lshlrev_b32 v18, 4, v4\nv_add_u32 v18, s54, v18")
    a("v_lshrrev_b32 v16, 1, v3\nv_and_b32 v17, 1, v3")
    a("v_lshlrev_b32 v19, 8, v16\nv_lshl_add_u32 v19, v17, 3, v19\nv_add_u32 v19, v19, v18")
    a("v_cmp_gt_u32 vcc, 2, v3")
    a("v_lshlrev_b32 v20, 8, v3\nv_add_u32 v20, 512, v20\nv_lshlrev_b32 v21, 9, v3")
    a("v_cndmask_b32 v20, v21, v20, vcc\nv_add_u32 v20, v20, v18")
    for i in range(1, 4):
        a(f"v_mov_b32 v22, {4*i}\nv_mov_b32 v23, {256*(i>>1) + 8*(i&1)}")
        a(f"v_cndmask_b32 v22, v23, v22, vcc\nv_add_u32 v{23+i}, v20, v22")
    a("v_lshlrev_b32 v27, 10, v3\nv_lshl_add_u32 v27, v4, 4, v27\nv_add_u32 v27, 2048, v27\ns_movk_i32 s56, 4112")
    for i in range(4):
        a(f"v_add_u32 v{28+i}, {256*i}, v27\nv_min_u32 v{28+i}, s56, v{28+i}\nv_add_u32 v{28+i}, s54, v{28+i}")
    a("v_sub_u32 v16, 4094, v7\nv_cvt_f32_u32 v16, v16")
    a("v_cmp_eq_u32 s[58:59], 63, v1")
    a("v_add_u32 v17, s53, v7")
    a.stamp(2)
    a("s_barrier")
    for t in range(3):
        a(f"ds_read_b128 {q(40+4*t)}, v5 offset:{1024*t}")
    a("s_waitcnt lgkmcnt(0)")
    for i in range(6):
        a(f"v_pk_add_f32 {q(DK+2*i,2)}, {q(DK+2*i,2)}, {q(40+2*i,2)}")
    for i in range(6):
        a(f"v_cvt_pk_bf16_f32 v{32+i}, v{DK+2*i}, v{DK+2*i+1}")
    a("ds_write_b64 v19, v[32:33]")
    a("ds_write_b16 v20, v34\nds_write_b16_d16_hi v24, v34\nds_write_b16 v25, v35\nds_write_b16_d16_hi v26, v35")
    a("ds_write_b16 v28, v36\nds_write_b16_d16_hi v29, v36\nds_write_b16 v30, v37\nds_write_b16_d16_hi v31, v37")
    a("v_sub_u32 v38, 4080, v7\nv_add_u32 v38, s54, v38")
    a("v_and_b32 v39, 1, v1\nv_cmp_eq_u32 s[60:61], 0, v39")
    a("v_cndmask_b32 v39, 0, 8, s[58:59]\nv_sub_u32 v40, v38, v39\nv_lshrrev_b32 v39, 1, v39\nv_sub_u32 v41, v38, v39")
    a("v_subrev_u32 v38, 2056, v38\nv_subrev_u32 v40, 2056, v40\nv_subrev_u32 v41, 2056, v41")
    AD = 20
    for m in range(0, 12, 2):
        f0 = 64 + m
        a(f"v_add_f32 v{f0}, {hex(f32bits(-3072.0 - 2.0*m))}, v16\nv_add_f32 v{f0+1}, {hex(f32bits(-3072.0 - 2.0*(m+1)))}, v16")
        a(f"v_cvt_pk_bf16_f32 v{f0}, v{f0}, v{f0+1}")
        a.unpack(f0, f0)
        a(f"v_cvt_u32_f32 v{AD+m}, v{f0}\nv_cvt_u32_f32 v{AD+m+1}, v{f0+1}")
        a(f"v_add_u32 v{AD+m}, s54, v{AD+m}\nv_add_u32 v{AD+m+1}, s54, v{AD+m+1}")
    a("s_waitcnt lgkmcnt(0)")
    G = 96
    for r in range(2):
        o = 2056 - 1024 * r
        a(f"ds_read_u16 v{G+4*r}, v38 offset:{o+16}\nds_read_u16 v{G+4*r+1}, v38 offset:{o}")
        a(f"ds_read_u16 v{G+4*r+2}, v{40 if r else 38} offset:{o}")
    o = 2056 - 2048
    a(f"ds_read_u16 v{G+8}, v38 offset:{o+16}\nds_read_u16 v{G+9}, v38 offset:{o+8}\nds_read_u16 v{G+10}, v38 offset:{o}")
    a(f"ds_read_u16 v{G+11}, v41 offset:{o}\nds_read_u16 v{G+12}, v38 offset:{o-8}")
    D = 32
    for m in range(6):
        a(f"ds_read_u16 v{D+m}, v{AD+2*m}")
        if m < 5:
            a(f"ds_read_u16 v{52+m}, v{AD+2*m+1}")

    def wr(r, c0, c1, c2, c3):
        for k, c in enumerate((c0, c1, c2, c3)):
            a(f"ds_write_b128 v17, {q(c)} offset:{CV_A + k*CV_CS + 1024*r}")

    a("s_waitcnt lgkmcnt(15)\ns_waitcnt lgkmcnt(11)")
    for r in range(2):
        A, B, B2 = G + 4 * r, G + 4 * r + 1, G + 4 * r + 2
        Q = 112 + 16 * r
        a(f"v_cndmask_b32 v{G+4*r+3}, v{B}, v{A}, s[60:61]")
        W3 = G + 4 * r + 3
        a(f"v_lshl_or_b32 v{Q}, v{A}, 16, v{A}\nv_lshl_or_b32 v{Q+1}, v{W3}, 16, v{A}\nv_lshl_or_b32 v{Q+2}, v{B}, 16, v{B}")
        a(f"v_mov_b32 v{Q+3}, v{Q+2}\nv_mov_b32 v{Q+4}, v{Q+1}\nv_mov_b32 v{Q+5}, v{Q+2}\nv_mov_b32 v{Q+6}, v{Q+2}\nv_mov_b32 v{Q+7}, v{Q+2}")
        a(f"v_mov_b32 v{Q+8}, v{Q}\nv_lshl_or_b32 v{Q+9}, v{B}, 16, v{W3}\nv_mov_b32 v{Q+10}, v{Q+2}\nv_mov_b32 v{Q+11}, v{Q+2}")
        a(f"v_mov_b32 v{Q+12}, v{Q+9}\nv_mov_b32 v{Q+13}, v{Q+2}\nv_mov_b32 v{Q+14}, v{Q+2}\nv_lshl_or_b32 v{Q+15}, v{B2}, 16, v{B}")
        wr(r, Q + 12, Q + 4, Q + 8, Q)
    P_, Q_, R_, R2, S_ = G + 8, G + 9, G + 10, G + 11, G + 12
    Q = 144
    a(f"v_lshl_or_b32 v{Q}, v{P_}, 16, v{P_}\nv_lshl_or_b32 v{Q+1}, v{Q_}, 16, v{Q_}\nv_lshl_or_b32 v{Q+2}, v{R_}, 16, v{Q_}\nv_lshl_or_b32 v{Q+3}, v{R_}, 16, v{R_}")
    a(f"v_mov_b32 v{Q+4}, v{Q+1}\nv_mov_b32 v{Q+5}, v{Q+2}\nv_mov_b32 v{Q+6}, v{Q+3}\nv_lshl_or_b32 v{Q+7}, v{R2}, 16, v{R_}")
    a(f"v_lshl_or_b32 v{Q+8}, v{Q_}, 16, v{P_}\nv_mov_b32 v{Q+9}, v{Q+1}\nv_mov_b32 v{Q+10}, v{Q+3}\nv_mov_b32 v{Q+11}, v{Q+3}")
    a(f"v_mov_b32 v{Q+12}, v{Q+1}\nv_mov_b32 v{Q+13}, v{Q+3}\nv_mov_b32 v{Q+14}, v{Q+3}\nv_lshl_or_b32 v{Q+15}, v{S_}, 16, v{R2}")
    wr(2, Q + 12, Q + 4, Q + 8, Q)
    a("s_waitcnt lgkmcnt(12)")
    for m in range(5):
        a(f"v_lshl_or_b32 v{D+m}, v{52+m}, 16, v{D+m}")
    a(f"v_cndmask_b32 v{D+4}, v{D+4}, 0, s[58:59]\nv_cndmask_b32 v{D+5}, v{D+5}, 0, s[58:59]")
    C1, C2, C0 = 40, 44, 48
    for m in range(4):
        a(f"v_mov_b32 v{C1+m}, v{D+1+m}")
        a(f"v_alignbit_b32 v{C2+m}, v{D+m+1}, v{D+m}, 16")
        a(f"v_alignbit_b32 v{C0+m}, v{D+m+2}, v{D+m+1}, 16")
    wr(3, C0, C1, C2, D)
    ACC, AS, FS, VA, VF = 16, [48, 112], [80, 144], 10, 11
    T1, XF, DSV = 176, 208, 240
    a(f"v_and_b32 v5, 3, v4\nv_mul_u32_u24 v5, {CV_CS}, v5\nv_lshrrev_b32 v6, 2, v4\nv_lshlrev_b32 v6, 3, v6\nv_sub_u32 v5, v5, v6")
    a(f"v_lshlrev_b32 v6, 4, v3\nv_sub_u32 v5, v5, v6\nv_add_u32 v5, {CV_A + 4104 - 3584 - 448}, v5\nv_add_u32 v{VA}, s53, v5")
    a(f"v_lshlrev_b32 v5, 5, v4\nv_sub_u32 v5, v5, v6\nv_add_u32 v5, {CV_U + 496 - 448}, v5\nv_add_u32 v{VF}, s53, v5")
    a("v_lshlrev_b32 v8, 5, v4\nv_lshl_add_u32 v8, v3, 3, v8\nv_add_u32 v9, s53, v8")
    a("v_lshrrev_b32 v6, 3, v4\ns_mov_b32 s56, 163840\nv_mul_lo_u32 v6, v6, s56")
    a("v_and_b32 v7, 7, v4\nv_lshl_add_u32 v6, v7, 5, v6\nv_lshl_add_u32 v6, v3, 3, v6")
    a(f"v_lshlrev_b32 v{DSV}, 16, v{DSV}\nv_mov_b32 v243, {LDS_CNT + 8}\ns_mov_b32 s57, 0")
    a.srd(32, 4, WS_XT, SZ_TP)
    a.srd(36, 4, WS_HT, SZ_T)
    a("s_lshl_b32 s54, s52, 6\ns_lshl_b32 s55, s52, 8")
    a(f"v_lshrrev_b32 v8, 1, v4\nv_mul_u32_u24 v8, {T_BLK}, v8\nv_and_b32 v7, 1, v4\nv_lshl_add_u32 v8, v7, 5, v8\nv_lshl_add_u32 v8, v3, 3, v8")
    a("s_waitcnt lgkmcnt(0)")
    a.stamp(3)
    a("s_barrier")
    a.stamp(4)

    def reads(s, c):
        o = []
        ex = 64 * (7 - c)
        for k in range(8):
            o.append(f"ds_read_b128 {q(FS[s]+4*k)}, v{VF} offset:{512*k + ex}")
            o.append(f"ds_read_b64 {q(AS[s]+4*k,2)}, v{VA} offset:{512*(7-k) + ex}")
            o.append(f"ds_read_b64 {q(AS[s]+4*k+2,2)}, v{VA} offset:{512*(7-k) + 8 + ex}")
        return o

    rd0 = reads(0, 0)
    for i, r in enumerate(rd0):
        a(r)
        if i == 11:
            a("s_waitcnt lgkmcnt(6)")
    fu, fx = [], []
    for nb in range(8):
        for hh in range(2):
            p = T1 + 4 * nb + 2 * hh
            src = T1 + 4 * nb + 2 + hh
            if hh == 0:
                fu += [f"v_lshlrev_b32 v{p}, 16, v{src}", f"v_and_b32 v{p+1}, 0xffff0000, v{src}"]
            else:
                fu += [f"v_lshlrev_b32 v{p}, 16, v{src}", f"v_and_b32 v{p+1}, 0xffff0000, v{src}"]
            fu += [f"v_pk_mul_f32 {q(p,2)}, {q(p,2)}, {q(DSV,2)} op_sel_hi:[1,0]",
                   f"v_cvt_pk_bf16_f32 v{p}, v{p}, v{p+1}",
                   f"v_and_b32 v{p+1}, 0xffff0000, v{p}", f"v_lshlrev_b32 v{p}, 16, v{p}"]
            p = XF + 4 * nb + 2 * hh
            src = XF + 4 * nb + 2 + hh
            fx += [f"v_lshlrev_b32 v{p}, 16, v{src}", f"v_and_b32 v{p+1}, 0xffff0000, v{src}"]
    fill = {c: fu[16 * (c - 1):16 * c] for c in range(1, 7)}
    fill[0] = [f"ds_read_b64 {q(T1+4*nb+2,2)}, v9 offset:{CV_U + 480 + 512*nb}" for nb in range(8)]
    fill[7] = fx
    for c in range(8):
        s = c & 1
        a("s_waitcnt lgkmcnt(0)")
        if c == 7:
            a("s_waitcnt vmcnt(0)")
        rd = reads(1 - s, c + 1) if c < 7 else []
        fl = list(fill[c])
        if c == 3:
            L = a.newlabel("L_xw")
            a.label(L)
            a(f"ds_read_b32 v242, v243\ns_waitcnt lgkmcnt(0)\nv_readfirstlane_b32 s56, v242\ns_add_u32 s57, s57, 1\ns_cmp_gt_u32 s57, {POLL_MAX*8}\ns_cselect_b32 s56, 1, s56")
            a(f"s_cmp_eq_u32 s56, 0\ns_cbranch_scc1 {L}")
            rd = rd + [None] * 4 + [f"buffer_load_dwordx2 {q(XF+4*nb+2,2)}, v8, s[32:35], s54 offen {SC}\ns_add_u32 s54, s54, {8*T_BLK}" for nb in range(8)]
        i = 0
        for aa in range(8):
            for m in range(8 - aa):
                cc = q(ACC + 4 * (aa + m)) if (c or aa) else "0"
                a(f"v_mfma_f32_16x16x32_bf16 {q(ACC+4*(aa+m))}, {q(AS[s]+4*aa)}, {q(FS[s]+4*m)}, {cc}")
                if i < len(rd) and rd[i]:
                    a(rd[i])
                    if i in (11, 19):
                        a("s_waitcnt lgkmcnt(8)")
                if (i >= 20 or c == 7) and fl:
                    a(fl.pop(0))
                i += 1
        assert not fl
    a.stamp(5)
    a("s_nop 4")
    for nb in range(8):
        y = ACC + 4 * nb
        o = 48 + 2 * nb
        for hh in range(2):
            t = y + 2 * hh
            a(f"v_cvt_pk_bf16_f32 v{t}, v{t}, v{t+1}")
            a.unpack(t, t)
            a(f"v_pk_add_f32 {q(t,2)}, {q(t,2)}, {q(T1+4*nb+2*hh,2)}")
            a(f"v_cvt_pk_bf16_f32 v{t}, v{t}, v{t+1}")
            a.unpack(t, t)
            a(f"v_pk_add_f32 {q(t,2)}, {q(t,2)}, {q(XF+4*nb+2*hh,2)}")
            a(f"v_cvt_pk_bf16_f32 v{o+hh}, v{t}, v{t+1}")
        a.vmem(f"buffer_store_dwordx2 {q(o,2)}, v6, s[36:39], s55 offen {SC}")
        a(f"s_add_u32 s55, s55, {2*163840}")
    a.stamp(6)
    a("s_waitcnt vmcnt(0)")
    last_of4_publish(a, 0, F_C, 2, 120)


def conv_partner(a):
    DK = 80
    a(f"s_mul_i32 s53, s7, {CV_WAVE}")
    a(f"s_mul_i32 s55, s7, 3072\ns_add_u32 s55, s55, {PART_BASE}")
    a("v_lshlrev_b32 v7, 4, v1\nv_add_u32 v5, s55, v7")
    a("v_mov_b32 v20, 0\nv_mov_b32 v21, 0\nv_mov_b32 v22, 0\nv_mov_b32 v23, 0")
    a("v_add_u32 v9, s53, v7")
    a(f"v_lshrrev_b32 v16, 1, v1\nv_mul_u32_u24 v16, {CV_CS}, v16\nv_and_b32 v17, 1, v1\nv_lshl_add_u32 v16, v17, 4, v16\nv_add_u32 v16, s53, v16")
    for t in range(3):
        a(f"ds_write_b128 v5, {q(DK+4*t)} offset:{1024*t}")
    a.stamp(2)
    a("s_cmp_ge_u32 s6, 6\ns_cbranch_scc1 L_part_rp")

    def pads():
        a("s_mov_b64 exec, 0x3fffffff")
        a(f"ds_write_b128 v9, v[20:23] offset:{CV_U}")
        a("s_mov_b64 exec, 0xff")
        a(f"ds_write_b128 v16, v[20:23] offset:{CV_A + 4096}")
        a("s_mov_b64 exec, -1")

    a.srd(32, 4, WS_UT, SZ_TP)
    a("s_lshl_b32 s54, s52, 6")
    a(f"v_lshrrev_b32 v8, 2, v1\nv_mul_u32_u24 v8, {T_BLK}, v8\nv_and_b32 v10, 3, v1\nv_lshl_add_u32 v8, v10, 4, v8\nv_add_u32 v10, 128, v8")
    a("s_waitcnt lgkmcnt(0)\ns_barrier")
    pads()
    a.poll(F_L, 64, 24)
    a.stamp(3)
    for i in range(4):
        for ch in range(2):
            a(f"s_add_u32 m0, s53, {CV_U + 480 + 2*CV_WAVE*ch + 1024*i}\ns_nop 0")
            a(f"buffer_load_dwordx4 v{8+2*ch}, s[32:35], s54 offen {SCL} lds")
        a(f"s_add_u32 s54, s54, {16*T_BLK}")
    a("s_waitcnt vmcnt(0) lgkmcnt(0)")
    a.stamp(4)
    a("s_barrier")
    a("s_cmp_lg_u32 s6, 4\ns_cbranch_scc1 L_part_end")
    a.poll(F_X, 64, 24)
    a(f"v_mov_b32 v24, {LDS_CNT + 8}\nv_mov_b32 v25, 1\nds_write_b32 v24, v25\ns_branch L_part_end")
    a.label("L_part_rp")
    a(f"s_lshl_b32 s55, s2, 1\ns_add_u32 s55, s55, s6\ns_sub_u32 s55, s55, 6\ns_mul_i32 s56, s6, {TB_SZ}")
    rp13_issue(a)
    a("s_waitcnt lgkmcnt(0)\ns_barrier")
    pads()
    a("s_waitcnt lgkmcnt(0)\ns_barrier")
    a("s_waitcnt vmcnt(0)")
    rp13_finish(a)
    a("s_waitcnt vmcnt(0)")
    a.publish(F_R, 55, 10)
    a.label("L_part_end")


G1_H = 5120
G1_HN = 5
G1_W = 87040
G1_WN = 3
G1_CONST = 0
G1_CS = 2048
G2_H, G2_HN, G2_W, G2_WN = G1_H, G1_HN, G1_W, G1_WN
LDS_TOTAL = 163840


def tile_ids(a):
    a("s_and_b32 s12, s2, 7\ns_lshr_b32 s13, s2, 3\ns_and_b32 s14, s13, 7\ns_lshr_b32 s15, s13, 3")
    a("s_and_b32 s8, s12, 1\ns_lshl_b32 s8, s8, 3\ns_add_u32 s8, s8, s14")
    a("s_lshr_b32 s9, s12, 1\ns_lshl_b32 s10, s9, 3\ns_lshl_b32 s9, s9, 2\ns_add_u32 s9, s9, s15")
    a("s_add_u32 s10, s10, s14")
    a("s_and_b32 s11, s12, 1\ns_lshl_b32 s11, s11, 2\ns_add_u32 s11, s11, s15")
    a("v_bfe_u32 v5, v1, 2, 2")
    a("v_lshl_add_u32 v6, v3, 2, v5\nv_lshlrev_b32 v6, 8, v6")
    a("v_and_b32 v7, 3, v1\nv_lshl_add_u32 v6, v7, 3, v6")
    a("v_and_b32 v7, 1, v3\nv_lshl_add_u32 v5, v7, 2, v5")


def gemm_mfma_waves(a, done):
    tile_ids(a)
    if EXP & 16:
        sk = a.newlabel("L_nowarm")
        a(f"s_cmp_lt_u32 s2, 160\ns_cbranch_scc1 {sk}")
        a("s_sub_u32 s16, s13, 20\ns_lshl_b32 s16, s16, 2\ns_add_u32 s16, s16, s7\ns_mul_i32 s16, s16, 20480")
        a("v_lshlrev_b32 v8, 4, v1")
        for which in range(2):
            if which == 0:
                a(f"s_lshr_b32 s17, s12, 1\ns_mul_i32 s18, s17, {80*FS_}\ns_mul_i32 s17, s17, 983040")
                a.srd(32, 4, WS_W13, SZ_W13)
                a.poll(F_R, 80, 120, "s18")
            else:
                a("s_and_b32 s17, s12, 1\ns_mul_i32 s17, s17, 983040")
                a.srd(32, 4, WS_W2, SZ_W2)
                a.poll(F_R2, 32, 120)
            a("s_add_u32 s17, s17, s16")
            for i in range(20):
                a(f"buffer_load_dwordx4 {q(24+4*i)}, v8, s[32:35], s17 offen offset:{1024*(i%4)}")
                if i % 4 == 3:
                    a("s_add_u32 s17, s17, 4096")
        a("s_waitcnt vmcnt(0)")
        a.label(sk)
    a("s_barrier")
    a("s_and_b32 s16, s7, 1\ns_lshr_b32 s17, s7, 1")
    a("s_lshl_b32 s18, s16, 2\nv_xor_b32 v5, s18, v5")
    for nt in range(4):
        a(f"v_xor_b32 v7, {nt}, v5\nv_lshl_add_u32 v{12+nt}, v7, 5, v6")
    a("v_lshlrev_b32 v16, 4, v1\ns_mul_i32 s18, s17, 6144\nv_add_u32 v16, s18, v16")
    ACC, HS, AD = 24, [120, 160], 17
    for i in range(96):
        a(f"v_mov_b32 v{ACC+i}, 0")

    def reads(s, half):
        o = []
        for nt in range(4):
            r = HS[s] + 4 * nt
            o.append(f"ds_read_b64_tr_b16 {q(r,2)}, v{AD+nt} offset:{8192*half}")
            o.append(f"ds_read_b64_tr_b16 {q(r+2,2)}, v{AD+nt} offset:{8192*half + 4096}")
        for t in range(6):
            o.append(f"ds_read_b128 {q(HS[s]+16+4*t)}, v{AD+4} offset:{12288*half + 1024*t}")
        return o

    def setad(hs, ws):
        return [f"v_add_u32 v{AD+i}, {hs}, v{12+i}" for i in range(4)] + [f"v_add_u32 v{AD+4}, {ws}, v16"]

    for x in setad(G1_H, G1_W):
        a(x)
    a(f"s_mov_b32 s19, {G1_H}\ns_mov_b32 s20, {G1_W}\ns_mov_b32 s21, 0")
    a.srd(32, 4, WS_HM, SZ_HM)
    a.stamp(7)
    sk = a.newlabel("L_nopoll")
    a(f"s_cmp_lg_u32 s6, 0\ns_cbranch_scc1 {sk}")
    a.poll(F_R2, 32, 120)
    a.poll(F_C, 160, 120)
    a(f"s_cmp_lg_u32 s2, 0\ns_cbranch_scc1 {sk}")
    a("v_mov_b32 v120, s3\nv_mov_b32 v121, 0\ns_mov_b64 exec, 1")
    a("buffer_store_dword v120, v121, s[92:95], 0 offen\ns_mov_b64 exec, -1")
    a.label(sk)
    a("s_barrier")
    a.stamp(8)
    a("s_barrier")
    a.stamp(9)
    for x in reads(0, 0):
        a(x)
    a.label("L_g1")
    for s in range(2):
        if s == 0:
            a(f"s_add_u32 s19, s19, 16384\ns_cmp_eq_u32 s19, {G1_H + G1_HN*16384}\ns_cselect_b32 s19, {G1_H}, s19")
            a(f"s_add_u32 s20, s20, 24576\ns_cmp_eq_u32 s20, {G1_W + G1_WN*24576}\ns_cselect_b32 s20, {G1_W}, s20")
            a("s_waitcnt lgkmcnt(0)")
            rest = reads(1, 1) + setad("s19", "s20")
        else:
            a("s_waitcnt lgkmcnt(0)\ns_barrier")
            rest = reads(0, 0)
        i = 0
        for t in range(6):
            for nt in range(4):
                ac = ACC + 4 * (t * 4 + nt)
                a(f"v_mfma_f32_16x16x32_bf16 {q(ac)}, {q(HS[s]+16+4*t)}, {q(HS[s]+4*nt)}, {q(ac)}")
                if i < len(rest):
                    a(rest[i])
                i += 1
    a("s_add_u32 s21, s21, 1\ns_cmp_lt_u32 s21, 10\ns_cbranch_scc1 L_g1")
    a.stamp(10)
    a("s_lshl_b32 s18, s16, 10\nv_lshlrev_b32 v5, 4, v4\nv_add_u32 v5, s18, v5")
    a("s_mul_i32 s18, s17, 384\nv_lshlrev_b32 v6, 4, v3\nv_add_u32 v6, s18, v6")
    a("s_lshl_b32 s22, s8, 1\ns_add_u32 s22, s22, s16\ns_mul_i32 s22, s22, 48")
    a("s_mul_i32 s23, s9, 3\ns_add_u32 s22, s22, s23")
    a("s_lshl_b32 s23, s17, 1\ns_add_u32 s23, s23, s22\ns_lshl_b32 s23, s23, 12")
    a("s_add_u32 s22, s22, 1\ns_lshl_b32 s22, s22, 12\ns_lshl_b32 s18, s17, 9\ns_add_u32 s22, s22, s18")
    a("v_and_b32 v7, 1, v3\nv_lshlrev_b32 v7, 10, v7\nv_lshrrev_b32 v8, 1, v3\nv_lshl_add_u32 v7, v8, 8, v7\nv_lshl_add_u32 v7, v4, 4, v7")
    a("s_waitcnt lgkmcnt(0)\ns_barrier")
    KC, CSR = 184, 160
    for nt in range(4):
        a(f"ds_read_b128 {q(KC+4*nt)}, v5 offset:{G1_CONST + 256*nt}")
    for t in range(6):
        a(f"ds_read_b128 {q(CSR+4*t)}, v6 offset:{G1_CS + 64*t}")
    a("v_lshlrev_b32 v5, 4, v1")
    a("s_waitcnt lgkmcnt(0)")
    a.stamp(11)
    T = 120
    for nt in range(4):
        O = 144 + 4 * (nt & 1)
        k = KC + 4 * nt
        for jj in range(3):
            g = ACC + 4 * (jj * 4 + nt)
            u = ACC + 4 * ((3 + jj) * 4 + nt)
            for hh in range(2):
                g2, u2 = g + 2 * hh, u + 2 * hh
                a(f"v_pk_fma_f32 {q(g2,2)}, {q(CSR+4*jj+2*hh,2)}, {q(k,2)}, {q(g2,2)} op_sel_hi:[1,0,1]")
                a(f"v_pk_fma_f32 {q(u2,2)}, {q(CSR+4*(3+jj)+2*hh,2)}, {q(k,2)}, {q(u2,2)} op_sel_hi:[1,0,1]")
            for hh in range(2):
                a(f"v_pk_mul_f32 {q(T+2*hh,2)}, {q(g+2*hh,2)}, {q(k,2)} op_sel:[0,1] op_sel_hi:[1,1]")
            for i in range(4):
                a(f"v_exp_f32 v{T+i}, v{T+i}")
            for hh in range(2):
                a(f"v_pk_mul_f32 {q(g+2*hh,2)}, {q(g+2*hh,2)}, {q(u+2*hh,2)}")
            for hh in range(2):
                a(f"v_pk_fma_f32 {q(T+2*hh,2)}, {q(T+2*hh,2)}, {q(k+2,2)}, {q(k+2,2)} op_sel_hi:[1,0,0]")
            for i in range(4):
                a(f"v_rcp_f32 v{T+i}, v{T+i}")
            a("s_nop 0")
            for hh in range(2):
                a(f"v_pk_mul_f32 {q(g+2*hh,2)}, {q(g+2*hh,2)}, {q(T+2*hh,2)}")
            for hh in range(2):
                d = O + 2 * jj + hh if jj < 2 else 152 + 4 * (nt >> 1) + 2 * (nt & 1) + hh
                a(f"v_cvt_pk_bf16_f32 v{d}, v{g+2*hh}, v{g+2*hh+1}")
            if jj == 1:
                a(f"buffer_store_dwordx4 {q(O)}, v5, s[32:35], s23 offen offset:{1024*nt} {SC}")
        if nt & 1:
            S = 152 + 4 * (nt >> 1)
            a(f"s_nop 1\nv_permlane16_swap_b32 v{S}, v{S+2}\nv_permlane16_swap_b32 v{S+1}, v{S+3}")
            a(f"buffer_store_dwordx4 {q(S)}, v7, s[32:35], s22 offen offset:{1024*(nt-1)} {SC}")
    a.stamp(12)
    a.vm = []
    ACC, FS, RES, VW, VH = 16, [56, 84], 112, 132, 134
    a("s_lshl_b32 s22, s16, 1\ns_add_u32 s22, s22, s17")
    a("s_lshr_b32 s18, s10, 1\ns_mul_i32 s18, s18, 163840\ns_mul_i32 s19, s11, 20480\ns_add_u32 s18, s18, s19")
    a("s_and_b32 s19, s10, 1\ns_lshl_b32 s19, s19, 7\ns_add_u32 s18, s18, s19\ns_lshl_b32 s19, s22, 5\ns_add_u32 s18, s18, s19")
    a("v_lshlrev_b32 v10, 1, v4\nv_lshl_add_u32 v11, v3, 10, v10\nv_lshl_add_u32 v10, v3, 11, v10")
    a("s_add_u32 s19, s18, 8192\ns_add_u32 s20, s18, 16384")
    a.srd(36, 4, WS_HT, SZ_T)
    a.srd(40, 30, 0, SZ_T)
    a("s_lshl_b32 s21, s8, 4\ns_add_u32 s21, s21, s9")
    a("s_waitcnt vmcnt(0)")
    last_of4_publish(a, 1, F_G, 21, 140)
    a.stamp(13)
    sk = a.newlabel("L_nopub")
    a(f"s_cmp_lg_u32 s6, 0\ns_cbranch_scc1 {sk}")
    a(f"s_lshr_b32 s21, s10, 1\ns_mul_i32 s21, s21, {16*FS_}")
    a.poll(F_G, 16, 140, "s21")
    a.label(sk)
    a("s_barrier")
    if EXP & 4:
        a(f"s_mul_i32 s21, s10, {48*4096}\ns_lshl_b32 s23, s15, 2\ns_add_u32 s23, s23, s7\ns_mul_i32 s23, s23, 12288\ns_add_u32 s21, s21, s23")
        for i in range(12):
            a.vmem(f"buffer_load_dwordx4 {q(144+4*i)}, v5, s[32:35], s21 offen offset:{1024*(i%4)} {SC}", "warm")
            if i % 4 == 3:
                a("s_add_u32 s21, s21, 4096")
    for p in range(2):
        for e in range(8):
            a.vmem(f"buffer_load_ushort v{RES+8*p+e}, v10, s[36:39], s{18+p} offen offset:{256*e} {SC}", "res")
    for e in range(4):
        a.vmem(f"buffer_load_ushort v{RES+16+e}, v11, s[36:39], s20 offen offset:{256*e} {SC}", "res")
    for i in range(40):
        a(f"v_mov_b32 v{ACC+i}, 0")
    a(f"s_lshl_b32 s19, s17, 12\ns_lshl_b32 s21, s22, 10\ns_add_u32 s19, s19, s21\nv_add_u32 v{VH}, s19, v5")
    a(f"v_xor_b32 v{VH+1}, 1024, v{VH}\nv_add_u32 v{VH}, {G2_H}, v{VH}\nv_add_u32 v{VH+1}, {G2_H}, v{VH+1}")
    a(f"s_mul_i32 s19, s17, 5120\nv_add_u32 v{VW}, s19, v5")
    a(f"v_mov_b32 v{VH+2}, v{VH}\nv_mov_b32 v{VH+3}, v{VH+1}\nv_add_u32 v{VW+1}, {G2_W + 24576}, v{VW}")
    a(f"s_mov_b32 s23, 0\ns_mov_b32 s24, {G2_W + 24576}")

    def reads2(kk, s):
        o = [f"ds_read_b128 {q(FS[s]+20+4*j)}, v{VH+2+j} offset:{kk*8192}" for j in range(2)]
        o += [f"ds_read_b128 {q(FS[s]+4*t)}, v{VW+1} offset:{kk*10240 + 1024*t}" for t in range(5)]
        return o

    a("s_lshl_b32 s18, s10, 6\ns_lshl_b32 s19, s22, 4\ns_add_u32 s18, s18, s19\ns_mul_i32 s18, s18, 1280\ns_mul_i32 s19, s11, 160\ns_add_u32 s18, s18, s19")
    a("v_mul_u32_u24 v10, 1280, v4\nv_lshl_add_u32 v11, v3, 3, v10\nv_lshl_add_u32 v10, v3, 4, v10")
    a(f"s_mul_i32 s19, s7, 5120\ns_add_u32 s19, s19, {G2_W + 2*24576}\nv_add_u32 v6, s19, v5")
    a(f"s_xor_b32 s19, s7, 2\ns_mul_i32 s19, s19, 5120\ns_add_u32 s19, s19, {G2_W + 2*24576}\nv_add_u32 v7, s19, v5")
    a("s_mov_b32 s21, 0")
    a("s_barrier")
    a.stamp(14)
    for x in reads2(0, 0):
        a(x)
    a.label("L_g2")
    for s in range(2):
        if s == 0:
            a(f"s_add_u32 s23, s23, 16384\ns_cmp_eq_u32 s23, {G2_HN*16384}\ns_cselect_b32 s23, 0, s23")
            a(f"s_add_u32 s24, s24, 24576\ns_cmp_eq_u32 s24, {G2_W + G2_WN*24576}\ns_cselect_b32 s24, {G2_W}, s24")
            a("s_waitcnt lgkmcnt(0)")
            rd = reads2(1, 1) + [f"v_add_u32 v{VH+2}, s23, v{VH}", f"v_add_u32 v{VH+3}, s23, v{VH+1}", f"v_add_u32 v{VW+1}, s24, v{VW}"]
        else:
            a("s_waitcnt lgkmcnt(0)\ns_barrier")
            rd = reads2(0, 0)
        i = 0
        for t in range(5):
            for j in range(2):
                ac = ACC + 4 * (5 * j + t)
                if not EXP & 32:
                    a(f"v_mfma_f32_16x16x32_bf16 {q(ac)}, {q(FS[s]+4*t)}, {q(FS[s]+20+4*j)}, {q(ac)}")
                for x in rd[2*i:2*i+2]:
                    a(x)
                i += 1
    a("s_add_u32 s21, s21, 1\ns_cmp_lt_u32 s21, 12\ns_cbranch_scc1 L_g2")
    a("s_nop 5")
    for t in range(5):
        a(f"ds_write_b128 v6, {q(ACC+20+4*t)} offset:{1024*t}")
    a("s_waitcnt lgkmcnt(0)\ns_barrier")
    for t in range(5):
        a(f"ds_read_b128 {q(ACC+20+4*t)}, v7 offset:{1024*t}")
    a.wait_vm("res")
    for i in range(20):
        a(f"v_lshlrev_b32 v{RES+i}, 16, v{RES+i}")
    a("s_waitcnt lgkmcnt(0)")
    O = 56
    for i in range(10):
        y = ACC + 2 * i
        a(f"v_pk_add_f32 {q(y,2)}, {q(y,2)}, {q(y+20,2)}")
        a(f"v_cvt_pk_bf16_f32 v{y}, v{y}, v{y+1}")
        a.unpack(y, y)
        a(f"v_pk_add_f32 {q(y,2)}, {q(y,2)}, {q(RES+2*i,2)}")
        a(f"v_cvt_pk_bf16_f32 v{O+i}, v{y}, v{y+1}")
        if i == 3:
            a(f"buffer_store_dwordx4 {q(O)}, v10, s[40:43], s18 offen")
        if i == 7:
            a(f"buffer_store_dwordx4 {q(O+4)}, v10, s[40:43], s18 offen offset:64")
    a(f"buffer_store_dwordx2 {q(O+8,2)}, v11, s[40:43], s18 offen offset:128")
    a(f"s_branch {done}")


def gemm_loader_waves(a, done):
    a.vm = []
    tile_ids(a)
    a("s_mul_i32 s22, s8, 163840\ns_add_u32 s23, s22, 163840")
    a(f"s_mul_i32 s24, s9, {20*12288}\ns_add_u32 s25, s24, {20*12288}")
    a("s_mul_i32 s20, s15, 5\ns_add_u32 s20, s20, 1\ns_lshr_b32 s20, s20, 1")
    if not EXP & 1:
        a("s_mov_b32 s20, 0")
    a("s_lshl_b32 s16, s20, 14\ns_add_u32 s16, s16, s22\ns_mul_i32 s17, s20, 24576\ns_add_u32 s17, s17, s24")
    a("s_lshl_b32 s18, s7, 12\ns_mul_i32 s19, s7, 6144")
    a("v_lshrrev_b32 v12, 1, v4\nv_xor_b32 v12, v12, v3\nv_lshlrev_b32 v12, 5, v12")
    a("v_and_b32 v7, 1, v4\nv_lshlrev_b32 v7, 4, v7\nv_lshl_add_u32 v7, v3, 8, v7\nv_add_u32 v7, s18, v7")
    a("v_add_u32 v8, v7, v12\nv_xor_b32 v12, 128, v12\nv_add_u32 v9, v7, v12")
    a("v_lshlrev_b32 v10, 4, v1\nv_add_u32 v10, s19, v10\nv_add_u32 v11, 4096, v10")
    a.srd(32, 4, WS_HT, SZ_T)
    a.srd(36, 4, WS_W13, SZ_W13)
    a.srd(40, 4, WS_CSP, SZ_CSP)
    a(f"s_mul_i32 s20, s9, {20*FS_}")
    a.poll(F_R, 20, 20, "s20")
    a.stamp(5)

    def issue_w(st):
        slot = G1_W + (st % G1_WN) * 24576
        a(f"s_add_u32 m0, s19, {slot}\ns_nop 0")
        for i in range(4):
            a.vmem(f"buffer_load_dwordx4 v10, s[36:39], s17 offen offset:{1024*i} {SCL} lds", ("w", st))
        a(f"s_add_u32 m0, s19, {slot + 4096}\ns_nop 0")
        for i in range(2):
            a.vmem(f"buffer_load_dwordx4 v11, s[36:39], s17 offen offset:{1024*i} {SCL} lds", ("w", st))
        a("s_add_u32 s17, s17, 24576\ns_cmp_eq_u32 s17, s25\ns_cselect_b32 s17, s24, s17")

    def issue_h(st):
        slot = G1_H + (st % G1_HN) * 16384
        a(f"s_add_u32 m0, s18, {slot}\ns_nop 0")
        for i in range(4):
            a.vmem(f"buffer_load_dwordx4 v{8 + (i&1)}, s[32:35], s16 offen offset:{1024*i} {SCL} lds", ("h", st))
        a("s_add_u32 s16, s16, 16384\ns_cmp_eq_u32 s16, s23\ns_cselect_b32 s16, s22, s16")

    CS = 40
    a("v_and_b32 v13, 255, v0\nv_lshlrev_b32 v13, 2, v13\ns_mul_i32 s20, s9, 15360")
    for ks in range(20):
        if ks and ks % 5 == 0:
            a("s_add_u32 s20, s20, 3840")
        a.vmem(f"buffer_load_dword v{CS+ks}, v13, s[40:43], s20 offen offset:{768*(ks % 5)} {SC}", "cs")
    SA = 14
    a("s_lshl_b32 s20, s7, 1\nv_xor_b32 v5, s20, v5")
    for j in range(2):
        a(f"v_xor_b32 v7, {j}, v5\nv_lshl_add_u32 v{SA+j}, v7, 5, v6\nv_add_u32 v{SA+2+j}, {3*16384}, v{SA+j}")
    ONE, SACC, SF = 20, 24, 64
    for i in range(4):
        a(f"v_mov_b32 v{ONE+i}, {hex(ONES_BF)}")
    for i in range(16):
        a(f"v_mov_b32 v{SACC+i}, 0")
    a.wait_vm("cs")
    for ks in range(1, 20):
        a(f"v_add_f32 v{CS}, v{CS}, v{CS+ks}")
    a("v_and_b32 v7, 3, v4\nv_cmp_eq_u32 s[52:53], 1, v7\nv_cmp_eq_u32 s[54:55], 2, v7\nv_cmp_eq_u32 s[56:57], 3, v7")
    a("v_lshrrev_b32 v7, 2, v4\nv_cmp_eq_u32 s[58:59], v7, v3")
    a(f"s_mul_i32 s60, s11, {48*5120}\ns_mul_i32 s62, s10, {48*4096}\ns_mul_i32 s28, s7, 5120")
    a(f"s_add_u32 s61, s60, {48*5120}\ns_add_u32 s63, s62, {48*4096}")
    a(f"s_mul_i32 s26, s15, {3*20480 if EXP & 2 else 0}\ns_add_u32 s26, s26, s60\ns_mul_i32 s27, s15, {3*16384 if EXP & 2 else 0}\ns_add_u32 s27, s27, s62")
    a("v_lshlrev_b32 v60, 4, v1\nv_add_u32 v61, s18, v60\nv_add_u32 v60, s28, v60\nv_add_u32 v62, 4096, v60")
    a.srd(40, 4, WS_W2, SZ_W2)
    a.srd(44, 4, WS_HM, SZ_HM)
    a.stamp(6)
    a("s_barrier")
    for st in range(G1_WN):
        issue_w(st)
    a.stamp(7)
    a("s_barrier")
    a(f"ds_write_b32 v13, v{CS} offset:{G1_CS}")
    issue_h(0); issue_h(1)
    a.wait_vm(("h", 0))
    a.stamp(8)
    a("s_barrier")
    issue_h(2); issue_h(3); issue_h(4)

    def issue_w2(st):
        slot = G2_W + ((st + 1) % G2_WN) * 24576
        if EXP & 128 and st > 2:
            a.vm.append(("w2", st))
            return
        a(f"s_add_u32 m0, s28, {slot}\ns_nop 0")
        for i in range(4):
            a.vmem(f"buffer_load_dwordx4 v60, s[40:43], s26 offen offset:{1024*i} {SCL} lds", ("w2", st))
        a(f"s_add_u32 m0, s28, {slot + 4096}\ns_nop 0")
        a.vmem(f"buffer_load_dwordx4 v62, s[40:43], s26 offen {SCL} lds", ("w2", st))
        a("s_add_u32 s26, s26, 20480\ns_cmp_eq_u32 s26, s61\ns_cselect_b32 s26, s60, s26")

    def issue_hm(st):
        slot = G2_H + (st % G2_HN) * 16384
        if EXP & 64 and st > 0:
            a.vm.append(("hm", st))
            return
        a(f"s_add_u32 m0, s18, {slot}\ns_nop 0")
        for i in range(4):
            a.vmem(f"buffer_load_dwordx4 v61, s[44:47], s27 offen offset:{1024*i} {SCL} lds", ("hm", st))
        a("s_add_u32 s27, s27, 16384\ns_cmp_eq_u32 s27, s63\ns_cselect_b32 s27, s62, s27")

    for s in range(10):
        slot = s % G1_HN
        for kk in range(2):
            for j in range(2):
                r = SF + 8 * kk + 4 * j
                off = G1_H + (slot % 3) * 16384 + 8192 * kk
                a(f"ds_read_b64_tr_b16 {q(r,2)}, v{SA + 2*(slot//3) + j} offset:{off}")
                a(f"ds_read_b64_tr_b16 {q(r+2,2)}, v{SA + 2*(slot//3) + j} offset:{off + 4096}")
        if s >= 1:
            if s + 2 < 10:
                issue_w(s + 2)
            else:
                issue_w2(s - 8)
            if s + 4 < 10:
                issue_h(s + 4)
        a("s_waitcnt lgkmcnt(0)")
        for kk in range(2):
            for j in range(2):
                r = SF + 8 * kk + 4 * j
                a(f"v_mfma_f32_16x16x32_bf16 {q(SACC+8*j)}, {q(ONE)}, {q(r)}, {q(SACC+8*j)}")
                a(f"v_mfma_f32_16x16x32_bf16 {q(SACC+8*j+4)}, {q(r)}, {q(r)}, {q(SACC+8*j+4)}")
        if s + 1 < 10:
            a.wait_vm(("h", s + 1))
            if s + 1 >= G1_WN:
                a.wait_vm(("w", s + 1))
        a("s_barrier")
    issue_w2(2)
    a("s_lshl_b32 s20, s7, 9\nv_lshlrev_b32 v7, 4, v4\nv_add_u32 v7, s20, v7")
    for j in range(2):
        sm, sq, k = SACC + 8 * j, SACC + 8 * j + 4, 40 + 4 * j
        a(f"v_cndmask_b32 v{sq}, v{sq}, v{sq+1}, s[52:53]\nv_cndmask_b32 v{sq}, v{sq}, v{sq+2}, s[54:55]\nv_cndmask_b32 v{sq}, v{sq}, v{sq+3}, s[56:57]")
        ln_finish(a, sm, sq, sm + 1, k, k + 1)
        a(f"v_mul_f32 v{k+1}, {hex(NLOG2E)}, v{k+1}\nv_mul_f32 v{k+2}, v{sm+1}, v{sm+1}\nv_mov_b32 v{k+3}, 0")
    a("s_mov_b64 exec, s[58:59]")
    for j in range(2):
        a(f"ds_write_b128 v7, {q(40+4*j)} offset:{G1_CONST + 256*j}")
    a("s_mov_b64 exec, -1")
    a("s_waitcnt lgkmcnt(0)")
    a.stamp(10)
    a("s_barrier")
    a.stamp(13)
    a("s_barrier")
    issue_hm(0); issue_hm(1)
    a.wait_vm(("hm", 0))
    a("s_barrier")
    issue_hm(2); issue_hm(3); issue_hm(4)
    for s in range(12):
        if s + 1 < 12:
            a.wait_vm(("hm", s + 1))
            if s + 1 >= G2_WN:
                a.wait_vm(("w2", s + 1))
        a("s_barrier")
        if s + G2_WN < 12:
            issue_w2(s + G2_WN)
        if s + G2_HN < 12:
            issue_hm(s + G2_HN)
    a("s_barrier")


def main():
    a = Asm()
    hdr = open(f"cdna_kernels/{NAME}.s.ref").read().split("\n")
    for line in hdr:
        if line.startswith("; Override") or line.startswith("; grid=") or "@launch" in line:
            continue
        if not line.startswith(";"):
            break
        a.raw(line)
    if STAMPS:
        a.raw(f"; @launch kernel={KNAME} grid=(256,1,1) block=(512,1,1) lds={LDS_TOTAL}")
    else:
        a.raw(f"; @launch grid=(256,1,1) block=(512,1,1) lds={LDS_TOTAL}")
    a.raw('.amdgcn_target "amdgcn-amd-amdhsa--gfx950"\n.text')
    a.raw(f".globl {KNAME}\n.p2align 8\n.type {KNAME},@function\n{KNAME}:")
    done = "L_done"
    a("s_cmp_ge_u32 s2, 256\ns_cbranch_scc1 L_exit")
    if STAMPS:
        for i in range(16):
            a(f"s_mov_b32 s{64+i}, 0")
        a.stamp(0)
    a(f"s_load_dwordx2 s[4:5], s[0:1], {KA_WS}\ns_load_dwordx16 s[8:23], s[0:1], 0\ns_load_dwordx8 s[24:31], s[0:1], 64")
    a("v_and_b32 v1, 63, v0\nv_lshrrev_b32 v2, 6, v0\nv_lshrrev_b32 v3, 4, v1\nv_and_b32 v4, 15, v1")
    a("v_readfirstlane_b32 s6, v2")
    a("s_waitcnt lgkmcnt(0)")
    a("s_load_dword s3, s[4:5], 0")
    a("s_and_b32 s7, s6, 3")
    a.srd(92, 4, WS_FLG, SZ_FLG)
    a(f"v_mov_b32 v5, {LDS_CNT}\nv_mov_b32 v6, 0\nv_mov_b32 v7, 0\nv_mov_b32 v8, 0\nv_mov_b32 v9, 0\nds_write_b128 v5, v[6:9]")
    a("s_cmp_ge_u32 s2, 160\ns_cbranch_scc1 L_aux")
    a("s_lshl_b32 s52, s2, 2\ns_add_u32 s52, s52, s7")
    kgen(a)
    a("s_cmp_ge_u32 s6, 4\ns_cbranch_scc1 L_partner")
    conv_main(a)
    a("s_branch L_mfma")
    a.label("L_partner")
    conv_partner(a)
    a("s_branch L_loader")
    a.label("L_aux")
    a.vm = []
    a("s_cmp_ge_u32 s2, 224\ns_cbranch_scc1 L_aux_rp")
    a("s_sub_u32 s52, s2, 160")
    role_ln1(a)
    a("s_branch L_aux_go")
    a.label("L_aux_rp")
    a("s_sub_u32 s52, s2, 224")
    if not EXP & 256:
        a("s_cmp_lt_u32 s6, 6\ns_cbranch_scc1 L_aux_rp1")
        a("s_getpc_b64 s[54:55]")
        a.label("L_pc")
        a(f"s_sub_u32 s54, s54, L_pc-{KNAME}\ns_subb_u32 s55, s55, 0")
        a(f"v_lshlrev_b32 v5, 4, v1\ns_and_b32 s56, s6, 1\ns_mul_i32 s56, s56, {CODE_KB*512}\nv_add_u32 v5, s56, v5")
        for i in range(CODE_KB // 2):
            a(f"global_load_dwordx4 {q(16+4*i)}, v5, s[54:55] offset:{1024*(i%4)}")
            if i % 4 == 3:
                a("v_add_u32 v5, 4096, v5")
        a.label("L_aux_rp1")
    epoch_ready(a)
    a("s_cmp_ge_u32 s6, 6\ns_cbranch_scc1 L_aux_end")
    a("s_mul_i32 s53, s52, 6\ns_add_u32 s53, s53, s6")
    role_rp2(a)
    a.label("L_aux_end")
    a("s_waitcnt vmcnt(0)\ns_barrier")
    a("s_cmp_lg_u32 s6, 4\ns_cbranch_scc1 L_aux_go")
    a.publish(F_R2, 52, 10)
    a.label("L_aux_go")
    a.stamp(4)
    a("s_cmp_ge_u32 s6, 4\ns_cbranch_scc1 L_loader\ns_branch L_mfma")
    a.label("L_loader")
    gemm_loader_waves(a, done)
    a(f"s_branch {done}")
    a.label("L_mfma")
    gemm_mfma_waves(a, done)
    a.label(done)
    if STAMPS:
        a("s_waitcnt vmcnt(0)")
        a.stamp(15)
        a.srd(88, 4, WS_STAMP, 262144)
        a("v_lshrrev_b32 v1, 6, v0\nv_lshlrev_b32 v1, 6, v1\ns_lshl_b32 s82, s2, 9\nv_add_u32 v1, s82, v1")
        for i in range(16):
            a(f"v_mov_b32 v{4+i}, s{64+i}")
        a("s_mov_b64 exec, 1")
        for i in range(4):
            a(f"buffer_store_dwordx4 {q(4+4*i)}, v1, s[88:91], 0 offen offset:{16*i}")
    a.label("L_exit")
    a("s_endpgm")
    a.raw(f".fill ({CODE_KB*1024} - (. - {KNAME})) / 4, 4, 0xbf800000")
    a.raw(f""".section .rodata,"a"
.p2align 6
.amdhsa_kernel {KNAME}
  .amdhsa_next_free_vgpr 244
  .amdhsa_next_free_sgpr 96
  .amdhsa_accum_offset 244
  .amdhsa_group_segment_fixed_size 0
  .amdhsa_kernarg_size 112
  .amdhsa_user_sgpr_count 2
  .amdhsa_user_sgpr_kernarg_segment_ptr 1
  .amdhsa_system_sgpr_workgroup_id_x 1
.end_amdhsa_kernel""")
    out = sys.argv[1] if len(sys.argv) > 1 else f"cdna_kernels/{NAME}.s"
    open(out, "w").write("\n".join(a.l) + "\n")


if __name__ == "__main__":
    main()
```

```python
import sys, os, struct

NAME = "sequential_preLN__ssm_conv_s4d__glu_gated_swiglu__prompt"
KNAME = NAME + "_kernel"
KA_WS = 104

WS_FLG = 0
FS_ = 128
F_L, F_X, F_R2, F_C, F_G, F_R = 0x1000, 0x3000, 0x5000, 0x8000, 0x10000, 0x18000
SZ_FLG = 0x30000
WS_UT = 0x100000
WS_XT = 0x400000
WS_HT = 0x700000
WS_HM = 0xA00000
WS_W13 = 0x1000000
WS_W2 = 0x1400000
WS_GR = 0x1710000
WS_ST = 0x1700000
WS_CSP = 0x1600000
WS_STAMP = 0x4000000
SZ_T = 640 * 4096
SZ_TP = SZ_T
T_BLK = 40960
SZ_HM = 32 * 48 * 4096
SZ_W13 = 16 * 20 * 12288
SZ_W2 = 8 * 48 * 5120
SZ_CSP = 320 * 768 + 1024

STAMPS = int(os.environ.get('STAMPS', '0'))
EXP = int(os.environ.get('EXP', '0'))
LOG2E, NLOG2E, INV2PI, INV640, EPS, ONES_BF = 0x3FB8AA3B, 0xBFB8AA3B, 0x3E22F983, 0x3ACCCCCD, 0x3727C5AC, 0x3F803F80
POLL_MAX = 400000
CODE_KB = 30
SLEEP = int(os.environ.get('SLEEP', '1'))
SC = "sc1"
SCO = os.environ.get("SCO", "")
SCL = "" if EXP & 8 else "sc1"


def f32bits(x):
    return struct.unpack("<I", struct.pack("<f", x))[0]


def q(r, n=4):
    return f"v[{r}:{r+n-1}]"


class Asm:
    def __init__(self):
        self.l = []
        self.vm = []
        self.uid = 0

    def __call__(self, s):
        for x in s.split("\n"):
            x = x.strip()
            if x:
                self.l.append("    " + x)

    def label(self, s):
        self.l.append(s + ":")

    def raw(self, s):
        self.l.append(s)

    def newlabel(self, p="L"):
        self.uid += 1
        return f"{p}_{self.uid}"

    def vmem(self, s, tag=None):
        self(s)
        self.vm.append(tag)

    def wait_vm(self, tag):
        idx = max(i for i, t in enumerate(self.vm) if t == tag)
        n = len(self.vm) - 1 - idx
        assert n <= 63, n
        self(f"s_waitcnt vmcnt({n})")

    def srd(self, sd, lo, off, size):
        if off == 0:
            self(f"s_mov_b32 s{sd}, s{lo}\ns_mov_b32 s{sd+1}, s{lo+1}")
        else:
            self(f"s_add_u32 s{sd}, s{lo}, {hex(off)}\ns_addc_u32 s{sd+1}, s{lo+1}, 0")
        self(f"s_mov_b32 s{sd+2}, {size}\ns_mov_b32 s{sd+3}, 0x20000")

    def stamp(self, i):
        if STAMPS:
            self(f"s_memrealtime s[80:81]\ns_waitcnt lgkmcnt(0)\ns_mov_b32 s{64+i}, s80")

    def unpack(self, dlo, src):
        if dlo == src:
            self(f"v_and_b32 v{dlo+1}, 0xffff0000, v{src}\nv_lshlrev_b32 v{dlo}, 16, v{src}")
        else:
            self(f"v_lshlrev_b32 v{dlo}, 16, v{src}\nv_and_b32 v{dlo+1}, 0xffff0000, v{src}")

    def rnd(self, d, s):
        self(f"v_cvt_pk_bf16_f32 v{d}, v{s}, v{s}\nv_lshlrev_b32 v{d}, 16, v{d}")

    def poll(self, off, n, vt, soff=None):
        L, D = self.newlabel("L_poll"), self.newlabel("L_polld")
        nl = (n + 63) // 64
        for i in range(nl):
            self(f"v_add_u32 v{vt+i}, {64*i}, v1\nv_min_u32 v{vt+i}, {n-1}, v{vt+i}\nv_mul_u32_u24 v{vt+i}, {FS_}, v{vt+i}")
        if soff is None:
            self(f"s_mov_b32 s86, {off}")
        else:
            self(f"s_add_u32 s86, {soff}, {off}")
        self("s_mov_b32 s84, 0")
        self.label(L)
        for i in range(nl):
            self(f"buffer_load_dword v{vt+3+i}, v{vt+i}, s[92:95], s86 offen {SC}")
        self("s_add_u32 s84, s84, 1\ns_waitcnt vmcnt(0)")
        for i in range(nl):
            self(f"v_xor_b32 v{vt+3+i}, s3, v{vt+3+i}")
        for i in range(1, nl):
            self(f"v_or_b32 v{vt+3}, v{vt+3}, v{vt+3+i}")
        self(f"v_cmp_ne_u32 vcc, 0, v{vt+3}\ns_cbranch_vccz {D}")
        self(f"s_sleep {SLEEP}\ns_cmp_lt_u32 s84, {POLL_MAX}\ns_cbranch_scc1 {L}")
        self.label(D)
        self.vm = []

    def publish(self, off, sidx, vt):
        self(f"s_mul_i32 s85, s{sidx}, {FS_}\ns_add_u32 s85, s85, {off}\nv_mov_b32 v{vt}, s3\nv_mov_b32 v{vt+1}, s85\ns_mov_b64 exec, 1")
        self.vmem(f"buffer_store_dword v{vt}, v{vt+1}, s[92:95], 0 offen {SC}")
        self("s_mov_b64 exec, -1")


def ln_finish(a, vs, vq, vt, vnegm, vrinv):
    a(f"v_mul_f32 v{vs}, {hex(INV640)}, v{vs}")
    a(f"v_mul_f32 v{vq}, {hex(INV640)}, v{vq}")
    a(f"v_fma_f32 v{vq}, -v{vs}, v{vs}, v{vq}")
    a(f"v_max_f32 v{vq}, 0, v{vq}")
    a.rnd(vnegm, vs)
    a(f"v_xor_b32 v{vnegm}, 0x80000000, v{vnegm}")
    a.rnd(vt, vq)
    a(f"v_add_f32 v{vt}, {hex(EPS)}, v{vt}")
    a.rnd(vt, vt)
    a(f"v_sqrt_f32 v{vt}, v{vt}\ns_nop 0")
    a.rnd(vt, vt)
    a(f"v_rcp_f32 v{vrinv}, v{vt}\ns_nop 0")


def cmul(a, d, x, y, t):
    a(f"v_pk_mul_f32 {q(t,2)}, {q(x,2)}, {q(y,2)} op_sel_hi:[1,0]")
    a(f"v_pk_fma_f32 {q(d,2)}, {q(x,2)}, {q(y,2)}, {q(t,2)} op_sel:[1,1,0] op_sel_hi:[0,1,1] neg_lo:[1,0,0]")


def epoch_ready(a):
    a("s_waitcnt lgkmcnt(0)\ns_add_u32 s3, s3, 1")


LDS_CNT = 163824


def last_of4_publish(a, word, off, sidx, vt):
    sk = a.newlabel("L_notlast")
    a(f"v_mov_b32 v{vt}, {LDS_CNT + 4*word}\nv_mov_b32 v{vt+1}, 1\ns_mov_b64 exec, 1")
    a(f"ds_add_rtn_u32 v{vt+1}, v{vt}, v{vt+1}\ns_mov_b64 exec, -1\ns_waitcnt lgkmcnt(0)")
    a(f"v_readfirstlane_b32 s85, v{vt+1}\ns_nop 3\ns_cmp_lg_u32 s85, 3\ns_cbranch_scc1 {sk}")
    a.publish(off, sidx, vt)
    a.label(sk)


LN_RS = 1312
LN_U = 32 * LN_RS


def role_ln1(a):
    a("v_lshl_add_u32 v5, v2, 2, v3")
    a(f"s_mul_i32 s53, s52, {32*1280}")
    a("v_mul_u32_u24 v6, 1280, v5\nv_lshl_add_u32 v6, v4, 4, v6\nv_add_u32 v6, s53, v6")
    a.srd(32, 8, 0, SZ_T)
    X = 16
    for j in range(5):
        a.vmem(f"buffer_load_dwordx4 {q(X+4*j)}, v6, s[32:35], 0 offen offset:{j*256}", ("x", j))
    a(f"v_mul_u32_u24 v7, {LN_RS}, v5\nv_lshl_add_u32 v7, v4, 4, v7")
    a(f"s_mov_b32 s54, {hex(ONES_BF)}")
    a.srd(36, 4, WS_ST, 16384)
    a.srd(40, 4, WS_XT, SZ_TP)
    a("v_bfe_u32 v8, v1, 2, 2\nv_lshl_add_u32 v8, v3, 3, v8")
    a(f"v_mul_u32_u24 v8, {LN_RS}, v8\nv_and_b32 v9, 3, v1\nv_lshl_add_u32 v8, v9, 3, v8")
    a("v_mul_u32_u24 v9, 160, v2\nv_add_u32 v8, v8, v9")
    a("v_mul_u32_u24 v9, 80, v2\nv_add_u32 v9, v9, v4\nv_lshlrev_b32 v9, 6, v9\nv_lshl_add_u32 v9, v3, 4, v9")
    a(f"s_mul_i32 s53, s52, {T_BLK}\ns_add_u32 s55, s53, 4096\ns_lshl_b32 s56, s52, 7")
    a(f"v_lshlrev_b32 v10, 2, v5\nv_and_b32 v11, 1, v4\nv_lshl_add_u32 v10, v11, 7, v10\nv_add_u32 v10, {LN_U}, v10")
    R = 56
    S0, S1, Q0, Q1, NM, RI, TT = 80, 81, 82, 83, 84, 85, 88
    a(f"v_mov_b32 v{S0}, 0\nv_mov_b32 v{S1}, 0\nv_mov_b32 v{Q0}, 0\nv_mov_b32 v{Q1}, 0\nv_cmp_eq_u32 s[58:59], 1, v11")
    epoch_ready(a)
    for j in range(5):
        a.wait_vm(("x", j))
        if j == 0:
            a.stamp(1)
        a(f"ds_write_b128 v7, {q(X+4*j)} offset:{j*256}")
        for i in range(4 * j, 4 * j + 4):
            a(f"v_dot2c_f32_bf16 v{S0 + (i&1)}, s54, v{X+i}")
            a(f"v_dot2c_f32_bf16 v{Q0 + (i&1)}, v{X+i}, v{X+i}")
    a("s_waitcnt lgkmcnt(0)\ns_barrier")
    a.stamp(2)
    for i in range(5):
        a(f"ds_read_b64_tr_b16 {q(R+4*i,2)}, v8 offset:{32*i}")
        a(f"ds_read_b64_tr_b16 {q(R+4*i+2,2)}, v8 offset:{32*i + 4*LN_RS}")
    a(f"v_add_f32 v{S0}, v{S0}, v{S1}\nv_add_f32 v{Q0}, v{Q0}, v{Q1}")
    for i in range(5):
        a(f"s_waitcnt lgkmcnt({8-2*i})")
        a.vmem(f"buffer_store_dwordx4 {q(R+4*i)}, v9, s[40:43], {'s53' if i < 4 else 's55'} offen offset:{1024*(i%4)} {SC}")
    for sh in (8, 4, 2, 1):
        a(f"v_add_f32_dpp v{S0}, v{S0}, v{S0} row_ror:{sh} row_mask:0xf bank_mask:0xf")
        a(f"v_add_f32_dpp v{Q0}, v{Q0}, v{Q0} row_ror:{sh} row_mask:0xf bank_mask:0xf")
        a("s_nop 0")
    ln_finish(a, S0, Q0, TT, NM, RI)
    a(f"v_cndmask_b32 v{NM}, v{NM}, v{RI}, s[58:59]")
    a(f"ds_write_b32 v10, v{NM}")
    a("s_waitcnt lgkmcnt(0)\ns_barrier")
    sk = a.newlabel("L_lnst")
    a(f"s_cmp_lg_u32 s6, 7\ns_cbranch_scc1 {sk}")
    a(f"v_lshlrev_b32 v10, 2, v1\nv_add_u32 v11, {LN_U}, v10\nds_read_b32 v12, v11")
    a("v_lshrrev_b32 v11, 5, v1\nv_mul_u32_u24 v11, 8064, v11\nv_add_u32 v10, v10, v11\ns_waitcnt lgkmcnt(0)")
    a.vmem(f"buffer_store_dword v12, v10, s[36:39], s56 offen {SC}")
    a.label(sk)
    a("s_waitcnt vmcnt(0)\ns_barrier")
    a.stamp(3)
    sk = a.newlabel("L_lnp")
    a(f"s_cmp_lg_u32 s6, 7\ns_cbranch_scc1 {sk}")
    a.publish(F_L, 52, 10)
    a.label(sk)
    sk = a.newlabel("L_lnrp")
    a(f"s_cmp_ge_u32 s6, 5\ns_cbranch_scc1 {sk}")
    a(f"s_mul_i32 s55, s52, 5\ns_add_u32 s55, s55, s6\ns_mul_i32 s56, s6, 12288\ns_add_u32 s56, s56, 49152")
    rp13_issue(a)
    a("s_waitcnt vmcnt(0)")
    rp13_finish(a)
    a("s_waitcnt vmcnt(0)")
    a.publish(F_R, 55, 10)
    a.label(sk)


W13_J = [[0, 1, 2], [4, 5, 3]]


RP_BASE = 2 * LN_U


def rp13_issue(a):
    a("s_mul_i32 s57, s55, 205\ns_lshr_b32 s57, s57, 12")
    a("s_mul_i32 s58, s57, 20\ns_sub_u32 s58, s55, s58")
    a.srd(44, 24, 0, 640 * 3072)
    a.srd(48, 26, 0, 640 * 3072)
    a(f"s_mul_i32 s57, s57, 192\ns_mul_i32 s58, s58, {32*3072}\ns_add_u32 s57, s57, s58")
    for i in range(6):
        a(f"v_add_u32 v10, {64*i}, v1\nv_mul_u32_u24 v11, 43691, v10\nv_lshrrev_b32 v11, 19, v11")
        a(f"v_mul_u32_u24 v12, 12, v11\nv_sub_u32 v12, v10, v12\nv_mul_u32_u24 v11, 3072, v11\nv_lshl_add_u32 v13, v12, 4, v11")
        for mat in range(2):
            a(f"s_add_u32 m0, s56, {mat*6144 + i*1024}\ns_nop 0")
            a(f"buffer_load_dwordx4 v13, s[{44+4*mat}:{47+4*mat}], s57 offen lds")


def rp13_finish(a):
    a("v_lshlrev_b32 v5, 4, v1")
    a("v_bfe_u32 v6, v1, 2, 2\nv_lshl_add_u32 v6, v3, 2, v6\nv_and_b32 v7, 3, v1")
    a("v_mul_u32_u24 v16, 192, v6\nv_lshl_add_u32 v16, v7, 3, v16\nv_add_u32 v16, s56, v16")
    OH, ACC, F = 32, 80, 84
    for t in range(12):
        wn, mat, jj = t // 6, (t % 6) // 3, t % 3
        off = mat * 6144 + 32 * W13_J[wn][jj]
        a(f"ds_read_b64_tr_b16 {q(F+4*t,2)}, v16 offset:{off}")
        a(f"ds_read_b64_tr_b16 {q(F+4*t+2,2)}, v16 offset:{off + 16*192}")
    a.srd(40, 4, WS_W13, SZ_W13)
    a.srd(44, 4, WS_CSP, SZ_CSP)
    a("s_mul_i32 s57, s55, 12288\ns_add_u32 s58, s57, 4096\ns_add_u32 s59, s57, 8192")
    a("s_waitcnt lgkmcnt(0)")
    for t in range(12):
        a(f"buffer_store_dwordx4 {q(F+4*t)}, v5, s[40:43], s{57 + t//4} offen offset:{1024*(t%4)} {SC}")
    a(f"v_mov_b32 v8, {hex(ONES_BF)}")
    a("v_lshlrev_b32 v9, 6, v4\nv_lshl_add_u32 v9, v3, 4, v9\ns_mul_i32 s60, s55, 768")
    for t in range(12):
        a(f"v_cmp_eq_u32 vcc, {t}, v4\ns_nop 1")
        for i in range(4):
            a(f"v_cndmask_b32 v{OH+4*t+i}, 0, v8, vcc")
    a("s_nop 1")
    for t in range(12):
        a(f"v_mfma_f32_16x16x32_bf16 {q(ACC)}, {q(F+4*t)}, {q(OH+4*t)}, {q(ACC) if t else 0}")
    a("s_nop 7\nv_cmp_gt_u32 vcc, 12, v4\ns_and_saveexec_b64 s[82:83], vcc")
    a(f"buffer_store_dwordx4 {q(ACC)}, v9, s[44:47], s60 offen {SC}")
    a(f"s_mov_b64 exec, s[82:83]")


def role_rp2(a):
    a.vm = []
    a("s_mul_i32 s54, s6, 12288")
    a("v_lshlrev_b32 v5, 4, v1")
    a("v_bfe_u32 v6, v1, 2, 2\nv_lshl_add_u32 v6, v3, 2, v6\nv_and_b32 v7, 3, v1")
    a("s_mul_i32 s55, s53, 171\ns_lshr_b32 s55, s55, 12")
    a("s_mul_i32 s56, s55, 24\ns_sub_u32 s56, s53, s56")
    a.srd(32, 28, 0, 1536 * 1280)
    a(f"s_mul_i32 s57, s55, 160\ns_mul_i32 s58, s56, {64*1280}\ns_add_u32 s57, s57, s58\ns_add_u32 s58, s57, {32*1280}")
    for i in range(5):
        a(f"v_add_u32 v8, {64*i}, v1\nv_mul_u32_u24 v9, 52429, v8\nv_lshrrev_b32 v9, 19, v9")
        a(f"v_mul_u32_u24 v16, 10, v9\nv_sub_u32 v16, v8, v16\nv_mul_u32_u24 v9, 1280, v9\nv_lshl_add_u32 v{10+i}, v16, 4, v9")
        for un in range(2):
            a(f"s_add_u32 m0, s54, {un*5120 + i*1024}\ns_nop 0")
            a.vmem(f"buffer_load_dwordx4 v{10+i}, s[32:35], s{57+un} offen lds", "w")
    a.srd(40, 4, WS_W2, SZ_W2)
    a("s_mul_i32 s60, s56, 171\ns_lshr_b32 s60, s60, 9\ns_mul_i32 s60, s60, 3\ns_sub_u32 s60, s56, s60")
    for un in range(2):
        a(f"s_cmp_eq_u32 s60, {2 if un == 0 else 0}\ns_cselect_b32 s61, 640, 0\ns_mul_i32 s62, s61, 3\ns_sub_u32 s62, 2560, s62")
        a(f"v_mul_u32_u24 v16, 160, v6\nv_mul_u32_u24 v8, s61, v3\nv_add3_u32 v16, v16, v8, s54")
        b = 18 + 4 * un
        a(f"v_lshl_add_u32 v{b}, v7, 4, v16\nv_lshl_add_u32 v{b+1}, v7, 3, v16\nv_add_u32 v{b+2}, s62, v{b}\nv_add_u32 v{b+3}, s62, v{b+1}")
    a("s_mul_i32 s57, s53, 10240\ns_add_u32 s58, s57, 4096\ns_add_u32 s59, s57, 8192")
    a.poll(F_L, 64, 26)
    F = 32
    for k in range(10):
        un, t = divmod(k, 5)
        b = 18 + 4 * un + (0 if t < 4 else 1)
        off = un * 5120 + ((t >> 1) * 64 + (t & 1) * 8 if t < 4 else 128)
        a(f"ds_read_b64_tr_b16 {q(F+4*k,2)}, v{b} offset:{off}")
        a(f"ds_read_b64_tr_b16 {q(F+4*k+2,2)}, v{b+2} offset:{off}")
    a("s_waitcnt lgkmcnt(0)")
    for k in range(10):
        a.vmem(f"buffer_store_dwordx4 {q(F+4*k)}, v5, s[40:43], s{57 + k//4} offen offset:{1024*(k%4)} {SC}")


TB_RS = 272
TB_SZ = 57 * TB_RS
CV_A = 64
CV_CS = 4160
CV_U = CV_A + 4 * CV_CS
CV_X = CV_U + 4608
CV_WAVE = CV_X + 4096
KP_BASE = 126976
PART_BASE = 145408
RP_LDS = [101632, 113920]


def kgen(a):
    a.vm = []
    a(f"s_mul_i32 s53, s6, {TB_SZ}")
    a("s_lshr_b32 s54, s6, 2")
    a("s_mul_i32 s55, s52, 384\ns_lshl_b32 s56, s54, 7\ns_add_u32 s55, s55, s56\nv_lshlrev_b32 v5, 1, v1")
    a("s_lshl_b32 s56, s52, 1\nv_mov_b32 v6, 0")
    PR, DT = 8, 92
    PR2 = 96
    a.srd(48, 18, 0, 1280)
    a.vmem(f"buffer_load_ushort v{DT}, v6, s[48:51], s56 offen", "par")
    for i in range(4):
        a.srd(32 + 4 * i, 10 + 2 * i, 0, 640 * 192 * 2)
        a.vmem(f"buffer_load_ushort v{PR+i}, v5, s[{32+4*i}:{35+4*i}], s55 offen", "par")
    for i in range(4):
        a.vmem(f"buffer_load_ushort v{PR2+i}, v5, s[{32+4*i}:{35+4*i}], s55 offen offset:256", "par2")
    a.srd(48, 20, 0, 1280)
    a.vmem("buffer_load_ushort v240, v6, s[48:51], s56 offen", "par2")
    VW, VR, DK = 6, 7, 80
    a(f"v_lshlrev_b32 v{VW}, 2, v1\nv_add_u32 v{VW}, s53, v{VW}")
    a(f"v_mul_u32_u24 v{VR}, {TB_RS}, v4\nv_lshl_add_u32 v{VR}, v3, 4, v{VR}\nv_add_u32 v{VR}, s53, v{VR}")
    for i in range(12):
        a(f"v_mov_b32 v{DK+i}, 0")
    epoch_ready(a)
    a.wait_vm("par")
    a.stamp(1)
    a(f"v_lshlrev_b32 v{DT}, 16, v{DT}\nv_mul_f32 v{DT}, {hex(LOG2E)}, v{DT}\nv_exp_f32 v{DT}, v{DT}\ns_nop 0")
    a.rnd(DT, DT)
    a.label("L_kgen")
    A2, W, Z8, Y, GC, T0, T1, T2, XT = 16, 17, 18, 20, 22, 24, 26, 28, 30
    E = [None] + [32 + 2 * i for i in range(7)]
    G1 = 46
    PK = [48, 49, 50, 51]
    pkc = [0]

    def put(row, re, im):
        r = PK[pkc[0] % 4]
        pkc[0] += 1
        a(f"v_cvt_pk_bf16_f32 v{r}, {re}, {im}")
        a(f"ds_write_b32 v{VW}, v{r} offset:{row*TB_RS}")

    def putp(row, p):
        put(row, f"v{p}", f"v{p+1}")

    a(f"v_lshlrev_b32 v{PR}, 16, v{PR}\nv_mul_f32 v{A2}, {hex(LOG2E)}, v{PR}\nv_exp_f32 v{A2}, v{A2}")
    for i in range(1, 4):
        a(f"v_lshlrev_b32 v{PR+i}, 16, v{PR+i}")
    a.rnd(A2, A2)
    a(f"v_mul_f32 v{W}, v{PR+1}, v{DT}")
    a(f"v_mul_f32 v{A2}, v{A2}, v{DT}")
    a(f"v_mul_f32 v{W}, {hex(INV2PI)}, v{W}")
    a(f"v_mul_f32 v{A2}, {hex(NLOG2E)}, v{A2}")
    a(f"v_rndne_f32 v{T0}, v{W}")
    a(f"v_mul_f32 v{Y}, v{PR+2}, v{DT}\nv_mul_f32 v{Y+1}, v{PR+3}, v{DT}")
    a(f"v_sub_f32 v{W}, v{W}, v{T0}")
    a(f"v_mul_f32 v{Y}, 2.0, v{Y}\nv_mul_f32 v{Y+1}, -2.0, v{Y+1}")

    def base(dst, mult, conj, T):
        m = {1: "1.0", 8: hex(0x41000000), 128: hex(0x43000000)}[mult]
        a(f"v_mul_f32 v{T}, {m}, v{A2}\nv_mul_f32 v{T+1}, {m}, v{W}")
        a(f"v_exp_f32 v{T}, v{T}\nv_cos_f32 v{dst}, v{T+1}\nv_sin_f32 v{dst+1}, v{T+1}\ns_nop 0")
        a(f"v_mul_f32 v{dst}, v{dst}, v{T}")
        a(f"v_mul_f32 v{dst+1}, {'-' if conj else ''}v{dst+1}, v{T}")

    base(E[1], 1, False, T0)
    base(Z8, 8, True, T1)
    base(G1, 128, False, T2)
    put(0, "1.0", "0")
    putp(1, E[1])
    putp(41, Y)
    cmul(a, E[2], E[1], E[1], T0)
    putp(8, G1)
    cmul(a, E[3], E[2], E[1], T0)
    cmul(a, E[4], E[2], E[2], T1)
    putp(2, E[2])
    cmul(a, E[5], E[4], E[1], T0)
    cmul(a, E[6], E[4], E[2], T1)
    cmul(a, E[7], E[4], E[3], T2)
    for e in range(3, 8):
        putp(e, E[e])
    ops = []
    for e in range(1, 8):
        ops.append(("x", 8 + e, G1, E[e]))
    for g in range(2, 17):
        ops.append(("g", g))
        if g in (2, 3):
            for i, e in enumerate((2, 4, 6)):
                ops.append(("x", 16 + (g - 2) * 4 + 1 + i, GC, E[e]))
        elif g < 8:
            ops.append(("x", 24 + (g - 4) * 2 + 1, GC, E[4]))
    yb = 1
    for k, op in enumerate(ops):
        if op[0] == "x":
            x = XT if (k & 1) else T2
            cmul(a, x, op[2], op[3], x)
            putp(op[1], x)
        else:
            g = op[1]
            cmul(a, GC, G1 if g == 2 else GC, G1, T1)
            row = 16 + (g - 2) * 4 if g < 4 else (24 + (g - 4) * 2 if g < 8 else 32 + (g - 8))
            putp(row, GC)
        if (k & 1) and yb < 16:
            cmul(a, Y, Y, Z8, T0)
            putp(41 + yb, Y)
            yb += 1
    assert yb == 16
    FR = 16
    a("s_waitcnt lgkmcnt(0)")
    for st in range(4):
        f = FR + 16 * st
        if st == 3:
            a("s_waitcnt lgkmcnt(8)")
        a(f"ds_read_b128 {q(f)}, v{VR} offset:{41*TB_RS + 64*st}")
        for t in range(3):
            a(f"ds_read_b128 {q(f+4+4*t)}, v{VR} offset:{16*t*TB_RS + 64*st}")
    a("s_waitcnt vmcnt(0)")
    for i in range(4):
        a(f"v_mov_b32 v{PR+i}, v{PR2+i}")
    for st in range(4):
        f = FR + 16 * st
        a(f"s_waitcnt lgkmcnt({12 - 4*st})")
        for t in range(3):
            a(f"v_mfma_f32_16x16x32_bf16 {q(DK+4*t)}, {q(f+4+4*t)}, {q(f)}, {q(DK+4*t)}")
    a("s_add_u32 s54, s54, 1\ns_cmp_lt_u32 s54, 2\ns_cbranch_scc1 L_kgen")
    a.vm = []


def conv_main(a):
    DK = 80
    a(f"s_mul_i32 s53, s7, {CV_WAVE}")
    a(f"s_mul_i32 s54, s7, 4224\ns_add_u32 s54, s54, {KP_BASE}")
    a(f"s_mul_i32 s55, s7, 3072\ns_add_u32 s55, s55, {PART_BASE}")
    a("v_lshlrev_b32 v7, 4, v1\nv_add_u32 v5, s55, v7")
    a("v_lshlrev_b32 v18, 4, v4\nv_add_u32 v18, s54, v18")
    a("v_lshrrev_b32 v16, 1, v3\nv_and_b32 v17, 1, v3")
    a("v_lshlrev_b32 v19, 8, v16\nv_lshl_add_u32 v19, v17, 3, v19\nv_add_u32 v19, v19, v18")
    a("v_cmp_gt_u32 vcc, 2, v3")
    a("v_lshlrev_b32 v20, 8, v3\nv_add_u32 v20, 512, v20\nv_lshlrev_b32 v21, 9, v3")
    a("v_cndmask_b32 v20, v21, v20, vcc\nv_add_u32 v20, v20, v18")
    for i in range(1, 4):
        a(f"v_mov_b32 v22, {4*i}\nv_mov_b32 v23, {256*(i>>1) + 8*(i&1)}")
        a(f"v_cndmask_b32 v22, v23, v22, vcc\nv_add_u32 v{23+i}, v20, v22")
    a("v_lshlrev_b32 v27, 10, v3\nv_lshl_add_u32 v27, v4, 4, v27\nv_add_u32 v27, 2048, v27\ns_movk_i32 s56, 4112")
    for i in range(4):
        a(f"v_add_u32 v{28+i}, {256*i}, v27\nv_min_u32 v{28+i}, s56, v{28+i}\nv_add_u32 v{28+i}, s54, v{28+i}")
    a("v_sub_u32 v16, 4094, v7\nv_cvt_f32_u32 v16, v16")
    a("v_cmp_eq_u32 s[58:59], 63, v1")
    a("v_add_u32 v17, s53, v7")
    a.stamp(2)
    a("s_barrier")
    for t in range(3):
        a(f"ds_read_b128 {q(40+4*t)}, v5 offset:{1024*t}")
    a("s_waitcnt lgkmcnt(0)")
    for i in range(6):
        a(f"v_pk_add_f32 {q(DK+2*i,2)}, {q(DK+2*i,2)}, {q(40+2*i,2)}")
    for i in range(6):
        a(f"v_cvt_pk_bf16_f32 v{32+i}, v{DK+2*i}, v{DK+2*i+1}")
    a("ds_write_b64 v19, v[32:33]")
    a("ds_write_b16 v20, v34\nds_write_b16_d16_hi v24, v34\nds_write_b16 v25, v35\nds_write_b16_d16_hi v26, v35")
    a("ds_write_b16 v28, v36\nds_write_b16_d16_hi v29, v36\nds_write_b16 v30, v37\nds_write_b16_d16_hi v31, v37")
    a("v_sub_u32 v38, 4080, v7\nv_add_u32 v38, s54, v38")
    a("v_and_b32 v39, 1, v1\nv_cmp_eq_u32 s[60:61], 0, v39")
    a("v_cndmask_b32 v39, 0, 8, s[58:59]\nv_sub_u32 v40, v38, v39\nv_lshrrev_b32 v39, 1, v39\nv_sub_u32 v41, v38, v39")
    a("v_subrev_u32 v38, 2056, v38\nv_subrev_u32 v40, 2056, v40\nv_subrev_u32 v41, 2056, v41")
    AD = 20
    for m in range(0, 12, 2):
        f0 = 64 + m
        a(f"v_add_f32 v{f0}, {hex(f32bits(-3072.0 - 2.0*m))}, v16\nv_add_f32 v{f0+1}, {hex(f32bits(-3072.0 - 2.0*(m+1)))}, v16")
        a(f"v_cvt_pk_bf16_f32 v{f0}, v{f0}, v{f0+1}")
        a.unpack(f0, f0)
        a(f"v_cvt_u32_f32 v{AD+m}, v{f0}\nv_cvt_u32_f32 v{AD+m+1}, v{f0+1}")
        a(f"v_add_u32 v{AD+m}, s54, v{AD+m}\nv_add_u32 v{AD+m+1}, s54, v{AD+m+1}")
    a("s_waitcnt lgkmcnt(0)")
    G = 96
    for r in range(2):
        o = 2056 - 1024 * r
        a(f"ds_read_u16 v{G+4*r}, v38 offset:{o+16}\nds_read_u16 v{G+4*r+1}, v38 offset:{o}")
        a(f"ds_read_u16 v{G+4*r+2}, v{40 if r else 38} offset:{o}")
    o = 2056 - 2048
    a(f"ds_read_u16 v{G+8}, v38 offset:{o+16}\nds_read_u16 v{G+9}, v38 offset:{o+8}\nds_read_u16 v{G+10}, v38 offset:{o}")
    a(f"ds_read_u16 v{G+11}, v41 offset:{o}\nds_read_u16 v{G+12}, v38 offset:{o-8}")
    D = 32
    for m in range(6):
        a(f"ds_read_u16 v{D+m}, v{AD+2*m}")
        if m < 5:
            a(f"ds_read_u16 v{52+m}, v{AD+2*m+1}")

    def wr(r, c0, c1, c2, c3):
        for k, c in enumerate((c0, c1, c2, c3)):
            a(f"ds_write_b128 v17, {q(c)} offset:{CV_A + k*CV_CS + 1024*r}")

    a("s_waitcnt lgkmcnt(15)\ns_waitcnt lgkmcnt(11)")
    for r in range(2):
        A, B, B2 = G + 4 * r, G + 4 * r + 1, G + 4 * r + 2
        Q = 112 + 16 * r
        a(f"v_cndmask_b32 v{G+4*r+3}, v{B}, v{A}, s[60:61]")
        W3 = G + 4 * r + 3
        a(f"v_lshl_or_b32 v{Q}, v{A}, 16, v{A}\nv_lshl_or_b32 v{Q+1}, v{W3}, 16, v{A}\nv_lshl_or_b32 v{Q+2}, v{B}, 16, v{B}")
        a(f"v_mov_b32 v{Q+3}, v{Q+2}\nv_mov_b32 v{Q+4}, v{Q+1}\nv_mov_b32 v{Q+5}, v{Q+2}\nv_mov_b32 v{Q+6}, v{Q+2}\nv_mov_b32 v{Q+7}, v{Q+2}")
        a(f"v_mov_b32 v{Q+8}, v{Q}\nv_lshl_or_b32 v{Q+9}, v{B}, 16, v{W3}\nv_mov_b32 v{Q+10}, v{Q+2}\nv_mov_b32 v{Q+11}, v{Q+2}")
        a(f"v_mov_b32 v{Q+12}, v{Q+9}\nv_mov_b32 v{Q+13}, v{Q+2}\nv_mov_b32 v{Q+14}, v{Q+2}\nv_lshl_or_b32 v{Q+15}, v{B2}, 16, v{B}")
        wr(r, Q + 12, Q + 4, Q + 8, Q)
    P_, Q_, R_, R2, S_ = G + 8, G + 9, G + 10, G + 11, G + 12
    Q = 144
    a(f"v_lshl_or_b32 v{Q}, v{P_}, 16, v{P_}\nv_lshl_or_b32 v{Q+1}, v{Q_}, 16, v{Q_}\nv_lshl_or_b32 v{Q+2}, v{R_}, 16, v{Q_}\nv_lshl_or_b32 v{Q+3}, v{R_}, 16, v{R_}")
    a(f"v_mov_b32 v{Q+4}, v{Q+1}\nv_mov_b32 v{Q+5}, v{Q+2}\nv_mov_b32 v{Q+6}, v{Q+3}\nv_lshl_or_b32 v{Q+7}, v{R2}, 16, v{R_}")
    a(f"v_lshl_or_b32 v{Q+8}, v{Q_}, 16, v{P_}\nv_mov_b32 v{Q+9}, v{Q+1}\nv_mov_b32 v{Q+10}, v{Q+3}\nv_mov_b32 v{Q+11}, v{Q+3}")
    a(f"v_mov_b32 v{Q+12}, v{Q+1}\nv_mov_b32 v{Q+13}, v{Q+3}\nv_mov_b32 v{Q+14}, v{Q+3}\nv_lshl_or_b32 v{Q+15}, v{S_}, 16, v{R2}")
    wr(2, Q + 12, Q + 4, Q + 8, Q)
    a("s_waitcnt lgkmcnt(12)")
    for m in range(5):
        a(f"v_lshl_or_b32 v{D+m}, v{52+m}, 16, v{D+m}")
    a(f"v_cndmask_b32 v{D+4}, v{D+4}, 0, s[58:59]\nv_cndmask_b32 v{D+5}, v{D+5}, 0, s[58:59]")
    C1, C2, C0 = 40, 44, 48
    for m in range(4):
        a(f"v_mov_b32 v{C1+m}, v{D+1+m}")
        a(f"v_alignbit_b32 v{C2+m}, v{D+m+1}, v{D+m}, 16")
        a(f"v_alignbit_b32 v{C0+m}, v{D+m+2}, v{D+m+1}, 16")
    wr(3, C0, C1, C2, D)
    ACC, AS, FS, VA, VF = 16, [48, 112], [80, 144], 10, 11
    T1, XF, DSV = 176, 208, 240
    a(f"v_and_b32 v5, 3, v4\nv_mul_u32_u24 v5, {CV_CS}, v5\nv_lshrrev_b32 v6, 2, v4\nv_lshlrev_b32 v6, 3, v6\nv_sub_u32 v5, v5, v6")
    a(f"v_lshlrev_b32 v6, 4, v3\nv_sub_u32 v5, v5, v6\nv_add_u32 v5, {CV_A + 4104 - 3584 - 448}, v5\nv_add_u32 v{VA}, s53, v5")
    a(f"v_lshlrev_b32 v5, 5, v4\nv_sub_u32 v5, v5, v6\nv_add_u32 v5, {CV_U + 496 - 448}, v5\nv_add_u32 v{VF}, s53, v5")
    a("v_lshlrev_b32 v8, 5, v4\nv_lshl_add_u32 v8, v3, 3, v8\nv_add_u32 v9, s53, v8")
    a("v_lshrrev_b32 v6, 3, v4\ns_mov_b32 s56, 163840\nv_mul_lo_u32 v6, v6, s56")
    a("v_and_b32 v7, 7, v4\nv_lshl_add_u32 v6, v7, 5, v6\nv_lshl_add_u32 v6, v3, 3, v6")
    a(f"v_lshlrev_b32 v{DSV}, 16, v{DSV}")
    a.srd(36, 4, WS_HT, SZ_T)
    a("s_lshl_b32 s55, s52, 8")
    a("s_waitcnt lgkmcnt(0)")
    a.stamp(3)
    a("s_barrier")
    a.stamp(4)
    if EXP & 512:
        a("s_setprio 2")

    def reads(s, c):
        o = []
        ex = 64 * (7 - c)
        for k in range(8):
            o.append(f"ds_read_b128 {q(FS[s]+4*k)}, v{VF} offset:{512*k + ex}")
            o.append(f"ds_read_b64 {q(AS[s]+4*k,2)}, v{VA} offset:{512*(7-k) + ex}")
            o.append(f"ds_read_b64 {q(AS[s]+4*k+2,2)}, v{VA} offset:{512*(7-k) + 8 + ex}")
        return o

    rd0 = reads(0, 0)
    for i, r in enumerate(rd0):
        a(r)
        if i == 11:
            a("s_waitcnt lgkmcnt(6)")
    fu, fx = [], []
    for nb in range(8):
        for hh in range(2):
            p = T1 + 4 * nb + 2 * hh
            src = T1 + 4 * nb + 2 + hh
            if hh == 0:
                fu += [f"v_lshlrev_b32 v{p}, 16, v{src}", f"v_and_b32 v{p+1}, 0xffff0000, v{src}"]
            else:
                fu += [f"v_lshlrev_b32 v{p}, 16, v{src}", f"v_and_b32 v{p+1}, 0xffff0000, v{src}"]
            fu += [f"v_pk_mul_f32 {q(p,2)}, {q(p,2)}, {q(DSV,2)} op_sel_hi:[1,0]",
                   f"v_cvt_pk_bf16_f32 v{p}, v{p}, v{p+1}",
                   f"v_and_b32 v{p+1}, 0xffff0000, v{p}", f"v_lshlrev_b32 v{p}, 16, v{p}"]
            p = XF + 4 * nb + 2 * hh
            src = XF + 4 * nb + 2 + hh
            fx += [f"v_lshlrev_b32 v{p}, 16, v{src}", f"v_and_b32 v{p+1}, 0xffff0000, v{src}"]
    fill = {c: fu[16 * (c - 1):16 * c] for c in range(1, 7)}
    fill[0] = [f"ds_read_b64 {q(T1+4*nb+2,2)}, v9 offset:{CV_U + 480 + 512*nb}" for nb in range(8)]
    fill[0] += [f"ds_read_b64 {q(XF+4*nb+2,2)}, v9 offset:{CV_X + 512*nb}" for nb in range(8)]
    fill[7] = fx
    for c in range(8):
        s = c & 1
        a("s_waitcnt lgkmcnt(0)")
        rd = reads(1 - s, c + 1) if c < 7 else []
        fl = list(fill[c])
        i = 0
        for aa in range(8):
            for m in range(8 - aa):
                cc = q(ACC + 4 * (aa + m)) if (c or aa) else "0"
                a(f"v_mfma_f32_16x16x32_bf16 {q(ACC+4*(aa+m))}, {q(AS[s]+4*aa)}, {q(FS[s]+4*m)}, {cc}")
                if i < len(rd) and rd[i]:
                    a(rd[i])
                    if i in (11, 19):
                        a("s_waitcnt lgkmcnt(8)")
                if (i >= 20 or c == 7) and fl:
                    a(fl.pop(0))
                i += 1
        assert not fl
    a.stamp(5)
    a("s_nop 4")
    for nb in range(8):
        y = ACC + 4 * nb
        o = 48 + 2 * nb
        for hh in range(2):
            t = y + 2 * hh
            a(f"v_cvt_pk_bf16_f32 v{t}, v{t}, v{t+1}")
            a.unpack(t, t)
            a(f"v_pk_add_f32 {q(t,2)}, {q(t,2)}, {q(T1+4*nb+2*hh,2)}")
            a(f"v_cvt_pk_bf16_f32 v{t}, v{t}, v{t+1}")
            a.unpack(t, t)
            a(f"v_pk_add_f32 {q(t,2)}, {q(t,2)}, {q(XF+4*nb+2*hh,2)}")
            a(f"v_cvt_pk_bf16_f32 v{o+hh}, v{t}, v{t+1}")
        a.vmem(f"buffer_store_dwordx2 {q(o,2)}, v6, s[36:39], s55 offen {SC}")
        a(f"s_add_u32 s55, s55, {2*163840}")
    a.stamp(6)
    a("s_waitcnt vmcnt(0)")
    last_of4_publish(a, 0, F_C, 2, 120)


def conv_partner(a):
    DK = 80
    a(f"s_mul_i32 s53, s7, {CV_WAVE}")
    a(f"s_mul_i32 s55, s7, 3072\ns_add_u32 s55, s55, {PART_BASE}")
    a("v_lshlrev_b32 v7, 4, v1\nv_add_u32 v5, s55, v7")
    a("v_mov_b32 v20, 0\nv_mov_b32 v21, 0\nv_mov_b32 v22, 0\nv_mov_b32 v23, 0")
    a("v_add_u32 v9, s53, v7")
    a(f"v_lshrrev_b32 v16, 1, v1\nv_mul_u32_u24 v16, {CV_CS}, v16\nv_and_b32 v17, 1, v1\nv_lshl_add_u32 v16, v17, 4, v16\nv_add_u32 v16, s53, v16")
    for t in range(3):
        a(f"ds_write_b128 v5, {q(DK+4*t)} offset:{1024*t}")
    a.stamp(2)
    a.srd(32, 4, WS_XT, SZ_TP)
    a.srd(36, 4, WS_ST, 16384)
    a(f"s_lshl_b32 s54, s2, 8\ns_mul_i32 s61, s7, {16*T_BLK}\ns_add_u32 s54, s54, s61\ns_lshl_b32 s61, s7, 11\ns_add_u32 s62, s61, 8192")
    a(f"v_lshrrev_b32 v8, 2, v1\nv_mul_u32_u24 v8, {T_BLK}, v8\nv_and_b32 v14, 3, v1\nv_lshl_add_u32 v8, v14, 4, v8")
    a("v_lshlrev_b32 v14, 5, v1\ns_lshl_b32 s63, s7, 10\nv_add_u32 v15, s63, v7")
    a("s_waitcnt lgkmcnt(0)\ns_barrier")
    a("s_mov_b64 exec, 0x3fffffff")
    a(f"ds_write_b128 v9, v[20:23] offset:{CV_U}")
    a("s_mov_b64 exec, 0xff")
    a(f"ds_write_b128 v16, v[20:23] offset:{CV_A + 4096}")
    a("s_mov_b64 exec, -1")
    a.poll(F_L, 64, 24)
    a.stamp(3)
    XR, NM, RI, U = 32, 48, 56, 64
    for k in range(2):
        a.vmem(f"buffer_load_dwordx4 {q(NM+4*k)}, v14, s[36:39], s61 offen offset:{16*k} {SC}", "st")
        a.vmem(f"buffer_load_dwordx4 {q(RI+4*k)}, v14, s[36:39], s62 offen offset:{16*k} {SC}", "st")
    for ch in range(4):
        a.vmem(f"buffer_load_dwordx4 {q(XR+4*ch)}, v8, s[32:35], s54 offen offset:{64*ch} {SC}", ("x", ch))
    for ch in range(4):
        a.wait_vm(("x", ch))
        for i in range(4):
            t = 80 + 2 * i
            a.unpack(t, XR + 4 * ch + i)
            a(f"v_pk_add_f32 {q(t,2)}, {q(t,2)}, {q(NM+2*i,2)}")
            a(f"v_cvt_pk_bf16_f32 v{t}, v{t}, v{t+1}")
            a.unpack(t, t)
            a(f"v_pk_mul_f32 {q(t,2)}, {q(t,2)}, {q(RI+2*i,2)}")
            a(f"v_cvt_pk_bf16_f32 v{U+4*ch+i}, v{t}, v{t+1}")
        if ch == 2:
            a(f"v_add_u32 v15, {2*CV_WAVE}, v15")
        a(f"ds_write_b128 v15, {q(U+4*ch)} offset:{CV_U + 480 + CV_WAVE*(ch&1)}")
        a(f"ds_write_b128 v15, {q(XR+4*ch)} offset:{CV_X + CV_WAVE*(ch&1)}")
    a("s_waitcnt lgkmcnt(0)")
    a.stamp(4)
    a("s_barrier")


G1_H = 5120
G1_HN = 5
G1_W = 87040
G1_WN = 3
G1_CONST = 0
G1_CS = 2048
G1_SP = 3072
G2_H, G2_HN, G2_W, G2_WN = G1_H, G1_HN, G1_W, G1_WN
LDS_TOTAL = 163840


def tile_ids(a):
    a("s_and_b32 s12, s2, 7\ns_lshr_b32 s13, s2, 3\ns_and_b32 s14, s13, 7\ns_lshr_b32 s15, s13, 3")
    a("s_and_b32 s8, s12, 1\ns_lshl_b32 s8, s8, 3\ns_add_u32 s8, s8, s14")
    a("s_lshr_b32 s9, s12, 1\ns_lshl_b32 s10, s9, 3\ns_lshl_b32 s9, s9, 2\ns_add_u32 s9, s9, s15")
    a("s_add_u32 s10, s10, s14")
    a("s_and_b32 s11, s12, 1\ns_lshl_b32 s11, s11, 2\ns_add_u32 s11, s11, s15")
    a("v_bfe_u32 v5, v1, 2, 2")
    a("v_lshl_add_u32 v6, v3, 2, v5\nv_lshlrev_b32 v6, 8, v6")
    a("v_and_b32 v7, 3, v1\nv_lshl_add_u32 v6, v7, 3, v6")
    a("v_and_b32 v7, 1, v3\nv_lshl_add_u32 v5, v7, 2, v5")


def gemm_mfma_waves(a, done):
    tile_ids(a)
    if EXP & 16:
        sk = a.newlabel("L_nowarm")
        a(f"s_cmp_lt_u32 s2, 160\ns_cbranch_scc1 {sk}")
        a("s_sub_u32 s16, s13, 20\ns_lshl_b32 s16, s16, 2\ns_add_u32 s16, s16, s7\ns_mul_i32 s16, s16, 20480")
        a("v_lshlrev_b32 v8, 4, v1")
        for which in range(2):
            if which == 0:
                a(f"s_lshr_b32 s17, s12, 1\ns_mul_i32 s18, s17, {80*FS_}\ns_mul_i32 s17, s17, 983040")
                a.srd(32, 4, WS_W13, SZ_W13)
                a.poll(F_R, 80, 120, "s18")
            else:
                a("s_and_b32 s17, s12, 1\ns_mul_i32 s17, s17, 983040")
                a.srd(32, 4, WS_W2, SZ_W2)
                a.poll(F_R2, 32, 120)
            a("s_add_u32 s17, s17, s16")
            for i in range(20):
                a(f"buffer_load_dwordx4 {q(24+4*i)}, v8, s[32:35], s17 offen offset:{1024*(i%4)}")
                if i % 4 == 3:
                    a("s_add_u32 s17, s17, 4096")
        a("s_waitcnt vmcnt(0)")
        a.label(sk)
    a("s_barrier")
    if EXP & 1024:
        a("s_setprio 2")
    elif EXP & 512:
        a("s_setprio 0")
    a("s_and_b32 s16, s7, 1\ns_lshr_b32 s17, s7, 1")
    a("s_lshl_b32 s18, s16, 2\nv_xor_b32 v5, s18, v5")
    for nt in range(4):
        a(f"v_xor_b32 v7, {nt}, v5\nv_lshl_add_u32 v{12+nt}, v7, 5, v6")
    a("v_lshlrev_b32 v16, 4, v1\ns_mul_i32 s18, s17, 6144\nv_add_u32 v16, s18, v16")
    ACC, HS, AD = 24, [120, 160], 17
    for i in range(96):
        a(f"v_mov_b32 v{ACC+i}, 0")

    def reads(s, half):
        o = []
        for nt in range(4):
            r = HS[s] + 4 * nt
            o.append(f"ds_read_b64_tr_b16 {q(r,2)}, v{AD+nt} offset:{8192*half}")
            o.append(f"ds_read_b64_tr_b16 {q(r+2,2)}, v{AD+nt} offset:{8192*half + 4096}")
        for t in range(6):
            o.append(f"ds_read_b128 {q(HS[s]+16+4*t)}, v{AD+4} offset:{12288*half + 1024*t}")
        return o

    def setad(hs, ws):
        return [f"v_add_u32 v{AD+i}, {hs}, v{12+i}" for i in range(4)] + [f"v_add_u32 v{AD+4}, {ws}, v16"]

    for x in setad(G1_H, G1_W):
        a(x)
    a(f"s_mov_b32 s19, {G1_H}\ns_mov_b32 s20, {G1_W}\ns_mov_b32 s21, 0")
    a.srd(32, 4, WS_HM, SZ_HM)
    a.stamp(7)
    sk = a.newlabel("L_nopoll")
    a(f"s_cmp_lg_u32 s6, 0\ns_cbranch_scc1 {sk}")
    a.poll(F_R2, 32, 120)
    a.poll(F_C, 160, 120)
    a(f"s_cmp_lg_u32 s2, 0\ns_cbranch_scc1 {sk}")
    a("v_mov_b32 v120, s3\nv_mov_b32 v121, 0\ns_mov_b64 exec, 1")
    a("buffer_store_dword v120, v121, s[92:95], 0 offen\ns_mov_b64 exec, -1")
    a.label(sk)
    a("s_barrier")
    a.stamp(8)
    a("s_barrier")
    a.stamp(9)
    for x in reads(0, 0):
        a(x)
    a.label("L_g1")
    for s in range(2):
        if s == 0:
            a(f"s_add_u32 s19, s19, 16384\ns_cmp_eq_u32 s19, {G1_H + G1_HN*16384}\ns_cselect_b32 s19, {G1_H}, s19")
            a(f"s_add_u32 s20, s20, 24576\ns_cmp_eq_u32 s20, {G1_W + G1_WN*24576}\ns_cselect_b32 s20, {G1_W}, s20")
            a("s_waitcnt lgkmcnt(0)")
            rest = reads(1, 1) + setad("s19", "s20")
        else:
            a("s_waitcnt lgkmcnt(0)\ns_barrier")
            rest = reads(0, 0)
        i = 0
        for t in range(6):
            for nt in range(4):
                ac = ACC + 4 * (t * 4 + nt)
                a(f"v_mfma_f32_16x16x32_bf16 {q(ac)}, {q(HS[s]+16+4*t)}, {q(HS[s]+4*nt)}, {q(ac)}")
                if i < len(rest):
                    a(rest[i])
                i += 1
    a("s_add_u32 s21, s21, 1\ns_cmp_lt_u32 s21, 10\ns_cbranch_scc1 L_g1")
    a.stamp(10)
    a("s_lshl_b32 s18, s16, 10\nv_lshlrev_b32 v5, 4, v4\nv_add_u32 v5, s18, v5")
    a("s_mul_i32 s18, s17, 384\nv_lshlrev_b32 v6, 4, v3\nv_add_u32 v6, s18, v6")
    a("s_lshl_b32 s22, s8, 1\ns_add_u32 s22, s22, s16\ns_mul_i32 s22, s22, 48")
    a("s_mul_i32 s23, s9, 3\ns_add_u32 s22, s22, s23")
    a("s_lshl_b32 s23, s17, 1\ns_add_u32 s23, s23, s22\ns_lshl_b32 s23, s23, 12")
    a("s_add_u32 s22, s22, 1\ns_lshl_b32 s22, s22, 12\ns_lshl_b32 s18, s17, 9\ns_add_u32 s22, s22, s18")
    a("v_and_b32 v7, 1, v3\nv_lshlrev_b32 v7, 10, v7\nv_lshrrev_b32 v8, 1, v3\nv_lshl_add_u32 v7, v8, 8, v7\nv_lshl_add_u32 v7, v4, 4, v7")
    a("s_waitcnt lgkmcnt(0)\ns_barrier")
    KC, CSR = 184, 160
    for nt in range(4):
        a(f"ds_read_b128 {q(KC+4*nt)}, v5 offset:{G1_CONST + 256*nt}")
    for t in range(6):
        a(f"ds_read_b128 {q(CSR+4*t)}, v6 offset:{G1_CS + 64*t}")
    a("v_lshlrev_b32 v5, 4, v1")
    a("s_waitcnt lgkmcnt(0)")
    a.stamp(11)
    T = 120
    for nt in range(4):
        O = 144 + 4 * (nt & 1)
        k = KC + 4 * nt
        for jj in range(3):
            g = ACC + 4 * (jj * 4 + nt)
            u = ACC + 4 * ((3 + jj) * 4 + nt)
            for hh in range(2):
                g2, u2 = g + 2 * hh, u + 2 * hh
                a(f"v_pk_fma_f32 {q(g2,2)}, {q(CSR+4*jj+2*hh,2)}, {q(k,2)}, {q(g2,2)} op_sel_hi:[1,0,1]")
                a(f"v_pk_fma_f32 {q(u2,2)}, {q(CSR+4*(3+jj)+2*hh,2)}, {q(k,2)}, {q(u2,2)} op_sel_hi:[1,0,1]")
            for hh in range(2):
                a(f"v_pk_mul_f32 {q(T+2*hh,2)}, {q(g+2*hh,2)}, {q(k,2)} op_sel:[0,1] op_sel_hi:[1,1]")
            for i in range(4):
                a(f"v_exp_f32 v{T+i}, v{T+i}")
            for hh in range(2):
                a(f"v_pk_mul_f32 {q(g+2*hh,2)}, {q(g+2*hh,2)}, {q(u+2*hh,2)}")
            for hh in range(2):
                a(f"v_pk_fma_f32 {q(T+2*hh,2)}, {q(T+2*hh,2)}, {q(k+2,2)}, {q(k+2,2)} op_sel_hi:[1,0,0]")
            for i in range(4):
                a(f"v_rcp_f32 v{T+i}, v{T+i}")
            a("s_nop 0")
            for hh in range(2):
                a(f"v_pk_mul_f32 {q(g+2*hh,2)}, {q(g+2*hh,2)}, {q(T+2*hh,2)}")
            for hh in range(2):
                d = O + 2 * jj + hh if jj < 2 else 152 + 4 * (nt >> 1) + 2 * (nt & 1) + hh
                a(f"v_cvt_pk_bf16_f32 v{d}, v{g+2*hh}, v{g+2*hh+1}")
            if jj == 1:
                a(f"buffer_store_dwordx4 {q(O)}, v5, s[32:35], s23 offen offset:{1024*nt} {SC}")
        if nt & 1:
            S = 152 + 4 * (nt >> 1)
            a(f"s_nop 1\nv_permlane16_swap_b32 v{S}, v{S+2}\nv_permlane16_swap_b32 v{S+1}, v{S+3}")
            a(f"buffer_store_dwordx4 {q(S)}, v7, s[32:35], s22 offen offset:{1024*(nt-1)} {SC}")
    a.stamp(12)
    a.vm = []
    ACC, FS, RES, VW, VH = 16, [56, 84], 112, 132, 134
    a("s_lshl_b32 s22, s16, 1\ns_add_u32 s22, s22, s17")
    a("s_lshr_b32 s18, s10, 1\ns_mul_i32 s18, s18, 163840\ns_mul_i32 s19, s11, 20480\ns_add_u32 s18, s18, s19")
    a("s_and_b32 s19, s10, 1\ns_lshl_b32 s19, s19, 7\ns_add_u32 s18, s18, s19\ns_lshl_b32 s19, s22, 5\ns_add_u32 s18, s18, s19")
    a("v_lshlrev_b32 v10, 1, v4\nv_lshl_add_u32 v11, v3, 10, v10\nv_lshl_add_u32 v10, v3, 11, v10")
    a("s_add_u32 s19, s18, 8192\ns_add_u32 s20, s18, 16384")
    a.srd(36, 4, WS_HT, SZ_T)
    a.srd(40, 30, 0, SZ_T)
    a("s_lshl_b32 s21, s8, 4\ns_add_u32 s21, s21, s9")
    a("s_waitcnt vmcnt(0)")
    last_of4_publish(a, 1, F_G, 21, 140)
    a.stamp(13)
    sk = a.newlabel("L_nopub")
    a(f"s_cmp_lg_u32 s6, 0\ns_cbranch_scc1 {sk}")
    a(f"s_lshr_b32 s21, s10, 1\ns_mul_i32 s21, s21, {16*FS_}")
    a.poll(F_G, 16, 140, "s21")
    a.label(sk)
    a("s_barrier")
    if EXP & 4:
        a(f"s_mul_i32 s21, s10, {48*4096}\ns_lshl_b32 s23, s15, 2\ns_add_u32 s23, s23, s7\ns_mul_i32 s23, s23, 12288\ns_add_u32 s21, s21, s23")
        for i in range(12):
            a.vmem(f"buffer_load_dwordx4 {q(144+4*i)}, v5, s[32:35], s21 offen offset:{1024*(i%4)} {SC}", "warm")
            if i % 4 == 3:
                a("s_add_u32 s21, s21, 4096")
    for p in range(2):
        for e in range(8):
            a.vmem(f"buffer_load_ushort v{RES+8*p+e}, v10, s[36:39], s{18+p} offen offset:{256*e} {SC}", "res")
    for e in range(4):
        a.vmem(f"buffer_load_ushort v{RES+16+e}, v11, s[36:39], s20 offen offset:{256*e} {SC}", "res")
    for i in range(40):
        a(f"v_mov_b32 v{ACC+i}, 0")
    a(f"s_lshl_b32 s19, s17, 12\ns_lshl_b32 s21, s22, 10\ns_add_u32 s19, s19, s21\nv_add_u32 v{VH}, s19, v5")
    a(f"v_xor_b32 v{VH+1}, 1024, v{VH}\nv_add_u32 v{VH}, {G2_H}, v{VH}\nv_add_u32 v{VH+1}, {G2_H}, v{VH+1}")
    a(f"s_mul_i32 s19, s17, 5120\nv_add_u32 v{VW}, s19, v5")
    a(f"v_mov_b32 v{VH+2}, v{VH}\nv_mov_b32 v{VH+3}, v{VH+1}\nv_add_u32 v{VW+1}, {G2_W + 24576}, v{VW}")
    a(f"s_mov_b32 s23, 0\ns_mov_b32 s24, {G2_W + 24576}")

    def reads2(kk, s):
        o = [f"ds_read_b128 {q(FS[s]+20+4*j)}, v{VH+2+j} offset:{kk*8192}" for j in range(2)]
        o += [f"ds_read_b128 {q(FS[s]+4*t)}, v{VW+1} offset:{kk*10240 + 1024*t}" for t in range(5)]
        return o

    a("s_lshl_b32 s18, s10, 6\ns_lshl_b32 s19, s22, 4\ns_add_u32 s18, s18, s19\ns_mul_i32 s18, s18, 1280\ns_mul_i32 s19, s11, 160\ns_add_u32 s18, s18, s19")
    a("v_mul_u32_u24 v10, 1280, v4\nv_lshl_add_u32 v11, v3, 3, v10\nv_lshl_add_u32 v10, v3, 4, v10")
    a(f"s_mul_i32 s19, s7, 5120\ns_add_u32 s19, s19, {G2_W + 2*24576}\nv_add_u32 v6, s19, v5")
    a(f"s_xor_b32 s19, s7, 2\ns_mul_i32 s19, s19, 5120\ns_add_u32 s19, s19, {G2_W + 2*24576}\nv_add_u32 v7, s19, v5")
    a("s_mov_b32 s21, 0")
    a("s_barrier")
    a.stamp(14)
    for x in reads2(0, 0):
        a(x)
    a.label("L_g2")
    for s in range(2):
        if s == 0:
            a(f"s_add_u32 s23, s23, 16384\ns_cmp_eq_u32 s23, {G2_HN*16384}\ns_cselect_b32 s23, 0, s23")
            a(f"s_add_u32 s24, s24, 24576\ns_cmp_eq_u32 s24, {G2_W + G2_WN*24576}\ns_cselect_b32 s24, {G2_W}, s24")
            a("s_waitcnt lgkmcnt(0)")
            rd = reads2(1, 1) + [f"v_add_u32 v{VH+2}, s23, v{VH}", f"v_add_u32 v{VH+3}, s23, v{VH+1}", f"v_add_u32 v{VW+1}, s24, v{VW}"]
        else:
            a("s_waitcnt lgkmcnt(0)\ns_barrier")
            rd = reads2(0, 0)
        i = 0
        for t in range(5):
            for j in range(2):
                ac = ACC + 4 * (5 * j + t)
                if not EXP & 32:
                    a(f"v_mfma_f32_16x16x32_bf16 {q(ac)}, {q(FS[s]+4*t)}, {q(FS[s]+20+4*j)}, {q(ac)}")
                for x in rd[2*i:2*i+2]:
                    a(x)
                i += 1
    a("s_add_u32 s21, s21, 1\ns_cmp_lt_u32 s21, 12\ns_cbranch_scc1 L_g2")
    a("s_nop 5")
    for t in range(5):
        a(f"ds_write_b128 v6, {q(ACC+20+4*t)} offset:{1024*t}")
    a("s_waitcnt lgkmcnt(0)\ns_barrier")
    for t in range(5):
        a(f"ds_read_b128 {q(ACC+20+4*t)}, v7 offset:{1024*t}")
    a.wait_vm("res")
    for i in range(20):
        a(f"v_lshlrev_b32 v{RES+i}, 16, v{RES+i}")
    a("s_waitcnt lgkmcnt(0)")
    O = 56
    for i in range(10):
        y = ACC + 2 * i
        a(f"v_pk_add_f32 {q(y,2)}, {q(y,2)}, {q(y+20,2)}")
        a(f"v_cvt_pk_bf16_f32 v{y}, v{y}, v{y+1}")
        a.unpack(y, y)
        a(f"v_pk_add_f32 {q(y,2)}, {q(y,2)}, {q(RES+2*i,2)}")
        a(f"v_cvt_pk_bf16_f32 v{O+i}, v{y}, v{y+1}")
        if i == 3:
            a(f"buffer_store_dwordx4 {q(O)}, v10, s[40:43], s18 offen {SCO}")
        if i == 7:
            a(f"buffer_store_dwordx4 {q(O+4)}, v10, s[40:43], s18 offen offset:64 {SCO}")
    a(f"buffer_store_dwordx2 {q(O+8,2)}, v11, s[40:43], s18 offen offset:128 {SCO}")
    a(f"s_branch {done}")


def gemm_loader_waves(a, done):
    a.vm = []
    tile_ids(a)
    a("s_mul_i32 s22, s8, 163840\ns_add_u32 s23, s22, 163840")
    a(f"s_mul_i32 s24, s9, {20*12288}\ns_add_u32 s25, s24, {20*12288}")
    a("s_lshr_b32 s20, s9, 3\ns_mul_i32 s20, s20, 5")
    a("s_lshl_b32 s16, s20, 14\ns_add_u32 s16, s16, s22\ns_mul_i32 s17, s20, 24576\ns_add_u32 s17, s17, s24")
    a("s_lshl_b32 s18, s7, 12\ns_mul_i32 s19, s7, 6144")
    a("v_lshrrev_b32 v12, 1, v4\nv_xor_b32 v12, v12, v3\nv_lshlrev_b32 v12, 5, v12")
    a("v_and_b32 v7, 1, v4\nv_lshlrev_b32 v7, 4, v7\nv_lshl_add_u32 v7, v3, 8, v7\nv_add_u32 v7, s18, v7")
    a("v_add_u32 v8, v7, v12\nv_xor_b32 v12, 128, v12\nv_add_u32 v9, v7, v12")
    if EXP & 2048:
        a("v_lshlrev_b32 v8, 4, v1\nv_add_u32 v8, s18, v8\nv_mov_b32 v9, v8")
    a("v_lshlrev_b32 v10, 4, v1\nv_add_u32 v10, s19, v10\nv_add_u32 v11, 4096, v10")
    a.srd(32, 4, WS_HT, SZ_T)
    a.srd(36, 4, WS_W13, SZ_W13)
    a.srd(40, 4, WS_CSP, SZ_CSP)
    a(f"s_mul_i32 s20, s9, {20*FS_}")
    a.poll(F_R, 20, 20, "s20")
    a.stamp(5)

    def issue_w(st):
        slot = G1_W + (st % G1_WN) * 24576
        if EXP & 4096 and st > 2:
            a.vm.append(("w", st))
            return
        a(f"s_add_u32 m0, s19, {slot}\ns_nop 0")
        for i in range(4):
            a.vmem(f"buffer_load_dwordx4 v10, s[36:39], s17 offen offset:{1024*i} {SCL} lds", ("w", st))
        a(f"s_add_u32 m0, s19, {slot + 4096}\ns_nop 0")
        for i in range(2):
            a.vmem(f"buffer_load_dwordx4 v11, s[36:39], s17 offen offset:{1024*i} {SCL} lds", ("w", st))
        a("s_add_u32 s17, s17, 24576\ns_cmp_eq_u32 s17, s25\ns_cselect_b32 s17, s24, s17")

    def issue_h(st):
        slot = G1_H + (st % G1_HN) * 16384
        if EXP & 8192 and st > 0:
            a.vm.append(("h", st))
            return
        a(f"s_add_u32 m0, s18, {slot}\ns_nop 0")
        for i in range(4):
            a.vmem(f"buffer_load_dwordx4 v{8 + (i&1)}, s[32:35], s16 offen offset:{1024*i} {SCL} lds", ("h", st))
        a("s_add_u32 s16, s16, 16384\ns_cmp_eq_u32 s16, s23\ns_cselect_b32 s16, s22, s16")

    CS = 40
    a("v_and_b32 v13, 255, v0\nv_lshlrev_b32 v13, 2, v13\ns_mul_i32 s20, s9, 15360")
    for ks in range(20):
        if ks and ks % 5 == 0:
            a("s_add_u32 s20, s20, 3840")
        a.vmem(f"buffer_load_dword v{CS+ks}, v13, s[40:43], s20 offen offset:{768*(ks % 5)} {SC}", "cs")
    SA = 14
    a("s_and_b32 s20, s9, 7\nv_xor_b32 v5, s20, v5\nv_lshl_add_u32 v14, v5, 5, v6\nv_add_u32 v15, 49152, v14")
    ONE, SACC, SF = 20, 24, 32
    for i in range(4):
        a(f"v_mov_b32 v{ONE+i}, {hex(ONES_BF)}")
    for i in range(8):
        a(f"v_mov_b32 v{SACC+i}, 0")
    a.wait_vm("cs")
    for ks in range(1, 20):
        a(f"v_add_f32 v{CS}, v{CS}, v{CS+ks}")
    a("v_and_b32 v7, 3, v4\nv_cmp_eq_u32 s[52:53], 1, v7\nv_cmp_eq_u32 s[54:55], 2, v7\nv_cmp_eq_u32 s[56:57], 3, v7")
    a("v_lshrrev_b32 v7, 2, v4\nv_cmp_eq_u32 s[58:59], v7, v3")
    a(f"s_mul_i32 s60, s11, {48*5120}\ns_mul_i32 s62, s10, {48*4096}\ns_mul_i32 s28, s7, 5120")
    a(f"s_add_u32 s61, s60, {48*5120}\ns_add_u32 s63, s62, {48*4096}")
    a(f"s_mul_i32 s26, s15, {3*20480 if EXP & 2 else 0}\ns_add_u32 s26, s26, s60\ns_mul_i32 s27, s15, {3*16384 if EXP & 2 else 0}\ns_add_u32 s27, s27, s62")
    a("v_lshlrev_b32 v60, 4, v1\nv_add_u32 v61, s18, v60\nv_add_u32 v60, s28, v60\nv_add_u32 v62, 4096, v60")
    a.srd(40, 4, WS_W2, SZ_W2)
    a.srd(44, 4, WS_HM, SZ_HM)
    a.stamp(6)
    a("s_barrier")
    for st in range(G1_WN):
        issue_w(st)
    a.stamp(7)
    a("s_barrier")
    a(f"ds_write_b32 v13, v{CS} offset:{G1_CS}")
    issue_h(0); issue_h(1)
    a.wait_vm(("h", 0))
    a.stamp(8)
    a("s_barrier")
    issue_h(2); issue_h(3); issue_h(4)

    def issue_w2(st):
        slot = G2_W + ((st + 1) % G2_WN) * 24576
        if EXP & 128 and st > 2:
            a.vm.append(("w2", st))
            return
        a(f"s_add_u32 m0, s28, {slot}\ns_nop 0")
        for i in range(4):
            a.vmem(f"buffer_load_dwordx4 v60, s[40:43], s26 offen offset:{1024*i} {SCL} lds", ("w2", st))
        a(f"s_add_u32 m0, s28, {slot + 4096}\ns_nop 0")
        a.vmem(f"buffer_load_dwordx4 v62, s[40:43], s26 offen {SCL} lds", ("w2", st))
        a("s_add_u32 s26, s26, 20480\ns_cmp_eq_u32 s26, s61\ns_cselect_b32 s26, s60, s26")

    def issue_hm(st):
        slot = G2_H + (st % G2_HN) * 16384
        if EXP & 64 and st > 0:
            a.vm.append(("hm", st))
            return
        a(f"s_add_u32 m0, s18, {slot}\ns_nop 0")
        for i in range(4):
            a.vmem(f"buffer_load_dwordx4 v61, s[44:47], s27 offen offset:{1024*i} {SCL} lds", ("hm", st))
        a("s_add_u32 s27, s27, 16384\ns_cmp_eq_u32 s27, s63\ns_cselect_b32 s27, s62, s27")

    a.srd(48, 4, WS_GR, 16 * 4096)
    a("s_and_b32 s20, s7, 1\ns_lshl_b32 s20, s20, 13\nv_add_u32 v14, s20, v14\nv_add_u32 v15, s20, v15")
    for s in range(10):
        slot = s % G1_HN
        dostat = s < 5
        if dostat:
            sk = a.newlabel("L_nost")
            a(f"s_lshr_b32 s20, s7, 1\ns_cmp_lg_u32 s20, {s & 1}\ns_cbranch_scc1 {sk}")
            off = G1_H + (slot % 3) * 16384
            a(f"ds_read_b64_tr_b16 {q(SF,2)}, v{SA + slot//3} offset:{off}")
            a(f"ds_read_b64_tr_b16 {q(SF+2,2)}, v{SA + slot//3} offset:{off + 4096}")
            a("s_waitcnt lgkmcnt(0)")
            a(f"v_mfma_f32_16x16x32_bf16 {q(SACC)}, {q(ONE)}, {q(SF)}, {q(SACC)}")
            a(f"v_mfma_f32_16x16x32_bf16 {q(SACC+4)}, {q(SF)}, {q(SF)}, {q(SACC+4)}")
            a.label(sk)
        if s == 8:
            a("s_lshl_b32 s20, s8, 12\ns_lshl_b32 s21, s7, 9\ns_add_u32 s20, s20, s21")
            a("v_and_b32 v7, 31, v1\nv_lshlrev_b32 v7, 4, v7\nv_lshrrev_b32 v36, 5, v1\nv_lshl_add_u32 v36, v36, 11, v7\nv_add_u32 v7, s21, v7\ns_mov_b32 s84, 0")
            L, D = a.newlabel("L_gp"), a.newlabel("L_gpd")
            a.label(L)
            a(f"buffer_load_dwordx4 {q(40)}, v36, s[48:51], s20 offen {SC}")
            a(f"s_add_u32 s84, s84, 1\ns_waitcnt vmcnt(0)\nv_cmp_ne_u32 vcc, s3, v42\ns_cbranch_vccz {D}")
            a(f"s_sleep 2\ns_cmp_lt_u32 s84, {POLL_MAX}\ns_cbranch_scc1 {L}")
            a.label(D)
            a("v_mov_b32 v44, v40\nv_mov_b32 v45, v41\ns_nop 1\nv_permlane32_swap_b32 v40, v44\nv_permlane32_swap_b32 v41, v45")
            a("v_add_f32 v40, v40, v44\nv_add_f32 v41, v41, v45")
            ln_finish(a, 40, 41, 42, 44, 45)
            a(f"v_mul_f32 v45, {hex(NLOG2E)}, v45\nv_mul_f32 v46, v42, v42\nv_mov_b32 v47, 0")
            a(f"ds_write_b128 v7, {q(44)} offset:{G1_CONST}")
        if s >= 1:
            if s + 2 < 10:
                issue_w(s + 2)
            else:
                issue_w2(s - 8)
            if s + 4 < 10:
                issue_h(s + 4)
        if s == 4:
            sq = SACC + 4
            a("s_nop 4")
            a(f"v_cndmask_b32 v{sq}, v{sq}, v{sq+1}, s[52:53]\nv_cndmask_b32 v{sq}, v{sq}, v{sq+2}, s[54:55]\nv_cndmask_b32 v{SACC+1}, v{sq}, v{sq+3}, s[56:57]")
            a(f"s_lshl_b32 s20, s7, 7\nv_lshlrev_b32 v7, 3, v4\nv_add_u32 v7, s20, v7\ns_mov_b64 exec, s[58:59]")
            a(f"ds_write_b64 v7, {q(SACC,2)} offset:{G1_SP}\ns_mov_b64 exec, -1\ns_waitcnt lgkmcnt(0)")
        if s == 5:
            sk = a.newlabel("L_nogr")
            a(f"s_cmp_lg_u32 s7, 3\ns_cbranch_scc1 {sk}")
            a("v_lshlrev_b32 v7, 3, v4")
            for w in range(4):
                a(f"ds_read_b64 {q(SF+2*w,2)}, v7 offset:{G1_SP + 128*w}")
            a("s_lshl_b32 s20, s8, 1\ns_lshr_b32 s21, s9, 3\ns_add_u32 s20, s20, s21\ns_lshl_b32 s20, s20, 3\ns_and_b32 s21, s9, 7\ns_add_u32 s20, s20, s21\ns_lshl_b32 s20, s20, 8")
            a(f"v_lshlrev_b32 v7, 4, v4\nv_mov_b32 v{SF+10}, s3\nv_mov_b32 v{SF+11}, s3\ns_waitcnt lgkmcnt(0)")
            a(f"v_pk_add_f32 {q(SF,2)}, {q(SF,2)}, {q(SF+2,2)}\nv_pk_add_f32 {q(SF+4,2)}, {q(SF+4,2)}, {q(SF+6,2)}\nv_pk_add_f32 {q(SF+8,2)}, {q(SF,2)}, {q(SF+4,2)}")
            a("s_mov_b64 exec, 0xffff")
            a(f"buffer_store_dwordx4 {q(SF+8)}, v7, s[48:51], s20 offen {SC}")
            a("s_mov_b64 exec, -1")
            a.label(sk)
        if s + 1 < 10:
            a.wait_vm(("h", s + 1))
            if s + 1 >= G1_WN:
                a.wait_vm(("w", s + 1))
        a("s_barrier")
    issue_w2(2)
    a("s_waitcnt lgkmcnt(0)")
    a.stamp(10)
    a("s_barrier")
    a.stamp(13)
    a("s_barrier")
    issue_hm(0); issue_hm(1)
    a.wait_vm(("hm", 0))
    a("s_barrier")
    issue_hm(2); issue_hm(3); issue_hm(4)
    for s in range(12):
        if s + 1 < 12:
            a.wait_vm(("hm", s + 1))
            if s + 1 >= G2_WN:
                a.wait_vm(("w2", s + 1))
        a("s_barrier")
        if s + G2_WN < 12:
            issue_w2(s + G2_WN)
        if s + G2_HN < 12:
            issue_hm(s + G2_HN)
    a("s_barrier")


def main():
    a = Asm()
    hdr = open(f"cdna_kernels/{NAME}.s.ref").read().split("\n")
    for line in hdr:
        if line.startswith("; Override") or line.startswith("; grid=") or "@launch" in line:
            continue
        if not line.startswith(";"):
            break
        a.raw(line)
    if STAMPS:
        a.raw(f"; @launch kernel={KNAME} grid=(256,1,1) block=(512,1,1) lds={LDS_TOTAL}")
    else:
        a.raw(f"; @launch grid=(256,1,1) block=(512,1,1) lds={LDS_TOTAL}")
    a.raw('.amdgcn_target "amdgcn-amd-amdhsa--gfx950"\n.text')
    a.raw(f".globl {KNAME}\n.p2align 8\n.type {KNAME},@function\n{KNAME}:")
    done = "L_done"
    a("s_cmp_ge_u32 s2, 256\ns_cbranch_scc1 L_exit")
    if STAMPS:
        for i in range(16):
            a(f"s_mov_b32 s{64+i}, 0")
        a.stamp(0)
    a(f"s_load_dwordx2 s[4:5], s[0:1], {KA_WS}\ns_load_dwordx16 s[8:23], s[0:1], 0\ns_load_dwordx8 s[24:31], s[0:1], 64")
    a("v_and_b32 v1, 63, v0\nv_lshrrev_b32 v2, 6, v0\nv_lshrrev_b32 v3, 4, v1\nv_and_b32 v4, 15, v1")
    a("v_readfirstlane_b32 s6, v2")
    a("s_waitcnt lgkmcnt(0)")
    a("s_load_dword s3, s[4:5], 0")
    a("s_and_b32 s7, s6, 3")
    a.srd(92, 4, WS_FLG, SZ_FLG)
    a(f"v_mov_b32 v5, {LDS_CNT}\nv_mov_b32 v6, 0\nv_mov_b32 v7, 0\nv_mov_b32 v8, 0\nv_mov_b32 v9, 0\nds_write_b128 v5, v[6:9]")
    a("s_cmp_ge_u32 s2, 160\ns_cbranch_scc1 L_aux")
    a("s_lshl_b32 s52, s2, 2\ns_add_u32 s52, s52, s7")
    kgen(a)
    a("s_cmp_ge_u32 s6, 4\ns_cbranch_scc1 L_partner")
    conv_main(a)
    a("s_branch L_mfma")
    a.label("L_partner")
    conv_partner(a)
    a("s_branch L_loader")
    a.label("L_aux")
    a.vm = []
    a("s_cmp_ge_u32 s2, 224\ns_cbranch_scc1 L_aux_rp")
    a("s_sub_u32 s52, s2, 160")
    role_ln1(a)
    a("s_branch L_aux_go")
    a.label("L_aux_rp")
    a("s_sub_u32 s52, s2, 224")
    if not EXP & 256:
        a("s_cmp_lt_u32 s6, 6\ns_cbranch_scc1 L_aux_rp1")
        a("s_getpc_b64 s[54:55]")
        a.label("L_pc")
        a(f"s_sub_u32 s54, s54, L_pc-{KNAME}\ns_subb_u32 s55, s55, 0")
        a(f"v_lshlrev_b32 v5, 4, v1\ns_and_b32 s56, s6, 1\ns_mul_i32 s56, s56, {CODE_KB*512}\nv_add_u32 v5, s56, v5")
        for i in range(CODE_KB // 2):
            a(f"global_load_dwordx4 {q(16+4*i)}, v5, s[54:55] offset:{1024*(i%4)}")
            if i % 4 == 3:
                a("v_add_u32 v5, 4096, v5")
        a.label("L_aux_rp1")
    epoch_ready(a)
    a("s_cmp_ge_u32 s6, 6\ns_cbranch_scc1 L_aux_end")
    a("s_mul_i32 s53, s52, 6\ns_add_u32 s53, s53, s6")
    role_rp2(a)
    a.label("L_aux_end")
    a("s_waitcnt vmcnt(0)\ns_barrier")
    a("s_cmp_lg_u32 s6, 4\ns_cbranch_scc1 L_aux_go")
    a.publish(F_R2, 52, 10)
    a.label("L_aux_go")
    a.stamp(4)
    a("s_cmp_ge_u32 s6, 4\ns_cbranch_scc1 L_loader\ns_branch L_mfma")
    a.label("L_loader")
    gemm_loader_waves(a, done)
    a(f"s_branch {done}")
    a.label("L_mfma")
    gemm_mfma_waves(a, done)
    a.label(done)
    if STAMPS:
        a("s_waitcnt vmcnt(0)")
        a.stamp(15)
        a.srd(88, 4, WS_STAMP, 262144)
        a("v_lshrrev_b32 v1, 6, v0\nv_lshlrev_b32 v1, 6, v1\ns_lshl_b32 s82, s2, 9\nv_add_u32 v1, s82, v1")
        for i in range(16):
            a(f"v_mov_b32 v{4+i}, s{64+i}")
        a("s_mov_b64 exec, 1")
        for i in range(4):
            a(f"buffer_store_dwordx4 {q(4+4*i)}, v1, s[88:91], 0 offen offset:{16*i}")
    a.label("L_exit")
    a("s_endpgm")
    a.raw(f".fill ({CODE_KB*1024} - (. - {KNAME})) / 4, 4, 0xbf800000")
    a.raw(f""".section .rodata,"a"
.p2align 6
.amdhsa_kernel {KNAME}
  .amdhsa_next_free_vgpr 244
  .amdhsa_next_free_sgpr 96
  .amdhsa_accum_offset 244
  .amdhsa_group_segment_fixed_size 0
  .amdhsa_kernarg_size 112
  .amdhsa_user_sgpr_count 2
  .amdhsa_user_sgpr_kernarg_segment_ptr 1
  .amdhsa_system_sgpr_workgroup_id_x 1
.end_amdhsa_kernel""")
    out = sys.argv[1] if len(sys.argv) > 1 else f"cdna_kernels/{NAME}.s"
    open(out, "w").write("\n".join(a.l) + "\n")


if __name__ == "__main__":
    main()
```

```python
import sys, os, struct

NAME = "sequential_preLN__ssm_conv_s4d__glu_gated_swiglu__prompt"
KNAME = NAME + "_kernel"
KA_WS = 104

WS_FLG = 0
FS_ = 128
F_L, F_X, F_R2, F_C, F_G, F_R = 0x1000, 0x3000, 0x5000, 0x8000, 0x10000, 0x18000
SZ_FLG = 0x30000
WS_UT = 0x100000
WS_XT = 0x400000
WS_HT = 0x700000
WS_HM = 0xA00000
WS_W13 = 0x1000000
WS_W2 = 0x1400000
WS_GR = 0x1710000
WS_ST = 0x1700000
WS_CSP = 0x1600000
WS_STAMP = 0x4000000
SZ_T = 640 * 4096
SZ_TP = SZ_T
T_BLK = 40960
SZ_HM = 32 * 48 * 4096
SZ_W13 = 16 * 20 * 12288
SZ_W2 = 8 * 48 * 5120
SZ_CSP = 320 * 768 + 1024

STAMPS = int(os.environ.get('STAMPS', '0'))
EXP = int(os.environ.get('EXP', '0'))
LOG2E, NLOG2E, INV2PI, INV640, EPS, ONES_BF = 0x3FB8AA3B, 0xBFB8AA3B, 0x3E22F983, 0x3ACCCCCD, 0x3727C5AC, 0x3F803F80
POLL_MAX = 400000
CODE_KB = 30
SLEEP = int(os.environ.get('SLEEP', '1'))
SC = "sc1"
SCO = os.environ.get("SCO", "")
SCL = "" if EXP & 8 else "sc1"


def f32bits(x):
    return struct.unpack("<I", struct.pack("<f", x))[0]


def q(r, n=4):
    return f"v[{r}:{r+n-1}]"


class Asm:
    def __init__(self):
        self.l = []
        self.vm = []
        self.uid = 0

    def __call__(self, s):
        for x in s.split("\n"):
            x = x.strip()
            if x:
                self.l.append("    " + x)

    def label(self, s):
        self.l.append(s + ":")

    def raw(self, s):
        self.l.append(s)

    def newlabel(self, p="L"):
        self.uid += 1
        return f"{p}_{self.uid}"

    def vmem(self, s, tag=None):
        self(s)
        self.vm.append(tag)

    def wait_vm(self, tag):
        idx = max(i for i, t in enumerate(self.vm) if t == tag)
        n = len(self.vm) - 1 - idx
        assert n <= 63, n
        self(f"s_waitcnt vmcnt({n})")

    def srd(self, sd, lo, off, size):
        if off == 0:
            self(f"s_mov_b32 s{sd}, s{lo}\ns_mov_b32 s{sd+1}, s{lo+1}")
        else:
            self(f"s_add_u32 s{sd}, s{lo}, {hex(off)}\ns_addc_u32 s{sd+1}, s{lo+1}, 0")
        self(f"s_mov_b32 s{sd+2}, {size}\ns_mov_b32 s{sd+3}, 0x20000")

    def stamp(self, i):
        if STAMPS:
            self(f"s_memrealtime s[80:81]\ns_waitcnt lgkmcnt(0)\ns_mov_b32 s{64+i}, s80")

    def unpack(self, dlo, src):
        if dlo == src:
            self(f"v_and_b32 v{dlo+1}, 0xffff0000, v{src}\nv_lshlrev_b32 v{dlo}, 16, v{src}")
        else:
            self(f"v_lshlrev_b32 v{dlo}, 16, v{src}\nv_and_b32 v{dlo+1}, 0xffff0000, v{src}")

    def rnd(self, d, s):
        self(f"v_cvt_pk_bf16_f32 v{d}, v{s}, v{s}\nv_lshlrev_b32 v{d}, 16, v{d}")

    def poll(self, off, n, vt, soff=None):
        L, D = self.newlabel("L_poll"), self.newlabel("L_polld")
        nl = (n + 63) // 64
        for i in range(nl):
            self(f"v_add_u32 v{vt+i}, {64*i}, v1\nv_min_u32 v{vt+i}, {n-1}, v{vt+i}\nv_mul_u32_u24 v{vt+i}, {FS_}, v{vt+i}")
        if soff is None:
            self(f"s_mov_b32 s86, {off}")
        else:
            self(f"s_add_u32 s86, {soff}, {off}")
        self("s_mov_b32 s84, 0")
        self.label(L)
        for i in range(nl):
            self(f"buffer_load_dword v{vt+3+i}, v{vt+i}, s[92:95], s86 offen {SC}")
        self("s_add_u32 s84, s84, 1\ns_waitcnt vmcnt(0)")
        for i in range(nl):
            self(f"v_xor_b32 v{vt+3+i}, s3, v{vt+3+i}")
        for i in range(1, nl):
            self(f"v_or_b32 v{vt+3}, v{vt+3}, v{vt+3+i}")
        self(f"v_cmp_ne_u32 vcc, 0, v{vt+3}\ns_cbranch_vccz {D}")
        self(f"s_sleep {SLEEP}\ns_cmp_lt_u32 s84, {POLL_MAX}\ns_cbranch_scc1 {L}")
        self.label(D)
        self.vm = []

    def publish(self, off, sidx, vt):
        self(f"s_mul_i32 s85, s{sidx}, {FS_}\ns_add_u32 s85, s85, {off}\nv_mov_b32 v{vt}, s3\nv_mov_b32 v{vt+1}, s85\ns_mov_b64 exec, 1")
        self.vmem(f"buffer_store_dword v{vt}, v{vt+1}, s[92:95], 0 offen {SC}")
        self("s_mov_b64 exec, -1")


def ln_finish(a, vs, vq, vt, vnegm, vrinv):
    a(f"v_mul_f32 v{vs}, {hex(INV640)}, v{vs}")
    a(f"v_mul_f32 v{vq}, {hex(INV640)}, v{vq}")
    a(f"v_fma_f32 v{vq}, -v{vs}, v{vs}, v{vq}")
    a(f"v_max_f32 v{vq}, 0, v{vq}")
    a.rnd(vnegm, vs)
    a(f"v_xor_b32 v{vnegm}, 0x80000000, v{vnegm}")
    a.rnd(vt, vq)
    a(f"v_add_f32 v{vt}, {hex(EPS)}, v{vt}")
    a.rnd(vt, vt)
    a(f"v_sqrt_f32 v{vt}, v{vt}\ns_nop 0")
    a.rnd(vt, vt)
    a(f"v_rcp_f32 v{vrinv}, v{vt}\ns_nop 0")


def cmul(a, d, x, y, t):
    a(f"v_pk_mul_f32 {q(t,2)}, {q(x,2)}, {q(y,2)} op_sel_hi:[1,0]")
    a(f"v_pk_fma_f32 {q(d,2)}, {q(x,2)}, {q(y,2)}, {q(t,2)} op_sel:[1,1,0] op_sel_hi:[0,1,1] neg_lo:[1,0,0]")


def epoch_ready(a):
    a("s_waitcnt lgkmcnt(0)\ns_add_u32 s3, s3, 1")


LDS_CNT = 163824


def last_of4_publish(a, word, off, sidx, vt):
    sk = a.newlabel("L_notlast")
    a(f"v_mov_b32 v{vt}, {LDS_CNT + 4*word}\nv_mov_b32 v{vt+1}, 1\ns_mov_b64 exec, 1")
    a(f"ds_add_rtn_u32 v{vt+1}, v{vt}, v{vt+1}\ns_mov_b64 exec, -1\ns_waitcnt lgkmcnt(0)")
    a(f"v_readfirstlane_b32 s85, v{vt+1}\ns_nop 3\ns_cmp_lg_u32 s85, 3\ns_cbranch_scc1 {sk}")
    a.publish(off, sidx, vt)
    a.label(sk)


LN_RS = 1312
LN_U = 32 * LN_RS


def role_ln1(a):
    a("v_lshl_add_u32 v5, v2, 2, v3")
    a(f"s_mul_i32 s53, s52, {32*1280}")
    a("v_mul_u32_u24 v6, 1280, v5\nv_lshl_add_u32 v6, v4, 4, v6\nv_add_u32 v6, s53, v6")
    a.srd(32, 8, 0, SZ_T)
    X = 16
    for j in range(5):
        a.vmem(f"buffer_load_dwordx4 {q(X+4*j)}, v6, s[32:35], 0 offen offset:{j*256}", ("x", j))
    a(f"v_mul_u32_u24 v7, {LN_RS}, v5\nv_lshl_add_u32 v7, v4, 4, v7")
    a(f"s_mov_b32 s54, {hex(ONES_BF)}")
    a.srd(36, 4, WS_ST, 16384)
    a.srd(40, 4, WS_XT, SZ_TP)
    a("v_bfe_u32 v8, v1, 2, 2\nv_lshl_add_u32 v8, v3, 3, v8")
    a(f"v_mul_u32_u24 v8, {LN_RS}, v8\nv_and_b32 v9, 3, v1\nv_lshl_add_u32 v8, v9, 3, v8")
    a("v_mul_u32_u24 v9, 160, v2\nv_add_u32 v8, v8, v9")
    a("v_mul_u32_u24 v9, 80, v2\nv_add_u32 v9, v9, v4\nv_lshlrev_b32 v9, 6, v9\nv_lshl_add_u32 v9, v3, 4, v9")
    a(f"s_mul_i32 s53, s52, {T_BLK}\ns_add_u32 s55, s53, 4096\ns_lshl_b32 s56, s52, 7")
    a(f"v_lshlrev_b32 v10, 2, v5\nv_and_b32 v11, 1, v4\nv_lshl_add_u32 v10, v11, 7, v10\nv_add_u32 v10, {LN_U}, v10")
    R = 56
    S0, S1, Q0, Q1, NM, RI, TT = 80, 81, 82, 83, 84, 85, 88
    a(f"v_mov_b32 v{S0}, 0\nv_mov_b32 v{S1}, 0\nv_mov_b32 v{Q0}, 0\nv_mov_b32 v{Q1}, 0\nv_cmp_eq_u32 s[58:59], 1, v11")
    epoch_ready(a)
    for j in range(5):
        a.wait_vm(("x", j))
        if j == 0:
            a.stamp(1)
        a(f"ds_write_b128 v7, {q(X+4*j)} offset:{j*256}")
        for i in range(4 * j, 4 * j + 4):
            a(f"v_dot2c_f32_bf16 v{S0 + (i&1)}, s54, v{X+i}")
            a(f"v_dot2c_f32_bf16 v{Q0 + (i&1)}, v{X+i}, v{X+i}")
    a("s_waitcnt lgkmcnt(0)\ns_barrier")
    a.stamp(2)
    for i in range(5):
        a(f"ds_read_b64_tr_b16 {q(R+4*i,2)}, v8 offset:{32*i}")
        a(f"ds_read_b64_tr_b16 {q(R+4*i+2,2)}, v8 offset:{32*i + 4*LN_RS}")
    a(f"v_add_f32 v{S0}, v{S0}, v{S1}\nv_add_f32 v{Q0}, v{Q0}, v{Q1}")
    for i in range(5):
        a(f"s_waitcnt lgkmcnt({8-2*i})")
        a.vmem(f"buffer_store_dwordx4 {q(R+4*i)}, v9, s[40:43], {'s53' if i < 4 else 's55'} offen offset:{1024*(i%4)} {SC}")
    for sh in (8, 4, 2, 1):
        a(f"v_add_f32_dpp v{S0}, v{S0}, v{S0} row_ror:{sh} row_mask:0xf bank_mask:0xf")
        a(f"v_add_f32_dpp v{Q0}, v{Q0}, v{Q0} row_ror:{sh} row_mask:0xf bank_mask:0xf")
        a("s_nop 0")
    ln_finish(a, S0, Q0, TT, NM, RI)
    a(f"v_cndmask_b32 v{NM}, v{NM}, v{RI}, s[58:59]")
    a(f"ds_write_b32 v10, v{NM}")
    a("s_waitcnt lgkmcnt(0)\ns_barrier")
    sk = a.newlabel("L_lnst")
    a(f"s_cmp_lg_u32 s6, 7\ns_cbranch_scc1 {sk}")
    a(f"v_lshlrev_b32 v10, 2, v1\nv_add_u32 v11, {LN_U}, v10\nds_read_b32 v12, v11")
    a("v_lshrrev_b32 v11, 5, v1\nv_mul_u32_u24 v11, 8064, v11\nv_add_u32 v10, v10, v11\ns_waitcnt lgkmcnt(0)")
    a.vmem(f"buffer_store_dword v12, v10, s[36:39], s56 offen {SC}")
    a.label(sk)
    a("s_waitcnt vmcnt(0)\ns_barrier")
    a.stamp(3)
    sk = a.newlabel("L_lnp")
    a(f"s_cmp_lg_u32 s6, 7\ns_cbranch_scc1 {sk}")
    a.publish(F_L, 52, 10)
    a.label(sk)
    sk = a.newlabel("L_lnrp")
    a(f"s_cmp_ge_u32 s6, 5\ns_cbranch_scc1 {sk}")
    a(f"s_mul_i32 s55, s52, 5\ns_add_u32 s55, s55, s6\ns_mul_i32 s56, s6, 12288\ns_add_u32 s56, s56, 49152")
    rp13_issue(a)
    a("s_waitcnt vmcnt(0)")
    rp13_finish(a)
    a("s_waitcnt vmcnt(0)")
    a.publish(F_R, 55, 10)
    a.label(sk)


W13_J = [[0, 1, 2], [4, 5, 3]]


RP_BASE = 2 * LN_U


def rp13_issue(a):
    a("s_mul_i32 s57, s55, 205\ns_lshr_b32 s57, s57, 12")
    a("s_mul_i32 s58, s57, 20\ns_sub_u32 s58, s55, s58")
    a.srd(44, 24, 0, 640 * 3072)
    a.srd(48, 26, 0, 640 * 3072)
    a(f"s_mul_i32 s57, s57, 192\ns_mul_i32 s58, s58, {32*3072}\ns_add_u32 s57, s57, s58")
    for i in range(6):
        a(f"v_add_u32 v10, {64*i}, v1\nv_mul_u32_u24 v11, 43691, v10\nv_lshrrev_b32 v11, 19, v11")
        a(f"v_mul_u32_u24 v12, 12, v11\nv_sub_u32 v12, v10, v12\nv_mul_u32_u24 v11, 3072, v11\nv_lshl_add_u32 v13, v12, 4, v11")
        for mat in range(2):
            a(f"s_add_u32 m0, s56, {mat*6144 + i*1024}\ns_nop 0")
            a(f"buffer_load_dwordx4 v13, s[{44+4*mat}:{47+4*mat}], s57 offen lds")


def rp13_finish(a):
    a("v_lshlrev_b32 v5, 4, v1")
    a("v_bfe_u32 v6, v1, 2, 2\nv_lshl_add_u32 v6, v3, 2, v6\nv_and_b32 v7, 3, v1")
    a("v_mul_u32_u24 v16, 192, v6\nv_lshl_add_u32 v16, v7, 3, v16\nv_add_u32 v16, s56, v16")
    OH, ACC, F = 32, 80, 84
    for t in range(12):
        wn, mat, jj = t // 6, (t % 6) // 3, t % 3
        off = mat * 6144 + 32 * W13_J[wn][jj]
        a(f"ds_read_b64_tr_b16 {q(F+4*t,2)}, v16 offset:{off}")
        a(f"ds_read_b64_tr_b16 {q(F+4*t+2,2)}, v16 offset:{off + 16*192}")
    a.srd(40, 4, WS_W13, SZ_W13)
    a.srd(44, 4, WS_CSP, SZ_CSP)
    a("s_mul_i32 s57, s55, 12288\ns_add_u32 s58, s57, 4096\ns_add_u32 s59, s57, 8192")
    a("s_waitcnt lgkmcnt(0)")
    for t in range(12):
        a(f"buffer_store_dwordx4 {q(F+4*t)}, v5, s[40:43], s{57 + t//4} offen offset:{1024*(t%4)} {SC}")
    a(f"v_mov_b32 v8, {hex(ONES_BF)}")
    a("v_lshlrev_b32 v9, 6, v4\nv_lshl_add_u32 v9, v3, 4, v9\ns_mul_i32 s60, s55, 768")
    for t in range(12):
        a(f"v_cmp_eq_u32 vcc, {t}, v4\ns_nop 1")
        for i in range(4):
            a(f"v_cndmask_b32 v{OH+4*t+i}, 0, v8, vcc")
    a("s_nop 1")
    for t in range(12):
        a(f"v_mfma_f32_16x16x32_bf16 {q(ACC)}, {q(F+4*t)}, {q(OH+4*t)}, {q(ACC) if t else 0}")
    a("s_nop 7\nv_cmp_gt_u32 vcc, 12, v4\ns_and_saveexec_b64 s[82:83], vcc")
    a(f"buffer_store_dwordx4 {q(ACC)}, v9, s[44:47], s60 offen {SC}")
    a(f"s_mov_b64 exec, s[82:83]")


def role_rp2(a):
    a.vm = []
    a("s_mul_i32 s54, s6, 12288")
    a("v_lshlrev_b32 v5, 4, v1")
    a("v_bfe_u32 v6, v1, 2, 2\nv_lshl_add_u32 v6, v3, 2, v6\nv_and_b32 v7, 3, v1")
    a("s_mul_i32 s55, s53, 171\ns_lshr_b32 s55, s55, 12")
    a("s_mul_i32 s56, s55, 24\ns_sub_u32 s56, s53, s56")
    a.srd(32, 28, 0, 1536 * 1280)
    a(f"s_mul_i32 s57, s55, 160\ns_mul_i32 s58, s56, {64*1280}\ns_add_u32 s57, s57, s58\ns_add_u32 s58, s57, {32*1280}")
    for i in range(5):
        a(f"v_add_u32 v8, {64*i}, v1\nv_mul_u32_u24 v9, 52429, v8\nv_lshrrev_b32 v9, 19, v9")
        a(f"v_mul_u32_u24 v16, 10, v9\nv_sub_u32 v16, v8, v16\nv_mul_u32_u24 v9, 1280, v9\nv_lshl_add_u32 v{10+i}, v16, 4, v9")
        for un in range(2):
            a(f"s_add_u32 m0, s54, {un*5120 + i*1024}\ns_nop 0")
            a.vmem(f"buffer_load_dwordx4 v{10+i}, s[32:35], s{57+un} offen lds", "w")
    a.srd(40, 4, WS_W2, SZ_W2)
    a("s_mul_i32 s60, s56, 171\ns_lshr_b32 s60, s60, 9\ns_mul_i32 s60, s60, 3\ns_sub_u32 s60, s56, s60")
    for un in range(2):
        a(f"s_cmp_eq_u32 s60, {2 if un == 0 else 0}\ns_cselect_b32 s61, 640, 0\ns_mul_i32 s62, s61, 3\ns_sub_u32 s62, 2560, s62")
        a(f"v_mul_u32_u24 v16, 160, v6\nv_mul_u32_u24 v8, s61, v3\nv_add3_u32 v16, v16, v8, s54")
        b = 18 + 4 * un
        a(f"v_lshl_add_u32 v{b}, v7, 4, v16\nv_lshl_add_u32 v{b+1}, v7, 3, v16\nv_add_u32 v{b+2}, s62, v{b}\nv_add_u32 v{b+3}, s62, v{b+1}")
    a("s_mul_i32 s57, s53, 10240\ns_add_u32 s58, s57, 4096\ns_add_u32 s59, s57, 8192")
    a.poll(F_L, 64, 26)
    F = 32
    for k in range(10):
        un, t = divmod(k, 5)
        b = 18 + 4 * un + (0 if t < 4 else 1)
        off = un * 5120 + ((t >> 1) * 64 + (t & 1) * 8 if t < 4 else 128)
        a(f"ds_read_b64_tr_b16 {q(F+4*k,2)}, v{b} offset:{off}")
        a(f"ds_read_b64_tr_b16 {q(F+4*k+2,2)}, v{b+2} offset:{off}")
    a("s_waitcnt lgkmcnt(0)")
    for k in range(10):
        a.vmem(f"buffer_store_dwordx4 {q(F+4*k)}, v5, s[40:43], s{57 + k//4} offen offset:{1024*(k%4)} {SC}")


TB_RS = 272
TB_SZ = 57 * TB_RS
CV_A = 64
CV_CS = 4160
CV_U = CV_A + 4 * CV_CS
CV_X = CV_U + 4608
CV_WAVE = CV_X + 4096
KP_BASE = 126976
PART_BASE = 145408
RP_LDS = [101632, 113920]


def kgen(a):
    a.vm = []
    a(f"s_mul_i32 s53, s6, {TB_SZ}")
    a("s_lshr_b32 s54, s6, 2")
    a("s_mul_i32 s55, s52, 384\ns_lshl_b32 s56, s54, 7\ns_add_u32 s55, s55, s56\nv_lshlrev_b32 v5, 1, v1")
    a("s_lshl_b32 s56, s52, 1\nv_mov_b32 v6, 0")
    PR, DT = 8, 92
    PR2 = 96
    a.srd(48, 18, 0, 1280)
    a.vmem(f"buffer_load_ushort v{DT}, v6, s[48:51], s56 offen", "par")
    for i in range(4):
        a.srd(32 + 4 * i, 10 + 2 * i, 0, 640 * 192 * 2)
        a.vmem(f"buffer_load_ushort v{PR+i}, v5, s[{32+4*i}:{35+4*i}], s55 offen", "par")
    for i in range(4):
        a.vmem(f"buffer_load_ushort v{PR2+i}, v5, s[{32+4*i}:{35+4*i}], s55 offen offset:256", "par2")
    a.srd(48, 20, 0, 1280)
    a.vmem("buffer_load_ushort v240, v6, s[48:51], s56 offen", "par2")
    VW, VR, DK = 6, 7, 80
    a(f"v_lshlrev_b32 v{VW}, 2, v1\nv_add_u32 v{VW}, s53, v{VW}")
    a(f"v_mul_u32_u24 v{VR}, {TB_RS}, v4\nv_lshl_add_u32 v{VR}, v3, 4, v{VR}\nv_add_u32 v{VR}, s53, v{VR}")
    for i in range(12):
        a(f"v_mov_b32 v{DK+i}, 0")
    epoch_ready(a)
    a.wait_vm("par")
    a.stamp(1)
    a(f"v_lshlrev_b32 v{DT}, 16, v{DT}\nv_mul_f32 v{DT}, {hex(LOG2E)}, v{DT}\nv_exp_f32 v{DT}, v{DT}\ns_nop 0")
    a.rnd(DT, DT)
    a.label("L_kgen")
    A2, W, Z8, Y, GC, T0, T1, T2, XT = 16, 17, 18, 20, 22, 24, 26, 28, 30
    E = [None] + [32 + 2 * i for i in range(7)]
    G1 = 46
    PK = [48, 49, 50, 51]
    pkc = [0]

    def put(row, re, im):
        r = PK[pkc[0] % 4]
        pkc[0] += 1
        a(f"v_cvt_pk_bf16_f32 v{r}, {re}, {im}")
        a(f"ds_write_b32 v{VW}, v{r} offset:{row*TB_RS}")

    def putp(row, p):
        put(row, f"v{p}", f"v{p+1}")

    a(f"v_lshlrev_b32 v{PR}, 16, v{PR}\nv_mul_f32 v{A2}, {hex(LOG2E)}, v{PR}\nv_exp_f32 v{A2}, v{A2}")
    for i in range(1, 4):
        a(f"v_lshlrev_b32 v{PR+i}, 16, v{PR+i}")
    a.rnd(A2, A2)
    a(f"v_mul_f32 v{W}, v{PR+1}, v{DT}")
    a(f"v_mul_f32 v{A2}, v{A2}, v{DT}")
    a(f"v_mul_f32 v{W}, {hex(INV2PI)}, v{W}")
    a(f"v_mul_f32 v{A2}, {hex(NLOG2E)}, v{A2}")
    a(f"v_rndne_f32 v{T0}, v{W}")
    a(f"v_mul_f32 v{Y}, v{PR+2}, v{DT}\nv_mul_f32 v{Y+1}, v{PR+3}, v{DT}")
    a(f"v_sub_f32 v{W}, v{W}, v{T0}")
    a(f"v_mul_f32 v{Y}, 2.0, v{Y}\nv_mul_f32 v{Y+1}, -2.0, v{Y+1}")

    def base(dst, mult, conj, T):
        m = {1: "1.0", 8: hex(0x41000000), 128: hex(0x43000000)}[mult]
        a(f"v_mul_f32 v{T}, {m}, v{A2}\nv_mul_f32 v{T+1}, {m}, v{W}")
        a(f"v_exp_f32 v{T}, v{T}\nv_cos_f32 v{dst}, v{T+1}\nv_sin_f32 v{dst+1}, v{T+1}\ns_nop 0")
        a(f"v_mul_f32 v{dst}, v{dst}, v{T}")
        a(f"v_mul_f32 v{dst+1}, {'-' if conj else ''}v{dst+1}, v{T}")

    base(E[1], 1, False, T0)
    base(Z8, 8, True, T1)
    base(G1, 128, False, T2)
    put(0, "1.0", "0")
    putp(1, E[1])
    putp(41, Y)
    cmul(a, E[2], E[1], E[1], T0)
    putp(8, G1)
    cmul(a, E[3], E[2], E[1], T0)
    cmul(a, E[4], E[2], E[2], T1)
    putp(2, E[2])
    cmul(a, E[5], E[4], E[1], T0)
    cmul(a, E[6], E[4], E[2], T1)
    cmul(a, E[7], E[4], E[3], T2)
    for e in range(3, 8):
        putp(e, E[e])
    ops = []
    for e in range(1, 8):
        ops.append(("x", 8 + e, G1, E[e]))
    for g in range(2, 17):
        ops.append(("g", g))
        if g in (2, 3):
            for i, e in enumerate((2, 4, 6)):
                ops.append(("x", 16 + (g - 2) * 4 + 1 + i, GC, E[e]))
        elif g < 8:
            ops.append(("x", 24 + (g - 4) * 2 + 1, GC, E[4]))
    yb = 1
    for k, op in enumerate(ops):
        if op[0] == "x":
            x = XT if (k & 1) else T2
            cmul(a, x, op[2], op[3], x)
            putp(op[1], x)
        else:
            g = op[1]
            cmul(a, GC, G1 if g == 2 else GC, G1, T1)
            row = 16 + (g - 2) * 4 if g < 4 else (24 + (g - 4) * 2 if g < 8 else 32 + (g - 8))
            putp(row, GC)
        if (k & 1) and yb < 16:
            cmul(a, Y, Y, Z8, T0)
            putp(41 + yb, Y)
            yb += 1
    assert yb == 16
    FR = 16
    a("s_waitcnt lgkmcnt(0)")
    for st in range(4):
        f = FR + 16 * st
        if st == 3:
            a("s_waitcnt lgkmcnt(8)")
        a(f"ds_read_b128 {q(f)}, v{VR} offset:{41*TB_RS + 64*st}")
        for t in range(3):
            a(f"ds_read_b128 {q(f+4+4*t)}, v{VR} offset:{16*t*TB_RS + 64*st}")
    a("s_waitcnt vmcnt(0)")
    for i in range(4):
        a(f"v_mov_b32 v{PR+i}, v{PR2+i}")
    for st in range(4):
        f = FR + 16 * st
        a(f"s_waitcnt lgkmcnt({12 - 4*st})")
        for t in range(3):
            a(f"v_mfma_f32_16x16x32_bf16 {q(DK+4*t)}, {q(f+4+4*t)}, {q(f)}, {q(DK+4*t)}")
    a("s_add_u32 s54, s54, 1\ns_cmp_lt_u32 s54, 2\ns_cbranch_scc1 L_kgen")
    a.vm = []


def conv_main(a):
    DK = 80
    a(f"s_mul_i32 s53, s7, {CV_WAVE}")
    a(f"s_mul_i32 s54, s7, 4224\ns_add_u32 s54, s54, {KP_BASE}")
    a(f"s_mul_i32 s55, s7, 3072\ns_add_u32 s55, s55, {PART_BASE}")
    a("v_lshlrev_b32 v7, 4, v1\nv_add_u32 v5, s55, v7")
    a("v_lshlrev_b32 v18, 4, v4\nv_add_u32 v18, s54, v18")
    a("v_lshrrev_b32 v16, 1, v3\nv_and_b32 v17, 1, v3")
    a("v_lshlrev_b32 v19, 8, v16\nv_lshl_add_u32 v19, v17, 3, v19\nv_add_u32 v19, v19, v18")
    a("v_cmp_gt_u32 vcc, 2, v3")
    a("v_lshlrev_b32 v20, 8, v3\nv_add_u32 v20, 512, v20\nv_lshlrev_b32 v21, 9, v3")
    a("v_cndmask_b32 v20, v21, v20, vcc\nv_add_u32 v20, v20, v18")
    for i in range(1, 4):
        a(f"v_mov_b32 v22, {4*i}\nv_mov_b32 v23, {256*(i>>1) + 8*(i&1)}")
        a(f"v_cndmask_b32 v22, v23, v22, vcc\nv_add_u32 v{23+i}, v20, v22")
    a("v_lshlrev_b32 v27, 10, v3\nv_lshl_add_u32 v27, v4, 4, v27\nv_add_u32 v27, 2048, v27\ns_movk_i32 s56, 4112")
    for i in range(4):
        a(f"v_add_u32 v{28+i}, {256*i}, v27\nv_min_u32 v{28+i}, s56, v{28+i}\nv_add_u32 v{28+i}, s54, v{28+i}")
    a("v_sub_u32 v16, 4094, v7\nv_cvt_f32_u32 v16, v16")
    a("v_cmp_eq_u32 s[58:59], 63, v1")
    a("v_add_u32 v17, s53, v7")
    a.stamp(2)
    a("s_barrier")
    for t in range(3):
        a(f"ds_read_b128 {q(40+4*t)}, v5 offset:{1024*t}")
    a("s_waitcnt lgkmcnt(0)")
    for i in range(6):
        a(f"v_pk_add_f32 {q(DK+2*i,2)}, {q(DK+2*i,2)}, {q(40+2*i,2)}")
    for i in range(6):
        a(f"v_cvt_pk_bf16_f32 v{32+i}, v{DK+2*i}, v{DK+2*i+1}")
    a("ds_write_b64 v19, v[32:33]")
    a("ds_write_b16 v20, v34\nds_write_b16_d16_hi v24, v34\nds_write_b16 v25, v35\nds_write_b16_d16_hi v26, v35")
    a("ds_write_b16 v28, v36\nds_write_b16_d16_hi v29, v36\nds_write_b16 v30, v37\nds_write_b16_d16_hi v31, v37")
    a("v_sub_u32 v38, 4080, v7\nv_add_u32 v38, s54, v38")
    a("v_and_b32 v39, 1, v1\nv_cmp_eq_u32 s[60:61], 0, v39")
    a("v_cndmask_b32 v39, 0, 8, s[58:59]\nv_sub_u32 v40, v38, v39\nv_lshrrev_b32 v39, 1, v39\nv_sub_u32 v41, v38, v39")
    a("v_subrev_u32 v38, 2056, v38\nv_subrev_u32 v40, 2056, v40\nv_subrev_u32 v41, 2056, v41")
    AD = 20
    for m in range(0, 12, 2):
        f0 = 64 + m
        a(f"v_add_f32 v{f0}, {hex(f32bits(-3072.0 - 2.0*m))}, v16\nv_add_f32 v{f0+1}, {hex(f32bits(-3072.0 - 2.0*(m+1)))}, v16")
        a(f"v_cvt_pk_bf16_f32 v{f0}, v{f0}, v{f0+1}")
        a.unpack(f0, f0)
        a(f"v_cvt_u32_f32 v{AD+m}, v{f0}\nv_cvt_u32_f32 v{AD+m+1}, v{f0+1}")
        a(f"v_add_u32 v{AD+m}, s54, v{AD+m}\nv_add_u32 v{AD+m+1}, s54, v{AD+m+1}")
    a("s_waitcnt lgkmcnt(0)")
    G = 96
    for r in range(2):
        o = 2056 - 1024 * r
        a(f"ds_read_u16 v{G+4*r}, v38 offset:{o+16}\nds_read_u16 v{G+4*r+1}, v38 offset:{o}")
        a(f"ds_read_u16 v{G+4*r+2}, v{40 if r else 38} offset:{o}")
    o = 2056 - 2048
    a(f"ds_read_u16 v{G+8}, v38 offset:{o+16}\nds_read_u16 v{G+9}, v38 offset:{o+8}\nds_read_u16 v{G+10}, v38 offset:{o}")
    a(f"ds_read_u16 v{G+11}, v41 offset:{o}\nds_read_u16 v{G+12}, v38 offset:{o-8}")
    D = 32
    for m in range(6):
        a(f"ds_read_u16 v{D+m}, v{AD+2*m}")
        if m < 5:
            a(f"ds_read_u16 v{52+m}, v{AD+2*m+1}")

    def wr(r, c0, c1, c2, c3):
        for k, c in enumerate((c0, c1, c2, c3)):
            a(f"ds_write_b128 v17, {q(c)} offset:{CV_A + k*CV_CS + 1024*r}")

    a("s_waitcnt lgkmcnt(15)\ns_waitcnt lgkmcnt(11)")
    for r in range(2):
        A, B, B2 = G + 4 * r, G + 4 * r + 1, G + 4 * r + 2
        Q = 112 + 16 * r
        a(f"v_cndmask_b32 v{G+4*r+3}, v{B}, v{A}, s[60:61]")
        W3 = G + 4 * r + 3
        a(f"v_lshl_or_b32 v{Q}, v{A}, 16, v{A}\nv_lshl_or_b32 v{Q+1}, v{W3}, 16, v{A}\nv_lshl_or_b32 v{Q+2}, v{B}, 16, v{B}")
        a(f"v_mov_b32 v{Q+3}, v{Q+2}\nv_mov_b32 v{Q+4}, v{Q+1}\nv_mov_b32 v{Q+5}, v{Q+2}\nv_mov_b32 v{Q+6}, v{Q+2}\nv_mov_b32 v{Q+7}, v{Q+2}")
        a(f"v_mov_b32 v{Q+8}, v{Q}\nv_lshl_or_b32 v{Q+9}, v{B}, 16, v{W3}\nv_mov_b32 v{Q+10}, v{Q+2}\nv_mov_b32 v{Q+11}, v{Q+2}")
        a(f"v_mov_b32 v{Q+12}, v{Q+9}\nv_mov_b32 v{Q+13}, v{Q+2}\nv_mov_b32 v{Q+14}, v{Q+2}\nv_lshl_or_b32 v{Q+15}, v{B2}, 16, v{B}")
        wr(r, Q + 12, Q + 4, Q + 8, Q)
    P_, Q_, R_, R2, S_ = G + 8, G + 9, G + 10, G + 11, G + 12
    Q = 144
    a(f"v_lshl_or_b32 v{Q}, v{P_}, 16, v{P_}\nv_lshl_or_b32 v{Q+1}, v{Q_}, 16, v{Q_}\nv_lshl_or_b32 v{Q+2}, v{R_}, 16, v{Q_}\nv_lshl_or_b32 v{Q+3}, v{R_}, 16, v{R_}")
    a(f"v_mov_b32 v{Q+4}, v{Q+1}\nv_mov_b32 v{Q+5}, v{Q+2}\nv_mov_b32 v{Q+6}, v{Q+3}\nv_lshl_or_b32 v{Q+7}, v{R2}, 16, v{R_}")
    a(f"v_lshl_or_b32 v{Q+8}, v{Q_}, 16, v{P_}\nv_mov_b32 v{Q+9}, v{Q+1}\nv_mov_b32 v{Q+10}, v{Q+3}\nv_mov_b32 v{Q+11}, v{Q+3}")
    a(f"v_mov_b32 v{Q+12}, v{Q+1}\nv_mov_b32 v{Q+13}, v{Q+3}\nv_mov_b32 v{Q+14}, v{Q+3}\nv_lshl_or_b32 v{Q+15}, v{S_}, 16, v{R2}")
    wr(2, Q + 12, Q + 4, Q + 8, Q)
    a("s_waitcnt lgkmcnt(12)")
    for m in range(5):
        a(f"v_lshl_or_b32 v{D+m}, v{52+m}, 16, v{D+m}")
    a(f"v_cndmask_b32 v{D+4}, v{D+4}, 0, s[58:59]\nv_cndmask_b32 v{D+5}, v{D+5}, 0, s[58:59]")
    C1, C2, C0 = 40, 44, 48
    for m in range(4):
        a(f"v_mov_b32 v{C1+m}, v{D+1+m}")
        a(f"v_alignbit_b32 v{C2+m}, v{D+m+1}, v{D+m}, 16")
        a(f"v_alignbit_b32 v{C0+m}, v{D+m+2}, v{D+m+1}, 16")
    wr(3, C0, C1, C2, D)
    ACC, AS, FS, VA, VF = 16, [48, 112], [80, 144], 10, 11
    T1, XF, DSV = 176, 208, 240
    a(f"v_and_b32 v5, 3, v4\nv_mul_u32_u24 v5, {CV_CS}, v5\nv_lshrrev_b32 v6, 2, v4\nv_lshlrev_b32 v6, 3, v6\nv_sub_u32 v5, v5, v6")
    a(f"v_lshlrev_b32 v6, 4, v3\nv_sub_u32 v5, v5, v6\nv_add_u32 v5, {CV_A + 4104 - 3584 - 448}, v5\nv_add_u32 v{VA}, s53, v5")
    a(f"v_lshlrev_b32 v5, 5, v4\nv_sub_u32 v5, v5, v6\nv_add_u32 v5, {CV_U + 496 - 448}, v5\nv_add_u32 v{VF}, s53, v5")
    a("v_lshlrev_b32 v8, 5, v4\nv_lshl_add_u32 v8, v3, 3, v8\nv_add_u32 v9, s53, v8")
    a("v_lshrrev_b32 v6, 3, v4\ns_mov_b32 s56, 163840\nv_mul_lo_u32 v6, v6, s56")
    a("v_and_b32 v7, 7, v4\nv_lshl_add_u32 v6, v7, 5, v6\nv_lshl_add_u32 v6, v3, 3, v6")
    a(f"v_lshlrev_b32 v{DSV}, 16, v{DSV}")
    a.srd(36, 4, WS_HT, SZ_T)
    a("s_lshl_b32 s55, s52, 8")
    a("s_waitcnt lgkmcnt(0)")
    a.stamp(3)
    a("s_barrier")
    a.stamp(4)
    if EXP & 512:
        a("s_setprio 2")

    def reads(s, c):
        o = []
        ex = 64 * (7 - c)
        for k in range(8):
            o.append(f"ds_read_b128 {q(FS[s]+4*k)}, v{VF} offset:{512*k + ex}")
            o.append(f"ds_read_b64 {q(AS[s]+4*k,2)}, v{VA} offset:{512*(7-k) + ex}")
            o.append(f"ds_read_b64 {q(AS[s]+4*k+2,2)}, v{VA} offset:{512*(7-k) + 8 + ex}")
        return o

    rd0 = reads(0, 0)
    for i, r in enumerate(rd0):
        a(r)
        if i == 11:
            a("s_waitcnt lgkmcnt(6)")
    fu, fx = [], []
    for nb in range(8):
        for hh in range(2):
            p = T1 + 4 * nb + 2 * hh
            src = T1 + 4 * nb + 2 + hh
            if hh == 0:
                fu += [f"v_lshlrev_b32 v{p}, 16, v{src}", f"v_and_b32 v{p+1}, 0xffff0000, v{src}"]
            else:
                fu += [f"v_lshlrev_b32 v{p}, 16, v{src}", f"v_and_b32 v{p+1}, 0xffff0000, v{src}"]
            fu += [f"v_pk_mul_f32 {q(p,2)}, {q(p,2)}, {q(DSV,2)} op_sel_hi:[1,0]",
                   f"v_cvt_pk_bf16_f32 v{p}, v{p}, v{p+1}",
                   f"v_and_b32 v{p+1}, 0xffff0000, v{p}", f"v_lshlrev_b32 v{p}, 16, v{p}"]
            p = XF + 4 * nb + 2 * hh
            src = XF + 4 * nb + 2 + hh
            fx += [f"v_lshlrev_b32 v{p}, 16, v{src}", f"v_and_b32 v{p+1}, 0xffff0000, v{src}"]
    fill = {c: fu[16 * (c - 1):16 * c] for c in range(1, 7)}
    fill[0] = [f"ds_read_b64 {q(T1+4*nb+2,2)}, v9 offset:{CV_U + 480 + 512*nb}" for nb in range(8)]
    fill[0] += [f"ds_read_b64 {q(XF+4*nb+2,2)}, v9 offset:{CV_X + 512*nb}" for nb in range(8)]
    fill[7] = fx
    for c in range(8):
        s = c & 1
        a("s_waitcnt lgkmcnt(0)")
        rd = reads(1 - s, c + 1) if c < 7 else []
        fl = list(fill[c])
        i = 0
        for aa in range(8):
            for m in range(8 - aa):
                cc = q(ACC + 4 * (aa + m)) if (c or aa) else "0"
                a(f"v_mfma_f32_16x16x32_bf16 {q(ACC+4*(aa+m))}, {q(AS[s]+4*aa)}, {q(FS[s]+4*m)}, {cc}")
                if i < len(rd) and rd[i]:
                    a(rd[i])
                    if i in (11, 19):
                        a("s_waitcnt lgkmcnt(8)")
                if (i >= 20 or c == 7) and fl:
                    a(fl.pop(0))
                i += 1
        assert not fl
    a.stamp(5)
    a("s_nop 4")
    for nb in range(8):
        y = ACC + 4 * nb
        o = 48 + 2 * nb
        for hh in range(2):
            t = y + 2 * hh
            a(f"v_cvt_pk_bf16_f32 v{t}, v{t}, v{t+1}")
            a.unpack(t, t)
            a(f"v_pk_add_f32 {q(t,2)}, {q(t,2)}, {q(T1+4*nb+2*hh,2)}")
            a(f"v_cvt_pk_bf16_f32 v{t}, v{t}, v{t+1}")
            a.unpack(t, t)
            a(f"v_pk_add_f32 {q(t,2)}, {q(t,2)}, {q(XF+4*nb+2*hh,2)}")
            a(f"v_cvt_pk_bf16_f32 v{o+hh}, v{t}, v{t+1}")
        a.vmem(f"buffer_store_dwordx2 {q(o,2)}, v6, s[36:39], s55 offen {SC}")
        a(f"s_add_u32 s55, s55, {2*163840}")
    a.stamp(6)
    a("s_waitcnt vmcnt(0)")
    last_of4_publish(a, 0, F_C, 2, 120)


def conv_partner(a):
    DK = 80
    a(f"s_mul_i32 s53, s7, {CV_WAVE}")
    a(f"s_mul_i32 s55, s7, 3072\ns_add_u32 s55, s55, {PART_BASE}")
    a("v_lshlrev_b32 v7, 4, v1\nv_add_u32 v5, s55, v7")
    a("v_mov_b32 v20, 0\nv_mov_b32 v21, 0\nv_mov_b32 v22, 0\nv_mov_b32 v23, 0")
    a("v_add_u32 v9, s53, v7")
    a(f"v_lshrrev_b32 v16, 1, v1\nv_mul_u32_u24 v16, {CV_CS}, v16\nv_and_b32 v17, 1, v1\nv_lshl_add_u32 v16, v17, 4, v16\nv_add_u32 v16, s53, v16")
    for t in range(3):
        a(f"ds_write_b128 v5, {q(DK+4*t)} offset:{1024*t}")
    a.stamp(2)
    a.srd(32, 4, WS_XT, SZ_TP)
    a.srd(36, 4, WS_ST, 16384)
    a(f"s_lshl_b32 s54, s2, 8\ns_mul_i32 s61, s7, {16*T_BLK}\ns_add_u32 s54, s54, s61\ns_lshl_b32 s61, s7, 11\ns_add_u32 s62, s61, 8192")
    a(f"v_lshrrev_b32 v8, 2, v1\nv_mul_u32_u24 v8, {T_BLK}, v8\nv_and_b32 v14, 3, v1\nv_lshl_add_u32 v8, v14, 4, v8")
    a("v_lshlrev_b32 v14, 5, v1\ns_lshl_b32 s63, s7, 10\nv_add_u32 v15, s63, v7")
    a("s_waitcnt lgkmcnt(0)\ns_barrier")
    a("s_mov_b64 exec, 0x3fffffff")
    a(f"ds_write_b128 v9, v[20:23] offset:{CV_U}")
    a("s_mov_b64 exec, 0xff")
    a(f"ds_write_b128 v16, v[20:23] offset:{CV_A + 4096}")
    a("s_mov_b64 exec, -1")
    a.poll(F_L, 64, 24)
    a.stamp(3)
    XR, NM, RI, U = 32, 48, 56, 64
    for k in range(2):
        a.vmem(f"buffer_load_dwordx4 {q(NM+4*k)}, v14, s[36:39], s61 offen offset:{16*k} {SC}", "st")
        a.vmem(f"buffer_load_dwordx4 {q(RI+4*k)}, v14, s[36:39], s62 offen offset:{16*k} {SC}", "st")
    for ch in range(4):
        a.vmem(f"buffer_load_dwordx4 {q(XR+4*ch)}, v8, s[32:35], s54 offen offset:{64*ch} {SC}", ("x", ch))
    for ch in range(4):
        a.wait_vm(("x", ch))
        for i in range(4):
            t = 80 + 2 * i
            a.unpack(t, XR + 4 * ch + i)
            a(f"v_pk_add_f32 {q(t,2)}, {q(t,2)}, {q(NM+2*i,2)}")
            a(f"v_cvt_pk_bf16_f32 v{t}, v{t}, v{t+1}")
            a.unpack(t, t)
            a(f"v_pk_mul_f32 {q(t,2)}, {q(t,2)}, {q(RI+2*i,2)}")
            a(f"v_cvt_pk_bf16_f32 v{U+4*ch+i}, v{t}, v{t+1}")
        if ch == 2:
            a(f"v_add_u32 v15, {2*CV_WAVE}, v15")
        a(f"ds_write_b128 v15, {q(U+4*ch)} offset:{CV_U + 480 + CV_WAVE*(ch&1)}")
        a(f"ds_write_b128 v15, {q(XR+4*ch)} offset:{CV_X + CV_WAVE*(ch&1)}")
    a("s_waitcnt lgkmcnt(0)")
    a.stamp(4)
    a("s_barrier")


G1_H = 5120
G1_HN = 5
G1_W = 87040
G1_WN = 3
G1_CONST = 0
G1_CS = 2048
G1_SP = 3072
G2_H, G2_HN, G2_W, G2_WN = G1_H, G1_HN, G1_W, G1_WN
LDS_TOTAL = 163840


def tile_ids(a):
    a("s_and_b32 s12, s2, 7\ns_lshr_b32 s13, s2, 3\ns_and_b32 s14, s13, 7\ns_lshr_b32 s15, s13, 3")
    a("s_and_b32 s8, s12, 1\ns_lshl_b32 s8, s8, 3\ns_add_u32 s8, s8, s14")
    a("s_lshr_b32 s9, s12, 1\ns_lshl_b32 s10, s9, 3\ns_lshl_b32 s9, s9, 2\ns_add_u32 s9, s9, s15")
    a("s_add_u32 s10, s10, s14")
    a("s_and_b32 s11, s12, 1\ns_lshl_b32 s11, s11, 2\ns_add_u32 s11, s11, s15")
    a("v_bfe_u32 v5, v1, 2, 2")
    a("v_lshl_add_u32 v6, v3, 2, v5\nv_lshlrev_b32 v6, 8, v6")
    a("v_and_b32 v7, 3, v1\nv_lshl_add_u32 v6, v7, 3, v6")
    a("v_and_b32 v7, 1, v3\nv_lshl_add_u32 v5, v7, 2, v5")


def gemm_mfma_waves(a, done):
    tile_ids(a)
    if EXP & 16:
        sk = a.newlabel("L_nowarm")
        a(f"s_cmp_lt_u32 s2, 160\ns_cbranch_scc1 {sk}")
        a("s_sub_u32 s16, s13, 20\ns_lshl_b32 s16, s16, 2\ns_add_u32 s16, s16, s7\ns_mul_i32 s16, s16, 20480")
        a("v_lshlrev_b32 v8, 4, v1")
        for which in range(2):
            if which == 0:
                a(f"s_lshr_b32 s17, s12, 1\ns_mul_i32 s18, s17, {80*FS_}\ns_mul_i32 s17, s17, 983040")
                a.srd(32, 4, WS_W13, SZ_W13)
                a.poll(F_R, 80, 120, "s18")
            else:
                a("s_and_b32 s17, s12, 1\ns_mul_i32 s17, s17, 983040")
                a.srd(32, 4, WS_W2, SZ_W2)
                a.poll(F_R2, 32, 120)
            a("s_add_u32 s17, s17, s16")
            for i in range(20):
                a(f"buffer_load_dwordx4 {q(24+4*i)}, v8, s[32:35], s17 offen offset:{1024*(i%4)}")
                if i % 4 == 3:
                    a("s_add_u32 s17, s17, 4096")
        a("s_waitcnt vmcnt(0)")
        a.label(sk)
    a("s_barrier")
    if EXP & 1024:
        a("s_setprio 2")
    elif EXP & 512:
        a("s_setprio 0")
    a("s_and_b32 s16, s7, 1\ns_lshr_b32 s17, s7, 1")
    a("s_lshl_b32 s18, s16, 2\nv_xor_b32 v5, s18, v5")
    for nt in range(4):
        a(f"v_xor_b32 v7, {nt}, v5\nv_lshl_add_u32 v{12+nt}, v7, 5, v6")
    a("v_lshlrev_b32 v16, 4, v1\ns_mul_i32 s18, s17, 6144\nv_add_u32 v16, s18, v16")
    ACC, HS, AD = 24, [120, 160], 17
    for i in range(96):
        a(f"v_mov_b32 v{ACC+i}, 0")

    def reads(s, half):
        o = []
        for nt in range(4):
            r = HS[s] + 4 * nt
            o.append(f"ds_read_b64_tr_b16 {q(r,2)}, v{AD+nt} offset:{8192*half}")
            o.append(f"ds_read_b64_tr_b16 {q(r+2,2)}, v{AD+nt} offset:{8192*half + 4096}")
        for t in range(6):
            o.append(f"ds_read_b128 {q(HS[s]+16+4*t)}, v{AD+4} offset:{12288*half + 1024*t}")
        return o

    def setad(hs, ws):
        return [f"v_add_u32 v{AD+i}, {hs}, v{12+i}" for i in range(4)] + [f"v_add_u32 v{AD+4}, {ws}, v16"]

    for x in setad(G1_H, G1_W):
        a(x)
    a(f"s_mov_b32 s19, {G1_H}\ns_mov_b32 s20, {G1_W}\ns_mov_b32 s21, 0")
    a.srd(32, 4, WS_HM, SZ_HM)
    a.stamp(7)
    sk = a.newlabel("L_nopoll")
    a(f"s_cmp_lg_u32 s6, 0\ns_cbranch_scc1 {sk}")
    a.poll(F_R2, 32, 120)
    a.poll(F_C, 160, 120)
    a(f"s_cmp_lg_u32 s2, 0\ns_cbranch_scc1 {sk}")
    a("v_mov_b32 v120, s3\nv_mov_b32 v121, 0\ns_mov_b64 exec, 1")
    a("buffer_store_dword v120, v121, s[92:95], 0 offen\ns_mov_b64 exec, -1")
    a.label(sk)
    a("s_barrier")
    a.stamp(8)
    a("s_barrier")
    a.stamp(9)
    for x in reads(0, 0):
        a(x)
    a.label("L_g1")
    for s in range(2):
        if s == 0:
            a(f"s_add_u32 s19, s19, 16384\ns_cmp_eq_u32 s19, {G1_H + G1_HN*16384}\ns_cselect_b32 s19, {G1_H}, s19")
            a(f"s_add_u32 s20, s20, 24576\ns_cmp_eq_u32 s20, {G1_W + G1_WN*24576}\ns_cselect_b32 s20, {G1_W}, s20")
            a("s_waitcnt lgkmcnt(0)")
            rest = reads(1, 1) + setad("s19", "s20")
        else:
            a("s_waitcnt lgkmcnt(0)\ns_barrier")
            rest = reads(0, 0)
        i = 0
        for t in range(6):
            for nt in range(4):
                ac = ACC + 4 * (t * 4 + nt)
                a(f"v_mfma_f32_16x16x32_bf16 {q(ac)}, {q(HS[s]+16+4*t)}, {q(HS[s]+4*nt)}, {q(ac)}")
                if i < len(rest):
                    a(rest[i])
                i += 1
    a("s_add_u32 s21, s21, 1\ns_cmp_lt_u32 s21, 10\ns_cbranch_scc1 L_g1")
    a.stamp(10)
    a("s_lshl_b32 s18, s16, 10\nv_lshlrev_b32 v5, 4, v4\nv_add_u32 v5, s18, v5")
    a("s_mul_i32 s18, s17, 384\nv_lshlrev_b32 v6, 4, v3\nv_add_u32 v6, s18, v6")
    a("s_lshl_b32 s22, s8, 1\ns_add_u32 s22, s22, s16\ns_mul_i32 s22, s22, 48")
    a("s_mul_i32 s23, s9, 3\ns_add_u32 s22, s22, s23")
    a("s_lshl_b32 s23, s17, 1\ns_add_u32 s23, s23, s22\ns_lshl_b32 s23, s23, 12")
    a("s_add_u32 s22, s22, 1\ns_lshl_b32 s22, s22, 12\ns_lshl_b32 s18, s17, 9\ns_add_u32 s22, s22, s18")
    a("v_and_b32 v7, 1, v3\nv_lshlrev_b32 v7, 10, v7\nv_lshrrev_b32 v8, 1, v3\nv_lshl_add_u32 v7, v8, 8, v7\nv_lshl_add_u32 v7, v4, 4, v7")
    a("s_waitcnt lgkmcnt(0)\ns_barrier")
    KC, CSR = 184, 160
    for nt in range(4):
        a(f"ds_read_b128 {q(KC+4*nt)}, v5 offset:{G1_CONST + 256*nt}")
    for t in range(6):
        a(f"ds_read_b128 {q(CSR+4*t)}, v6 offset:{G1_CS + 64*t}")
    a("v_lshlrev_b32 v5, 4, v1")
    a("s_waitcnt lgkmcnt(0)")
    a.stamp(11)
    T = 120
    for nt in range(4):
        O = 144 + 4 * (nt & 1)
        k = KC + 4 * nt
        for jj in range(3):
            g = ACC + 4 * (jj * 4 + nt)
            u = ACC + 4 * ((3 + jj) * 4 + nt)
            for hh in range(2):
                g2, u2 = g + 2 * hh, u + 2 * hh
                a(f"v_pk_fma_f32 {q(g2,2)}, {q(CSR+4*jj+2*hh,2)}, {q(k,2)}, {q(g2,2)} op_sel_hi:[1,0,1]")
                a(f"v_pk_fma_f32 {q(u2,2)}, {q(CSR+4*(3+jj)+2*hh,2)}, {q(k,2)}, {q(u2,2)} op_sel_hi:[1,0,1]")
            for hh in range(2):
                a(f"v_pk_mul_f32 {q(T+2*hh,2)}, {q(g+2*hh,2)}, {q(k,2)} op_sel:[0,1] op_sel_hi:[1,1]")
            for i in range(4):
                a(f"v_exp_f32 v{T+i}, v{T+i}")
            for hh in range(2):
                a(f"v_pk_mul_f32 {q(g+2*hh,2)}, {q(g+2*hh,2)}, {q(u+2*hh,2)}")
            for hh in range(2):
                a(f"v_pk_fma_f32 {q(T+2*hh,2)}, {q(T+2*hh,2)}, {q(k+2,2)}, {q(k+2,2)} op_sel_hi:[1,0,0]")
            for i in range(4):
                a(f"v_rcp_f32 v{T+i}, v{T+i}")
            a("s_nop 0")
            for hh in range(2):
                a(f"v_pk_mul_f32 {q(g+2*hh,2)}, {q(g+2*hh,2)}, {q(T+2*hh,2)}")
            for hh in range(2):
                d = O + 2 * jj + hh if jj < 2 else 152 + 4 * (nt >> 1) + 2 * (nt & 1) + hh
                a(f"v_cvt_pk_bf16_f32 v{d}, v{g+2*hh}, v{g+2*hh+1}")
            if jj == 1:
                a(f"buffer_store_dwordx4 {q(O)}, v5, s[32:35], s23 offen offset:{1024*nt} {SC}")
        if nt & 1:
            S = 152 + 4 * (nt >> 1)
            a(f"s_nop 1\nv_permlane16_swap_b32 v{S}, v{S+2}\nv_permlane16_swap_b32 v{S+1}, v{S+3}")
            a(f"buffer_store_dwordx4 {q(S)}, v7, s[32:35], s22 offen offset:{1024*(nt-1)} {SC}")
    a.stamp(12)
    a.vm = []
    ACC, FS, RES, VW, VH = 16, [56, 84], 112, 132, 134
    a("s_lshl_b32 s22, s16, 1\ns_add_u32 s22, s22, s17")
    a("s_lshr_b32 s18, s10, 1\ns_mul_i32 s18, s18, 163840\ns_mul_i32 s19, s11, 20480\ns_add_u32 s18, s18, s19")
    a("s_and_b32 s19, s10, 1\ns_lshl_b32 s19, s19, 7\ns_add_u32 s18, s18, s19\ns_lshl_b32 s19, s22, 5\ns_add_u32 s18, s18, s19")
    a("v_lshlrev_b32 v10, 1, v4\nv_lshl_add_u32 v11, v3, 10, v10\nv_lshl_add_u32 v10, v3, 11, v10")
    a("s_add_u32 s19, s18, 8192\ns_add_u32 s20, s18, 16384")
    a.srd(36, 4, WS_HT, SZ_T)
    a.srd(40, 30, 0, SZ_T)
    a("s_lshl_b32 s21, s8, 4\ns_add_u32 s21, s21, s9")
    a("s_waitcnt vmcnt(0)")
    last_of4_publish(a, 1, F_G, 21, 140)
    a.stamp(13)
    sk = a.newlabel("L_nopub")
    a(f"s_cmp_lg_u32 s6, 0\ns_cbranch_scc1 {sk}")
    a(f"s_lshr_b32 s21, s10, 1\ns_mul_i32 s21, s21, {16*FS_}")
    a.poll(F_G, 16, 140, "s21")
    a.label(sk)
    a("s_barrier")
    if EXP & 4:
        a(f"s_mul_i32 s21, s10, {48*4096}\ns_lshl_b32 s23, s15, 2\ns_add_u32 s23, s23, s7\ns_mul_i32 s23, s23, 12288\ns_add_u32 s21, s21, s23")
        for i in range(12):
            a.vmem(f"buffer_load_dwordx4 {q(144+4*i)}, v5, s[32:35], s21 offen offset:{1024*(i%4)} {SC}", "warm")
            if i % 4 == 3:
                a("s_add_u32 s21, s21, 4096")
    for p in range(2):
        for e in range(8):
            a.vmem(f"buffer_load_ushort v{RES+8*p+e}, v10, s[36:39], s{18+p} offen offset:{256*e} {SC}", "res")
    for e in range(4):
        a.vmem(f"buffer_load_ushort v{RES+16+e}, v11, s[36:39], s20 offen offset:{256*e} {SC}", "res")
    for i in range(40):
        a(f"v_mov_b32 v{ACC+i}, 0")
    a(f"s_lshl_b32 s19, s17, 12\ns_lshl_b32 s21, s22, 10\ns_add_u32 s19, s19, s21\nv_add_u32 v{VH}, s19, v5")
    a(f"v_xor_b32 v{VH+1}, 1024, v{VH}\nv_add_u32 v{VH}, {G2_H}, v{VH}\nv_add_u32 v{VH+1}, {G2_H}, v{VH+1}")
    a(f"s_mul_i32 s19, s17, 5120\nv_add_u32 v{VW}, s19, v5")
    a(f"v_mov_b32 v{VH+2}, v{VH}\nv_mov_b32 v{VH+3}, v{VH+1}\nv_add_u32 v{VW+1}, {G2_W + 24576}, v{VW}")
    a(f"s_mov_b32 s23, 0\ns_mov_b32 s24, {G2_W + 24576}")

    def reads2(kk, s):
        o = [f"ds_read_b128 {q(FS[s]+20+4*j)}, v{VH+2+j} offset:{kk*8192}" for j in range(2)]
        o += [f"ds_read_b128 {q(FS[s]+4*t)}, v{VW+1} offset:{kk*10240 + 1024*t}" for t in range(5)]
        return o

    a("s_lshl_b32 s18, s10, 6\ns_lshl_b32 s19, s22, 4\ns_add_u32 s18, s18, s19\ns_mul_i32 s18, s18, 1280\ns_mul_i32 s19, s11, 160\ns_add_u32 s18, s18, s19")
    a("v_mul_u32_u24 v10, 1280, v4\nv_lshl_add_u32 v11, v3, 3, v10\nv_lshl_add_u32 v10, v3, 4, v10")
    a(f"s_mul_i32 s19, s7, 5120\ns_add_u32 s19, s19, {G2_W + 2*24576}\nv_add_u32 v6, s19, v5")
    a(f"s_xor_b32 s19, s7, 2\ns_mul_i32 s19, s19, 5120\ns_add_u32 s19, s19, {G2_W + 2*24576}\nv_add_u32 v7, s19, v5")
    a("s_mov_b32 s21, 0")
    a("s_barrier")
    a.stamp(14)
    for x in reads2(0, 0):
        a(x)
    a.label("L_g2")
    for s in range(2):
        if s == 0:
            a(f"s_add_u32 s23, s23, 16384\ns_cmp_eq_u32 s23, {G2_HN*16384}\ns_cselect_b32 s23, 0, s23")
            a(f"s_add_u32 s24, s24, 24576\ns_cmp_eq_u32 s24, {G2_W + G2_WN*24576}\ns_cselect_b32 s24, {G2_W}, s24")
            a("s_waitcnt lgkmcnt(0)")
            rd = reads2(1, 1) + [f"v_add_u32 v{VH+2}, s23, v{VH}", f"v_add_u32 v{VH+3}, s23, v{VH+1}", f"v_add_u32 v{VW+1}, s24, v{VW}"]
        else:
            a("s_waitcnt lgkmcnt(0)\ns_barrier")
            rd = reads2(0, 0)
        i = 0
        for t in range(5):
            for j in range(2):
                ac = ACC + 4 * (5 * j + t)
                if not EXP & 32:
                    a(f"v_mfma_f32_16x16x32_bf16 {q(ac)}, {q(FS[s]+4*t)}, {q(FS[s]+20+4*j)}, {q(ac)}")
                for x in rd[2*i:2*i+2]:
                    a(x)
                i += 1
    a("s_add_u32 s21, s21, 1\ns_cmp_lt_u32 s21, 12\ns_cbranch_scc1 L_g2")
    a("s_nop 5")
    for t in range(5):
        a(f"ds_write_b128 v6, {q(ACC+20+4*t)} offset:{1024*t}")
    a("s_waitcnt lgkmcnt(0)\ns_barrier")
    for t in range(5):
        a(f"ds_read_b128 {q(ACC+20+4*t)}, v7 offset:{1024*t}")
    a.wait_vm("res")
    for i in range(20):
        a(f"v_lshlrev_b32 v{RES+i}, 16, v{RES+i}")
    a("s_waitcnt lgkmcnt(0)")
    O = 56
    for i in range(10):
        y = ACC + 2 * i
        a(f"v_pk_add_f32 {q(y,2)}, {q(y,2)}, {q(y+20,2)}")
        a(f"v_cvt_pk_bf16_f32 v{y}, v{y}, v{y+1}")
        a.unpack(y, y)
        a(f"v_pk_add_f32 {q(y,2)}, {q(y,2)}, {q(RES+2*i,2)}")
        a(f"v_cvt_pk_bf16_f32 v{O+i}, v{y}, v{y+1}")
        if i == 3:
            a(f"buffer_store_dwordx4 {q(O)}, v10, s[40:43], s18 offen {SCO}")
        if i == 7:
            a(f"buffer_store_dwordx4 {q(O+4)}, v10, s[40:43], s18 offen offset:64 {SCO}")
    a(f"buffer_store_dwordx2 {q(O+8,2)}, v11, s[40:43], s18 offen offset:128 {SCO}")
    a(f"s_branch {done}")


def gemm_loader_waves(a, done):
    a.vm = []
    tile_ids(a)
    a("s_mul_i32 s22, s8, 163840\ns_add_u32 s23, s22, 163840")
    a(f"s_mul_i32 s24, s9, {20*12288}\ns_add_u32 s25, s24, {20*12288}")
    a("s_lshr_b32 s20, s9, 3\ns_mul_i32 s20, s20, 5")
    a("s_lshl_b32 s16, s20, 14\ns_add_u32 s16, s16, s22\ns_mul_i32 s17, s20, 24576\ns_add_u32 s17, s17, s24")
    a("s_lshl_b32 s18, s7, 12\ns_mul_i32 s19, s7, 6144")
    a("v_lshrrev_b32 v12, 1, v4\nv_xor_b32 v12, v12, v3\nv_lshlrev_b32 v12, 5, v12")
    a("v_and_b32 v7, 1, v4\nv_lshlrev_b32 v7, 4, v7\nv_lshl_add_u32 v7, v3, 8, v7\nv_add_u32 v7, s18, v7")
    a("v_add_u32 v8, v7, v12\nv_xor_b32 v12, 128, v12\nv_add_u32 v9, v7, v12")
    if EXP & 2048:
        a("v_lshlrev_b32 v8, 4, v1\nv_add_u32 v8, s18, v8\nv_mov_b32 v9, v8")
    a("v_lshlrev_b32 v10, 4, v1\nv_add_u32 v10, s19, v10\nv_add_u32 v11, 4096, v10")
    a.srd(32, 4, WS_HT, SZ_T)
    a.srd(36, 4, WS_W13, SZ_W13)
    a.srd(40, 4, WS_CSP, SZ_CSP)
    a(f"s_mul_i32 s20, s9, {20*FS_}")
    a.poll(F_R, 20, 20, "s20")
    a.stamp(5)

    def issue_w(st):
        slot = G1_W + (st % G1_WN) * 24576
        if EXP & 4096 and st > 2:
            a.vm.append(("w", st))
            return
        a(f"s_add_u32 m0, s19, {slot}\ns_nop 0")
        for i in range(4):
            a.vmem(f"buffer_load_dwordx4 v10, s[36:39], s17 offen offset:{1024*i} {SCL} lds", ("w", st))
        a(f"s_add_u32 m0, s19, {slot + 4096}\ns_nop 0")
        for i in range(2):
            a.vmem(f"buffer_load_dwordx4 v11, s[36:39], s17 offen offset:{1024*i} {SCL} lds", ("w", st))
        a("s_add_u32 s17, s17, 24576\ns_cmp_eq_u32 s17, s25\ns_cselect_b32 s17, s24, s17")

    def issue_h(st):
        slot = G1_H + (st % G1_HN) * 16384
        if EXP & 8192 and st > 0:
            a.vm.append(("h", st))
            return
        a(f"s_add_u32 m0, s18, {slot}\ns_nop 0")
        for i in range(4):
            a.vmem(f"buffer_load_dwordx4 v{8 + (i&1)}, s[32:35], s16 offen offset:{1024*i} {SCL} lds", ("h", st))
        a("s_add_u32 s16, s16, 16384\ns_cmp_eq_u32 s16, s23\ns_cselect_b32 s16, s22, s16")

    CS = 40
    a("v_and_b32 v13, 255, v0\nv_lshlrev_b32 v13, 2, v13\ns_mul_i32 s20, s9, 15360")
    for ks in range(20):
        if ks and ks % 5 == 0:
            a("s_add_u32 s20, s20, 3840")
        a.vmem(f"buffer_load_dword v{CS+ks}, v13, s[40:43], s20 offen offset:{768*(ks % 5)} {SC}", "cs")
    SA = 14
    a("s_and_b32 s20, s9, 7\nv_xor_b32 v5, s20, v5\nv_lshl_add_u32 v14, v5, 5, v6\nv_add_u32 v15, 49152, v14")
    ONE, SACC, SF = 20, 24, 32
    for i in range(4):
        a(f"v_mov_b32 v{ONE+i}, {hex(ONES_BF)}")
    for i in range(8):
        a(f"v_mov_b32 v{SACC+i}, 0")
    a.wait_vm("cs")
    for ks in range(1, 20):
        a(f"v_add_f32 v{CS}, v{CS}, v{CS+ks}")
    a("v_and_b32 v7, 3, v4\nv_cmp_eq_u32 s[52:53], 1, v7\nv_cmp_eq_u32 s[54:55], 2, v7\nv_cmp_eq_u32 s[56:57], 3, v7")
    a("v_lshrrev_b32 v7, 2, v4\nv_cmp_eq_u32 s[58:59], v7, v3")
    a(f"s_mul_i32 s60, s11, {48*5120}\ns_mul_i32 s62, s10, {48*4096}\ns_mul_i32 s28, s7, 5120")
    a(f"s_add_u32 s61, s60, {48*5120}\ns_add_u32 s63, s62, {48*4096}")
    a(f"s_mul_i32 s26, s15, {3*20480 if EXP & 2 else 0}\ns_add_u32 s26, s26, s60\ns_mul_i32 s27, s15, {3*16384 if EXP & 2 else 0}\ns_add_u32 s27, s27, s62")
    a("v_lshlrev_b32 v60, 4, v1\nv_add_u32 v61, s18, v60\nv_add_u32 v60, s28, v60\nv_add_u32 v62, 4096, v60")
    a.srd(40, 4, WS_W2, SZ_W2)
    a.srd(44, 4, WS_HM, SZ_HM)
    a.stamp(6)
    a("s_barrier")
    for st in range(G1_WN):
        issue_w(st)
    a.stamp(7)
    a("s_barrier")
    a(f"ds_write_b32 v13, v{CS} offset:{G1_CS}")
    issue_h(0); issue_h(1)
    a.wait_vm(("h", 0))
    a.stamp(8)
    a("s_barrier")
    issue_h(2); issue_h(3); issue_h(4)

    def issue_w2(st):
        slot = G2_W + ((st + 1) % G2_WN) * 24576
        if EXP & 128 and st > 2:
            a.vm.append(("w2", st))
            return
        a(f"s_add_u32 m0, s28, {slot}\ns_nop 0")
        for i in range(4):
            a.vmem(f"buffer_load_dwordx4 v60, s[40:43], s26 offen offset:{1024*i} {SCL} lds", ("w2", st))
        a(f"s_add_u32 m0, s28, {slot + 4096}\ns_nop 0")
        a.vmem(f"buffer_load_dwordx4 v62, s[40:43], s26 offen {SCL} lds", ("w2", st))
        a("s_add_u32 s26, s26, 20480\ns_cmp_eq_u32 s26, s61\ns_cselect_b32 s26, s60, s26")

    def issue_hm(st):
        slot = G2_H + (st % G2_HN) * 16384
        if EXP & 64 and st > 0:
            a.vm.append(("hm", st))
            return
        a(f"s_add_u32 m0, s18, {slot}\ns_nop 0")
        for i in range(4):
            a.vmem(f"buffer_load_dwordx4 v61, s[44:47], s27 offen offset:{1024*i} {SCL} lds", ("hm", st))
        a("s_add_u32 s27, s27, 16384\ns_cmp_eq_u32 s27, s63\ns_cselect_b32 s27, s62, s27")

    a.srd(48, 4, WS_GR, 16 * 4096)
    a("s_and_b32 s20, s7, 1\ns_lshl_b32 s20, s20, 13\nv_add_u32 v14, s20, v14\nv_add_u32 v15, s20, v15")
    for s in range(10):
        slot = s % G1_HN
        dostat = s < 5
        if dostat:
            sk = a.newlabel("L_nost")
            a(f"s_lshr_b32 s20, s7, 1\ns_cmp_lg_u32 s20, {s & 1}\ns_cbranch_scc1 {sk}")
            off = G1_H + (slot % 3) * 16384
            a(f"ds_read_b64_tr_b16 {q(SF,2)}, v{SA + slot//3} offset:{off}")
            a(f"ds_read_b64_tr_b16 {q(SF+2,2)}, v{SA + slot//3} offset:{off + 4096}")
            a("s_waitcnt lgkmcnt(0)")
            a(f"v_mfma_f32_16x16x32_bf16 {q(SACC)}, {q(ONE)}, {q(SF)}, {q(SACC)}")
            a(f"v_mfma_f32_16x16x32_bf16 {q(SACC+4)}, {q(SF)}, {q(SF)}, {q(SACC+4)}")
            a.label(sk)
        if s == 8:
            a("s_lshl_b32 s20, s8, 12\ns_lshl_b32 s21, s7, 9\ns_add_u32 s20, s20, s21")
            a("v_and_b32 v7, 31, v1\nv_lshlrev_b32 v7, 4, v7\nv_lshrrev_b32 v36, 5, v1\nv_lshl_add_u32 v36, v36, 11, v7\nv_add_u32 v7, s21, v7\ns_mov_b32 s84, 0")
            L, D = a.newlabel("L_gp"), a.newlabel("L_gpd")
            a.label(L)
            a(f"buffer_load_dwordx4 {q(40)}, v36, s[48:51], s20 offen {SC}")
            a(f"s_add_u32 s84, s84, 1\ns_waitcnt vmcnt(0)\nv_cmp_ne_u32 vcc, s3, v42\ns_cbranch_vccz {D}")
            a(f"s_sleep 2\ns_cmp_lt_u32 s84, {POLL_MAX}\ns_cbranch_scc1 {L}")
            a.label(D)
            a("v_mov_b32 v44, v40\nv_mov_b32 v45, v41\ns_nop 1\nv_permlane32_swap_b32 v40, v44\nv_permlane32_swap_b32 v41, v45")
            a("v_add_f32 v40, v40, v44\nv_add_f32 v41, v41, v45")
            ln_finish(a, 40, 41, 42, 44, 45)
            a(f"v_mul_f32 v45, {hex(NLOG2E)}, v45\nv_mul_f32 v46, v42, v42\nv_mov_b32 v47, 0")
            a(f"ds_write_b128 v7, {q(44)} offset:{G1_CONST}")
        if s >= 1:
            if s + 2 < 10:
                issue_w(s + 2)
            else:
                issue_w2(s - 8)
            if s + 4 < 10:
                issue_h(s + 4)
        if s == 4:
            sq = SACC + 4
            a("s_nop 4")
            a(f"v_cndmask_b32 v{sq}, v{sq}, v{sq+1}, s[52:53]\nv_cndmask_b32 v{sq}, v{sq}, v{sq+2}, s[54:55]\nv_cndmask_b32 v{SACC+1}, v{sq}, v{sq+3}, s[56:57]")
            a(f"s_lshl_b32 s20, s7, 7\nv_lshlrev_b32 v7, 3, v4\nv_add_u32 v7, s20, v7\ns_mov_b64 exec, s[58:59]")
            a(f"ds_write_b64 v7, {q(SACC,2)} offset:{G1_SP}\ns_mov_b64 exec, -1\ns_waitcnt lgkmcnt(0)")
        if s == 5:
            sk = a.newlabel("L_nogr")
            a(f"s_cmp_lg_u32 s7, 3\ns_cbranch_scc1 {sk}")
            a("v_lshlrev_b32 v7, 3, v4")
            for w in range(4):
                a(f"ds_read_b64 {q(SF+2*w,2)}, v7 offset:{G1_SP + 128*w}")
            a("s_lshl_b32 s20, s8, 1\ns_lshr_b32 s21, s9, 3\ns_add_u32 s20, s20, s21\ns_lshl_b32 s20, s20, 3\ns_and_b32 s21, s9, 7\ns_add_u32 s20, s20, s21\ns_lshl_b32 s20, s20, 8")
            a(f"v_lshlrev_b32 v7, 4, v4\nv_mov_b32 v{SF+10}, s3\nv_mov_b32 v{SF+11}, s3\ns_waitcnt lgkmcnt(0)")
            a(f"v_pk_add_f32 {q(SF,2)}, {q(SF,2)}, {q(SF+2,2)}\nv_pk_add_f32 {q(SF+4,2)}, {q(SF+4,2)}, {q(SF+6,2)}\nv_pk_add_f32 {q(SF+8,2)}, {q(SF,2)}, {q(SF+4,2)}")
            a("s_mov_b64 exec, 0xffff")
            a(f"buffer_store_dwordx4 {q(SF+8)}, v7, s[48:51], s20 offen {SC}")
            a("s_mov_b64 exec, -1")
            a.label(sk)
        if s + 1 < 10:
            a.wait_vm(("h", s + 1))
            if s + 1 >= G1_WN:
                a.wait_vm(("w", s + 1))
        a("s_barrier")
    issue_w2(2)
    a("s_waitcnt lgkmcnt(0)")
    a.stamp(10)
    a("s_barrier")
    a.stamp(13)
    a("s_barrier")
    issue_hm(0); issue_hm(1)
    a.wait_vm(("hm", 0))
    a("s_barrier")
    issue_hm(2); issue_hm(3); issue_hm(4)
    for s in range(12):
        if s + 1 < 12:
            a.wait_vm(("hm", s + 1))
            if s + 1 >= G2_WN:
                a.wait_vm(("w2", s + 1))
        a("s_barrier")
        if s + G2_WN < 12:
            issue_w2(s + G2_WN)
        if s + G2_HN < 12:
            issue_hm(s + G2_HN)
    a("s_barrier")


def main():
    a = Asm()
    hdr = open(f"cdna_kernels/{NAME}.s.ref").read().split("\n")
    for line in hdr:
        if line.startswith("; Override") or line.startswith("; grid=") or "@launch" in line:
            continue
        if not line.startswith(";"):
            break
        a.raw(line)
    if STAMPS == 1:
        a.raw(f"; @launch kernel={KNAME} grid=(256,1,1) block=(512,1,1) lds={LDS_TOTAL}")
    else:
        a.raw(f"; @launch grid=(256,1,1) block=(512,1,1) lds={LDS_TOTAL}")
    a.raw('.amdgcn_target "amdgcn-amd-amdhsa--gfx950"\n.text')
    a.raw(f".globl {KNAME}\n.p2align 8\n.type {KNAME},@function\n{KNAME}:")
    done = "L_done"
    a("s_cmp_ge_u32 s2, 256\ns_cbranch_scc1 L_exit")
    if STAMPS:
        for i in range(16):
            a(f"s_mov_b32 s{64+i}, 0")
        a.stamp(0)
    a(f"s_load_dwordx2 s[4:5], s[0:1], {KA_WS}\ns_load_dwordx16 s[8:23], s[0:1], 0\ns_load_dwordx8 s[24:31], s[0:1], 64")
    a("v_and_b32 v1, 63, v0\nv_lshrrev_b32 v2, 6, v0\nv_lshrrev_b32 v3, 4, v1\nv_and_b32 v4, 15, v1")
    a("v_readfirstlane_b32 s6, v2")
    a("s_waitcnt lgkmcnt(0)")
    a("s_load_dword s3, s[4:5], 0")
    a("s_and_b32 s7, s6, 3")
    a.srd(92, 4, WS_FLG, SZ_FLG)
    a(f"v_mov_b32 v5, {LDS_CNT}\nv_mov_b32 v6, 0\nv_mov_b32 v7, 0\nv_mov_b32 v8, 0\nv_mov_b32 v9, 0\nds_write_b128 v5, v[6:9]")
    a("s_cmp_ge_u32 s2, 160\ns_cbranch_scc1 L_aux")
    a("s_lshl_b32 s52, s2, 2\ns_add_u32 s52, s52, s7")
    kgen(a)
    a("s_cmp_ge_u32 s6, 4\ns_cbranch_scc1 L_partner")
    conv_main(a)
    a("s_branch L_mfma")
    a.label("L_partner")
    conv_partner(a)
    a("s_branch L_loader")
    a.label("L_aux")
    a.vm = []
    a("s_cmp_ge_u32 s2, 224\ns_cbranch_scc1 L_aux_rp")
    a("s_sub_u32 s52, s2, 160")
    role_ln1(a)
    a("s_branch L_aux_go")
    a.label("L_aux_rp")
    a("s_sub_u32 s52, s2, 224")
    if not EXP & 256:
        a("s_cmp_lt_u32 s6, 6\ns_cbranch_scc1 L_aux_rp1")
        a("s_getpc_b64 s[54:55]")
        a.label("L_pc")
        a(f"s_sub_u32 s54, s54, L_pc-{KNAME}\ns_subb_u32 s55, s55, 0")
        a(f"v_lshlrev_b32 v5, 4, v1\ns_and_b32 s56, s6, 1\ns_mul_i32 s56, s56, {CODE_KB*512}\nv_add_u32 v5, s56, v5")
        for i in range(CODE_KB // 2):
            a(f"global_load_dwordx4 {q(16+4*i)}, v5, s[54:55] offset:{1024*(i%4)}")
            if i % 4 == 3:
                a("v_add_u32 v5, 4096, v5")
        a.label("L_aux_rp1")
    epoch_ready(a)
    a("s_cmp_ge_u32 s6, 6\ns_cbranch_scc1 L_aux_end")
    a("s_mul_i32 s53, s52, 6\ns_add_u32 s53, s53, s6")
    role_rp2(a)
    a.label("L_aux_end")
    a("s_waitcnt vmcnt(0)\ns_barrier")
    a("s_cmp_lg_u32 s6, 4\ns_cbranch_scc1 L_aux_go")
    a.publish(F_R2, 52, 10)
    a.label("L_aux_go")
    a.stamp(4)
    a("s_cmp_ge_u32 s6, 4\ns_cbranch_scc1 L_loader\ns_branch L_mfma")
    a.label("L_loader")
    gemm_loader_waves(a, done)
    a(f"s_branch {done}")
    a.label("L_mfma")
    gemm_mfma_waves(a, done)
    a.label(done)
    if STAMPS:
        a("s_waitcnt vmcnt(0)")
        a.stamp(15)
        if STAMPS == 2:
            a(f"s_cmp_lg_u32 s2, {int(os.environ.get('DBGWG', '0'))}\ns_cbranch_scc1 L_exit\ns_cmp_lg_u32 s6, {int(os.environ.get('DBGWV', '0'))}\ns_cbranch_scc1 L_exit")
            a("s_load_dwordx2 s[82:83], s[0:1], 96\ns_waitcnt lgkmcnt(0)")
            a.srd(88, 82, 0, 256)
            for i in range(15, -1, -1):
                a(f"s_sub_u32 s{64+i}, s{64+i}, s64")
            for i in range(16):
                a(f"v_mov_b32 v{4+i}, s{64+i}")
            a("v_mov_b32 v1, 0\ns_mov_b64 exec, 1")
            for i in range(4):
                a(f"buffer_store_dwordx4 {q(4+4*i)}, v1, s[88:91], 0 offen offset:{16*i}")
            a("s_branch L_exit")
        a.srd(88, 4, WS_STAMP, 262144)
        a("v_lshrrev_b32 v1, 6, v0\nv_lshlrev_b32 v1, 6, v1\ns_lshl_b32 s82, s2, 9\nv_add_u32 v1, s82, v1")
        for i in range(16):
            a(f"v_mov_b32 v{4+i}, s{64+i}")
        a("s_mov_b64 exec, 1")
        for i in range(4):
            a(f"buffer_store_dwordx4 {q(4+4*i)}, v1, s[88:91], 0 offen offset:{16*i}")
    a.label("L_exit")
    a("s_endpgm")
    a.raw(f".fill ({CODE_KB*1024} - (. - {KNAME})) / 4, 4, 0xbf800000")
    a.raw(f""".section .rodata,"a"
.p2align 6
.amdhsa_kernel {KNAME}
  .amdhsa_next_free_vgpr 244
  .amdhsa_next_free_sgpr 96
  .amdhsa_accum_offset 244
  .amdhsa_group_segment_fixed_size 0
  .amdhsa_kernarg_size 112
  .amdhsa_user_sgpr_count 2
  .amdhsa_user_sgpr_kernarg_segment_ptr 1
  .amdhsa_system_sgpr_workgroup_id_x 1
.end_amdhsa_kernel""")
    out = sys.argv[1] if len(sys.argv) > 1 else f"cdna_kernels/{NAME}.s"
    open(out, "w").write("\n".join(a.l) + "\n")


if __name__ == "__main__":
    main()
```

```python
import sys, os, struct

NAME = "sequential_preLN__ssm_conv_s4d__glu_gated_swiglu__prompt"
KNAME = NAME + "_kernel"
KA_WS = 104

WS_FLG = 0
FS_ = 128
F_L, F_X, F_R2, F_C, F_G, F_R = 0x1000, 0x3000, 0x5000, 0x8000, 0x10000, 0x18000
SZ_FLG = 0x30000
WS_UT = 0x100000
WS_XT = 0x400000
WS_HT = 0x700000
WS_HM = 0xA00000
WS_W13 = 0x1000000
WS_W2 = 0x1400000
WS_GR = 0x1710000
WS_ST = 0x1700000
WS_CSP = 0x1600000
WS_STAMP = 0x4000000
SZ_T = 640 * 4096
SZ_TP = SZ_T
T_BLK = 40960
SZ_HM = 32 * 48 * 4096
SZ_W13 = 16 * 20 * 12288
SZ_W2 = 8 * 48 * 5120
SZ_CSP = 320 * 768 + 1024

STAMPS = int(os.environ.get('STAMPS', '0'))
EXP = int(os.environ.get('EXP', '0'))
LOG2E, NLOG2E, INV2PI, INV640, EPS, ONES_BF = 0x3FB8AA3B, 0xBFB8AA3B, 0x3E22F983, 0x3ACCCCCD, 0x3727C5AC, 0x3F803F80
POLL_MAX = 400000
CODE_KB = 30
PIPE = int(os.environ.get('PIPE', '2'))
PSLEEP = int(os.environ.get('PSLEEP', '3'))
SLEEP = int(os.environ.get('SLEEP', '1'))
SC = "sc1"
SCO = os.environ.get("SCO", "")
SCL = "" if EXP & 8 else "sc1"


def f32bits(x):
    return struct.unpack("<I", struct.pack("<f", x))[0]


def q(r, n=4):
    return f"v[{r}:{r+n-1}]"


class Asm:
    def __init__(self):
        self.l = []
        self.vm = []
        self.uid = 0

    def __call__(self, s):
        for x in s.split("\n"):
            x = x.strip()
            if x:
                self.l.append("    " + x)

    def label(self, s):
        self.l.append(s + ":")

    def raw(self, s):
        self.l.append(s)

    def newlabel(self, p="L"):
        self.uid += 1
        return f"{p}_{self.uid}"

    def vmem(self, s, tag=None):
        self(s)
        self.vm.append(tag)

    def wait_vm(self, tag):
        idx = max(i for i, t in enumerate(self.vm) if t == tag)
        n = len(self.vm) - 1 - idx
        assert n <= 63, n
        self(f"s_waitcnt vmcnt({n})")

    def srd(self, sd, lo, off, size):
        if off == 0:
            self(f"s_mov_b32 s{sd}, s{lo}\ns_mov_b32 s{sd+1}, s{lo+1}")
        else:
            self(f"s_add_u32 s{sd}, s{lo}, {hex(off)}\ns_addc_u32 s{sd+1}, s{lo+1}, 0")
        self(f"s_mov_b32 s{sd+2}, {size}\ns_mov_b32 s{sd+3}, 0x20000")

    def stamp(self, i):
        if STAMPS:
            self(f"s_memrealtime s[80:81]\ns_waitcnt lgkmcnt(0)\ns_mov_b32 s{64+i}, s80")

    def unpack(self, dlo, src):
        if dlo == src:
            self(f"v_and_b32 v{dlo+1}, 0xffff0000, v{src}\nv_lshlrev_b32 v{dlo}, 16, v{src}")
        else:
            self(f"v_lshlrev_b32 v{dlo}, 16, v{src}\nv_and_b32 v{dlo+1}, 0xffff0000, v{src}")

    def rnd(self, d, s):
        self(f"v_cvt_pk_bf16_f32 v{d}, v{s}, v{s}\nv_lshlrev_b32 v{d}, 16, v{d}")

    def poll(self, off, n, vt, soff=None, fast=False):
        L, D = self.newlabel("L_poll"), self.newlabel("L_polld")
        nl = (n + 63) // 64
        for i in range(nl):
            self(f"v_add_u32 v{vt+i}, {64*i}, v1\nv_min_u32 v{vt+i}, {n-1}, v{vt+i}\nv_mul_u32_u24 v{vt+i}, {FS_}, v{vt+i}")
        if soff is None:
            self(f"s_mov_b32 s86, {off}")
        else:
            self(f"s_add_u32 s86, {soff}, {off}")
        self("s_mov_b32 s84, 0")
        np_ = PIPE if fast else 1

        def ld(k):
            for i in range(nl):
                self(f"buffer_load_dword v{vt+nl*(1+k)+i}, v{vt+i}, s[92:95], s86 offen {SC}")

        def chk(k):
            b = vt + nl * (1 + k)
            for i in range(nl):
                self(f"v_xor_b32 v{b+i}, s3, v{b+i}")
            for i in range(1, nl):
                self(f"v_or_b32 v{b}, v{b}, v{b+i}")
            self(f"v_cmp_ne_u32 vcc, 0, v{b}\ns_cbranch_vccz {D}")

        for k in range(np_ - 1):
            ld(k)
            self(f"s_sleep {PSLEEP}")
        self.label(L)
        for k in range(np_):
            ld((k + np_ - 1) % np_)
            self(f"s_waitcnt vmcnt({nl*(np_-1)})")
            chk(k)
            self(f"s_sleep {PSLEEP if fast else SLEEP}")
        self(f"s_add_u32 s84, s84, 1\ns_cmp_lt_u32 s84, {POLL_MAX}\ns_cbranch_scc1 {L}")
        self.label(D)
        if np_ > 1:
            self.vm = [None] * (nl * (np_ - 1))
        else:
            self.vm = []

    def publish(self, off, sidx, vt):
        self(f"s_mul_i32 s85, s{sidx}, {FS_}\ns_add_u32 s85, s85, {off}\nv_mov_b32 v{vt}, s3\nv_mov_b32 v{vt+1}, s85\ns_mov_b64 exec, 1")
        self.vmem(f"buffer_store_dword v{vt}, v{vt+1}, s[92:95], 0 offen {SC}")
        self("s_mov_b64 exec, -1")


def ln_finish(a, vs, vq, vt, vnegm, vrinv):
    a(f"v_mul_f32 v{vs}, {hex(INV640)}, v{vs}")
    a(f"v_mul_f32 v{vq}, {hex(INV640)}, v{vq}")
    a(f"v_fma_f32 v{vq}, -v{vs}, v{vs}, v{vq}")
    a(f"v_max_f32 v{vq}, 0, v{vq}")
    a.rnd(vnegm, vs)
    a(f"v_xor_b32 v{vnegm}, 0x80000000, v{vnegm}")
    a.rnd(vt, vq)
    a(f"v_add_f32 v{vt}, {hex(EPS)}, v{vt}")
    a.rnd(vt, vt)
    a(f"v_sqrt_f32 v{vt}, v{vt}\ns_nop 0")
    a.rnd(vt, vt)
    a(f"v_rcp_f32 v{vrinv}, v{vt}\ns_nop 0")


def cmul(a, d, x, y, t):
    a(f"v_pk_mul_f32 {q(t,2)}, {q(x,2)}, {q(y,2)} op_sel_hi:[1,0]")
    a(f"v_pk_fma_f32 {q(d,2)}, {q(x,2)}, {q(y,2)}, {q(t,2)} op_sel:[1,1,0] op_sel_hi:[0,1,1] neg_lo:[1,0,0]")


def epoch_ready(a):
    a("s_waitcnt lgkmcnt(0)\ns_add_u32 s3, s3, 1")


LDS_CNT = 143872


LDS_CNT2 = 4096


def last_of4_publish(a, addr, off, sidx, vt):
    sk = a.newlabel("L_notlast")
    a(f"v_mov_b32 v{vt}, {addr}\nv_mov_b32 v{vt+1}, 1\ns_mov_b64 exec, 1")
    a(f"ds_add_rtn_u32 v{vt+1}, v{vt}, v{vt+1}\ns_mov_b64 exec, -1\ns_waitcnt lgkmcnt(0)")
    a(f"v_readfirstlane_b32 s85, v{vt+1}\ns_nop 3\ns_cmp_lg_u32 s85, 3\ns_cbranch_scc1 {sk}")
    a.publish(off, sidx, vt)
    a.label(sk)


LN_RS = 1312
LN_U = 32 * LN_RS


def role_ln1(a):
    a("v_lshl_add_u32 v5, v2, 2, v3")
    a(f"s_mul_i32 s53, s52, {32*1280}")
    a("v_mul_u32_u24 v6, 1280, v5\nv_lshl_add_u32 v6, v4, 4, v6\nv_add_u32 v6, s53, v6")
    a.srd(32, 8, 0, SZ_T)
    X = 16
    for j in range(5):
        a.vmem(f"buffer_load_dwordx4 {q(X+4*j)}, v6, s[32:35], 0 offen offset:{j*256}", ("x", j))
    a(f"v_mul_u32_u24 v7, {LN_RS}, v5\nv_lshl_add_u32 v7, v4, 4, v7")
    a(f"s_mov_b32 s54, {hex(ONES_BF)}")
    a.srd(36, 4, WS_ST, 16384)
    a.srd(40, 4, WS_XT, SZ_TP)
    a("v_bfe_u32 v8, v1, 2, 2\nv_lshl_add_u32 v8, v3, 3, v8")
    a(f"v_mul_u32_u24 v8, {LN_RS}, v8\nv_and_b32 v9, 3, v1\nv_lshl_add_u32 v8, v9, 3, v8")
    a("v_mul_u32_u24 v9, 160, v2\nv_add_u32 v8, v8, v9")
    a("v_mul_u32_u24 v9, 80, v2\nv_add_u32 v9, v9, v4\nv_lshlrev_b32 v9, 6, v9\nv_lshl_add_u32 v9, v3, 4, v9")
    a(f"s_mul_i32 s53, s52, {T_BLK}\ns_add_u32 s55, s53, 4096\ns_lshl_b32 s56, s52, 7")
    a(f"v_lshlrev_b32 v10, 2, v5\nv_and_b32 v11, 1, v4\nv_lshl_add_u32 v10, v11, 7, v10\nv_add_u32 v10, {LN_U}, v10")
    R = 56
    S0, S1, Q0, Q1, NM, RI, TT = 80, 81, 82, 83, 84, 85, 88
    a(f"v_mov_b32 v{S0}, 0\nv_mov_b32 v{S1}, 0\nv_mov_b32 v{Q0}, 0\nv_mov_b32 v{Q1}, 0\nv_cmp_eq_u32 s[58:59], 1, v11")
    epoch_ready(a)
    for j in range(5):
        a.wait_vm(("x", j))
        if j == 0:
            a.stamp(1)
        a(f"ds_write_b128 v7, {q(X+4*j)} offset:{j*256}")
        for i in range(4 * j, 4 * j + 4):
            a(f"v_dot2c_f32_bf16 v{S0 + (i&1)}, s54, v{X+i}")
            a(f"v_dot2c_f32_bf16 v{Q0 + (i&1)}, v{X+i}, v{X+i}")
    a("s_waitcnt lgkmcnt(0)\ns_barrier")
    a.stamp(2)
    for i in range(5):
        a(f"ds_read_b64_tr_b16 {q(R+4*i,2)}, v8 offset:{32*i}")
        a(f"ds_read_b64_tr_b16 {q(R+4*i+2,2)}, v8 offset:{32*i + 4*LN_RS}")
    a(f"v_add_f32 v{S0}, v{S0}, v{S1}\nv_add_f32 v{Q0}, v{Q0}, v{Q1}")
    for i in range(5):
        a(f"s_waitcnt lgkmcnt({8-2*i})")
        a.vmem(f"buffer_store_dwordx4 {q(R+4*i)}, v9, s[40:43], {'s53' if i < 4 else 's55'} offen offset:{1024*(i%4)} {SC}")
    for sh in (8, 4, 2, 1):
        a(f"v_add_f32_dpp v{S0}, v{S0}, v{S0} row_ror:{sh} row_mask:0xf bank_mask:0xf")
        a(f"v_add_f32_dpp v{Q0}, v{Q0}, v{Q0} row_ror:{sh} row_mask:0xf bank_mask:0xf")
        a("s_nop 0")
    ln_finish(a, S0, Q0, TT, NM, RI)
    a(f"v_cndmask_b32 v{NM}, v{NM}, v{RI}, s[58:59]")
    a(f"ds_write_b32 v10, v{NM}")
    a("s_waitcnt lgkmcnt(0)\ns_barrier")
    sk = a.newlabel("L_lnst")
    a(f"s_cmp_lg_u32 s6, 7\ns_cbranch_scc1 {sk}")
    a(f"v_lshlrev_b32 v10, 2, v1\nv_add_u32 v11, {LN_U}, v10\nds_read_b32 v12, v11")
    a("v_lshrrev_b32 v11, 5, v1\nv_mul_u32_u24 v11, 8064, v11\nv_add_u32 v10, v10, v11\ns_waitcnt lgkmcnt(0)")
    a.vmem(f"buffer_store_dword v12, v10, s[36:39], s56 offen {SC}")
    a.label(sk)
    a("s_waitcnt vmcnt(0)\ns_barrier")
    a.stamp(3)
    sk = a.newlabel("L_lnp")
    a(f"s_cmp_lg_u32 s6, 7\ns_cbranch_scc1 {sk}")
    a.publish(F_L, 52, 10)
    a.label(sk)
    sk = a.newlabel("L_lnrp")
    a(f"s_cmp_ge_u32 s6, 5\ns_cbranch_scc1 {sk}")
    a(f"s_mul_i32 s55, s52, 5\ns_add_u32 s55, s55, s6\ns_mul_i32 s56, s6, 12288\ns_add_u32 s56, s56, 49152")
    rp13_issue(a)
    a("s_waitcnt vmcnt(0)")
    rp13_finish(a)
    a("s_waitcnt vmcnt(0)")
    a.publish(F_R, 55, 10)
    a.label(sk)


W13_J = [[0, 1, 2], [4, 5, 3]]


RP_BASE = 2 * LN_U


def rp13_issue(a):
    a("s_mul_i32 s57, s55, 205\ns_lshr_b32 s57, s57, 12")
    a("s_mul_i32 s58, s57, 20\ns_sub_u32 s58, s55, s58")
    a.srd(44, 24, 0, 640 * 3072)
    a.srd(48, 26, 0, 640 * 3072)
    a(f"s_mul_i32 s57, s57, 192\ns_mul_i32 s58, s58, {32*3072}\ns_add_u32 s57, s57, s58")
    for i in range(6):
        a(f"v_add_u32 v10, {64*i}, v1\nv_mul_u32_u24 v11, 43691, v10\nv_lshrrev_b32 v11, 19, v11")
        a(f"v_mul_u32_u24 v12, 12, v11\nv_sub_u32 v12, v10, v12\nv_mul_u32_u24 v11, 3072, v11\nv_lshl_add_u32 v13, v12, 4, v11")
        for mat in range(2):
            a(f"s_add_u32 m0, s56, {mat*6144 + i*1024}\ns_nop 0")
            a(f"buffer_load_dwordx4 v13, s[{44+4*mat}:{47+4*mat}], s57 offen lds")


def rp13_finish(a):
    a("v_lshlrev_b32 v5, 4, v1")
    a("v_bfe_u32 v6, v1, 2, 2\nv_lshl_add_u32 v6, v3, 2, v6\nv_and_b32 v7, 3, v1")
    a("v_mul_u32_u24 v16, 192, v6\nv_lshl_add_u32 v16, v7, 3, v16\nv_add_u32 v16, s56, v16")
    OH, ACC, F = 32, 80, 84
    for t in range(12):
        wn, mat, jj = t // 6, (t % 6) // 3, t % 3
        off = mat * 6144 + 32 * W13_J[wn][jj]
        a(f"ds_read_b64_tr_b16 {q(F+4*t,2)}, v16 offset:{off}")
        a(f"ds_read_b64_tr_b16 {q(F+4*t+2,2)}, v16 offset:{off + 16*192}")
    a.srd(40, 4, WS_W13, SZ_W13)
    a.srd(44, 4, WS_CSP, SZ_CSP)
    a("s_mul_i32 s57, s55, 12288\ns_add_u32 s58, s57, 4096\ns_add_u32 s59, s57, 8192")
    a("s_waitcnt lgkmcnt(0)")
    for t in range(12):
        a(f"buffer_store_dwordx4 {q(F+4*t)}, v5, s[40:43], s{57 + t//4} offen offset:{1024*(t%4)} {SC}")
    a(f"v_mov_b32 v8, {hex(ONES_BF)}")
    a("v_lshlrev_b32 v9, 6, v4\nv_lshl_add_u32 v9, v3, 4, v9\ns_mul_i32 s60, s55, 768")
    for t in range(12):
        a(f"v_cmp_eq_u32 vcc, {t}, v4\ns_nop 1")
        for i in range(4):
            a(f"v_cndmask_b32 v{OH+4*t+i}, 0, v8, vcc")
    a("s_nop 1")
    for t in range(12):
        a(f"v_mfma_f32_16x16x32_bf16 {q(ACC)}, {q(F+4*t)}, {q(OH+4*t)}, {q(ACC) if t else 0}")
    a("s_nop 7\nv_cmp_gt_u32 vcc, 12, v4\ns_and_saveexec_b64 s[82:83], vcc")
    a(f"buffer_store_dwordx4 {q(ACC)}, v9, s[44:47], s60 offen {SC}")
    a(f"s_mov_b64 exec, s[82:83]")


def role_rp2(a):
    a.vm = []
    a("s_mul_i32 s54, s6, 12288")
    a("v_lshlrev_b32 v5, 4, v1")
    a("v_bfe_u32 v6, v1, 2, 2\nv_lshl_add_u32 v6, v3, 2, v6\nv_and_b32 v7, 3, v1")
    a("s_mul_i32 s55, s53, 171\ns_lshr_b32 s55, s55, 12")
    a("s_mul_i32 s56, s55, 24\ns_sub_u32 s56, s53, s56")
    a.srd(32, 28, 0, 1536 * 1280)
    a(f"s_mul_i32 s57, s55, 160\ns_mul_i32 s58, s56, {64*1280}\ns_add_u32 s57, s57, s58\ns_add_u32 s58, s57, {32*1280}")
    for i in range(5):
        a(f"v_add_u32 v8, {64*i}, v1\nv_mul_u32_u24 v9, 52429, v8\nv_lshrrev_b32 v9, 19, v9")
        a(f"v_mul_u32_u24 v16, 10, v9\nv_sub_u32 v16, v8, v16\nv_mul_u32_u24 v9, 1280, v9\nv_lshl_add_u32 v{10+i}, v16, 4, v9")
        for un in range(2):
            a(f"s_add_u32 m0, s54, {un*5120 + i*1024}\ns_nop 0")
            a.vmem(f"buffer_load_dwordx4 v{10+i}, s[32:35], s{57+un} offen lds", "w")
    a.srd(40, 4, WS_W2, SZ_W2)
    a("s_mul_i32 s60, s56, 171\ns_lshr_b32 s60, s60, 9\ns_mul_i32 s60, s60, 3\ns_sub_u32 s60, s56, s60")
    for un in range(2):
        a(f"s_cmp_eq_u32 s60, {2 if un == 0 else 0}\ns_cselect_b32 s61, 640, 0\ns_mul_i32 s62, s61, 3\ns_sub_u32 s62, 2560, s62")
        a(f"v_mul_u32_u24 v16, 160, v6\nv_mul_u32_u24 v8, s61, v3\nv_add3_u32 v16, v16, v8, s54")
        b = 18 + 4 * un
        a(f"v_lshl_add_u32 v{b}, v7, 4, v16\nv_lshl_add_u32 v{b+1}, v7, 3, v16\nv_add_u32 v{b+2}, s62, v{b}\nv_add_u32 v{b+3}, s62, v{b+1}")
    a("s_mul_i32 s57, s53, 10240\ns_add_u32 s58, s57, 4096\ns_add_u32 s59, s57, 8192")
    a.poll(F_L, 64, 26)
    F = 32
    for k in range(10):
        un, t = divmod(k, 5)
        b = 18 + 4 * un + (0 if t < 4 else 1)
        off = un * 5120 + ((t >> 1) * 64 + (t & 1) * 8 if t < 4 else 128)
        a(f"ds_read_b64_tr_b16 {q(F+4*k,2)}, v{b} offset:{off}")
        a(f"ds_read_b64_tr_b16 {q(F+4*k+2,2)}, v{b+2} offset:{off}")
    a("s_waitcnt lgkmcnt(0)")
    for k in range(10):
        a.vmem(f"buffer_store_dwordx4 {q(F+4*k)}, v5, s[40:43], s{57 + k//4} offen offset:{1024*(k%4)} {SC}")


TB_RS = 272
TB_SZ = 57 * TB_RS
CV_A = 64
CV_CS = 4160
CV_U = CV_A + 4 * CV_CS
CV_X = CV_U + 4608
CV_WAVE = CV_X + 4096
KP_BASE = 126976
PART_BASE = 145408
RP_LDS = [101632, 113920]


def kgen(a):
    a.vm = []
    a(f"s_mul_i32 s53, s6, {TB_SZ}")
    a("s_lshr_b32 s54, s6, 2")
    a("s_mul_i32 s55, s52, 384\ns_lshl_b32 s56, s54, 7\ns_add_u32 s55, s55, s56\nv_lshlrev_b32 v5, 1, v1")
    a("s_lshl_b32 s56, s52, 1\nv_mov_b32 v6, 0")
    PR, DT = 8, 92
    PR2 = 96
    a.srd(48, 18, 0, 1280)
    a.vmem(f"buffer_load_ushort v{DT}, v6, s[48:51], s56 offen", "par")
    for i in range(4):
        a.srd(32 + 4 * i, 10 + 2 * i, 0, 640 * 192 * 2)
        a.vmem(f"buffer_load_ushort v{PR+i}, v5, s[{32+4*i}:{35+4*i}], s55 offen", "par")
    for i in range(4):
        a.vmem(f"buffer_load_ushort v{PR2+i}, v5, s[{32+4*i}:{35+4*i}], s55 offen offset:256", "par2")
    a.srd(48, 20, 0, 1280)
    a.vmem("buffer_load_ushort v240, v6, s[48:51], s56 offen", "par2")
    VW, VR, DK = 6, 7, 80
    a(f"v_lshlrev_b32 v{VW}, 2, v1\nv_add_u32 v{VW}, s53, v{VW}")
    a(f"v_mul_u32_u24 v{VR}, {TB_RS}, v4\nv_lshl_add_u32 v{VR}, v3, 4, v{VR}\nv_add_u32 v{VR}, s53, v{VR}")
    for i in range(12):
        a(f"v_mov_b32 v{DK+i}, 0")
    epoch_ready(a)
    a.wait_vm("par")
    a.stamp(1)
    a(f"v_lshlrev_b32 v{DT}, 16, v{DT}\nv_mul_f32 v{DT}, {hex(LOG2E)}, v{DT}\nv_exp_f32 v{DT}, v{DT}\ns_nop 0")
    a.rnd(DT, DT)
    a.label("L_kgen")
    A2, W, Z8, Y, GC, T0, T1, T2, XT = 16, 17, 18, 20, 22, 24, 26, 28, 30
    E = [None] + [32 + 2 * i for i in range(7)]
    G1 = 46
    PK = [48, 49, 50, 51]
    pkc = [0]

    def put(row, re, im):
        r = PK[pkc[0] % 4]
        pkc[0] += 1
        a(f"v_cvt_pk_bf16_f32 v{r}, {re}, {im}")
        a(f"ds_write_b32 v{VW}, v{r} offset:{row*TB_RS}")

    def putp(row, p):
        put(row, f"v{p}", f"v{p+1}")

    a(f"v_lshlrev_b32 v{PR}, 16, v{PR}\nv_mul_f32 v{A2}, {hex(LOG2E)}, v{PR}\nv_exp_f32 v{A2}, v{A2}")
    for i in range(1, 4):
        a(f"v_lshlrev_b32 v{PR+i}, 16, v{PR+i}")
    a.rnd(A2, A2)
    a(f"v_mul_f32 v{W}, v{PR+1}, v{DT}")
    a(f"v_mul_f32 v{A2}, v{A2}, v{DT}")
    a(f"v_mul_f32 v{W}, {hex(INV2PI)}, v{W}")
    a(f"v_mul_f32 v{A2}, {hex(NLOG2E)}, v{A2}")
    a(f"v_rndne_f32 v{T0}, v{W}")
    a(f"v_mul_f32 v{Y}, v{PR+2}, v{DT}\nv_mul_f32 v{Y+1}, v{PR+3}, v{DT}")
    a(f"v_sub_f32 v{W}, v{W}, v{T0}")
    a(f"v_mul_f32 v{Y}, 2.0, v{Y}\nv_mul_f32 v{Y+1}, -2.0, v{Y+1}")

    def base(dst, mult, conj, T):
        m = {1: "1.0", 8: hex(0x41000000), 128: hex(0x43000000)}[mult]
        a(f"v_mul_f32 v{T}, {m}, v{A2}\nv_mul_f32 v{T+1}, {m}, v{W}")
        a(f"v_exp_f32 v{T}, v{T}\nv_cos_f32 v{dst}, v{T+1}\nv_sin_f32 v{dst+1}, v{T+1}\ns_nop 0")
        a(f"v_mul_f32 v{dst}, v{dst}, v{T}")
        a(f"v_mul_f32 v{dst+1}, {'-' if conj else ''}v{dst+1}, v{T}")

    base(E[1], 1, False, T0)
    base(Z8, 8, True, T1)
    base(G1, 128, False, T2)
    put(0, "1.0", "0")
    putp(1, E[1])
    putp(41, Y)
    cmul(a, E[2], E[1], E[1], T0)
    putp(8, G1)
    cmul(a, E[3], E[2], E[1], T0)
    cmul(a, E[4], E[2], E[2], T1)
    putp(2, E[2])
    cmul(a, E[5], E[4], E[1], T0)
    cmul(a, E[6], E[4], E[2], T1)
    cmul(a, E[7], E[4], E[3], T2)
    for e in range(3, 8):
        putp(e, E[e])
    ops = []
    for e in range(1, 8):
        ops.append(("x", 8 + e, G1, E[e]))
    for g in range(2, 17):
        ops.append(("g", g))
        if g in (2, 3):
            for i, e in enumerate((2, 4, 6)):
                ops.append(("x", 16 + (g - 2) * 4 + 1 + i, GC, E[e]))
        elif g < 8:
            ops.append(("x", 24 + (g - 4) * 2 + 1, GC, E[4]))
    yb = 1
    for k, op in enumerate(ops):
        if op[0] == "x":
            x = XT if (k & 1) else T2
            cmul(a, x, op[2], op[3], x)
            putp(op[1], x)
        else:
            g = op[1]
            cmul(a, GC, G1 if g == 2 else GC, G1, T1)
            row = 16 + (g - 2) * 4 if g < 4 else (24 + (g - 4) * 2 if g < 8 else 32 + (g - 8))
            putp(row, GC)
        if (k & 1) and yb < 16:
            cmul(a, Y, Y, Z8, T0)
            putp(41 + yb, Y)
            yb += 1
    assert yb == 16
    FR = 16
    a("s_waitcnt lgkmcnt(0)")
    for st in range(4):
        f = FR + 16 * st
        if st == 3:
            a("s_waitcnt lgkmcnt(8)")
        a(f"ds_read_b128 {q(f)}, v{VR} offset:{41*TB_RS + 64*st}")
        for t in range(3):
            a(f"ds_read_b128 {q(f+4+4*t)}, v{VR} offset:{16*t*TB_RS + 64*st}")
    a("s_waitcnt vmcnt(0)")
    for i in range(4):
        a(f"v_mov_b32 v{PR+i}, v{PR2+i}")
    for st in range(4):
        f = FR + 16 * st
        a(f"s_waitcnt lgkmcnt({12 - 4*st})")
        for t in range(3):
            a(f"v_mfma_f32_16x16x32_bf16 {q(DK+4*t)}, {q(f+4+4*t)}, {q(f)}, {q(DK+4*t)}")
    a("s_add_u32 s54, s54, 1\ns_cmp_lt_u32 s54, 2\ns_cbranch_scc1 L_kgen")
    a.vm = []


def conv_main(a):
    DK = 80
    a(f"s_mul_i32 s53, s7, {CV_WAVE}")
    a(f"s_mul_i32 s54, s7, 4224\ns_add_u32 s54, s54, {KP_BASE}")
    a(f"s_mul_i32 s55, s7, 3072\ns_add_u32 s55, s55, {PART_BASE}")
    a("v_lshlrev_b32 v7, 4, v1\nv_add_u32 v5, s55, v7")
    a("v_lshlrev_b32 v18, 4, v4\nv_add_u32 v18, s54, v18")
    a("v_lshrrev_b32 v16, 1, v3\nv_and_b32 v17, 1, v3")
    a("v_lshlrev_b32 v19, 8, v16\nv_lshl_add_u32 v19, v17, 3, v19\nv_add_u32 v19, v19, v18")
    a("v_cmp_gt_u32 vcc, 2, v3")
    a("v_lshlrev_b32 v20, 8, v3\nv_add_u32 v20, 512, v20\nv_lshlrev_b32 v21, 9, v3")
    a("v_cndmask_b32 v20, v21, v20, vcc\nv_add_u32 v20, v20, v18")
    for i in range(1, 4):
        a(f"v_mov_b32 v22, {4*i}\nv_mov_b32 v23, {256*(i>>1) + 8*(i&1)}")
        a(f"v_cndmask_b32 v22, v23, v22, vcc\nv_add_u32 v{23+i}, v20, v22")
    a("v_lshlrev_b32 v27, 10, v3\nv_lshl_add_u32 v27, v4, 4, v27\nv_add_u32 v27, 2048, v27\ns_movk_i32 s56, 4112")
    for i in range(4):
        a(f"v_add_u32 v{28+i}, {256*i}, v27\nv_min_u32 v{28+i}, s56, v{28+i}\nv_add_u32 v{28+i}, s54, v{28+i}")
    a("v_sub_u32 v16, 4094, v7\nv_cvt_f32_u32 v16, v16")
    a("v_cmp_eq_u32 s[58:59], 63, v1")
    a("v_add_u32 v17, s53, v7")
    a.stamp(2)
    a("s_barrier")
    for t in range(3):
        a(f"ds_read_b128 {q(40+4*t)}, v5 offset:{1024*t}")
    a("s_waitcnt lgkmcnt(0)")
    for i in range(6):
        a(f"v_pk_add_f32 {q(DK+2*i,2)}, {q(DK+2*i,2)}, {q(40+2*i,2)}")
    for i in range(6):
        a(f"v_cvt_pk_bf16_f32 v{32+i}, v{DK+2*i}, v{DK+2*i+1}")
    a("ds_write_b64 v19, v[32:33]")
    a("ds_write_b16 v20, v34\nds_write_b16_d16_hi v24, v34\nds_write_b16 v25, v35\nds_write_b16_d16_hi v26, v35")
    a("ds_write_b16 v28, v36\nds_write_b16_d16_hi v29, v36\nds_write_b16 v30, v37\nds_write_b16_d16_hi v31, v37")
    a("v_sub_u32 v38, 4080, v7\nv_add_u32 v38, s54, v38")
    a("v_and_b32 v39, 1, v1\nv_cmp_eq_u32 s[60:61], 0, v39")
    a("v_cndmask_b32 v39, 0, 8, s[58:59]\nv_sub_u32 v40, v38, v39\nv_lshrrev_b32 v39, 1, v39\nv_sub_u32 v41, v38, v39")
    a("v_subrev_u32 v38, 2056, v38\nv_subrev_u32 v40, 2056, v40\nv_subrev_u32 v41, 2056, v41")
    AD = 20
    for m in range(0, 12, 2):
        f0 = 64 + m
        a(f"v_add_f32 v{f0}, {hex(f32bits(-3072.0 - 2.0*m))}, v16\nv_add_f32 v{f0+1}, {hex(f32bits(-3072.0 - 2.0*(m+1)))}, v16")
        a(f"v_cvt_pk_bf16_f32 v{f0}, v{f0}, v{f0+1}")
        a.unpack(f0, f0)
        a(f"v_cvt_u32_f32 v{AD+m}, v{f0}\nv_cvt_u32_f32 v{AD+m+1}, v{f0+1}")
        a(f"v_add_u32 v{AD+m}, s54, v{AD+m}\nv_add_u32 v{AD+m+1}, s54, v{AD+m+1}")
    a("s_waitcnt lgkmcnt(0)")
    G = 96
    for r in range(2):
        o = 2056 - 1024 * r
        a(f"ds_read_u16 v{G+4*r}, v38 offset:{o+16}\nds_read_u16 v{G+4*r+1}, v38 offset:{o}")
        a(f"ds_read_u16 v{G+4*r+2}, v{40 if r else 38} offset:{o}")
    o = 2056 - 2048
    a(f"ds_read_u16 v{G+8}, v38 offset:{o+16}\nds_read_u16 v{G+9}, v38 offset:{o+8}\nds_read_u16 v{G+10}, v38 offset:{o}")
    a(f"ds_read_u16 v{G+11}, v41 offset:{o}\nds_read_u16 v{G+12}, v38 offset:{o-8}")
    D = 32
    for m in range(6):
        a(f"ds_read_u16 v{D+m}, v{AD+2*m}")
        if m < 5:
            a(f"ds_read_u16 v{52+m}, v{AD+2*m+1}")

    def wr(r, c0, c1, c2, c3):
        for k, c in enumerate((c0, c1, c2, c3)):
            a(f"ds_write_b128 v17, {q(c)} offset:{CV_A + k*CV_CS + 1024*r}")

    a("s_waitcnt lgkmcnt(15)\ns_waitcnt lgkmcnt(11)")
    for r in range(2):
        A, B, B2 = G + 4 * r, G + 4 * r + 1, G + 4 * r + 2
        Q = 112 + 16 * r
        a(f"v_cndmask_b32 v{G+4*r+3}, v{B}, v{A}, s[60:61]")
        W3 = G + 4 * r + 3
        a(f"v_lshl_or_b32 v{Q}, v{A}, 16, v{A}\nv_lshl_or_b32 v{Q+1}, v{W3}, 16, v{A}\nv_lshl_or_b32 v{Q+2}, v{B}, 16, v{B}")
        a(f"v_mov_b32 v{Q+3}, v{Q+2}\nv_mov_b32 v{Q+4}, v{Q+1}\nv_mov_b32 v{Q+5}, v{Q+2}\nv_mov_b32 v{Q+6}, v{Q+2}\nv_mov_b32 v{Q+7}, v{Q+2}")
        a(f"v_mov_b32 v{Q+8}, v{Q}\nv_lshl_or_b32 v{Q+9}, v{B}, 16, v{W3}\nv_mov_b32 v{Q+10}, v{Q+2}\nv_mov_b32 v{Q+11}, v{Q+2}")
        a(f"v_mov_b32 v{Q+12}, v{Q+9}\nv_mov_b32 v{Q+13}, v{Q+2}\nv_mov_b32 v{Q+14}, v{Q+2}\nv_lshl_or_b32 v{Q+15}, v{B2}, 16, v{B}")
        wr(r, Q + 12, Q + 4, Q + 8, Q)
    P_, Q_, R_, R2, S_ = G + 8, G + 9, G + 10, G + 11, G + 12
    Q = 144
    a(f"v_lshl_or_b32 v{Q}, v{P_}, 16, v{P_}\nv_lshl_or_b32 v{Q+1}, v{Q_}, 16, v{Q_}\nv_lshl_or_b32 v{Q+2}, v{R_}, 16, v{Q_}\nv_lshl_or_b32 v{Q+3}, v{R_}, 16, v{R_}")
    a(f"v_mov_b32 v{Q+4}, v{Q+1}\nv_mov_b32 v{Q+5}, v{Q+2}\nv_mov_b32 v{Q+6}, v{Q+3}\nv_lshl_or_b32 v{Q+7}, v{R2}, 16, v{R_}")
    a(f"v_lshl_or_b32 v{Q+8}, v{Q_}, 16, v{P_}\nv_mov_b32 v{Q+9}, v{Q+1}\nv_mov_b32 v{Q+10}, v{Q+3}\nv_mov_b32 v{Q+11}, v{Q+3}")
    a(f"v_mov_b32 v{Q+12}, v{Q+1}\nv_mov_b32 v{Q+13}, v{Q+3}\nv_mov_b32 v{Q+14}, v{Q+3}\nv_lshl_or_b32 v{Q+15}, v{S_}, 16, v{R2}")
    wr(2, Q + 12, Q + 4, Q + 8, Q)
    a("s_waitcnt lgkmcnt(12)")
    for m in range(5):
        a(f"v_lshl_or_b32 v{D+m}, v{52+m}, 16, v{D+m}")
    a(f"v_cndmask_b32 v{D+4}, v{D+4}, 0, s[58:59]\nv_cndmask_b32 v{D+5}, v{D+5}, 0, s[58:59]")
    C1, C2, C0 = 40, 44, 48
    for m in range(4):
        a(f"v_mov_b32 v{C1+m}, v{D+1+m}")
        a(f"v_alignbit_b32 v{C2+m}, v{D+m+1}, v{D+m}, 16")
        a(f"v_alignbit_b32 v{C0+m}, v{D+m+2}, v{D+m+1}, 16")
    wr(3, C0, C1, C2, D)
    ACC, AS, FS, VA, VF = 16, [48, 112], [80, 144], 10, 11
    T1, XF, DSV = 176, 208, 240
    a(f"v_and_b32 v5, 3, v4\nv_mul_u32_u24 v5, {CV_CS}, v5\nv_lshrrev_b32 v6, 2, v4\nv_lshlrev_b32 v6, 3, v6\nv_sub_u32 v5, v5, v6")
    a(f"v_lshlrev_b32 v6, 4, v3\nv_sub_u32 v5, v5, v6\nv_add_u32 v5, {CV_A + 4104 - 3584 - 448}, v5\nv_add_u32 v{VA}, s53, v5")
    a(f"v_lshlrev_b32 v5, 5, v4\nv_sub_u32 v5, v5, v6\nv_add_u32 v5, {CV_U + 496 - 448}, v5\nv_add_u32 v{VF}, s53, v5")
    a("v_lshlrev_b32 v8, 5, v4\nv_lshl_add_u32 v8, v3, 3, v8\nv_add_u32 v9, s53, v8")
    a("v_lshrrev_b32 v6, 3, v4\ns_mov_b32 s56, 163840\nv_mul_lo_u32 v6, v6, s56")
    a("v_and_b32 v7, 7, v4\nv_lshl_add_u32 v6, v7, 5, v6\nv_lshl_add_u32 v6, v3, 3, v6")
    a(f"v_lshlrev_b32 v{DSV}, 16, v{DSV}")
    a.srd(36, 4, WS_HT, SZ_T)
    a("s_lshl_b32 s55, s52, 8")
    a("s_waitcnt lgkmcnt(0)")
    a.stamp(3)
    a("s_barrier")
    a.stamp(4)
    if EXP & 512:
        a("s_setprio 2")

    def reads(s, c):
        o = []
        ex = 64 * (7 - c)
        for k in range(8):
            o.append(f"ds_read_b128 {q(FS[s]+4*k)}, v{VF} offset:{512*k + ex}")
            o.append(f"ds_read_b64 {q(AS[s]+4*k,2)}, v{VA} offset:{512*(7-k) + ex}")
            o.append(f"ds_read_b64 {q(AS[s]+4*k+2,2)}, v{VA} offset:{512*(7-k) + 8 + ex}")
        return o

    rd0 = reads(0, 0)
    for i, r in enumerate(rd0):
        a(r)
        if i == 11:
            a("s_waitcnt lgkmcnt(6)")
    fu, fx = [], []
    for nb in range(8):
        for hh in range(2):
            p = T1 + 4 * nb + 2 * hh
            src = T1 + 4 * nb + 2 + hh
            if hh == 0:
                fu += [f"v_lshlrev_b32 v{p}, 16, v{src}", f"v_and_b32 v{p+1}, 0xffff0000, v{src}"]
            else:
                fu += [f"v_lshlrev_b32 v{p}, 16, v{src}", f"v_and_b32 v{p+1}, 0xffff0000, v{src}"]
            fu += [f"v_pk_mul_f32 {q(p,2)}, {q(p,2)}, {q(DSV,2)} op_sel_hi:[1,0]",
                   f"v_cvt_pk_bf16_f32 v{p}, v{p}, v{p+1}",
                   f"v_and_b32 v{p+1}, 0xffff0000, v{p}", f"v_lshlrev_b32 v{p}, 16, v{p}"]
            p = XF + 4 * nb + 2 * hh
            src = XF + 4 * nb + 2 + hh
            fx += [f"v_lshlrev_b32 v{p}, 16, v{src}", f"v_and_b32 v{p+1}, 0xffff0000, v{src}"]
    fill = {c: fu[16 * (c - 1):16 * c] for c in range(1, 7)}
    fill[0] = [f"ds_read_b64 {q(T1+4*nb+2,2)}, v9 offset:{CV_U + 480 + 512*nb}" for nb in range(8)]
    fill[0] += [f"ds_read_b64 {q(XF+4*nb+2,2)}, v9 offset:{CV_X + 512*nb}" for nb in range(8)]
    fill[7] = fx
    for c in range(8):
        s = c & 1
        a("s_waitcnt lgkmcnt(0)")
        rd = reads(1 - s, c + 1) if c < 7 else []
        fl = list(fill[c])
        i = 0
        for aa in range(8):
            for m in range(8 - aa):
                cc = q(ACC + 4 * (aa + m)) if (c or aa) else "0"
                a(f"v_mfma_f32_16x16x32_bf16 {q(ACC+4*(aa+m))}, {q(AS[s]+4*aa)}, {q(FS[s]+4*m)}, {cc}")
                if i < len(rd) and rd[i]:
                    a(rd[i])
                    if i in (11, 19):
                        a("s_waitcnt lgkmcnt(8)")
                if (i >= 20 or c == 7) and fl:
                    a(fl.pop(0))
                i += 1
        assert not fl
    a.stamp(5)
    a("s_nop 4")
    for nb in range(8):
        y = ACC + 4 * nb
        o = 48 + 2 * nb
        for hh in range(2):
            t = y + 2 * hh
            a(f"v_cvt_pk_bf16_f32 v{t}, v{t}, v{t+1}")
            a.unpack(t, t)
            a(f"v_pk_add_f32 {q(t,2)}, {q(t,2)}, {q(T1+4*nb+2*hh,2)}")
            a(f"v_cvt_pk_bf16_f32 v{t}, v{t}, v{t+1}")
            a.unpack(t, t)
            a(f"v_pk_add_f32 {q(t,2)}, {q(t,2)}, {q(XF+4*nb+2*hh,2)}")
            a(f"v_cvt_pk_bf16_f32 v{o+hh}, v{t}, v{t+1}")
        a.vmem(f"buffer_store_dwordx2 {q(o,2)}, v6, s[36:39], s55 offen {SC}")
        a(f"s_add_u32 s55, s55, {2*163840}")
    a.stamp(6)
    a("s_waitcnt vmcnt(0)")
    last_of4_publish(a, LDS_CNT, F_C, 2, 120)


def conv_partner(a):
    DK = 80
    a(f"s_mul_i32 s53, s7, {CV_WAVE}")
    a(f"s_mul_i32 s55, s7, 3072\ns_add_u32 s55, s55, {PART_BASE}")
    a("v_lshlrev_b32 v7, 4, v1\nv_add_u32 v5, s55, v7")
    a("v_mov_b32 v20, 0\nv_mov_b32 v21, 0\nv_mov_b32 v22, 0\nv_mov_b32 v23, 0")
    a("v_add_u32 v9, s53, v7")
    a(f"v_lshrrev_b32 v16, 1, v1\nv_mul_u32_u24 v16, {CV_CS}, v16\nv_and_b32 v17, 1, v1\nv_lshl_add_u32 v16, v17, 4, v16\nv_add_u32 v16, s53, v16")
    for t in range(3):
        a(f"ds_write_b128 v5, {q(DK+4*t)} offset:{1024*t}")
    a.stamp(2)
    a.srd(32, 4, WS_XT, SZ_TP)
    a.srd(36, 4, WS_ST, 16384)
    a(f"s_lshl_b32 s54, s2, 8\ns_mul_i32 s61, s7, {16*T_BLK}\ns_add_u32 s54, s54, s61\ns_lshl_b32 s61, s7, 11\ns_add_u32 s62, s61, 8192")
    a(f"v_lshrrev_b32 v8, 2, v1\nv_mul_u32_u24 v8, {T_BLK}, v8\nv_and_b32 v14, 3, v1\nv_lshl_add_u32 v8, v14, 4, v8")
    a("v_lshlrev_b32 v14, 5, v1\ns_lshl_b32 s63, s7, 10\nv_add_u32 v15, s63, v7")
    a("s_waitcnt lgkmcnt(0)\ns_barrier")
    a("s_mov_b64 exec, 0x3fffffff")
    a(f"ds_write_b128 v9, v[20:23] offset:{CV_U}")
    a("s_mov_b64 exec, 0xff")
    a(f"ds_write_b128 v16, v[20:23] offset:{CV_A + 4096}")
    a("s_mov_b64 exec, -1")
    a.poll(F_L, 64, 24, fast=True)
    a.stamp(3)
    XR, NM, RI, U = 32, 48, 56, 64
    for k in range(2):
        a.vmem(f"buffer_load_dwordx4 {q(NM+4*k)}, v14, s[36:39], s61 offen offset:{16*k} {SC}", "st")
        a.vmem(f"buffer_load_dwordx4 {q(RI+4*k)}, v14, s[36:39], s62 offen offset:{16*k} {SC}", "st")
    for ch in range(4):
        a.vmem(f"buffer_load_dwordx4 {q(XR+4*ch)}, v8, s[32:35], s54 offen offset:{64*ch} {SC}", ("x", ch))
    for ch in range(4):
        a.wait_vm(("x", ch))
        for i in range(4):
            t = 80 + 2 * i
            a.unpack(t, XR + 4 * ch + i)
            a(f"v_pk_add_f32 {q(t,2)}, {q(t,2)}, {q(NM+2*i,2)}")
            a(f"v_cvt_pk_bf16_f32 v{t}, v{t}, v{t+1}")
            a.unpack(t, t)
            a(f"v_pk_mul_f32 {q(t,2)}, {q(t,2)}, {q(RI+2*i,2)}")
            a(f"v_cvt_pk_bf16_f32 v{U+4*ch+i}, v{t}, v{t+1}")
        if ch == 2:
            a(f"v_add_u32 v15, {2*CV_WAVE}, v15")
        a(f"ds_write_b128 v15, {q(U+4*ch)} offset:{CV_U + 480 + CV_WAVE*(ch&1)}")
        a(f"ds_write_b128 v15, {q(XR+4*ch)} offset:{CV_X + CV_WAVE*(ch&1)}")
    a("s_waitcnt lgkmcnt(0)")
    a.stamp(4)
    a("s_barrier")


G1_H = 5120
G1_HN = 5
G1_W = 87040
G1_WN = 3
G1_CONST = 0
G1_CS = 2048
G1_SP = 3072
G2_H, G2_HN, G2_W, G2_WN = G1_H, 3, 61440, 5
LDS_TOTAL = 163840


def tile_ids(a):
    a("s_and_b32 s12, s2, 7\ns_lshr_b32 s13, s2, 3\ns_and_b32 s14, s13, 7\ns_lshr_b32 s15, s13, 3")
    a("s_and_b32 s8, s12, 1\ns_lshl_b32 s8, s8, 3\ns_add_u32 s8, s8, s14")
    a("s_lshr_b32 s9, s12, 1\ns_lshl_b32 s10, s9, 3\ns_lshl_b32 s9, s9, 2\ns_add_u32 s9, s9, s15")
    a("s_add_u32 s10, s10, s14")
    a("s_and_b32 s11, s12, 1\ns_lshl_b32 s11, s11, 2\ns_add_u32 s11, s11, s15")
    a("v_bfe_u32 v5, v1, 2, 2")
    a("v_lshl_add_u32 v6, v3, 2, v5\nv_lshlrev_b32 v6, 8, v6")
    a("v_and_b32 v7, 3, v1\nv_lshl_add_u32 v6, v7, 3, v6")
    a("v_and_b32 v7, 1, v3\nv_lshl_add_u32 v5, v7, 2, v5")


def gemm_mfma_waves(a, done):
    tile_ids(a)
    if EXP & 16:
        sk = a.newlabel("L_nowarm")
        a(f"s_cmp_lt_u32 s2, 160\ns_cbranch_scc1 {sk}")
        a("s_sub_u32 s16, s13, 20\ns_lshl_b32 s16, s16, 2\ns_add_u32 s16, s16, s7\ns_mul_i32 s16, s16, 20480")
        a("v_lshlrev_b32 v8, 4, v1")
        for which in range(2):
            if which == 0:
                a(f"s_lshr_b32 s17, s12, 1\ns_mul_i32 s18, s17, {80*FS_}\ns_mul_i32 s17, s17, 983040")
                a.srd(32, 4, WS_W13, SZ_W13)
                a.poll(F_R, 80, 120, "s18")
            else:
                a("s_and_b32 s17, s12, 1\ns_mul_i32 s17, s17, 983040")
                a.srd(32, 4, WS_W2, SZ_W2)
                a.poll(F_R2, 32, 120)
            a("s_add_u32 s17, s17, s16")
            for i in range(20):
                a(f"buffer_load_dwordx4 {q(24+4*i)}, v8, s[32:35], s17 offen offset:{1024*(i%4)}")
                if i % 4 == 3:
                    a("s_add_u32 s17, s17, 4096")
        a("s_waitcnt vmcnt(0)")
        a.label(sk)
    a("s_barrier")
    if EXP & 1024:
        a("s_setprio 2")
    elif EXP & 512:
        a("s_setprio 0")
    a("s_and_b32 s16, s7, 1\ns_lshr_b32 s17, s7, 1")
    a("s_lshl_b32 s18, s16, 2\nv_xor_b32 v5, s18, v5")
    for nt in range(4):
        a(f"v_xor_b32 v7, {nt}, v5\nv_lshl_add_u32 v{12+nt}, v7, 5, v6")
    a("v_lshlrev_b32 v16, 4, v1\ns_mul_i32 s18, s17, 6144\nv_add_u32 v16, s18, v16")
    ACC, HS, AD = 24, [120, 160], 17
    for i in range(96):
        a(f"v_mov_b32 v{ACC+i}, 0")

    def reads(s, half):
        o = []
        for nt in range(4):
            r = HS[s] + 4 * nt
            o.append(f"ds_read_b64_tr_b16 {q(r,2)}, v{AD+nt} offset:{8192*half}")
            o.append(f"ds_read_b64_tr_b16 {q(r+2,2)}, v{AD+nt} offset:{8192*half + 4096}")
        for t in range(6):
            o.append(f"ds_read_b128 {q(HS[s]+16+4*t)}, v{AD+4} offset:{12288*half + 1024*t}")
        return o

    def setad(hs, ws):
        return [f"v_add_u32 v{AD+i}, {hs}, v{12+i}" for i in range(4)] + [f"v_add_u32 v{AD+4}, {ws}, v16"]

    for x in setad(G1_H, G1_W):
        a(x)
    a(f"s_mov_b32 s19, {G1_H}\ns_mov_b32 s20, {G1_W}\ns_mov_b32 s21, 0")
    a.srd(32, 4, WS_HM, SZ_HM)
    a.stamp(7)
    sk = a.newlabel("L_nopoll")
    a(f"s_cmp_lg_u32 s6, 0\ns_cbranch_scc1 {sk}")
    a.poll(F_R2, 32, 120)
    a.poll(F_C, 160, 120, fast=True)
    a(f"s_cmp_lg_u32 s2, 0\ns_cbranch_scc1 {sk}")
    a("v_mov_b32 v120, s3\nv_mov_b32 v121, 0\ns_mov_b64 exec, 1")
    a("buffer_store_dword v120, v121, s[92:95], 0 offen\ns_mov_b64 exec, -1")
    a.label(sk)
    a("s_barrier")
    a.stamp(8)
    a("s_waitcnt vmcnt(0)\ns_barrier")
    a.stamp(9)
    for x in reads(0, 0):
        a(x)
    a.label("L_g1")
    for s in range(2):
        if s == 0:
            a(f"s_add_u32 s19, s19, 16384\ns_cmp_eq_u32 s19, {G1_H + G1_HN*16384}\ns_cselect_b32 s19, {G1_H}, s19")
            a(f"s_add_u32 s20, s20, 24576\ns_cmp_eq_u32 s20, {G1_W + G1_WN*24576}\ns_cselect_b32 s20, {G1_W}, s20")
            a("s_waitcnt lgkmcnt(0)")
            rest = reads(1, 1) + setad("s19", "s20")
        else:
            a("s_waitcnt lgkmcnt(0)\ns_barrier")
            rest = reads(0, 0)
        i = 0
        for t in range(6):
            for nt in range(4):
                ac = ACC + 4 * (t * 4 + nt)
                a(f"v_mfma_f32_16x16x32_bf16 {q(ac)}, {q(HS[s]+16+4*t)}, {q(HS[s]+4*nt)}, {q(ac)}")
                if i < len(rest):
                    a(rest[i])
                i += 1
    a("s_add_u32 s21, s21, 1\ns_cmp_lt_u32 s21, 10\ns_cbranch_scc1 L_g1")
    a.stamp(10)
    a("s_lshl_b32 s18, s16, 10\nv_lshlrev_b32 v5, 4, v4\nv_add_u32 v5, s18, v5")
    a("s_mul_i32 s18, s17, 384\nv_lshlrev_b32 v6, 4, v3\nv_add_u32 v6, s18, v6")
    a("s_lshl_b32 s22, s8, 1\ns_add_u32 s22, s22, s16\ns_mul_i32 s22, s22, 48")
    a("s_mul_i32 s23, s9, 3\ns_add_u32 s22, s22, s23")
    a("s_lshl_b32 s23, s17, 1\ns_add_u32 s23, s23, s22\ns_lshl_b32 s23, s23, 12")
    a("s_add_u32 s22, s22, 1\ns_lshl_b32 s22, s22, 12\ns_lshl_b32 s18, s17, 9\ns_add_u32 s22, s22, s18")
    a("v_and_b32 v7, 1, v3\nv_lshlrev_b32 v7, 10, v7\nv_lshrrev_b32 v8, 1, v3\nv_lshl_add_u32 v7, v8, 8, v7\nv_lshl_add_u32 v7, v4, 4, v7")
    a("s_waitcnt lgkmcnt(0)\ns_barrier")
    KC, CSR = 184, 160
    for nt in range(4):
        a(f"ds_read_b128 {q(KC+4*nt)}, v5 offset:{G1_CONST + 256*nt}")
    for t in range(6):
        a(f"ds_read_b128 {q(CSR+4*t)}, v6 offset:{G1_CS + 64*t}")
    a("v_lshlrev_b32 v5, 4, v1")
    a("s_waitcnt lgkmcnt(0)")
    a.stamp(11)
    T = 120
    for nt in range(4):
        O = 144 + 4 * (nt & 1)
        k = KC + 4 * nt
        for jj in range(3):
            g = ACC + 4 * (jj * 4 + nt)
            u = ACC + 4 * ((3 + jj) * 4 + nt)
            for hh in range(2):
                g2, u2 = g + 2 * hh, u + 2 * hh
                a(f"v_pk_fma_f32 {q(g2,2)}, {q(CSR+4*jj+2*hh,2)}, {q(k,2)}, {q(g2,2)} op_sel_hi:[1,0,1]")
                a(f"v_pk_fma_f32 {q(u2,2)}, {q(CSR+4*(3+jj)+2*hh,2)}, {q(k,2)}, {q(u2,2)} op_sel_hi:[1,0,1]")
            for hh in range(2):
                a(f"v_pk_mul_f32 {q(T+2*hh,2)}, {q(g+2*hh,2)}, {q(k,2)} op_sel:[0,1] op_sel_hi:[1,1]")
            for i in range(4):
                a(f"v_exp_f32 v{T+i}, v{T+i}")
            for hh in range(2):
                a(f"v_pk_mul_f32 {q(g+2*hh,2)}, {q(g+2*hh,2)}, {q(u+2*hh,2)}")
            for hh in range(2):
                a(f"v_pk_fma_f32 {q(T+2*hh,2)}, {q(T+2*hh,2)}, {q(k+2,2)}, {q(k+2,2)} op_sel_hi:[1,0,0]")
            for i in range(4):
                a(f"v_rcp_f32 v{T+i}, v{T+i}")
            a("s_nop 0")
            for hh in range(2):
                a(f"v_pk_mul_f32 {q(g+2*hh,2)}, {q(g+2*hh,2)}, {q(T+2*hh,2)}")
            for hh in range(2):
                d = O + 2 * jj + hh if jj < 2 else 152 + 4 * (nt >> 1) + 2 * (nt & 1) + hh
                a(f"v_cvt_pk_bf16_f32 v{d}, v{g+2*hh}, v{g+2*hh+1}")
            if jj == 1:
                a(f"buffer_store_dwordx4 {q(O)}, v5, s[32:35], s23 offen offset:{1024*nt} {SC}")
        if nt & 1:
            S = 152 + 4 * (nt >> 1)
            a(f"s_nop 1\nv_permlane16_swap_b32 v{S}, v{S+2}\nv_permlane16_swap_b32 v{S+1}, v{S+3}")
            a(f"buffer_store_dwordx4 {q(S)}, v7, s[32:35], s22 offen offset:{1024*(nt-1)} {SC}")
    a.stamp(12)
    a.vm = []
    ACC, FS, RES, VW, VH = 16, [56, 84], 112, 132, 134
    a("s_lshl_b32 s22, s16, 1\ns_add_u32 s22, s22, s17")
    a("s_lshr_b32 s18, s10, 1\ns_mul_i32 s18, s18, 163840\ns_mul_i32 s19, s11, 20480\ns_add_u32 s18, s18, s19")
    a("s_and_b32 s19, s10, 1\ns_lshl_b32 s19, s19, 7\ns_add_u32 s18, s18, s19\ns_lshl_b32 s19, s22, 5\ns_add_u32 s18, s18, s19")
    a("v_lshlrev_b32 v10, 1, v4\nv_lshl_add_u32 v11, v3, 10, v10\nv_lshl_add_u32 v10, v3, 11, v10")
    a("s_add_u32 s19, s18, 8192\ns_add_u32 s20, s18, 16384")
    a.srd(36, 4, WS_HT, SZ_T)
    a.srd(40, 30, 0, SZ_T)
    a("s_lshl_b32 s21, s8, 4\ns_add_u32 s21, s21, s9")
    a("s_waitcnt vmcnt(0)")
    last_of4_publish(a, LDS_CNT2, F_G, 21, 140)
    a.stamp(13)
    sk = a.newlabel("L_nopub")
    a(f"s_cmp_lg_u32 s6, 0\ns_cbranch_scc1 {sk}")
    a(f"s_lshr_b32 s21, s10, 1\ns_mul_i32 s21, s21, {16*FS_}")
    a.poll(F_G, 16, 140, "s21", fast=True)
    a.label(sk)
    a("s_barrier")
    if EXP & 4:
        a(f"s_mul_i32 s21, s10, {48*4096}\ns_lshl_b32 s23, s15, 2\ns_add_u32 s23, s23, s7\ns_mul_i32 s23, s23, 12288\ns_add_u32 s21, s21, s23")
        for i in range(12):
            a.vmem(f"buffer_load_dwordx4 {q(144+4*i)}, v5, s[32:35], s21 offen offset:{1024*(i%4)} {SC}", "warm")
            if i % 4 == 3:
                a("s_add_u32 s21, s21, 4096")
    for p in range(2):
        for e in range(8):
            a.vmem(f"buffer_load_ushort v{RES+8*p+e}, v10, s[36:39], s{18+p} offen offset:{256*e} {SC}", "res")
    for e in range(4):
        a.vmem(f"buffer_load_ushort v{RES+16+e}, v11, s[36:39], s20 offen offset:{256*e} {SC}", "res")
    for i in range(40):
        a(f"v_mov_b32 v{ACC+i}, 0")
    a(f"s_lshl_b32 s19, s17, 12\ns_lshl_b32 s21, s22, 10\ns_add_u32 s19, s19, s21\nv_add_u32 v{VH}, s19, v5")
    a(f"v_xor_b32 v{VH+1}, 1024, v{VH}\nv_add_u32 v{VH}, {G2_H}, v{VH}\nv_add_u32 v{VH+1}, {G2_H}, v{VH+1}")
    a(f"s_mul_i32 s19, s17, 5120\nv_add_u32 v{VW}, s19, v5")
    a(f"v_mov_b32 v{VH+2}, v{VH}\nv_mov_b32 v{VH+3}, v{VH+1}\nv_add_u32 v{VW+1}, {G2_W + 3*20480}, v{VW}")
    a(f"s_mov_b32 s23, 0\ns_mov_b32 s24, {G2_W + 3*20480}")

    def reads2(kk, s):
        o = [f"ds_read_b128 {q(FS[s]+20+4*j)}, v{VH+2+j} offset:{kk*8192}" for j in range(2)]
        o += [f"ds_read_b128 {q(FS[s]+4*t)}, v{VW+1} offset:{kk*10240 + 1024*t}" for t in range(5)]
        return o

    a("s_lshl_b32 s18, s10, 6\ns_lshl_b32 s19, s22, 4\ns_add_u32 s18, s18, s19\ns_mul_i32 s18, s18, 1280\ns_mul_i32 s19, s11, 160\ns_add_u32 s18, s18, s19")
    a("v_mul_u32_u24 v10, 1280, v4\nv_lshl_add_u32 v11, v3, 3, v10\nv_lshl_add_u32 v10, v3, 4, v10")
    a(f"s_mul_i32 s19, s7, 5120\ns_add_u32 s19, s19, {G2_W + 2*20480}\nv_add_u32 v6, s19, v5")
    a(f"s_xor_b32 s19, s7, 2\ns_mul_i32 s19, s19, 5120\ns_add_u32 s19, s19, {G2_W + 2*20480}\nv_add_u32 v7, s19, v5")
    a("s_mov_b32 s21, 0")
    a("s_barrier")
    a.stamp(14)
    for x in reads2(0, 0):
        a(x)
    a.label("L_g2")
    for s in range(2):
        if s == 0:
            a(f"s_add_u32 s23, s23, 16384\ns_cmp_eq_u32 s23, {G2_HN*16384}\ns_cselect_b32 s23, 0, s23")
            a(f"s_add_u32 s24, s24, 20480\ns_cmp_eq_u32 s24, {G2_W + G2_WN*20480}\ns_cselect_b32 s24, {G2_W}, s24")
            a("s_waitcnt lgkmcnt(0)")
            rd = reads2(1, 1) + [f"v_add_u32 v{VH+2}, s23, v{VH}", f"v_add_u32 v{VH+3}, s23, v{VH+1}", f"v_add_u32 v{VW+1}, s24, v{VW}"]
        else:
            a("s_waitcnt lgkmcnt(0)\ns_barrier")
            rd = reads2(0, 0)
        i = 0
        for t in range(5):
            for j in range(2):
                ac = ACC + 4 * (5 * j + t)
                if not EXP & 32:
                    a(f"v_mfma_f32_16x16x32_bf16 {q(ac)}, {q(FS[s]+4*t)}, {q(FS[s]+20+4*j)}, {q(ac)}")
                for x in rd[2*i:2*i+2]:
                    a(x)
                i += 1
    a("s_add_u32 s21, s21, 1\ns_cmp_lt_u32 s21, 12\ns_cbranch_scc1 L_g2")
    a("s_nop 5")
    for t in range(5):
        a(f"ds_write_b128 v6, {q(ACC+20+4*t)} offset:{1024*t}")
    a("s_waitcnt lgkmcnt(0)\ns_barrier")
    for t in range(5):
        a(f"ds_read_b128 {q(ACC+20+4*t)}, v7 offset:{1024*t}")
    a.wait_vm("res")
    for i in range(20):
        a(f"v_lshlrev_b32 v{RES+i}, 16, v{RES+i}")
    a("s_waitcnt lgkmcnt(0)")
    O = 56
    for i in range(10):
        y = ACC + 2 * i
        a(f"v_pk_add_f32 {q(y,2)}, {q(y,2)}, {q(y+20,2)}")
        a(f"v_cvt_pk_bf16_f32 v{y}, v{y}, v{y+1}")
        a.unpack(y, y)
        a(f"v_pk_add_f32 {q(y,2)}, {q(y,2)}, {q(RES+2*i,2)}")
        a(f"v_cvt_pk_bf16_f32 v{O+i}, v{y}, v{y+1}")
        if i == 3:
            a(f"buffer_store_dwordx4 {q(O)}, v10, s[40:43], s18 offen {SCO}")
        if i == 7:
            a(f"buffer_store_dwordx4 {q(O+4)}, v10, s[40:43], s18 offen offset:64 {SCO}")
    a(f"buffer_store_dwordx2 {q(O+8,2)}, v11, s[40:43], s18 offen offset:128 {SCO}")
    a(f"s_branch {done}")


def gemm_loader_waves(a, done):
    a.vm = []
    tile_ids(a)
    a("s_mul_i32 s22, s8, 163840\ns_add_u32 s23, s22, 163840")
    a(f"s_mul_i32 s24, s9, {20*12288}\ns_add_u32 s25, s24, {20*12288}")
    a("s_lshr_b32 s20, s9, 3\ns_mul_i32 s20, s20, 5")
    a("s_lshl_b32 s16, s20, 14\ns_add_u32 s16, s16, s22\ns_mul_i32 s17, s20, 24576\ns_add_u32 s17, s17, s24")
    a("s_lshl_b32 s18, s7, 12\ns_mul_i32 s19, s7, 6144")
    a("v_lshrrev_b32 v12, 1, v4\nv_xor_b32 v12, v12, v3\nv_lshlrev_b32 v12, 5, v12")
    a("v_and_b32 v7, 1, v4\nv_lshlrev_b32 v7, 4, v7\nv_lshl_add_u32 v7, v3, 8, v7\nv_add_u32 v7, s18, v7")
    a("v_add_u32 v8, v7, v12\nv_xor_b32 v12, 128, v12\nv_add_u32 v9, v7, v12")
    if EXP & 2048:
        a("v_lshlrev_b32 v8, 4, v1\nv_add_u32 v8, s18, v8\nv_mov_b32 v9, v8")
    a("v_lshlrev_b32 v10, 4, v1\nv_add_u32 v10, s19, v10\nv_add_u32 v11, 4096, v10")
    a.srd(32, 4, WS_HT, SZ_T)
    a.srd(36, 4, WS_W13, SZ_W13)
    a.srd(40, 4, WS_CSP, SZ_CSP)
    a(f"s_mul_i32 s20, s9, {20*FS_}")
    a.poll(F_R, 20, 20, "s20")
    a.stamp(5)

    def issue_w(st):
        slot = G1_W + (st % G1_WN) * 24576
        if EXP & 4096 and st > 2:
            a.vm.append(("w", st))
            return
        a(f"s_add_u32 m0, s19, {slot}\ns_nop 0")
        for i in range(4):
            a.vmem(f"buffer_load_dwordx4 v10, s[36:39], s17 offen offset:{1024*i} {SCL} lds", ("w", st))
        a(f"s_add_u32 m0, s19, {slot + 4096}\ns_nop 0")
        for i in range(2):
            a.vmem(f"buffer_load_dwordx4 v11, s[36:39], s17 offen offset:{1024*i} {SCL} lds", ("w", st))
        a("s_add_u32 s17, s17, 24576\ns_cmp_eq_u32 s17, s25\ns_cselect_b32 s17, s24, s17")

    def issue_h(st):
        slot = G1_H + (st % G1_HN) * 16384
        if EXP & 8192 and st > 0:
            a.vm.append(("h", st))
            return
        a(f"s_add_u32 m0, s18, {slot}\ns_nop 0")
        for i in range(4):
            a.vmem(f"buffer_load_dwordx4 v{8 + (i&1)}, s[32:35], s16 offen offset:{1024*i} {SCL} lds", ("h", st))
        a("s_add_u32 s16, s16, 16384\ns_cmp_eq_u32 s16, s23\ns_cselect_b32 s16, s22, s16")

    CS = 40
    a("v_and_b32 v13, 255, v0\nv_lshlrev_b32 v13, 2, v13\ns_mul_i32 s20, s9, 15360")
    for ks in range(20):
        if ks and ks % 5 == 0:
            a("s_add_u32 s20, s20, 3840")
        a.vmem(f"buffer_load_dword v{CS+ks}, v13, s[40:43], s20 offen offset:{768*(ks % 5)} {SC}", "cs")
    SA = 14
    a("s_and_b32 s20, s9, 7\nv_xor_b32 v5, s20, v5\nv_lshl_add_u32 v14, v5, 5, v6\nv_add_u32 v15, 49152, v14")
    ONE, SACC, SF = 20, 24, 32
    for i in range(4):
        a(f"v_mov_b32 v{ONE+i}, {hex(ONES_BF)}")
    for i in range(8):
        a(f"v_mov_b32 v{SACC+i}, 0")
    a.wait_vm("cs")
    for ks in range(1, 20):
        a(f"v_add_f32 v{CS}, v{CS}, v{CS+ks}")
    a("v_and_b32 v7, 3, v4\nv_cmp_eq_u32 s[52:53], 1, v7\nv_cmp_eq_u32 s[54:55], 2, v7\nv_cmp_eq_u32 s[56:57], 3, v7")
    a("v_lshrrev_b32 v7, 2, v4\nv_cmp_eq_u32 s[58:59], v7, v3")
    a(f"s_mul_i32 s60, s11, {48*5120}\ns_mul_i32 s62, s10, {48*4096}\ns_mul_i32 s28, s7, 5120")
    a(f"s_add_u32 s61, s60, {48*5120}\ns_add_u32 s63, s62, {48*4096}")
    a(f"s_mul_i32 s26, s15, {3*20480 if EXP & 2 else 0}\ns_add_u32 s26, s26, s60\ns_mul_i32 s27, s15, {3*16384 if EXP & 2 else 0}\ns_add_u32 s27, s27, s62")
    a("v_lshlrev_b32 v60, 4, v1\nv_add_u32 v61, s18, v60\nv_add_u32 v60, s28, v60\nv_add_u32 v62, 4096, v60")
    a.srd(40, 4, WS_W2, SZ_W2)
    a.srd(44, 4, WS_HM, SZ_HM)
    a.stamp(6)
    a("s_barrier")
    for st in range(G1_WN):
        issue_w(st)
    a.stamp(7)
    a("s_barrier")
    a(f"ds_write_b32 v13, v{CS} offset:{G1_CS}")
    a(f"v_mov_b32 v16, 0\nds_write_b32 v16, v16 offset:{LDS_CNT2}")
    issue_h(0); issue_h(1)
    a.wait_vm(("h", 0))
    a.stamp(8)
    a("s_barrier")
    issue_h(2); issue_h(3); issue_h(4)

    def issue_w2(st):
        slot = G2_W + ((st + 3) % G2_WN) * 20480
        if EXP & 128 and st > 2:
            a.vm.append(("w2", st))
            return
        a(f"s_add_u32 m0, s28, {slot}\ns_nop 0")
        for i in range(4):
            a.vmem(f"buffer_load_dwordx4 v60, s[40:43], s26 offen offset:{1024*i} {SCL} lds", ("w2", st))
        a(f"s_add_u32 m0, s28, {slot + 4096}\ns_nop 0")
        a.vmem(f"buffer_load_dwordx4 v62, s[40:43], s26 offen {SCL} lds", ("w2", st))
        a("s_add_u32 s26, s26, 20480\ns_cmp_eq_u32 s26, s61\ns_cselect_b32 s26, s60, s26")

    def issue_hm(st):
        slot = G2_H + (st % G2_HN) * 16384
        if EXP & 64 and st > 0:
            a.vm.append(("hm", st))
            return
        a(f"s_add_u32 m0, s18, {slot}\ns_nop 0")
        for i in range(4):
            a.vmem(f"buffer_load_dwordx4 v61, s[44:47], s27 offen offset:{1024*i} {SCL} lds", ("hm", st))
        a("s_add_u32 s27, s27, 16384\ns_cmp_eq_u32 s27, s63\ns_cselect_b32 s27, s62, s27")

    a.srd(48, 4, WS_GR, 16 * 4096)
    a("s_and_b32 s20, s7, 1\ns_lshl_b32 s20, s20, 13\nv_add_u32 v14, s20, v14\nv_add_u32 v15, s20, v15")
    for s in range(10):
        slot = s % G1_HN
        dostat = s < 5
        if dostat:
            sk = a.newlabel("L_nost")
            a(f"s_lshr_b32 s20, s7, 1\ns_cmp_lg_u32 s20, {s & 1}\ns_cbranch_scc1 {sk}")
            off = G1_H + (slot % 3) * 16384
            a(f"ds_read_b64_tr_b16 {q(SF,2)}, v{SA + slot//3} offset:{off}")
            a(f"ds_read_b64_tr_b16 {q(SF+2,2)}, v{SA + slot//3} offset:{off + 4096}")
            a("s_waitcnt lgkmcnt(0)")
            a(f"v_mfma_f32_16x16x32_bf16 {q(SACC)}, {q(ONE)}, {q(SF)}, {q(SACC)}")
            a(f"v_mfma_f32_16x16x32_bf16 {q(SACC+4)}, {q(SF)}, {q(SF)}, {q(SACC+4)}")
            a.label(sk)
        if s == 8:
            a("s_lshl_b32 s20, s8, 12\ns_lshl_b32 s21, s7, 9\ns_add_u32 s20, s20, s21")
            a("v_and_b32 v7, 31, v1\nv_lshlrev_b32 v7, 4, v7\nv_lshrrev_b32 v36, 5, v1\nv_lshl_add_u32 v36, v36, 11, v7\nv_add_u32 v7, s21, v7\ns_mov_b32 s84, 0")
            L, D = a.newlabel("L_gp"), a.newlabel("L_gpd")
            a.label(L)
            a(f"buffer_load_dwordx4 {q(40)}, v36, s[48:51], s20 offen {SC}")
            a(f"s_add_u32 s84, s84, 1\ns_waitcnt vmcnt(0)\nv_cmp_ne_u32 vcc, s3, v42\ns_cbranch_vccz {D}")
            a(f"s_sleep 2\ns_cmp_lt_u32 s84, {POLL_MAX}\ns_cbranch_scc1 {L}")
            a.label(D)
            a("v_mov_b32 v44, v40\nv_mov_b32 v45, v41\ns_nop 1\nv_permlane32_swap_b32 v40, v44\nv_permlane32_swap_b32 v41, v45")
            a("v_add_f32 v40, v40, v44\nv_add_f32 v41, v41, v45")
            ln_finish(a, 40, 41, 42, 44, 45)
            a(f"v_mul_f32 v45, {hex(NLOG2E)}, v45\nv_mul_f32 v46, v42, v42\nv_mov_b32 v47, 0")
            a(f"ds_write_b128 v7, {q(44)} offset:{G1_CONST}")
        if s >= 1:
            if s + 2 < 10:
                issue_w(s + 2)
            elif s == 9:
                issue_w2(0); issue_w2(1)
            if s + 4 < 10:
                issue_h(s + 4)
        if s == 4:
            sq = SACC + 4
            a("s_nop 4")
            a(f"v_cndmask_b32 v{sq}, v{sq}, v{sq+1}, s[52:53]\nv_cndmask_b32 v{sq}, v{sq}, v{sq+2}, s[54:55]\nv_cndmask_b32 v{SACC+1}, v{sq}, v{sq+3}, s[56:57]")
            a(f"s_lshl_b32 s20, s7, 7\nv_lshlrev_b32 v7, 3, v4\nv_add_u32 v7, s20, v7\ns_mov_b64 exec, s[58:59]")
            a(f"ds_write_b64 v7, {q(SACC,2)} offset:{G1_SP}\ns_mov_b64 exec, -1\ns_waitcnt lgkmcnt(0)")
        if s == 5:
            sk = a.newlabel("L_nogr")
            a(f"s_cmp_lg_u32 s7, 3\ns_cbranch_scc1 {sk}")
            a("v_lshlrev_b32 v7, 3, v4")
            for w in range(4):
                a(f"ds_read_b64 {q(SF+2*w,2)}, v7 offset:{G1_SP + 128*w}")
            a("s_lshl_b32 s20, s8, 1\ns_lshr_b32 s21, s9, 3\ns_add_u32 s20, s20, s21\ns_lshl_b32 s20, s20, 3\ns_and_b32 s21, s9, 7\ns_add_u32 s20, s20, s21\ns_lshl_b32 s20, s20, 8")
            a(f"v_lshlrev_b32 v7, 4, v4\nv_mov_b32 v{SF+10}, s3\nv_mov_b32 v{SF+11}, s3\ns_waitcnt lgkmcnt(0)")
            a(f"v_pk_add_f32 {q(SF,2)}, {q(SF,2)}, {q(SF+2,2)}\nv_pk_add_f32 {q(SF+4,2)}, {q(SF+4,2)}, {q(SF+6,2)}\nv_pk_add_f32 {q(SF+8,2)}, {q(SF,2)}, {q(SF+4,2)}")
            a("s_mov_b64 exec, 0xffff")
            a(f"buffer_store_dwordx4 {q(SF+8)}, v7, s[48:51], s20 offen {SC}")
            a("s_mov_b64 exec, -1")
            a.label(sk)
        if s + 1 < 10:
            a.wait_vm(("h", s + 1))
            if s + 1 >= G1_WN:
                a.wait_vm(("w", s + 1))
        a("s_barrier")
    issue_w2(2); issue_w2(3); issue_w2(4)
    a("s_waitcnt lgkmcnt(0)")
    a.stamp(10)
    a("s_barrier")
    a.stamp(13)
    a("s_barrier")
    issue_hm(0); issue_hm(1)
    a.wait_vm(("hm", 0))
    a("s_barrier")
    issue_hm(2)
    for s in range(12):
        if s + 1 < 12:
            a.wait_vm(("hm", s + 1))
            if s + 1 >= G2_WN:
                a.wait_vm(("w2", s + 1))
        a("s_barrier")
        if s + G2_WN < 12:
            issue_w2(s + G2_WN)
        if s + G2_HN < 12:
            issue_hm(s + G2_HN)
    a("s_barrier")


def main():
    a = Asm()
    hdr = open(f"cdna_kernels/{NAME}.s.ref").read().split("\n")
    for line in hdr:
        if line.startswith("; Override") or line.startswith("; grid=") or "@launch" in line:
            continue
        if not line.startswith(";"):
            break
        a.raw(line)
    if STAMPS == 1:
        a.raw(f"; @launch kernel={KNAME} grid=(256,1,1) block=(512,1,1) lds={LDS_TOTAL}")
    else:
        a.raw(f"; @launch grid=(256,1,1) block=(512,1,1) lds={LDS_TOTAL}")
    a.raw('.amdgcn_target "amdgcn-amd-amdhsa--gfx950"\n.text')
    a.raw(f".globl {KNAME}\n.p2align 8\n.type {KNAME},@function\n{KNAME}:")
    done = "L_done"
    a("s_cmp_ge_u32 s2, 256\ns_cbranch_scc1 L_exit")
    if STAMPS:
        for i in range(16):
            a(f"s_mov_b32 s{64+i}, 0")
        a.stamp(0)
    a(f"s_load_dwordx2 s[4:5], s[0:1], {KA_WS}\ns_load_dwordx16 s[8:23], s[0:1], 0\ns_load_dwordx8 s[24:31], s[0:1], 64")
    a("v_and_b32 v1, 63, v0\nv_lshrrev_b32 v2, 6, v0\nv_lshrrev_b32 v3, 4, v1\nv_and_b32 v4, 15, v1")
    a("v_readfirstlane_b32 s6, v2")
    a("s_waitcnt lgkmcnt(0)")
    a("s_load_dword s3, s[4:5], 0")
    a("s_and_b32 s7, s6, 3")
    a.srd(92, 4, WS_FLG, SZ_FLG)
    a(f"v_mov_b32 v5, {LDS_CNT}\nv_mov_b32 v6, 0\nv_mov_b32 v7, 0\nv_mov_b32 v8, 0\nv_mov_b32 v9, 0\nds_write_b128 v5, v[6:9]")
    a("s_cmp_ge_u32 s2, 160\ns_cbranch_scc1 L_aux")
    a("s_lshl_b32 s52, s2, 2\ns_add_u32 s52, s52, s7")
    kgen(a)
    a("s_cmp_ge_u32 s6, 4\ns_cbranch_scc1 L_partner")
    conv_main(a)
    a("s_branch L_mfma")
    a.label("L_partner")
    conv_partner(a)
    a("s_branch L_loader")
    a.label("L_aux")
    a.vm = []
    a("s_cmp_ge_u32 s2, 224\ns_cbranch_scc1 L_aux_rp")
    a("s_sub_u32 s52, s2, 160")
    role_ln1(a)
    a("s_branch L_aux_go")
    a.label("L_aux_rp")
    a("s_sub_u32 s52, s2, 224")
    if not EXP & 256:
        a("s_cmp_lt_u32 s6, 6\ns_cbranch_scc1 L_aux_rp1")
        a("s_getpc_b64 s[54:55]")
        a.label("L_pc")
        a(f"s_sub_u32 s54, s54, L_pc-{KNAME}\ns_subb_u32 s55, s55, 0")
        a(f"v_lshlrev_b32 v5, 4, v1\ns_and_b32 s56, s6, 1\ns_mul_i32 s56, s56, {CODE_KB*512}\nv_add_u32 v5, s56, v5")
        for i in range(CODE_KB // 2):
            a(f"global_load_dwordx4 {q(16+4*i)}, v5, s[54:55] offset:{1024*(i%4)}")
            if i % 4 == 3:
                a("v_add_u32 v5, 4096, v5")
        a.label("L_aux_rp1")
    epoch_ready(a)
    a("s_cmp_ge_u32 s6, 6\ns_cbranch_scc1 L_aux_end")
    a("s_mul_i32 s53, s52, 6\ns_add_u32 s53, s53, s6")
    role_rp2(a)
    a.label("L_aux_end")
    a("s_waitcnt vmcnt(0)\ns_barrier")
    a("s_cmp_lg_u32 s6, 4\ns_cbranch_scc1 L_aux_go")
    a.publish(F_R2, 52, 10)
    a.label("L_aux_go")
    a.stamp(4)
    a("s_cmp_ge_u32 s6, 4\ns_cbranch_scc1 L_loader\ns_branch L_mfma")
    a.label("L_loader")
    gemm_loader_waves(a, done)
    a(f"s_branch {done}")
    a.label("L_mfma")
    gemm_mfma_waves(a, done)
    a.label(done)
    if STAMPS:
        a("s_waitcnt vmcnt(0)")
        a.stamp(15)
        if STAMPS == 2:
            a(f"s_cmp_lg_u32 s2, {int(os.environ.get('DBGWG', '0'))}\ns_cbranch_scc1 L_exit\ns_cmp_lg_u32 s6, {int(os.environ.get('DBGWV', '0'))}\ns_cbranch_scc1 L_exit")
            a("s_load_dwordx2 s[82:83], s[0:1], 96\ns_waitcnt lgkmcnt(0)")
            a.srd(88, 82, 0, 256)
            for i in range(15, -1, -1):
                a(f"s_sub_u32 s{64+i}, s{64+i}, s64")
            for i in range(16):
                a(f"v_mov_b32 v{4+i}, s{64+i}")
            a("v_mov_b32 v1, 0\ns_mov_b64 exec, 1")
            for i in range(4):
                a(f"buffer_store_dwordx4 {q(4+4*i)}, v1, s[88:91], 0 offen offset:{16*i}")
            a("s_branch L_exit")
        a.srd(88, 4, WS_STAMP, 262144)
        a("v_lshrrev_b32 v1, 6, v0\nv_lshlrev_b32 v1, 6, v1\ns_lshl_b32 s82, s2, 9\nv_add_u32 v1, s82, v1")
        for i in range(16):
            a(f"v_mov_b32 v{4+i}, s{64+i}")
        a("s_mov_b64 exec, 1")
        for i in range(4):
            a(f"buffer_store_dwordx4 {q(4+4*i)}, v1, s[88:91], 0 offen offset:{16*i}")
    a.label("L_exit")
    a("s_endpgm")
    a.raw(f".fill ({CODE_KB*1024} - (. - {KNAME})) / 4, 4, 0xbf800000")
    a.raw(f""".section .rodata,"a"
.p2align 6
.amdhsa_kernel {KNAME}
  .amdhsa_next_free_vgpr 244
  .amdhsa_next_free_sgpr 96
  .amdhsa_accum_offset 244
  .amdhsa_group_segment_fixed_size 0
  .amdhsa_kernarg_size 112
  .amdhsa_user_sgpr_count 2
  .amdhsa_user_sgpr_kernarg_segment_ptr 1
  .amdhsa_system_sgpr_workgroup_id_x 1
.end_amdhsa_kernel""")
    out = sys.argv[1] if len(sys.argv) > 1 else f"cdna_kernels/{NAME}.s"
    open(out, "w").write("\n".join(a.l) + "\n")


if __name__ == "__main__":
    main()
```

```python
import sys, os, struct

NAME = "sequential_preLN__ssm_conv_s4d__glu_gated_swiglu__prompt"
KNAME = NAME + "_kernel"
KA_WS = 104

WS_FLG = 0
FS_ = 128
F_L, F_X, F_R2, F_C, F_G, F_R = 0x1000, 0x3000, 0x5000, 0x8000, 0x10000, 0x18000
SZ_FLG = 0x30000
WS_UT = 0x100000
WS_XT = 0x400000
WS_HT = 0x700000
WS_HM = 0xA00000
WS_W13 = 0x1000000
WS_W2 = 0x1400000
WS_GR = 0x1710000
WS_ST = 0x1700000
WS_CSP = 0x1600000
WS_STAMP = 0x4000000
SZ_T = 640 * 4096
SZ_TP = SZ_T
T_BLK = 40960
SZ_HM = 32 * 48 * 4096
SZ_W13 = 16 * 20 * 12288
SZ_W2 = 8 * 48 * 5120
SZ_CSP = 320 * 768 + 1024

STAMPS = int(os.environ.get('STAMPS', '0'))
EXP = int(os.environ.get('EXP', '0'))
LOG2E, NLOG2E, INV2PI, INV640, EPS, ONES_BF = 0x3FB8AA3B, 0xBFB8AA3B, 0x3E22F983, 0x3ACCCCCD, 0x3727C5AC, 0x3F803F80
POLL_MAX = 400000
CODE_KB = 30
TLBW = int(os.environ.get('TLBW', '0'))
PIPE = int(os.environ.get('PIPE', '2'))
PSLEEP = int(os.environ.get('PSLEEP', '3'))
SLEEP = int(os.environ.get('SLEEP', '1'))
SC = "sc1"
SCO = os.environ.get("SCO", "")
SCL = "" if EXP & 8 else "sc1"


def f32bits(x):
    return struct.unpack("<I", struct.pack("<f", x))[0]


def q(r, n=4):
    return f"v[{r}:{r+n-1}]"


class Asm:
    def __init__(self):
        self.l = []
        self.vm = []
        self.uid = 0

    def __call__(self, s):
        for x in s.split("\n"):
            x = x.strip()
            if x:
                self.l.append("    " + x)

    def label(self, s):
        self.l.append(s + ":")

    def raw(self, s):
        self.l.append(s)

    def newlabel(self, p="L"):
        self.uid += 1
        return f"{p}_{self.uid}"

    def vmem(self, s, tag=None):
        self(s)
        self.vm.append(tag)

    def wait_vm(self, tag):
        idx = max(i for i, t in enumerate(self.vm) if t == tag)
        n = len(self.vm) - 1 - idx
        assert n <= 63, n
        self(f"s_waitcnt vmcnt({n})")

    def srd(self, sd, lo, off, size):
        if off == 0:
            self(f"s_mov_b32 s{sd}, s{lo}\ns_mov_b32 s{sd+1}, s{lo+1}")
        else:
            self(f"s_add_u32 s{sd}, s{lo}, {hex(off)}\ns_addc_u32 s{sd+1}, s{lo+1}, 0")
        self(f"s_mov_b32 s{sd+2}, {size}\ns_mov_b32 s{sd+3}, 0x20000")

    def stamp(self, i):
        if STAMPS:
            self(f"s_memrealtime s[80:81]\ns_waitcnt lgkmcnt(0)\ns_mov_b32 s{64+i}, s80")

    def unpack(self, dlo, src):
        if dlo == src:
            self(f"v_and_b32 v{dlo+1}, 0xffff0000, v{src}\nv_lshlrev_b32 v{dlo}, 16, v{src}")
        else:
            self(f"v_lshlrev_b32 v{dlo}, 16, v{src}\nv_and_b32 v{dlo+1}, 0xffff0000, v{src}")

    def rnd(self, d, s):
        self(f"v_cvt_pk_bf16_f32 v{d}, v{s}, v{s}\nv_lshlrev_b32 v{d}, 16, v{d}")

    def poll(self, off, n, vt, soff=None, fast=False):
        L, D = self.newlabel("L_poll"), self.newlabel("L_polld")
        nl = (n + 63) // 64
        for i in range(nl):
            self(f"v_add_u32 v{vt+i}, {64*i}, v1\nv_min_u32 v{vt+i}, {n-1}, v{vt+i}\nv_mul_u32_u24 v{vt+i}, {FS_}, v{vt+i}")
        if soff is None:
            self(f"s_mov_b32 s86, {off}")
        else:
            self(f"s_add_u32 s86, {soff}, {off}")
        self("s_mov_b32 s84, 0")
        np_ = PIPE if fast else 1

        def ld(k):
            for i in range(nl):
                self(f"buffer_load_dword v{vt+nl*(1+k)+i}, v{vt+i}, s[92:95], s86 offen {SC}")

        def chk(k):
            b = vt + nl * (1 + k)
            for i in range(nl):
                self(f"v_xor_b32 v{b+i}, s3, v{b+i}")
            for i in range(1, nl):
                self(f"v_or_b32 v{b}, v{b}, v{b+i}")
            self(f"v_cmp_ne_u32 vcc, 0, v{b}\ns_cbranch_vccz {D}")

        for k in range(np_ - 1):
            ld(k)
            self(f"s_sleep {PSLEEP}")
        self.label(L)
        for k in range(np_):
            ld((k + np_ - 1) % np_)
            self(f"s_waitcnt vmcnt({nl*(np_-1)})")
            chk(k)
            self(f"s_sleep {PSLEEP if fast else SLEEP}")
        self(f"s_add_u32 s84, s84, 1\ns_cmp_lt_u32 s84, {POLL_MAX}\ns_cbranch_scc1 {L}")
        self.label(D)
        if np_ > 1:
            self.vm = [None] * (nl * (np_ - 1))
        else:
            self.vm = []

    def publish(self, off, sidx, vt):
        self(f"s_mul_i32 s85, s{sidx}, {FS_}\ns_add_u32 s85, s85, {off}\nv_mov_b32 v{vt}, s3\nv_mov_b32 v{vt+1}, s85\ns_mov_b64 exec, 1")
        self.vmem(f"buffer_store_dword v{vt}, v{vt+1}, s[92:95], 0 offen {SC}")
        self("s_mov_b64 exec, -1")


def ln_finish(a, vs, vq, vt, vnegm, vrinv):
    a(f"v_mul_f32 v{vs}, {hex(INV640)}, v{vs}")
    a(f"v_mul_f32 v{vq}, {hex(INV640)}, v{vq}")
    a(f"v_fma_f32 v{vq}, -v{vs}, v{vs}, v{vq}")
    a(f"v_max_f32 v{vq}, 0, v{vq}")
    a.rnd(vnegm, vs)
    a(f"v_xor_b32 v{vnegm}, 0x80000000, v{vnegm}")
    a.rnd(vt, vq)
    a(f"v_add_f32 v{vt}, {hex(EPS)}, v{vt}")
    a.rnd(vt, vt)
    a(f"v_sqrt_f32 v{vt}, v{vt}\ns_nop 0")
    a.rnd(vt, vt)
    a(f"v_rcp_f32 v{vrinv}, v{vt}\ns_nop 0")


def cmul(a, d, x, y, t):
    a(f"v_pk_mul_f32 {q(t,2)}, {q(x,2)}, {q(y,2)} op_sel_hi:[1,0]")
    a(f"v_pk_fma_f32 {q(d,2)}, {q(x,2)}, {q(y,2)}, {q(t,2)} op_sel:[1,1,0] op_sel_hi:[0,1,1] neg_lo:[1,0,0]")


def epoch_ready(a):
    a("s_waitcnt lgkmcnt(0)\ns_add_u32 s3, s3, 1")


LDS_CNT = 143872


LDS_CNT2 = 4096


def last_of4_publish(a, addr, off, sidx, vt):
    sk = a.newlabel("L_notlast")
    a(f"v_mov_b32 v{vt}, {addr}\nv_mov_b32 v{vt+1}, 1\ns_mov_b64 exec, 1")
    a(f"ds_add_rtn_u32 v{vt+1}, v{vt}, v{vt+1}\ns_mov_b64 exec, -1\ns_waitcnt lgkmcnt(0)")
    a(f"v_readfirstlane_b32 s85, v{vt+1}\ns_nop 3\ns_cmp_lg_u32 s85, 3\ns_cbranch_scc1 {sk}")
    a.publish(off, sidx, vt)
    a.label(sk)


LN_RS = 1312
LN_U = 32 * LN_RS


def role_ln1(a):
    a("v_lshl_add_u32 v5, v2, 2, v3")
    a(f"s_mul_i32 s53, s52, {32*1280}")
    a("v_mul_u32_u24 v6, 1280, v5\nv_lshl_add_u32 v6, v4, 4, v6\nv_add_u32 v6, s53, v6")
    a.srd(32, 8, 0, SZ_T)
    X = 16
    for j in range(5):
        a.vmem(f"buffer_load_dwordx4 {q(X+4*j)}, v6, s[32:35], 0 offen offset:{j*256}", ("x", j))
    a(f"v_mul_u32_u24 v7, {LN_RS}, v5\nv_lshl_add_u32 v7, v4, 4, v7")
    a(f"s_mov_b32 s54, {hex(ONES_BF)}")
    a.srd(36, 4, WS_ST, 16384)
    a.srd(40, 4, WS_XT, SZ_TP)
    a("v_bfe_u32 v8, v1, 2, 2\nv_lshl_add_u32 v8, v3, 3, v8")
    a(f"v_mul_u32_u24 v8, {LN_RS}, v8\nv_and_b32 v9, 3, v1\nv_lshl_add_u32 v8, v9, 3, v8")
    a("v_mul_u32_u24 v9, 160, v2\nv_add_u32 v8, v8, v9")
    a("v_mul_u32_u24 v9, 80, v2\nv_add_u32 v9, v9, v4\nv_lshlrev_b32 v9, 6, v9\nv_lshl_add_u32 v9, v3, 4, v9")
    a(f"s_mul_i32 s53, s52, {T_BLK}\ns_add_u32 s55, s53, 4096\ns_lshl_b32 s56, s52, 7")
    a(f"v_lshlrev_b32 v10, 2, v5\nv_and_b32 v11, 1, v4\nv_lshl_add_u32 v10, v11, 7, v10\nv_add_u32 v10, {LN_U}, v10")
    R = 56
    S0, S1, Q0, Q1, NM, RI, TT = 80, 81, 82, 83, 84, 85, 88
    a(f"v_mov_b32 v{S0}, 0\nv_mov_b32 v{S1}, 0\nv_mov_b32 v{Q0}, 0\nv_mov_b32 v{Q1}, 0\nv_cmp_eq_u32 s[58:59], 1, v11")
    epoch_ready(a)
    for j in range(5):
        a.wait_vm(("x", j))
        if j == 0:
            a.stamp(1)
        a(f"ds_write_b128 v7, {q(X+4*j)} offset:{j*256}")
        for i in range(4 * j, 4 * j + 4):
            a(f"v_dot2c_f32_bf16 v{S0 + (i&1)}, s54, v{X+i}")
            a(f"v_dot2c_f32_bf16 v{Q0 + (i&1)}, v{X+i}, v{X+i}")
    a("s_waitcnt lgkmcnt(0)\ns_barrier")
    a.stamp(2)
    for i in range(5):
        a(f"ds_read_b64_tr_b16 {q(R+4*i,2)}, v8 offset:{32*i}")
        a(f"ds_read_b64_tr_b16 {q(R+4*i+2,2)}, v8 offset:{32*i + 4*LN_RS}")
    a(f"v_add_f32 v{S0}, v{S0}, v{S1}\nv_add_f32 v{Q0}, v{Q0}, v{Q1}")
    for i in range(5):
        a(f"s_waitcnt lgkmcnt({8-2*i})")
        a.vmem(f"buffer_store_dwordx4 {q(R+4*i)}, v9, s[40:43], {'s53' if i < 4 else 's55'} offen offset:{1024*(i%4)} {SC}")
    for sh in (8, 4, 2, 1):
        a(f"v_add_f32_dpp v{S0}, v{S0}, v{S0} row_ror:{sh} row_mask:0xf bank_mask:0xf")
        a(f"v_add_f32_dpp v{Q0}, v{Q0}, v{Q0} row_ror:{sh} row_mask:0xf bank_mask:0xf")
        a("s_nop 0")
    ln_finish(a, S0, Q0, TT, NM, RI)
    a(f"v_cndmask_b32 v{NM}, v{NM}, v{RI}, s[58:59]")
    a(f"ds_write_b32 v10, v{NM}")
    a("s_waitcnt lgkmcnt(0)\ns_barrier")
    sk = a.newlabel("L_lnst")
    a(f"s_cmp_lg_u32 s6, 7\ns_cbranch_scc1 {sk}")
    a(f"v_lshlrev_b32 v10, 2, v1\nv_add_u32 v11, {LN_U}, v10\nds_read_b32 v12, v11")
    a("v_lshrrev_b32 v11, 5, v1\nv_mul_u32_u24 v11, 8064, v11\nv_add_u32 v10, v10, v11\ns_waitcnt lgkmcnt(0)")
    a.vmem(f"buffer_store_dword v12, v10, s[36:39], s56 offen {SC}")
    a.label(sk)
    a("s_waitcnt vmcnt(0)\ns_barrier")
    a.stamp(3)
    sk = a.newlabel("L_lnp")
    a(f"s_cmp_lg_u32 s6, 7\ns_cbranch_scc1 {sk}")
    a.publish(F_L, 52, 10)
    a.label(sk)
    sk = a.newlabel("L_lnrp")
    a(f"s_cmp_ge_u32 s6, 5\ns_cbranch_scc1 {sk}")
    a(f"s_mul_i32 s55, s52, 5\ns_add_u32 s55, s55, s6\ns_mul_i32 s56, s6, 12288\ns_add_u32 s56, s56, 49152")
    rp13_issue(a)
    a("s_waitcnt vmcnt(0)")
    rp13_finish(a)
    a("s_waitcnt vmcnt(0)")
    a.publish(F_R, 55, 10)
    a.label(sk)


W13_J = [[0, 1, 2], [4, 5, 3]]


RP_BASE = 2 * LN_U


def rp13_issue(a):
    a("s_mul_i32 s57, s55, 205\ns_lshr_b32 s57, s57, 12")
    a("s_mul_i32 s58, s57, 20\ns_sub_u32 s58, s55, s58")
    a.srd(44, 24, 0, 640 * 3072)
    a.srd(48, 26, 0, 640 * 3072)
    a(f"s_mul_i32 s57, s57, 192\ns_mul_i32 s58, s58, {32*3072}\ns_add_u32 s57, s57, s58")
    for i in range(6):
        a(f"v_add_u32 v10, {64*i}, v1\nv_mul_u32_u24 v11, 43691, v10\nv_lshrrev_b32 v11, 19, v11")
        a(f"v_mul_u32_u24 v12, 12, v11\nv_sub_u32 v12, v10, v12\nv_mul_u32_u24 v11, 3072, v11\nv_lshl_add_u32 v13, v12, 4, v11")
        for mat in range(2):
            a(f"s_add_u32 m0, s56, {mat*6144 + i*1024}\ns_nop 0")
            a(f"buffer_load_dwordx4 v13, s[{44+4*mat}:{47+4*mat}], s57 offen lds")


def rp13_finish(a):
    a("v_lshlrev_b32 v5, 4, v1")
    a("v_bfe_u32 v6, v1, 2, 2\nv_lshl_add_u32 v6, v3, 2, v6\nv_and_b32 v7, 3, v1")
    a("v_mul_u32_u24 v16, 192, v6\nv_lshl_add_u32 v16, v7, 3, v16\nv_add_u32 v16, s56, v16")
    OH, ACC, F = 32, 80, 84
    for t in range(12):
        wn, mat, jj = t // 6, (t % 6) // 3, t % 3
        off = mat * 6144 + 32 * W13_J[wn][jj]
        a(f"ds_read_b64_tr_b16 {q(F+4*t,2)}, v16 offset:{off}")
        a(f"ds_read_b64_tr_b16 {q(F+4*t+2,2)}, v16 offset:{off + 16*192}")
    a.srd(40, 4, WS_W13, SZ_W13)
    a.srd(44, 4, WS_CSP, SZ_CSP)
    a("s_mul_i32 s57, s55, 12288\ns_add_u32 s58, s57, 4096\ns_add_u32 s59, s57, 8192")
    a("s_waitcnt lgkmcnt(0)")
    for t in range(12):
        a(f"buffer_store_dwordx4 {q(F+4*t)}, v5, s[40:43], s{57 + t//4} offen offset:{1024*(t%4)} {SC}")
    a(f"v_mov_b32 v8, {hex(ONES_BF)}")
    a("v_lshlrev_b32 v9, 6, v4\nv_lshl_add_u32 v9, v3, 4, v9\ns_mul_i32 s60, s55, 768")
    for t in range(12):
        a(f"v_cmp_eq_u32 vcc, {t}, v4\ns_nop 1")
        for i in range(4):
            a(f"v_cndmask_b32 v{OH+4*t+i}, 0, v8, vcc")
    a("s_nop 1")
    for t in range(12):
        a(f"v_mfma_f32_16x16x32_bf16 {q(ACC)}, {q(F+4*t)}, {q(OH+4*t)}, {q(ACC) if t else 0}")
    a("s_nop 7\nv_cmp_gt_u32 vcc, 12, v4\ns_and_saveexec_b64 s[82:83], vcc")
    a(f"buffer_store_dwordx4 {q(ACC)}, v9, s[44:47], s60 offen {SC}")
    a(f"s_mov_b64 exec, s[82:83]")


def role_rp2(a):
    a.vm = []
    a("s_mul_i32 s54, s6, 12288")
    a("v_lshlrev_b32 v5, 4, v1")
    a("v_bfe_u32 v6, v1, 2, 2\nv_lshl_add_u32 v6, v3, 2, v6\nv_and_b32 v7, 3, v1")
    a("s_mul_i32 s55, s53, 171\ns_lshr_b32 s55, s55, 12")
    a("s_mul_i32 s56, s55, 24\ns_sub_u32 s56, s53, s56")
    a.srd(32, 28, 0, 1536 * 1280)
    a(f"s_mul_i32 s57, s55, 160\ns_mul_i32 s58, s56, {64*1280}\ns_add_u32 s57, s57, s58\ns_add_u32 s58, s57, {32*1280}")
    for i in range(5):
        a(f"v_add_u32 v8, {64*i}, v1\nv_mul_u32_u24 v9, 52429, v8\nv_lshrrev_b32 v9, 19, v9")
        a(f"v_mul_u32_u24 v16, 10, v9\nv_sub_u32 v16, v8, v16\nv_mul_u32_u24 v9, 1280, v9\nv_lshl_add_u32 v{10+i}, v16, 4, v9")
        for un in range(2):
            a(f"s_add_u32 m0, s54, {un*5120 + i*1024}\ns_nop 0")
            a.vmem(f"buffer_load_dwordx4 v{10+i}, s[32:35], s{57+un} offen lds", "w")
    a.srd(40, 4, WS_W2, SZ_W2)
    a("s_mul_i32 s60, s56, 171\ns_lshr_b32 s60, s60, 9\ns_mul_i32 s60, s60, 3\ns_sub_u32 s60, s56, s60")
    for un in range(2):
        a(f"s_cmp_eq_u32 s60, {2 if un == 0 else 0}\ns_cselect_b32 s61, 640, 0\ns_mul_i32 s62, s61, 3\ns_sub_u32 s62, 2560, s62")
        a(f"v_mul_u32_u24 v16, 160, v6\nv_mul_u32_u24 v8, s61, v3\nv_add3_u32 v16, v16, v8, s54")
        b = 18 + 4 * un
        a(f"v_lshl_add_u32 v{b}, v7, 4, v16\nv_lshl_add_u32 v{b+1}, v7, 3, v16\nv_add_u32 v{b+2}, s62, v{b}\nv_add_u32 v{b+3}, s62, v{b+1}")
    a("s_mul_i32 s57, s53, 10240\ns_add_u32 s58, s57, 4096\ns_add_u32 s59, s57, 8192")
    a.poll(F_L, 64, 26)
    F = 32
    for k in range(10):
        un, t = divmod(k, 5)
        b = 18 + 4 * un + (0 if t < 4 else 1)
        off = un * 5120 + ((t >> 1) * 64 + (t & 1) * 8 if t < 4 else 128)
        a(f"ds_read_b64_tr_b16 {q(F+4*k,2)}, v{b} offset:{off}")
        a(f"ds_read_b64_tr_b16 {q(F+4*k+2,2)}, v{b+2} offset:{off}")
    a("s_waitcnt lgkmcnt(0)")
    for k in range(10):
        a.vmem(f"buffer_store_dwordx4 {q(F+4*k)}, v5, s[40:43], s{57 + k//4} offen offset:{1024*(k%4)} {SC}")


TB_RS = 272
TB_SZ = 57 * TB_RS
CV_A = 64
CV_CS = 4160
CV_U = CV_A + 4 * CV_CS
CV_X = CV_U + 4608
CV_WAVE = CV_X + 4096
KP_BASE = 126976
PART_BASE = 145408
RP_LDS = [101632, 113920]


def kgen(a):
    a.vm = []
    a(f"s_mul_i32 s53, s6, {TB_SZ}")
    a("s_lshr_b32 s54, s6, 2")
    a("s_mul_i32 s55, s52, 384\ns_lshl_b32 s56, s54, 7\ns_add_u32 s55, s55, s56\nv_lshlrev_b32 v5, 1, v1")
    a("s_lshl_b32 s56, s52, 1\nv_mov_b32 v6, 0")
    PR, DT = 8, 92
    PR2 = 96
    a.srd(48, 18, 0, 1280)
    a.vmem(f"buffer_load_ushort v{DT}, v6, s[48:51], s56 offen", "par")
    for i in range(4):
        a.srd(32 + 4 * i, 10 + 2 * i, 0, 640 * 192 * 2)
        a.vmem(f"buffer_load_ushort v{PR+i}, v5, s[{32+4*i}:{35+4*i}], s55 offen", "par")
    for i in range(4):
        a.vmem(f"buffer_load_ushort v{PR2+i}, v5, s[{32+4*i}:{35+4*i}], s55 offen offset:256", "par2")
    a.srd(48, 20, 0, 1280)
    a.vmem("buffer_load_ushort v240, v6, s[48:51], s56 offen", "par2")
    VW, VR, DK = 6, 7, 80
    a(f"v_lshlrev_b32 v{VW}, 2, v1\nv_add_u32 v{VW}, s53, v{VW}")
    a(f"v_mul_u32_u24 v{VR}, {TB_RS}, v4\nv_lshl_add_u32 v{VR}, v3, 4, v{VR}\nv_add_u32 v{VR}, s53, v{VR}")
    for i in range(12):
        a(f"v_mov_b32 v{DK+i}, 0")
    epoch_ready(a)
    a.wait_vm("par")
    a.stamp(1)
    a(f"v_lshlrev_b32 v{DT}, 16, v{DT}\nv_mul_f32 v{DT}, {hex(LOG2E)}, v{DT}\nv_exp_f32 v{DT}, v{DT}\ns_nop 0")
    a.rnd(DT, DT)
    a.label("L_kgen")
    A2, W, Z8, Y, GC, T0, T1, T2, XT = 16, 17, 18, 20, 22, 24, 26, 28, 30
    E = [None] + [32 + 2 * i for i in range(7)]
    G1 = 46
    PK = [48, 49, 50, 51]
    pkc = [0]

    def put(row, re, im):
        r = PK[pkc[0] % 4]
        pkc[0] += 1
        a(f"v_cvt_pk_bf16_f32 v{r}, {re}, {im}")
        a(f"ds_write_b32 v{VW}, v{r} offset:{row*TB_RS}")

    def putp(row, p):
        put(row, f"v{p}", f"v{p+1}")

    a(f"v_lshlrev_b32 v{PR}, 16, v{PR}\nv_mul_f32 v{A2}, {hex(LOG2E)}, v{PR}\nv_exp_f32 v{A2}, v{A2}")
    for i in range(1, 4):
        a(f"v_lshlrev_b32 v{PR+i}, 16, v{PR+i}")
    a.rnd(A2, A2)
    a(f"v_mul_f32 v{W}, v{PR+1}, v{DT}")
    a(f"v_mul_f32 v{A2}, v{A2}, v{DT}")
    a(f"v_mul_f32 v{W}, {hex(INV2PI)}, v{W}")
    a(f"v_mul_f32 v{A2}, {hex(NLOG2E)}, v{A2}")
    a(f"v_rndne_f32 v{T0}, v{W}")
    a(f"v_mul_f32 v{Y}, v{PR+2}, v{DT}\nv_mul_f32 v{Y+1}, v{PR+3}, v{DT}")
    a(f"v_sub_f32 v{W}, v{W}, v{T0}")
    a(f"v_mul_f32 v{Y}, 2.0, v{Y}\nv_mul_f32 v{Y+1}, -2.0, v{Y+1}")

    def base(dst, mult, conj, T):
        m = {1: "1.0", 8: hex(0x41000000), 128: hex(0x43000000)}[mult]
        a(f"v_mul_f32 v{T}, {m}, v{A2}\nv_mul_f32 v{T+1}, {m}, v{W}")
        a(f"v_exp_f32 v{T}, v{T}\nv_cos_f32 v{dst}, v{T+1}\nv_sin_f32 v{dst+1}, v{T+1}\ns_nop 0")
        a(f"v_mul_f32 v{dst}, v{dst}, v{T}")
        a(f"v_mul_f32 v{dst+1}, {'-' if conj else ''}v{dst+1}, v{T}")

    base(E[1], 1, False, T0)
    base(Z8, 8, True, T1)
    base(G1, 128, False, T2)
    put(0, "1.0", "0")
    putp(1, E[1])
    putp(41, Y)
    cmul(a, E[2], E[1], E[1], T0)
    putp(8, G1)
    cmul(a, E[3], E[2], E[1], T0)
    cmul(a, E[4], E[2], E[2], T1)
    putp(2, E[2])
    cmul(a, E[5], E[4], E[1], T0)
    cmul(a, E[6], E[4], E[2], T1)
    cmul(a, E[7], E[4], E[3], T2)
    for e in range(3, 8):
        putp(e, E[e])
    ops = []
    for e in range(1, 8):
        ops.append(("x", 8 + e, G1, E[e]))
    for g in range(2, 17):
        ops.append(("g", g))
        if g in (2, 3):
            for i, e in enumerate((2, 4, 6)):
                ops.append(("x", 16 + (g - 2) * 4 + 1 + i, GC, E[e]))
        elif g < 8:
            ops.append(("x", 24 + (g - 4) * 2 + 1, GC, E[4]))
    yb = 1
    for k, op in enumerate(ops):
        if op[0] == "x":
            x = XT if (k & 1) else T2
            cmul(a, x, op[2], op[3], x)
            putp(op[1], x)
        else:
            g = op[1]
            cmul(a, GC, G1 if g == 2 else GC, G1, T1)
            row = 16 + (g - 2) * 4 if g < 4 else (24 + (g - 4) * 2 if g < 8 else 32 + (g - 8))
            putp(row, GC)
        if (k & 1) and yb < 16:
            cmul(a, Y, Y, Z8, T0)
            putp(41 + yb, Y)
            yb += 1
    assert yb == 16
    FR = 16
    a("s_waitcnt lgkmcnt(0)")
    for st in range(4):
        f = FR + 16 * st
        if st == 3:
            a("s_waitcnt lgkmcnt(8)")
        a(f"ds_read_b128 {q(f)}, v{VR} offset:{41*TB_RS + 64*st}")
        for t in range(3):
            a(f"ds_read_b128 {q(f+4+4*t)}, v{VR} offset:{16*t*TB_RS + 64*st}")
    a("s_waitcnt vmcnt(0)")
    for i in range(4):
        a(f"v_mov_b32 v{PR+i}, v{PR2+i}")
    for st in range(4):
        f = FR + 16 * st
        a(f"s_waitcnt lgkmcnt({12 - 4*st})")
        for t in range(3):
            a(f"v_mfma_f32_16x16x32_bf16 {q(DK+4*t)}, {q(f+4+4*t)}, {q(f)}, {q(DK+4*t)}")
    a("s_add_u32 s54, s54, 1\ns_cmp_lt_u32 s54, 2\ns_cbranch_scc1 L_kgen")
    a.vm = []


def conv_main(a):
    DK = 80
    a(f"s_mul_i32 s53, s7, {CV_WAVE}")
    a(f"s_mul_i32 s54, s7, 4224\ns_add_u32 s54, s54, {KP_BASE}")
    a(f"s_mul_i32 s55, s7, 3072\ns_add_u32 s55, s55, {PART_BASE}")
    a("v_lshlrev_b32 v7, 4, v1\nv_add_u32 v5, s55, v7")
    a("v_lshlrev_b32 v18, 4, v4\nv_add_u32 v18, s54, v18")
    a("v_lshrrev_b32 v16, 1, v3\nv_and_b32 v17, 1, v3")
    a("v_lshlrev_b32 v19, 8, v16\nv_lshl_add_u32 v19, v17, 3, v19\nv_add_u32 v19, v19, v18")
    a("v_cmp_gt_u32 vcc, 2, v3")
    a("v_lshlrev_b32 v20, 8, v3\nv_add_u32 v20, 512, v20\nv_lshlrev_b32 v21, 9, v3")
    a("v_cndmask_b32 v20, v21, v20, vcc\nv_add_u32 v20, v20, v18")
    for i in range(1, 4):
        a(f"v_mov_b32 v22, {4*i}\nv_mov_b32 v23, {256*(i>>1) + 8*(i&1)}")
        a(f"v_cndmask_b32 v22, v23, v22, vcc\nv_add_u32 v{23+i}, v20, v22")
    a("v_lshlrev_b32 v27, 10, v3\nv_lshl_add_u32 v27, v4, 4, v27\nv_add_u32 v27, 2048, v27\ns_movk_i32 s56, 4112")
    for i in range(4):
        a(f"v_add_u32 v{28+i}, {256*i}, v27\nv_min_u32 v{28+i}, s56, v{28+i}\nv_add_u32 v{28+i}, s54, v{28+i}")
    a("v_sub_u32 v16, 4094, v7\nv_cvt_f32_u32 v16, v16")
    a("v_cmp_eq_u32 s[58:59], 63, v1")
    a("v_add_u32 v17, s53, v7")
    a.stamp(2)
    a("s_barrier")
    for t in range(3):
        a(f"ds_read_b128 {q(40+4*t)}, v5 offset:{1024*t}")
    a("s_waitcnt lgkmcnt(0)")
    for i in range(6):
        a(f"v_pk_add_f32 {q(DK+2*i,2)}, {q(DK+2*i,2)}, {q(40+2*i,2)}")
    for i in range(6):
        a(f"v_cvt_pk_bf16_f32 v{32+i}, v{DK+2*i}, v{DK+2*i+1}")
    a("ds_write_b64 v19, v[32:33]")
    a("ds_write_b16 v20, v34\nds_write_b16_d16_hi v24, v34\nds_write_b16 v25, v35\nds_write_b16_d16_hi v26, v35")
    a("ds_write_b16 v28, v36\nds_write_b16_d16_hi v29, v36\nds_write_b16 v30, v37\nds_write_b16_d16_hi v31, v37")
    a("v_sub_u32 v38, 4080, v7\nv_add_u32 v38, s54, v38")
    a("v_and_b32 v39, 1, v1\nv_cmp_eq_u32 s[60:61], 0, v39")
    a("v_cndmask_b32 v39, 0, 8, s[58:59]\nv_sub_u32 v40, v38, v39\nv_lshrrev_b32 v39, 1, v39\nv_sub_u32 v41, v38, v39")
    a("v_subrev_u32 v38, 2056, v38\nv_subrev_u32 v40, 2056, v40\nv_subrev_u32 v41, 2056, v41")
    AD = 20
    for m in range(0, 12, 2):
        f0 = 64 + m
        a(f"v_add_f32 v{f0}, {hex(f32bits(-3072.0 - 2.0*m))}, v16\nv_add_f32 v{f0+1}, {hex(f32bits(-3072.0 - 2.0*(m+1)))}, v16")
        a(f"v_cvt_pk_bf16_f32 v{f0}, v{f0}, v{f0+1}")
        a.unpack(f0, f0)
        a(f"v_cvt_u32_f32 v{AD+m}, v{f0}\nv_cvt_u32_f32 v{AD+m+1}, v{f0+1}")
        a(f"v_add_u32 v{AD+m}, s54, v{AD+m}\nv_add_u32 v{AD+m+1}, s54, v{AD+m+1}")
    a("s_waitcnt lgkmcnt(0)")
    G = 96
    for r in range(2):
        o = 2056 - 1024 * r
        a(f"ds_read_u16 v{G+4*r}, v38 offset:{o+16}\nds_read_u16 v{G+4*r+1}, v38 offset:{o}")
        a(f"ds_read_u16 v{G+4*r+2}, v{40 if r else 38} offset:{o}")
    o = 2056 - 2048
    a(f"ds_read_u16 v{G+8}, v38 offset:{o+16}\nds_read_u16 v{G+9}, v38 offset:{o+8}\nds_read_u16 v{G+10}, v38 offset:{o}")
    a(f"ds_read_u16 v{G+11}, v41 offset:{o}\nds_read_u16 v{G+12}, v38 offset:{o-8}")
    D = 32
    for m in range(6):
        a(f"ds_read_u16 v{D+m}, v{AD+2*m}")
        if m < 5:
            a(f"ds_read_u16 v{52+m}, v{AD+2*m+1}")

    def wr(r, c0, c1, c2, c3):
        for k, c in enumerate((c0, c1, c2, c3)):
            a(f"ds_write_b128 v17, {q(c)} offset:{CV_A + k*CV_CS + 1024*r}")

    a("s_waitcnt lgkmcnt(15)\ns_waitcnt lgkmcnt(11)")
    for r in range(2):
        A, B, B2 = G + 4 * r, G + 4 * r + 1, G + 4 * r + 2
        Q = 112 + 16 * r
        a(f"v_cndmask_b32 v{G+4*r+3}, v{B}, v{A}, s[60:61]")
        W3 = G + 4 * r + 3
        a(f"v_lshl_or_b32 v{Q}, v{A}, 16, v{A}\nv_lshl_or_b32 v{Q+1}, v{W3}, 16, v{A}\nv_lshl_or_b32 v{Q+2}, v{B}, 16, v{B}")
        a(f"v_mov_b32 v{Q+3}, v{Q+2}\nv_mov_b32 v{Q+4}, v{Q+1}\nv_mov_b32 v{Q+5}, v{Q+2}\nv_mov_b32 v{Q+6}, v{Q+2}\nv_mov_b32 v{Q+7}, v{Q+2}")
        a(f"v_mov_b32 v{Q+8}, v{Q}\nv_lshl_or_b32 v{Q+9}, v{B}, 16, v{W3}\nv_mov_b32 v{Q+10}, v{Q+2}\nv_mov_b32 v{Q+11}, v{Q+2}")
        a(f"v_mov_b32 v{Q+12}, v{Q+9}\nv_mov_b32 v{Q+13}, v{Q+2}\nv_mov_b32 v{Q+14}, v{Q+2}\nv_lshl_or_b32 v{Q+15}, v{B2}, 16, v{B}")
        wr(r, Q + 12, Q + 4, Q + 8, Q)
    P_, Q_, R_, R2, S_ = G + 8, G + 9, G + 10, G + 11, G + 12
    Q = 144
    a(f"v_lshl_or_b32 v{Q}, v{P_}, 16, v{P_}\nv_lshl_or_b32 v{Q+1}, v{Q_}, 16, v{Q_}\nv_lshl_or_b32 v{Q+2}, v{R_}, 16, v{Q_}\nv_lshl_or_b32 v{Q+3}, v{R_}, 16, v{R_}")
    a(f"v_mov_b32 v{Q+4}, v{Q+1}\nv_mov_b32 v{Q+5}, v{Q+2}\nv_mov_b32 v{Q+6}, v{Q+3}\nv_lshl_or_b32 v{Q+7}, v{R2}, 16, v{R_}")
    a(f"v_lshl_or_b32 v{Q+8}, v{Q_}, 16, v{P_}\nv_mov_b32 v{Q+9}, v{Q+1}\nv_mov_b32 v{Q+10}, v{Q+3}\nv_mov_b32 v{Q+11}, v{Q+3}")
    a(f"v_mov_b32 v{Q+12}, v{Q+1}\nv_mov_b32 v{Q+13}, v{Q+3}\nv_mov_b32 v{Q+14}, v{Q+3}\nv_lshl_or_b32 v{Q+15}, v{S_}, 16, v{R2}")
    wr(2, Q + 12, Q + 4, Q + 8, Q)
    a("s_waitcnt lgkmcnt(12)")
    for m in range(5):
        a(f"v_lshl_or_b32 v{D+m}, v{52+m}, 16, v{D+m}")
    a(f"v_cndmask_b32 v{D+4}, v{D+4}, 0, s[58:59]\nv_cndmask_b32 v{D+5}, v{D+5}, 0, s[58:59]")
    C1, C2, C0 = 40, 44, 48
    for m in range(4):
        a(f"v_mov_b32 v{C1+m}, v{D+1+m}")
        a(f"v_alignbit_b32 v{C2+m}, v{D+m+1}, v{D+m}, 16")
        a(f"v_alignbit_b32 v{C0+m}, v{D+m+2}, v{D+m+1}, 16")
    wr(3, C0, C1, C2, D)
    ACC, AS, FS, VA, VF = 16, [48, 112], [80, 144], 10, 11
    T1, XF, DSV = 176, 208, 240
    a(f"v_and_b32 v5, 3, v4\nv_mul_u32_u24 v5, {CV_CS}, v5\nv_lshrrev_b32 v6, 2, v4\nv_lshlrev_b32 v6, 3, v6\nv_sub_u32 v5, v5, v6")
    a(f"v_lshlrev_b32 v6, 4, v3\nv_sub_u32 v5, v5, v6\nv_add_u32 v5, {CV_A + 4104 - 3584 - 448}, v5\nv_add_u32 v{VA}, s53, v5")
    a(f"v_lshlrev_b32 v5, 5, v4\nv_sub_u32 v5, v5, v6\nv_add_u32 v5, {CV_U + 496 - 448}, v5\nv_add_u32 v{VF}, s53, v5")
    a("v_lshlrev_b32 v8, 5, v4\nv_lshl_add_u32 v8, v3, 3, v8\nv_add_u32 v9, s53, v8")
    a("v_lshrrev_b32 v6, 3, v4\ns_mov_b32 s56, 163840\nv_mul_lo_u32 v6, v6, s56")
    a("v_and_b32 v7, 7, v4\nv_lshl_add_u32 v6, v7, 5, v6\nv_lshl_add_u32 v6, v3, 3, v6")
    a(f"v_lshlrev_b32 v{DSV}, 16, v{DSV}")
    a.srd(36, 4, WS_HT, SZ_T)
    a("s_lshl_b32 s55, s52, 8")
    a("s_waitcnt lgkmcnt(0)")
    a.stamp(3)
    a("s_barrier")
    a.stamp(4)
    if EXP & 512:
        a("s_setprio 2")

    def reads(s, c):
        o = []
        ex = 64 * (7 - c)
        for k in range(8):
            o.append(f"ds_read_b128 {q(FS[s]+4*k)}, v{VF} offset:{512*k + ex}")
            o.append(f"ds_read_b64 {q(AS[s]+4*k,2)}, v{VA} offset:{512*(7-k) + ex}")
            o.append(f"ds_read_b64 {q(AS[s]+4*k+2,2)}, v{VA} offset:{512*(7-k) + 8 + ex}")
        return o

    rd0 = reads(0, 0)
    for i, r in enumerate(rd0):
        a(r)
        if i == 11:
            a("s_waitcnt lgkmcnt(6)")
    fu, fx = [], []
    for nb in range(8):
        for hh in range(2):
            p = T1 + 4 * nb + 2 * hh
            src = T1 + 4 * nb + 2 + hh
            if hh == 0:
                fu += [f"v_lshlrev_b32 v{p}, 16, v{src}", f"v_and_b32 v{p+1}, 0xffff0000, v{src}"]
            else:
                fu += [f"v_lshlrev_b32 v{p}, 16, v{src}", f"v_and_b32 v{p+1}, 0xffff0000, v{src}"]
            fu += [f"v_pk_mul_f32 {q(p,2)}, {q(p,2)}, {q(DSV,2)} op_sel_hi:[1,0]",
                   f"v_cvt_pk_bf16_f32 v{p}, v{p}, v{p+1}",
                   f"v_and_b32 v{p+1}, 0xffff0000, v{p}", f"v_lshlrev_b32 v{p}, 16, v{p}"]
            p = XF + 4 * nb + 2 * hh
            src = XF + 4 * nb + 2 + hh
            fx += [f"v_lshlrev_b32 v{p}, 16, v{src}", f"v_and_b32 v{p+1}, 0xffff0000, v{src}"]
    fill = {c: fu[16 * (c - 1):16 * c] for c in range(1, 7)}
    fill[0] = [f"ds_read_b64 {q(T1+4*nb+2,2)}, v9 offset:{CV_U + 480 + 512*nb}" for nb in range(8)]
    fill[0] += [f"ds_read_b64 {q(XF+4*nb+2,2)}, v9 offset:{CV_X + 512*nb}" for nb in range(8)]
    fill[7] = fx
    for c in range(8):
        s = c & 1
        a("s_waitcnt lgkmcnt(0)")
        rd = reads(1 - s, c + 1) if c < 7 else []
        fl = list(fill[c])
        i = 0
        for aa in range(8):
            for m in range(8 - aa):
                cc = q(ACC + 4 * (aa + m)) if (c or aa) else "0"
                a(f"v_mfma_f32_16x16x32_bf16 {q(ACC+4*(aa+m))}, {q(AS[s]+4*aa)}, {q(FS[s]+4*m)}, {cc}")
                if i < len(rd) and rd[i]:
                    a(rd[i])
                    if i in (11, 19):
                        a("s_waitcnt lgkmcnt(8)")
                if (i >= 20 or c == 7) and fl:
                    a(fl.pop(0))
                i += 1
        assert not fl
    a.stamp(5)
    a("s_nop 4")
    for nb in range(8):
        y = ACC + 4 * nb
        o = 48 + 2 * nb
        for hh in range(2):
            t = y + 2 * hh
            a(f"v_cvt_pk_bf16_f32 v{t}, v{t}, v{t+1}")
            a.unpack(t, t)
            a(f"v_pk_add_f32 {q(t,2)}, {q(t,2)}, {q(T1+4*nb+2*hh,2)}")
            a(f"v_cvt_pk_bf16_f32 v{t}, v{t}, v{t+1}")
            a.unpack(t, t)
            a(f"v_pk_add_f32 {q(t,2)}, {q(t,2)}, {q(XF+4*nb+2*hh,2)}")
            a(f"v_cvt_pk_bf16_f32 v{o+hh}, v{t}, v{t+1}")
        a.vmem(f"buffer_store_dwordx2 {q(o,2)}, v6, s[36:39], s55 offen {SC}")
        a(f"s_add_u32 s55, s55, {2*163840}")
    a.stamp(6)
    a("s_waitcnt vmcnt(0)")
    last_of4_publish(a, LDS_CNT, F_C, 2, 120)


def conv_partner(a):
    DK = 80
    a(f"s_mul_i32 s53, s7, {CV_WAVE}")
    a(f"s_mul_i32 s55, s7, 3072\ns_add_u32 s55, s55, {PART_BASE}")
    a("v_lshlrev_b32 v7, 4, v1\nv_add_u32 v5, s55, v7")
    a("v_mov_b32 v20, 0\nv_mov_b32 v21, 0\nv_mov_b32 v22, 0\nv_mov_b32 v23, 0")
    a("v_add_u32 v9, s53, v7")
    a(f"v_lshrrev_b32 v16, 1, v1\nv_mul_u32_u24 v16, {CV_CS}, v16\nv_and_b32 v17, 1, v1\nv_lshl_add_u32 v16, v17, 4, v16\nv_add_u32 v16, s53, v16")
    for t in range(3):
        a(f"ds_write_b128 v5, {q(DK+4*t)} offset:{1024*t}")
    a.stamp(2)
    a.srd(32, 4, WS_XT, SZ_TP)
    a.srd(36, 4, WS_ST, 16384)
    a(f"s_lshl_b32 s54, s2, 8\ns_mul_i32 s61, s7, {16*T_BLK}\ns_add_u32 s54, s54, s61\ns_lshl_b32 s61, s7, 11\ns_add_u32 s62, s61, 8192")
    a(f"v_lshrrev_b32 v8, 2, v1\nv_mul_u32_u24 v8, {T_BLK}, v8\nv_and_b32 v14, 3, v1\nv_lshl_add_u32 v8, v14, 4, v8")
    a("v_lshlrev_b32 v14, 5, v1\ns_lshl_b32 s63, s7, 10\nv_add_u32 v15, s63, v7")
    a("s_waitcnt lgkmcnt(0)\ns_barrier")
    a("s_mov_b64 exec, 0x3fffffff")
    a(f"ds_write_b128 v9, v[20:23] offset:{CV_U}")
    a("s_mov_b64 exec, 0xff")
    a(f"ds_write_b128 v16, v[20:23] offset:{CV_A + 4096}")
    a("s_mov_b64 exec, -1")
    a.poll(F_L, 64, 24, fast=True)
    a.stamp(3)
    XR, NM, RI, U = 32, 48, 56, 64
    for k in range(2):
        a.vmem(f"buffer_load_dwordx4 {q(NM+4*k)}, v14, s[36:39], s61 offen offset:{16*k} {SC}", "st")
        a.vmem(f"buffer_load_dwordx4 {q(RI+4*k)}, v14, s[36:39], s62 offen offset:{16*k} {SC}", "st")
    for ch in range(4):
        a.vmem(f"buffer_load_dwordx4 {q(XR+4*ch)}, v8, s[32:35], s54 offen offset:{64*ch} {SC}", ("x", ch))
    for ch in range(4):
        a.wait_vm(("x", ch))
        for i in range(4):
            t = 80 + 2 * i
            a.unpack(t, XR + 4 * ch + i)
            a(f"v_pk_add_f32 {q(t,2)}, {q(t,2)}, {q(NM+2*i,2)}")
            a(f"v_cvt_pk_bf16_f32 v{t}, v{t}, v{t+1}")
            a.unpack(t, t)
            a(f"v_pk_mul_f32 {q(t,2)}, {q(t,2)}, {q(RI+2*i,2)}")
            a(f"v_cvt_pk_bf16_f32 v{U+4*ch+i}, v{t}, v{t+1}")
        if ch == 2:
            a(f"v_add_u32 v15, {2*CV_WAVE}, v15")
        a(f"ds_write_b128 v15, {q(U+4*ch)} offset:{CV_U + 480 + CV_WAVE*(ch&1)}")
        a(f"ds_write_b128 v15, {q(XR+4*ch)} offset:{CV_X + CV_WAVE*(ch&1)}")
    a("s_waitcnt lgkmcnt(0)")
    a.stamp(4)
    a("s_barrier")


G1_H = 5120
G1_HN = 5
G1_W = 87040
G1_WN = 3
G1_CONST = 0
G1_CS = 2048
G1_SP = 3072
G2_H, G2_HN, G2_W, G2_WN = G1_H, 3, 61440, 5
LDS_TOTAL = 163840


def tile_ids(a):
    a("s_and_b32 s12, s2, 7\ns_lshr_b32 s13, s2, 3\ns_and_b32 s14, s13, 7\ns_lshr_b32 s15, s13, 3")
    a("s_and_b32 s8, s12, 1\ns_lshl_b32 s8, s8, 3\ns_add_u32 s8, s8, s14")
    a("s_lshr_b32 s9, s12, 1\ns_lshl_b32 s10, s9, 3\ns_lshl_b32 s9, s9, 2\ns_add_u32 s9, s9, s15")
    a("s_add_u32 s10, s10, s14")
    a("s_and_b32 s11, s12, 1\ns_lshl_b32 s11, s11, 2\ns_add_u32 s11, s11, s15")
    a("v_bfe_u32 v5, v1, 2, 2")
    a("v_lshl_add_u32 v6, v3, 2, v5\nv_lshlrev_b32 v6, 8, v6")
    a("v_and_b32 v7, 3, v1\nv_lshl_add_u32 v6, v7, 3, v6")
    a("v_and_b32 v7, 1, v3\nv_lshl_add_u32 v5, v7, 2, v5")


def gemm_mfma_waves(a, done):
    tile_ids(a)
    if EXP & 16:
        sk = a.newlabel("L_nowarm")
        a(f"s_cmp_lt_u32 s2, 160\ns_cbranch_scc1 {sk}")
        a("s_sub_u32 s16, s13, 20\ns_lshl_b32 s16, s16, 2\ns_add_u32 s16, s16, s7\ns_mul_i32 s16, s16, 20480")
        a("v_lshlrev_b32 v8, 4, v1")
        for which in range(2):
            if which == 0:
                a(f"s_lshr_b32 s17, s12, 1\ns_mul_i32 s18, s17, {80*FS_}\ns_mul_i32 s17, s17, 983040")
                a.srd(32, 4, WS_W13, SZ_W13)
                a.poll(F_R, 80, 120, "s18")
            else:
                a("s_and_b32 s17, s12, 1\ns_mul_i32 s17, s17, 983040")
                a.srd(32, 4, WS_W2, SZ_W2)
                a.poll(F_R2, 32, 120)
            a("s_add_u32 s17, s17, s16")
            for i in range(20):
                a(f"buffer_load_dwordx4 {q(24+4*i)}, v8, s[32:35], s17 offen offset:{1024*(i%4)}")
                if i % 4 == 3:
                    a("s_add_u32 s17, s17, 4096")
        a("s_waitcnt vmcnt(0)")
        a.label(sk)
    a("s_barrier")
    if EXP & 1024:
        a("s_setprio 2")
    elif EXP & 512:
        a("s_setprio 0")
    a("s_and_b32 s16, s7, 1\ns_lshr_b32 s17, s7, 1")
    a("s_lshl_b32 s18, s16, 2\nv_xor_b32 v5, s18, v5")
    for nt in range(4):
        a(f"v_xor_b32 v7, {nt}, v5\nv_lshl_add_u32 v{12+nt}, v7, 5, v6")
    a("v_lshlrev_b32 v16, 4, v1\ns_mul_i32 s18, s17, 6144\nv_add_u32 v16, s18, v16")
    ACC, HS, AD = 24, [120, 160], 17
    for i in range(96):
        a(f"v_mov_b32 v{ACC+i}, 0")

    def reads(s, half):
        o = []
        for nt in range(4):
            r = HS[s] + 4 * nt
            o.append(f"ds_read_b64_tr_b16 {q(r,2)}, v{AD+nt} offset:{8192*half}")
            o.append(f"ds_read_b64_tr_b16 {q(r+2,2)}, v{AD+nt} offset:{8192*half + 4096}")
        for t in range(6):
            o.append(f"ds_read_b128 {q(HS[s]+16+4*t)}, v{AD+4} offset:{12288*half + 1024*t}")
        return o

    def setad(hs, ws):
        return [f"v_add_u32 v{AD+i}, {hs}, v{12+i}" for i in range(4)] + [f"v_add_u32 v{AD+4}, {ws}, v16"]

    for x in setad(G1_H, G1_W):
        a(x)
    a(f"s_mov_b32 s19, {G1_H}\ns_mov_b32 s20, {G1_W}\ns_mov_b32 s21, 0")
    a.srd(32, 4, WS_HM, SZ_HM)
    a.stamp(7)
    sk = a.newlabel("L_nopoll")
    a(f"s_cmp_lg_u32 s6, 0\ns_cbranch_scc1 {sk}")
    a.poll(F_R2, 32, 120)
    a.poll(F_C, 160, 120, fast=True)
    a(f"s_cmp_lg_u32 s2, 0\ns_cbranch_scc1 {sk}")
    a("v_mov_b32 v120, s3\nv_mov_b32 v121, 0\ns_mov_b64 exec, 1")
    a("buffer_store_dword v120, v121, s[92:95], 0 offen\ns_mov_b64 exec, -1")
    a.label(sk)
    a("s_barrier")
    a.stamp(8)
    a("s_waitcnt vmcnt(0)\ns_barrier")
    a.stamp(9)
    for x in reads(0, 0):
        a(x)
    a.label("L_g1")
    for s in range(2):
        if s == 0:
            a(f"s_add_u32 s19, s19, 16384\ns_cmp_eq_u32 s19, {G1_H + G1_HN*16384}\ns_cselect_b32 s19, {G1_H}, s19")
            a(f"s_add_u32 s20, s20, 24576\ns_cmp_eq_u32 s20, {G1_W + G1_WN*24576}\ns_cselect_b32 s20, {G1_W}, s20")
            a("s_waitcnt lgkmcnt(0)")
            rest = reads(1, 1) + setad("s19", "s20")
        else:
            a("s_waitcnt lgkmcnt(0)\ns_barrier")
            rest = reads(0, 0)
        i = 0
        for t in range(6):
            for nt in range(4):
                ac = ACC + 4 * (t * 4 + nt)
                a(f"v_mfma_f32_16x16x32_bf16 {q(ac)}, {q(HS[s]+16+4*t)}, {q(HS[s]+4*nt)}, {q(ac)}")
                if i < len(rest):
                    a(rest[i])
                i += 1
    a("s_add_u32 s21, s21, 1\ns_cmp_lt_u32 s21, 10\ns_cbranch_scc1 L_g1")
    a.stamp(10)
    a("s_lshl_b32 s18, s16, 10\nv_lshlrev_b32 v5, 4, v4\nv_add_u32 v5, s18, v5")
    a("s_mul_i32 s18, s17, 384\nv_lshlrev_b32 v6, 4, v3\nv_add_u32 v6, s18, v6")
    a("s_lshl_b32 s22, s8, 1\ns_add_u32 s22, s22, s16\ns_mul_i32 s22, s22, 48")
    a("s_mul_i32 s23, s9, 3\ns_add_u32 s22, s22, s23")
    a("s_lshl_b32 s23, s17, 1\ns_add_u32 s23, s23, s22\ns_lshl_b32 s23, s23, 12")
    a("s_add_u32 s22, s22, 1\ns_lshl_b32 s22, s22, 12\ns_lshl_b32 s18, s17, 9\ns_add_u32 s22, s22, s18")
    a("v_and_b32 v7, 1, v3\nv_lshlrev_b32 v7, 10, v7\nv_lshrrev_b32 v8, 1, v3\nv_lshl_add_u32 v7, v8, 8, v7\nv_lshl_add_u32 v7, v4, 4, v7")
    a("s_waitcnt lgkmcnt(0)\ns_barrier")
    KC, CSR = 184, 160
    for nt in range(4):
        a(f"ds_read_b128 {q(KC+4*nt)}, v5 offset:{G1_CONST + 256*nt}")
    for t in range(6):
        a(f"ds_read_b128 {q(CSR+4*t)}, v6 offset:{G1_CS + 64*t}")
    a("v_lshlrev_b32 v5, 4, v1")
    a("s_waitcnt lgkmcnt(0)")
    a.stamp(11)
    T = 120
    for nt in range(4):
        O = 144 + 4 * (nt & 1)
        k = KC + 4 * nt
        for jj in range(3):
            g = ACC + 4 * (jj * 4 + nt)
            u = ACC + 4 * ((3 + jj) * 4 + nt)
            for hh in range(2):
                g2, u2 = g + 2 * hh, u + 2 * hh
                a(f"v_pk_fma_f32 {q(g2,2)}, {q(CSR+4*jj+2*hh,2)}, {q(k,2)}, {q(g2,2)} op_sel_hi:[1,0,1]")
                a(f"v_pk_fma_f32 {q(u2,2)}, {q(CSR+4*(3+jj)+2*hh,2)}, {q(k,2)}, {q(u2,2)} op_sel_hi:[1,0,1]")
            for hh in range(2):
                a(f"v_pk_mul_f32 {q(T+2*hh,2)}, {q(g+2*hh,2)}, {q(k,2)} op_sel:[0,1] op_sel_hi:[1,1]")
            for i in range(4):
                a(f"v_exp_f32 v{T+i}, v{T+i}")
            for hh in range(2):
                a(f"v_pk_mul_f32 {q(g+2*hh,2)}, {q(g+2*hh,2)}, {q(u+2*hh,2)}")
            for hh in range(2):
                a(f"v_pk_fma_f32 {q(T+2*hh,2)}, {q(T+2*hh,2)}, {q(k+2,2)}, {q(k+2,2)} op_sel_hi:[1,0,0]")
            for i in range(4):
                a(f"v_rcp_f32 v{T+i}, v{T+i}")
            a("s_nop 0")
            for hh in range(2):
                a(f"v_pk_mul_f32 {q(g+2*hh,2)}, {q(g+2*hh,2)}, {q(T+2*hh,2)}")
            for hh in range(2):
                d = O + 2 * jj + hh if jj < 2 else 152 + 4 * (nt >> 1) + 2 * (nt & 1) + hh
                a(f"v_cvt_pk_bf16_f32 v{d}, v{g+2*hh}, v{g+2*hh+1}")
            if jj == 1:
                a(f"buffer_store_dwordx4 {q(O)}, v5, s[32:35], s23 offen offset:{1024*nt} {SC}")
        if nt & 1:
            S = 152 + 4 * (nt >> 1)
            a(f"s_nop 1\nv_permlane16_swap_b32 v{S}, v{S+2}\nv_permlane16_swap_b32 v{S+1}, v{S+3}")
            a(f"buffer_store_dwordx4 {q(S)}, v7, s[32:35], s22 offen offset:{1024*(nt-1)} {SC}")
    a.stamp(12)
    a.vm = []
    ACC, FS, RES, VW, VH = 16, [56, 84], 112, 132, 134
    a("s_lshl_b32 s22, s16, 1\ns_add_u32 s22, s22, s17")
    a("s_lshr_b32 s18, s10, 1\ns_mul_i32 s18, s18, 163840\ns_mul_i32 s19, s11, 20480\ns_add_u32 s18, s18, s19")
    a("s_and_b32 s19, s10, 1\ns_lshl_b32 s19, s19, 7\ns_add_u32 s18, s18, s19\ns_lshl_b32 s19, s22, 5\ns_add_u32 s18, s18, s19")
    a("v_lshlrev_b32 v10, 1, v4\nv_lshl_add_u32 v11, v3, 10, v10\nv_lshl_add_u32 v10, v3, 11, v10")
    a("s_add_u32 s19, s18, 8192\ns_add_u32 s20, s18, 16384")
    a.srd(36, 4, WS_HT, SZ_T)
    a.srd(40, 30, 0, SZ_T)
    a("s_lshl_b32 s21, s8, 4\ns_add_u32 s21, s21, s9")
    a("s_waitcnt vmcnt(0)")
    last_of4_publish(a, LDS_CNT2, F_G, 21, 140)
    a.stamp(13)
    sk = a.newlabel("L_nopub")
    a(f"s_cmp_lg_u32 s6, 0\ns_cbranch_scc1 {sk}")
    a(f"s_lshr_b32 s21, s10, 1\ns_mul_i32 s21, s21, {16*FS_}")
    a.poll(F_G, 16, 140, "s21", fast=True)
    a.label(sk)
    a("s_barrier")
    if EXP & 4:
        a(f"s_mul_i32 s21, s10, {48*4096}\ns_lshl_b32 s23, s15, 2\ns_add_u32 s23, s23, s7\ns_mul_i32 s23, s23, 12288\ns_add_u32 s21, s21, s23")
        for i in range(12):
            a.vmem(f"buffer_load_dwordx4 {q(144+4*i)}, v5, s[32:35], s21 offen offset:{1024*(i%4)} {SC}", "warm")
            if i % 4 == 3:
                a("s_add_u32 s21, s21, 4096")
    for p in range(2):
        for e in range(8):
            a.vmem(f"buffer_load_ushort v{RES+8*p+e}, v10, s[36:39], s{18+p} offen offset:{256*e} {SC}", "res")
    for e in range(4):
        a.vmem(f"buffer_load_ushort v{RES+16+e}, v11, s[36:39], s20 offen offset:{256*e} {SC}", "res")
    for i in range(40):
        a(f"v_mov_b32 v{ACC+i}, 0")
    a(f"s_lshl_b32 s19, s17, 12\ns_lshl_b32 s21, s22, 10\ns_add_u32 s19, s19, s21\nv_add_u32 v{VH}, s19, v5")
    a(f"v_xor_b32 v{VH+1}, 1024, v{VH}\nv_add_u32 v{VH}, {G2_H}, v{VH}\nv_add_u32 v{VH+1}, {G2_H}, v{VH+1}")
    a(f"s_mul_i32 s19, s17, 5120\nv_add_u32 v{VW}, s19, v5")
    a(f"v_mov_b32 v{VH+2}, v{VH}\nv_mov_b32 v{VH+3}, v{VH+1}\nv_add_u32 v{VW+1}, {G2_W + 3*20480}, v{VW}")
    a(f"s_mov_b32 s23, 0\ns_mov_b32 s24, {G2_W + 3*20480}")

    def reads2(kk, s):
        o = [f"ds_read_b128 {q(FS[s]+20+4*j)}, v{VH+2+j} offset:{kk*8192}" for j in range(2)]
        o += [f"ds_read_b128 {q(FS[s]+4*t)}, v{VW+1} offset:{kk*10240 + 1024*t}" for t in range(5)]
        return o

    a("s_lshl_b32 s18, s10, 6\ns_lshl_b32 s19, s22, 4\ns_add_u32 s18, s18, s19\ns_mul_i32 s18, s18, 1280\ns_mul_i32 s19, s11, 160\ns_add_u32 s18, s18, s19")
    a("v_mul_u32_u24 v10, 1280, v4\nv_lshl_add_u32 v11, v3, 3, v10\nv_lshl_add_u32 v10, v3, 4, v10")
    a(f"s_mul_i32 s19, s7, 5120\ns_add_u32 s19, s19, {G2_W + 2*20480}\nv_add_u32 v6, s19, v5")
    a(f"s_xor_b32 s19, s7, 2\ns_mul_i32 s19, s19, 5120\ns_add_u32 s19, s19, {G2_W + 2*20480}\nv_add_u32 v7, s19, v5")
    a("s_mov_b32 s21, 0")
    a("s_barrier")
    a.stamp(14)
    for x in reads2(0, 0):
        a(x)
    a.label("L_g2")
    for s in range(2):
        if s == 0:
            a(f"s_add_u32 s23, s23, 16384\ns_cmp_eq_u32 s23, {G2_HN*16384}\ns_cselect_b32 s23, 0, s23")
            a(f"s_add_u32 s24, s24, 20480\ns_cmp_eq_u32 s24, {G2_W + G2_WN*20480}\ns_cselect_b32 s24, {G2_W}, s24")
            a("s_waitcnt lgkmcnt(0)")
            rd = reads2(1, 1) + [f"v_add_u32 v{VH+2}, s23, v{VH}", f"v_add_u32 v{VH+3}, s23, v{VH+1}", f"v_add_u32 v{VW+1}, s24, v{VW}"]
        else:
            a("s_waitcnt lgkmcnt(0)\ns_barrier")
            rd = reads2(0, 0)
        i = 0
        for t in range(5):
            for j in range(2):
                ac = ACC + 4 * (5 * j + t)
                if not EXP & 32:
                    a(f"v_mfma_f32_16x16x32_bf16 {q(ac)}, {q(FS[s]+4*t)}, {q(FS[s]+20+4*j)}, {q(ac)}")
                for x in rd[2*i:2*i+2]:
                    a(x)
                i += 1
    a("s_add_u32 s21, s21, 1\ns_cmp_lt_u32 s21, 12\ns_cbranch_scc1 L_g2")
    a("s_nop 5")
    for t in range(5):
        a(f"ds_write_b128 v6, {q(ACC+20+4*t)} offset:{1024*t}")
    a("s_waitcnt lgkmcnt(0)\ns_barrier")
    for t in range(5):
        a(f"ds_read_b128 {q(ACC+20+4*t)}, v7 offset:{1024*t}")
    a.wait_vm("res")
    for i in range(20):
        a(f"v_lshlrev_b32 v{RES+i}, 16, v{RES+i}")
    a("s_waitcnt lgkmcnt(0)")
    O = 56
    for i in range(10):
        y = ACC + 2 * i
        a(f"v_pk_add_f32 {q(y,2)}, {q(y,2)}, {q(y+20,2)}")
        a(f"v_cvt_pk_bf16_f32 v{y}, v{y}, v{y+1}")
        a.unpack(y, y)
        a(f"v_pk_add_f32 {q(y,2)}, {q(y,2)}, {q(RES+2*i,2)}")
        a(f"v_cvt_pk_bf16_f32 v{O+i}, v{y}, v{y+1}")
        if i == 3:
            a(f"buffer_store_dwordx4 {q(O)}, v10, s[40:43], s18 offen {SCO}")
        if i == 7:
            a(f"buffer_store_dwordx4 {q(O+4)}, v10, s[40:43], s18 offen offset:64 {SCO}")
    a(f"buffer_store_dwordx2 {q(O+8,2)}, v11, s[40:43], s18 offen offset:128 {SCO}")
    a(f"s_branch {done}")


def gemm_loader_waves(a, done):
    a.vm = []
    tile_ids(a)
    a("s_mul_i32 s22, s8, 163840\ns_add_u32 s23, s22, 163840")
    a(f"s_mul_i32 s24, s9, {20*12288}\ns_add_u32 s25, s24, {20*12288}")
    a("s_lshr_b32 s20, s9, 3\ns_mul_i32 s20, s20, 5")
    a("s_lshl_b32 s16, s20, 14\ns_add_u32 s16, s16, s22\ns_mul_i32 s17, s20, 24576\ns_add_u32 s17, s17, s24")
    a("s_lshl_b32 s18, s7, 12\ns_mul_i32 s19, s7, 6144")
    a("v_lshrrev_b32 v12, 1, v4\nv_xor_b32 v12, v12, v3\nv_lshlrev_b32 v12, 5, v12")
    a("v_and_b32 v7, 1, v4\nv_lshlrev_b32 v7, 4, v7\nv_lshl_add_u32 v7, v3, 8, v7\nv_add_u32 v7, s18, v7")
    a("v_add_u32 v8, v7, v12\nv_xor_b32 v12, 128, v12\nv_add_u32 v9, v7, v12")
    if EXP & 2048:
        a("v_lshlrev_b32 v8, 4, v1\nv_add_u32 v8, s18, v8\nv_mov_b32 v9, v8")
    a("v_lshlrev_b32 v10, 4, v1\nv_add_u32 v10, s19, v10\nv_add_u32 v11, 4096, v10")
    a.srd(32, 4, WS_HT, SZ_T)
    a.srd(36, 4, WS_W13, SZ_W13)
    a.srd(40, 4, WS_CSP, SZ_CSP)
    a(f"s_mul_i32 s20, s9, {20*FS_}")
    a.poll(F_R, 20, 20, "s20")
    a.stamp(5)

    def issue_w(st):
        slot = G1_W + (st % G1_WN) * 24576
        if EXP & 4096 and st > 2:
            a.vm.append(("w", st))
            return
        a(f"s_add_u32 m0, s19, {slot}\ns_nop 0")
        for i in range(4):
            a.vmem(f"buffer_load_dwordx4 v10, s[36:39], s17 offen offset:{1024*i} {SCL} lds", ("w", st))
        a(f"s_add_u32 m0, s19, {slot + 4096}\ns_nop 0")
        for i in range(2):
            a.vmem(f"buffer_load_dwordx4 v11, s[36:39], s17 offen offset:{1024*i} {SCL} lds", ("w", st))
        a("s_add_u32 s17, s17, 24576\ns_cmp_eq_u32 s17, s25\ns_cselect_b32 s17, s24, s17")

    def issue_h(st):
        slot = G1_H + (st % G1_HN) * 16384
        if EXP & 8192 and st > 0:
            a.vm.append(("h", st))
            return
        a(f"s_add_u32 m0, s18, {slot}\ns_nop 0")
        for i in range(4):
            a.vmem(f"buffer_load_dwordx4 v{8 + (i&1)}, s[32:35], s16 offen offset:{1024*i} {SCL} lds", ("h", st))
        a("s_add_u32 s16, s16, 16384\ns_cmp_eq_u32 s16, s23\ns_cselect_b32 s16, s22, s16")

    CS = 40
    a("v_and_b32 v13, 255, v0\nv_lshlrev_b32 v13, 2, v13\ns_mul_i32 s20, s9, 15360")
    for ks in range(20):
        if ks and ks % 5 == 0:
            a("s_add_u32 s20, s20, 3840")
        a.vmem(f"buffer_load_dword v{CS+ks}, v13, s[40:43], s20 offen offset:{768*(ks % 5)} {SC}", "cs")
    SA = 14
    a("s_and_b32 s20, s9, 7\nv_xor_b32 v5, s20, v5\nv_lshl_add_u32 v14, v5, 5, v6\nv_add_u32 v15, 49152, v14")
    ONE, SACC, SF = 20, 24, 32
    for i in range(4):
        a(f"v_mov_b32 v{ONE+i}, {hex(ONES_BF)}")
    for i in range(8):
        a(f"v_mov_b32 v{SACC+i}, 0")
    a.wait_vm("cs")
    for ks in range(1, 20):
        a(f"v_add_f32 v{CS}, v{CS}, v{CS+ks}")
    a("v_and_b32 v7, 3, v4\nv_cmp_eq_u32 s[52:53], 1, v7\nv_cmp_eq_u32 s[54:55], 2, v7\nv_cmp_eq_u32 s[56:57], 3, v7")
    a("v_lshrrev_b32 v7, 2, v4\nv_cmp_eq_u32 s[58:59], v7, v3")
    a(f"s_mul_i32 s60, s11, {48*5120}\ns_mul_i32 s62, s10, {48*4096}\ns_mul_i32 s28, s7, 5120")
    a(f"s_add_u32 s61, s60, {48*5120}\ns_add_u32 s63, s62, {48*4096}")
    a(f"s_mul_i32 s26, s15, {3*20480 if EXP & 2 else 0}\ns_add_u32 s26, s26, s60\ns_mul_i32 s27, s15, {3*16384 if EXP & 2 else 0}\ns_add_u32 s27, s27, s62")
    a("v_lshlrev_b32 v60, 4, v1\nv_add_u32 v61, s18, v60\nv_add_u32 v60, s28, v60\nv_add_u32 v62, 4096, v60")
    a.srd(40, 4, WS_W2, SZ_W2)
    a.srd(44, 4, WS_HM, SZ_HM)
    a.stamp(6)
    a("s_barrier")
    for st in range(G1_WN):
        issue_w(st)
    a.stamp(7)
    a("s_barrier")
    a(f"ds_write_b32 v13, v{CS} offset:{G1_CS}")
    a(f"v_mov_b32 v16, 0\nds_write_b32 v16, v16 offset:{LDS_CNT2}")
    issue_h(0); issue_h(1)
    a.wait_vm(("h", 0))
    a.stamp(8)
    a("s_barrier")
    issue_h(2); issue_h(3); issue_h(4)

    def issue_w2(st):
        slot = G2_W + ((st + 3) % G2_WN) * 20480
        if EXP & 128 and st > 2:
            a.vm.append(("w2", st))
            return
        a(f"s_add_u32 m0, s28, {slot}\ns_nop 0")
        for i in range(4):
            a.vmem(f"buffer_load_dwordx4 v60, s[40:43], s26 offen offset:{1024*i} {SCL} lds", ("w2", st))
        a(f"s_add_u32 m0, s28, {slot + 4096}\ns_nop 0")
        a.vmem(f"buffer_load_dwordx4 v62, s[40:43], s26 offen {SCL} lds", ("w2", st))
        a("s_add_u32 s26, s26, 20480\ns_cmp_eq_u32 s26, s61\ns_cselect_b32 s26, s60, s26")

    def issue_hm(st):
        slot = G2_H + (st % G2_HN) * 16384
        if EXP & 64 and st > 0:
            a.vm.append(("hm", st))
            return
        a(f"s_add_u32 m0, s18, {slot}\ns_nop 0")
        for i in range(4):
            a.vmem(f"buffer_load_dwordx4 v61, s[44:47], s27 offen offset:{1024*i} {SCL} lds", ("hm", st))
        a("s_add_u32 s27, s27, 16384\ns_cmp_eq_u32 s27, s63\ns_cselect_b32 s27, s62, s27")

    a.srd(48, 4, WS_GR, 16 * 4096)
    a("s_and_b32 s20, s7, 1\ns_lshl_b32 s20, s20, 13\nv_add_u32 v14, s20, v14\nv_add_u32 v15, s20, v15")
    for s in range(10):
        slot = s % G1_HN
        dostat = s < 5
        if dostat:
            sk = a.newlabel("L_nost")
            a(f"s_lshr_b32 s20, s7, 1\ns_cmp_lg_u32 s20, {s & 1}\ns_cbranch_scc1 {sk}")
            off = G1_H + (slot % 3) * 16384
            a(f"ds_read_b64_tr_b16 {q(SF,2)}, v{SA + slot//3} offset:{off}")
            a(f"ds_read_b64_tr_b16 {q(SF+2,2)}, v{SA + slot//3} offset:{off + 4096}")
            a("s_waitcnt lgkmcnt(0)")
            a(f"v_mfma_f32_16x16x32_bf16 {q(SACC)}, {q(ONE)}, {q(SF)}, {q(SACC)}")
            a(f"v_mfma_f32_16x16x32_bf16 {q(SACC+4)}, {q(SF)}, {q(SF)}, {q(SACC+4)}")
            a.label(sk)
        if s == 8:
            a("s_lshl_b32 s20, s8, 12\ns_lshl_b32 s21, s7, 9\ns_add_u32 s20, s20, s21")
            a("v_and_b32 v7, 31, v1\nv_lshlrev_b32 v7, 4, v7\nv_lshrrev_b32 v36, 5, v1\nv_lshl_add_u32 v36, v36, 11, v7\nv_add_u32 v7, s21, v7\ns_mov_b32 s84, 0")
            L, D = a.newlabel("L_gp"), a.newlabel("L_gpd")
            a.label(L)
            a(f"buffer_load_dwordx4 {q(40)}, v36, s[48:51], s20 offen {SC}")
            a(f"s_add_u32 s84, s84, 1\ns_waitcnt vmcnt(0)\nv_cmp_ne_u32 vcc, s3, v42\ns_cbranch_vccz {D}")
            a(f"s_sleep 2\ns_cmp_lt_u32 s84, {POLL_MAX}\ns_cbranch_scc1 {L}")
            a.label(D)
            a("v_mov_b32 v44, v40\nv_mov_b32 v45, v41\ns_nop 1\nv_permlane32_swap_b32 v40, v44\nv_permlane32_swap_b32 v41, v45")
            a("v_add_f32 v40, v40, v44\nv_add_f32 v41, v41, v45")
            ln_finish(a, 40, 41, 42, 44, 45)
            a(f"v_mul_f32 v45, {hex(NLOG2E)}, v45\nv_mul_f32 v46, v42, v42\nv_mov_b32 v47, 0")
            a(f"ds_write_b128 v7, {q(44)} offset:{G1_CONST}")
        if s >= 1:
            if s + 2 < 10:
                issue_w(s + 2)
            elif s == 9:
                issue_w2(0); issue_w2(1)
            if s + 4 < 10:
                issue_h(s + 4)
        if s == 4:
            sq = SACC + 4
            a("s_nop 4")
            a(f"v_cndmask_b32 v{sq}, v{sq}, v{sq+1}, s[52:53]\nv_cndmask_b32 v{sq}, v{sq}, v{sq+2}, s[54:55]\nv_cndmask_b32 v{SACC+1}, v{sq}, v{sq+3}, s[56:57]")
            a(f"s_lshl_b32 s20, s7, 7\nv_lshlrev_b32 v7, 3, v4\nv_add_u32 v7, s20, v7\ns_mov_b64 exec, s[58:59]")
            a(f"ds_write_b64 v7, {q(SACC,2)} offset:{G1_SP}\ns_mov_b64 exec, -1\ns_waitcnt lgkmcnt(0)")
        if s == 5:
            sk = a.newlabel("L_nogr")
            a(f"s_cmp_lg_u32 s7, 3\ns_cbranch_scc1 {sk}")
            a("v_lshlrev_b32 v7, 3, v4")
            for w in range(4):
                a(f"ds_read_b64 {q(SF+2*w,2)}, v7 offset:{G1_SP + 128*w}")
            a("s_lshl_b32 s20, s8, 1\ns_lshr_b32 s21, s9, 3\ns_add_u32 s20, s20, s21\ns_lshl_b32 s20, s20, 3\ns_and_b32 s21, s9, 7\ns_add_u32 s20, s20, s21\ns_lshl_b32 s20, s20, 8")
            a(f"v_lshlrev_b32 v7, 4, v4\nv_mov_b32 v{SF+10}, s3\nv_mov_b32 v{SF+11}, s3\ns_waitcnt lgkmcnt(0)")
            a(f"v_pk_add_f32 {q(SF,2)}, {q(SF,2)}, {q(SF+2,2)}\nv_pk_add_f32 {q(SF+4,2)}, {q(SF+4,2)}, {q(SF+6,2)}\nv_pk_add_f32 {q(SF+8,2)}, {q(SF,2)}, {q(SF+4,2)}")
            a("s_mov_b64 exec, 0xffff")
            a(f"buffer_store_dwordx4 {q(SF+8)}, v7, s[48:51], s20 offen {SC}")
            a("s_mov_b64 exec, -1")
            a.label(sk)
        if s + 1 < 10:
            a.wait_vm(("h", s + 1))
            if s + 1 >= G1_WN:
                a.wait_vm(("w", s + 1))
        a("s_barrier")
    issue_w2(2); issue_w2(3); issue_w2(4)
    a("s_waitcnt lgkmcnt(0)")
    a.stamp(10)
    a("s_barrier")
    a.stamp(13)
    a("s_barrier")
    issue_hm(0); issue_hm(1)
    a.wait_vm(("hm", 0))
    a("s_barrier")
    issue_hm(2)
    for s in range(12):
        if s + 1 < 12:
            a.wait_vm(("hm", s + 1))
            if s + 1 >= G2_WN:
                a.wait_vm(("w2", s + 1))
        a("s_barrier")
        if s + G2_WN < 12:
            issue_w2(s + G2_WN)
        if s + G2_HN < 12:
            issue_hm(s + G2_HN)
    a("s_barrier")


def main():
    a = Asm()
    hdr = open(f"cdna_kernels/{NAME}.s.ref").read().split("\n")
    for line in hdr:
        if line.startswith("; Override") or line.startswith("; grid=") or "@launch" in line:
            continue
        if not line.startswith(";"):
            break
        a.raw(line)
    if STAMPS == 1:
        a.raw(f"; @launch kernel={KNAME} grid=(256,1,1) block=(512,1,1) lds={LDS_TOTAL}")
    else:
        a.raw(f"; @launch grid=(256,1,1) block=(512,1,1) lds={LDS_TOTAL}")
    a.raw('.amdgcn_target "amdgcn-amd-amdhsa--gfx950"\n.text')
    a.raw(f".globl {KNAME}\n.p2align 8\n.type {KNAME},@function\n{KNAME}:")
    done = "L_done"
    a("s_cmp_ge_u32 s2, 256\ns_cbranch_scc1 L_exit")
    if STAMPS:
        for i in range(16):
            a(f"s_mov_b32 s{64+i}, 0")
        a.stamp(0)
    a(f"s_load_dwordx2 s[4:5], s[0:1], {KA_WS}\ns_load_dwordx16 s[8:23], s[0:1], 0\ns_load_dwordx8 s[24:31], s[0:1], 64")
    a("v_and_b32 v1, 63, v0\nv_lshrrev_b32 v2, 6, v0\nv_lshrrev_b32 v3, 4, v1\nv_and_b32 v4, 15, v1")
    a("v_readfirstlane_b32 s6, v2")
    a("s_waitcnt lgkmcnt(0)")
    a("s_load_dword s3, s[4:5], 0")
    a("s_and_b32 s7, s6, 3")
    a.srd(92, 4, WS_FLG, SZ_FLG)
    a(f"v_mov_b32 v5, {LDS_CNT}\nv_mov_b32 v6, 0\nv_mov_b32 v7, 0\nv_mov_b32 v8, 0\nv_mov_b32 v9, 0\nds_write_b128 v5, v[6:9]")
    a("s_cmp_ge_u32 s2, 160\ns_cbranch_scc1 L_aux")
    a("s_lshl_b32 s52, s2, 2\ns_add_u32 s52, s52, s7")
    kgen(a)
    a("s_cmp_ge_u32 s6, 4\ns_cbranch_scc1 L_partner")
    conv_main(a)
    a("s_branch L_mfma")
    a.label("L_partner")
    conv_partner(a)
    a("s_branch L_loader")
    a.label("L_aux")
    a.vm = []
    a("s_cmp_ge_u32 s2, 224\ns_cbranch_scc1 L_aux_rp")
    a("s_sub_u32 s52, s2, 160")
    role_ln1(a)
    a("s_branch L_aux_go")
    a.label("L_aux_rp")
    a("s_sub_u32 s52, s2, 224")
    if not EXP & 256:
        a("s_cmp_lt_u32 s6, 6\ns_cbranch_scc1 L_aux_rp1")
        a("s_getpc_b64 s[54:55]")
        a.label("L_pc")
        a(f"s_sub_u32 s54, s54, L_pc-{KNAME}\ns_subb_u32 s55, s55, 0")
        a(f"v_lshlrev_b32 v5, 4, v1\ns_and_b32 s56, s6, 1\ns_mul_i32 s56, s56, {CODE_KB*512}\nv_add_u32 v5, s56, v5")
        for i in range(CODE_KB // 2):
            a(f"global_load_dwordx4 {q(16+4*i)}, v5, s[54:55] offset:{1024*(i%4)}")
            if i % 4 == 3:
                a("v_add_u32 v5, 4096, v5")
        if TLBW:
            a("v_lshlrev_b32 v5, 16, v1")
            a.srd(32, 4, 0, 0x1720000)
            for i in range(6):
                a(f"s_mov_b32 s56, {i << 22}")
                a(f"buffer_load_dword v{100+i}, v5, s[32:35], s56 offen {SC}")
            for k, (lo, sz) in enumerate([(24, 640*3072), (26, 640*3072), (28, 1536*1280), (30, SZ_T)]):
                a.srd(36, lo, 0, sz)
                a(f"buffer_load_dword v{106+k}, v5, s[36:39], 0 offen {SC}")
        a.label("L_aux_rp1")
    epoch_ready(a)
    a("s_cmp_ge_u32 s6, 6\ns_cbranch_scc1 L_aux_end")
    a("s_mul_i32 s53, s52, 6\ns_add_u32 s53, s53, s6")
    role_rp2(a)
    a.label("L_aux_end")
    a("s_waitcnt vmcnt(0)\ns_barrier")
    a("s_cmp_lg_u32 s6, 4\ns_cbranch_scc1 L_aux_go")
    a.publish(F_R2, 52, 10)
    a.label("L_aux_go")
    a.stamp(4)
    a("s_cmp_ge_u32 s6, 4\ns_cbranch_scc1 L_loader\ns_branch L_mfma")
    a.label("L_loader")
    gemm_loader_waves(a, done)
    a(f"s_branch {done}")
    a.label("L_mfma")
    gemm_mfma_waves(a, done)
    a.label(done)
    if STAMPS:
        a("s_waitcnt vmcnt(0)")
        a.stamp(15)
        if STAMPS == 2:
            a(f"s_cmp_lg_u32 s2, {int(os.environ.get('DBGWG', '0'))}\ns_cbranch_scc1 L_exit\ns_cmp_lg_u32 s6, {int(os.environ.get('DBGWV', '0'))}\ns_cbranch_scc1 L_exit")
            a("s_load_dwordx2 s[82:83], s[0:1], 96\ns_waitcnt lgkmcnt(0)")
            a.srd(88, 82, 0, 256)
            for i in range(15, -1, -1):
                a(f"s_sub_u32 s{64+i}, s{64+i}, s64")
            for i in range(16):
                a(f"v_mov_b32 v{4+i}, s{64+i}")
            a("v_mov_b32 v1, 0\ns_mov_b64 exec, 1")
            for i in range(4):
                a(f"buffer_store_dwordx4 {q(4+4*i)}, v1, s[88:91], 0 offen offset:{16*i}")
            a("s_branch L_exit")
        a.srd(88, 4, WS_STAMP, 262144)
        a("v_lshrrev_b32 v1, 6, v0\nv_lshlrev_b32 v1, 6, v1\ns_lshl_b32 s82, s2, 9\nv_add_u32 v1, s82, v1")
        for i in range(16):
            a(f"v_mov_b32 v{4+i}, s{64+i}")
        a("s_mov_b64 exec, 1")
        for i in range(4):
            a(f"buffer_store_dwordx4 {q(4+4*i)}, v1, s[88:91], 0 offen offset:{16*i}")
    a.label("L_exit")
    a("s_endpgm")
    a.raw(f".fill ({CODE_KB*1024} - (. - {KNAME})) / 4, 4, 0xbf800000")
    a.raw(f""".section .rodata,"a"
.p2align 6
.amdhsa_kernel {KNAME}
  .amdhsa_next_free_vgpr 244
  .amdhsa_next_free_sgpr 96
  .amdhsa_accum_offset 244
  .amdhsa_group_segment_fixed_size 0
  .amdhsa_kernarg_size 112
  .amdhsa_user_sgpr_count 2
  .amdhsa_user_sgpr_kernarg_segment_ptr 1
  .amdhsa_system_sgpr_workgroup_id_x 1
.end_amdhsa_kernel""")
    out = sys.argv[1] if len(sys.argv) > 1 else f"cdna_kernels/{NAME}.s"
    open(out, "w").write("\n".join(a.l) + "\n")


if __name__ == "__main__":
    main()
```

```python
import sys, os, struct

NAME = "sequential_preLN__ssm_conv_s4d__glu_gated_swiglu__prompt"
KNAME = NAME + "_kernel"
KA_WS = 104

WS_FLG = 0
FS_ = 128
F_L, F_X, F_R2, F_C, F_G, F_R = 0x1000, 0x3000, 0x5000, 0x8000, 0x10000, 0x18000
SZ_FLG = 0x30000
WS_UT = 0x100000
WS_XT = 0x400000
WS_HT = 0x700000
WS_HM = 0xA00000
WS_W13 = 0x1000000
WS_W2 = 0x1400000
WS_GR = 0x1710000
WS_ST = 0x1700000
WS_CSP = 0x1600000
WS_STAMP = 0x4000000
SZ_T = 640 * 4096
SZ_TP = SZ_T
T_BLK = 40960
SZ_HM = 32 * 48 * 4096
SZ_W13 = 16 * 20 * 12288
SZ_W2 = 8 * 48 * 5120
SZ_CSP = 320 * 768 + 1024

STAMPS = int(os.environ.get('STAMPS', '0'))
EXP = int(os.environ.get('EXP', '0'))
LOG2E, NLOG2E, INV2PI, INV640, EPS, ONES_BF = 0x3FB8AA3B, 0xBFB8AA3B, 0x3E22F983, 0x3ACCCCCD, 0x3727C5AC, 0x3F803F80
POLL_MAX = 400000
CODE_KB = 30
W2LATE = int(os.environ.get('W2LATE', '0'))
TLBW = int(os.environ.get('TLBW', '0'))
PIPE = int(os.environ.get('PIPE', '2'))
PSLEEP = int(os.environ.get('PSLEEP', '3'))
SLEEP = int(os.environ.get('SLEEP', '1'))
SC = "sc1"
SCO = os.environ.get("SCO", "")
SCL = "" if EXP & 8 else "sc1"


def f32bits(x):
    return struct.unpack("<I", struct.pack("<f", x))[0]


def q(r, n=4):
    return f"v[{r}:{r+n-1}]"


class Asm:
    def __init__(self):
        self.l = []
        self.vm = []
        self.uid = 0

    def __call__(self, s):
        for x in s.split("\n"):
            x = x.strip()
            if x:
                self.l.append("    " + x)

    def label(self, s):
        self.l.append(s + ":")

    def raw(self, s):
        self.l.append(s)

    def newlabel(self, p="L"):
        self.uid += 1
        return f"{p}_{self.uid}"

    def vmem(self, s, tag=None):
        self(s)
        self.vm.append(tag)

    def wait_vm(self, tag):
        idx = max(i for i, t in enumerate(self.vm) if t == tag)
        n = len(self.vm) - 1 - idx
        assert n <= 63, n
        self(f"s_waitcnt vmcnt({n})")

    def srd(self, sd, lo, off, size):
        if off == 0:
            self(f"s_mov_b32 s{sd}, s{lo}\ns_mov_b32 s{sd+1}, s{lo+1}")
        else:
            self(f"s_add_u32 s{sd}, s{lo}, {hex(off)}\ns_addc_u32 s{sd+1}, s{lo+1}, 0")
        self(f"s_mov_b32 s{sd+2}, {size}\ns_mov_b32 s{sd+3}, 0x20000")

    def stamp(self, i):
        if STAMPS:
            self(f"s_memrealtime s[80:81]\ns_waitcnt lgkmcnt(0)\ns_mov_b32 s{64+i}, s80")

    def unpack(self, dlo, src):
        if dlo == src:
            self(f"v_and_b32 v{dlo+1}, 0xffff0000, v{src}\nv_lshlrev_b32 v{dlo}, 16, v{src}")
        else:
            self(f"v_lshlrev_b32 v{dlo}, 16, v{src}\nv_and_b32 v{dlo+1}, 0xffff0000, v{src}")

    def rnd(self, d, s):
        self(f"v_cvt_pk_bf16_f32 v{d}, v{s}, v{s}\nv_lshlrev_b32 v{d}, 16, v{d}")

    def poll(self, off, n, vt, soff=None, fast=False):
        L, D = self.newlabel("L_poll"), self.newlabel("L_polld")
        nl = (n + 63) // 64
        for i in range(nl):
            self(f"v_add_u32 v{vt+i}, {64*i}, v1\nv_min_u32 v{vt+i}, {n-1}, v{vt+i}\nv_mul_u32_u24 v{vt+i}, {FS_}, v{vt+i}")
        if soff is None:
            self(f"s_mov_b32 s86, {off}")
        else:
            self(f"s_add_u32 s86, {soff}, {off}")
        self("s_mov_b32 s84, 0")
        np_ = PIPE if fast else 1

        def ld(k):
            for i in range(nl):
                self(f"buffer_load_dword v{vt+nl*(1+k)+i}, v{vt+i}, s[92:95], s86 offen {SC}")

        def chk(k):
            b = vt + nl * (1 + k)
            for i in range(nl):
                self(f"v_xor_b32 v{b+i}, s3, v{b+i}")
            for i in range(1, nl):
                self(f"v_or_b32 v{b}, v{b}, v{b+i}")
            self(f"v_cmp_ne_u32 vcc, 0, v{b}\ns_cbranch_vccz {D}")

        for k in range(np_ - 1):
            ld(k)
            self(f"s_sleep {PSLEEP}")
        self.label(L)
        for k in range(np_):
            ld((k + np_ - 1) % np_)
            self(f"s_waitcnt vmcnt({nl*(np_-1)})")
            chk(k)
            self(f"s_sleep {PSLEEP if fast else SLEEP}")
        self(f"s_add_u32 s84, s84, 1\ns_cmp_lt_u32 s84, {POLL_MAX}\ns_cbranch_scc1 {L}")
        self.label(D)
        if np_ > 1:
            self.vm = [None] * (nl * (np_ - 1))
        else:
            self.vm = []

    def publish(self, off, sidx, vt):
        self(f"s_mul_i32 s85, s{sidx}, {FS_}\ns_add_u32 s85, s85, {off}\nv_mov_b32 v{vt}, s3\nv_mov_b32 v{vt+1}, s85\ns_mov_b64 exec, 1")
        self.vmem(f"buffer_store_dword v{vt}, v{vt+1}, s[92:95], 0 offen {SC}")
        self("s_mov_b64 exec, -1")


def ln_finish(a, vs, vq, vt, vnegm, vrinv):
    a(f"v_mul_f32 v{vs}, {hex(INV640)}, v{vs}")
    a(f"v_mul_f32 v{vq}, {hex(INV640)}, v{vq}")
    a(f"v_fma_f32 v{vq}, -v{vs}, v{vs}, v{vq}")
    a(f"v_max_f32 v{vq}, 0, v{vq}")
    a.rnd(vnegm, vs)
    a(f"v_xor_b32 v{vnegm}, 0x80000000, v{vnegm}")
    a.rnd(vt, vq)
    a(f"v_add_f32 v{vt}, {hex(EPS)}, v{vt}")
    a.rnd(vt, vt)
    a(f"v_sqrt_f32 v{vt}, v{vt}\ns_nop 0")
    a.rnd(vt, vt)
    a(f"v_rcp_f32 v{vrinv}, v{vt}\ns_nop 0")


def cmul(a, d, x, y, t):
    a(f"v_pk_mul_f32 {q(t,2)}, {q(x,2)}, {q(y,2)} op_sel_hi:[1,0]")
    a(f"v_pk_fma_f32 {q(d,2)}, {q(x,2)}, {q(y,2)}, {q(t,2)} op_sel:[1,1,0] op_sel_hi:[0,1,1] neg_lo:[1,0,0]")


def epoch_ready(a):
    a("s_waitcnt lgkmcnt(0)\ns_add_u32 s3, s3, 1")


LDS_CNT = 143872


LDS_CNT2 = 4096


def last_of4_publish(a, addr, off, sidx, vt):
    sk = a.newlabel("L_notlast")
    a(f"v_mov_b32 v{vt}, {addr}\nv_mov_b32 v{vt+1}, 1\ns_mov_b64 exec, 1")
    a(f"ds_add_rtn_u32 v{vt+1}, v{vt}, v{vt+1}\ns_mov_b64 exec, -1\ns_waitcnt lgkmcnt(0)")
    a(f"v_readfirstlane_b32 s85, v{vt+1}\ns_nop 3\ns_cmp_lg_u32 s85, 3\ns_cbranch_scc1 {sk}")
    a.publish(off, sidx, vt)
    a.label(sk)


LN_RS = 1312
LN_U = 32 * LN_RS


def role_ln1(a):
    a("v_lshl_add_u32 v5, v2, 2, v3")
    a(f"s_mul_i32 s53, s52, {32*1280}")
    a("v_mul_u32_u24 v6, 1280, v5\nv_lshl_add_u32 v6, v4, 4, v6\nv_add_u32 v6, s53, v6")
    a.srd(32, 8, 0, SZ_T)
    X = 16
    for j in range(5):
        a.vmem(f"buffer_load_dwordx4 {q(X+4*j)}, v6, s[32:35], 0 offen offset:{j*256}", ("x", j))
    a(f"v_mul_u32_u24 v7, {LN_RS}, v5\nv_lshl_add_u32 v7, v4, 4, v7")
    a(f"s_mov_b32 s54, {hex(ONES_BF)}")
    a.srd(36, 4, WS_ST, 16384)
    a.srd(40, 4, WS_XT, SZ_TP)
    a("v_bfe_u32 v8, v1, 2, 2\nv_lshl_add_u32 v8, v3, 3, v8")
    a(f"v_mul_u32_u24 v8, {LN_RS}, v8\nv_and_b32 v9, 3, v1\nv_lshl_add_u32 v8, v9, 3, v8")
    a("v_mul_u32_u24 v9, 160, v2\nv_add_u32 v8, v8, v9")
    a("v_mul_u32_u24 v9, 80, v2\nv_add_u32 v9, v9, v4\nv_lshlrev_b32 v9, 6, v9\nv_lshl_add_u32 v9, v3, 4, v9")
    a(f"s_mul_i32 s53, s52, {T_BLK}\ns_add_u32 s55, s53, 4096\ns_lshl_b32 s56, s52, 7")
    a(f"v_lshlrev_b32 v10, 2, v5\nv_and_b32 v11, 1, v4\nv_lshl_add_u32 v10, v11, 7, v10\nv_add_u32 v10, {LN_U}, v10")
    R = 56
    S0, S1, Q0, Q1, NM, RI, TT = 80, 81, 82, 83, 84, 85, 88
    a(f"v_mov_b32 v{S0}, 0\nv_mov_b32 v{S1}, 0\nv_mov_b32 v{Q0}, 0\nv_mov_b32 v{Q1}, 0\nv_cmp_eq_u32 s[58:59], 1, v11")
    epoch_ready(a)
    for j in range(5):
        a.wait_vm(("x", j))
        if j == 0:
            a.stamp(1)
        a(f"ds_write_b128 v7, {q(X+4*j)} offset:{j*256}")
        for i in range(4 * j, 4 * j + 4):
            a(f"v_dot2c_f32_bf16 v{S0 + (i&1)}, s54, v{X+i}")
            a(f"v_dot2c_f32_bf16 v{Q0 + (i&1)}, v{X+i}, v{X+i}")
    a("s_waitcnt lgkmcnt(0)\ns_barrier")
    a.stamp(2)
    for i in range(5):
        a(f"ds_read_b64_tr_b16 {q(R+4*i,2)}, v8 offset:{32*i}")
        a(f"ds_read_b64_tr_b16 {q(R+4*i+2,2)}, v8 offset:{32*i + 4*LN_RS}")
    a(f"v_add_f32 v{S0}, v{S0}, v{S1}\nv_add_f32 v{Q0}, v{Q0}, v{Q1}")
    for i in range(5):
        a(f"s_waitcnt lgkmcnt({8-2*i})")
        a.vmem(f"buffer_store_dwordx4 {q(R+4*i)}, v9, s[40:43], {'s53' if i < 4 else 's55'} offen offset:{1024*(i%4)} {SC}")
    for sh in (8, 4, 2, 1):
        a(f"v_add_f32_dpp v{S0}, v{S0}, v{S0} row_ror:{sh} row_mask:0xf bank_mask:0xf")
        a(f"v_add_f32_dpp v{Q0}, v{Q0}, v{Q0} row_ror:{sh} row_mask:0xf bank_mask:0xf")
        a("s_nop 0")
    ln_finish(a, S0, Q0, TT, NM, RI)
    a(f"v_cndmask_b32 v{NM}, v{NM}, v{RI}, s[58:59]")
    a(f"ds_write_b32 v10, v{NM}")
    a("s_waitcnt lgkmcnt(0)\ns_barrier")
    sk = a.newlabel("L_lnst")
    a(f"s_cmp_lg_u32 s6, 7\ns_cbranch_scc1 {sk}")
    a(f"v_lshlrev_b32 v10, 2, v1\nv_add_u32 v11, {LN_U}, v10\nds_read_b32 v12, v11")
    a("v_lshrrev_b32 v11, 5, v1\nv_mul_u32_u24 v11, 8064, v11\nv_add_u32 v10, v10, v11\ns_waitcnt lgkmcnt(0)")
    a.vmem(f"buffer_store_dword v12, v10, s[36:39], s56 offen {SC}")
    a.label(sk)
    a("s_waitcnt vmcnt(0)\ns_barrier")
    a.stamp(3)
    sk = a.newlabel("L_lnp")
    a(f"s_cmp_lg_u32 s6, 7\ns_cbranch_scc1 {sk}")
    a.publish(F_L, 52, 10)
    a.label(sk)
    sk = a.newlabel("L_lnrp")
    a(f"s_cmp_ge_u32 s6, 5\ns_cbranch_scc1 {sk}")
    a(f"s_mul_i32 s55, s52, 5\ns_add_u32 s55, s55, s6\ns_mul_i32 s56, s6, 12288\ns_add_u32 s56, s56, 49152")
    rp13_issue(a)
    a("s_waitcnt vmcnt(0)")
    rp13_finish(a)
    a("s_waitcnt vmcnt(0)")
    a.publish(F_R, 55, 10)
    a.label(sk)


W13_J = [[0, 1, 2], [4, 5, 3]]


RP_BASE = 2 * LN_U


def rp13_issue(a):
    a("s_mul_i32 s57, s55, 205\ns_lshr_b32 s57, s57, 12")
    a("s_mul_i32 s58, s57, 20\ns_sub_u32 s58, s55, s58")
    a.srd(44, 24, 0, 640 * 3072)
    a.srd(48, 26, 0, 640 * 3072)
    a(f"s_mul_i32 s57, s57, 192\ns_mul_i32 s58, s58, {32*3072}\ns_add_u32 s57, s57, s58")
    for i in range(6):
        a(f"v_add_u32 v10, {64*i}, v1\nv_mul_u32_u24 v11, 43691, v10\nv_lshrrev_b32 v11, 19, v11")
        a(f"v_mul_u32_u24 v12, 12, v11\nv_sub_u32 v12, v10, v12\nv_mul_u32_u24 v11, 3072, v11\nv_lshl_add_u32 v13, v12, 4, v11")
        for mat in range(2):
            a(f"s_add_u32 m0, s56, {mat*6144 + i*1024}\ns_nop 0")
            a(f"buffer_load_dwordx4 v13, s[{44+4*mat}:{47+4*mat}], s57 offen lds")


def rp13_finish(a):
    a("v_lshlrev_b32 v5, 4, v1")
    a("v_bfe_u32 v6, v1, 2, 2\nv_lshl_add_u32 v6, v3, 2, v6\nv_and_b32 v7, 3, v1")
    a("v_mul_u32_u24 v16, 192, v6\nv_lshl_add_u32 v16, v7, 3, v16\nv_add_u32 v16, s56, v16")
    OH, ACC, F = 32, 80, 84
    for t in range(12):
        wn, mat, jj = t // 6, (t % 6) // 3, t % 3
        off = mat * 6144 + 32 * W13_J[wn][jj]
        a(f"ds_read_b64_tr_b16 {q(F+4*t,2)}, v16 offset:{off}")
        a(f"ds_read_b64_tr_b16 {q(F+4*t+2,2)}, v16 offset:{off + 16*192}")
    a.srd(40, 4, WS_W13, SZ_W13)
    a.srd(44, 4, WS_CSP, SZ_CSP)
    a("s_mul_i32 s57, s55, 12288\ns_add_u32 s58, s57, 4096\ns_add_u32 s59, s57, 8192")
    a("s_waitcnt lgkmcnt(0)")
    for t in range(12):
        a(f"buffer_store_dwordx4 {q(F+4*t)}, v5, s[40:43], s{57 + t//4} offen offset:{1024*(t%4)} {SC}")
    a(f"v_mov_b32 v8, {hex(ONES_BF)}")
    a("v_lshlrev_b32 v9, 6, v4\nv_lshl_add_u32 v9, v3, 4, v9\ns_mul_i32 s60, s55, 768")
    for t in range(12):
        a(f"v_cmp_eq_u32 vcc, {t}, v4\ns_nop 1")
        for i in range(4):
            a(f"v_cndmask_b32 v{OH+4*t+i}, 0, v8, vcc")
    a("s_nop 1")
    for t in range(12):
        a(f"v_mfma_f32_16x16x32_bf16 {q(ACC)}, {q(F+4*t)}, {q(OH+4*t)}, {q(ACC) if t else 0}")
    a("s_nop 7\nv_cmp_gt_u32 vcc, 12, v4\ns_and_saveexec_b64 s[82:83], vcc")
    a(f"buffer_store_dwordx4 {q(ACC)}, v9, s[44:47], s60 offen {SC}")
    a(f"s_mov_b64 exec, s[82:83]")


def role_rp2(a):
    a.vm = []
    a("s_mul_i32 s54, s6, 12288")
    a("v_lshlrev_b32 v5, 4, v1")
    a("v_bfe_u32 v6, v1, 2, 2\nv_lshl_add_u32 v6, v3, 2, v6\nv_and_b32 v7, 3, v1")
    a("s_mul_i32 s55, s53, 171\ns_lshr_b32 s55, s55, 12")
    a("s_mul_i32 s56, s55, 24\ns_sub_u32 s56, s53, s56")
    a.srd(32, 28, 0, 1536 * 1280)
    a(f"s_mul_i32 s57, s55, 160\ns_mul_i32 s58, s56, {64*1280}\ns_add_u32 s57, s57, s58\ns_add_u32 s58, s57, {32*1280}")
    for i in range(5):
        a(f"v_add_u32 v8, {64*i}, v1\nv_mul_u32_u24 v9, 52429, v8\nv_lshrrev_b32 v9, 19, v9")
        a(f"v_mul_u32_u24 v16, 10, v9\nv_sub_u32 v16, v8, v16\nv_mul_u32_u24 v9, 1280, v9\nv_lshl_add_u32 v{10+i}, v16, 4, v9")
        for un in range(2):
            a(f"s_add_u32 m0, s54, {un*5120 + i*1024}\ns_nop 0")
            a.vmem(f"buffer_load_dwordx4 v{10+i}, s[32:35], s{57+un} offen lds", "w")
    a.srd(40, 4, WS_W2, SZ_W2)
    a("s_mul_i32 s60, s56, 171\ns_lshr_b32 s60, s60, 9\ns_mul_i32 s60, s60, 3\ns_sub_u32 s60, s56, s60")
    for un in range(2):
        a(f"s_cmp_eq_u32 s60, {2 if un == 0 else 0}\ns_cselect_b32 s61, 640, 0\ns_mul_i32 s62, s61, 3\ns_sub_u32 s62, 2560, s62")
        a(f"v_mul_u32_u24 v16, 160, v6\nv_mul_u32_u24 v8, s61, v3\nv_add3_u32 v16, v16, v8, s54")
        b = 18 + 4 * un
        a(f"v_lshl_add_u32 v{b}, v7, 4, v16\nv_lshl_add_u32 v{b+1}, v7, 3, v16\nv_add_u32 v{b+2}, s62, v{b}\nv_add_u32 v{b+3}, s62, v{b+1}")
    a("s_mul_i32 s57, s53, 10240\ns_add_u32 s58, s57, 4096\ns_add_u32 s59, s57, 8192")
    if W2LATE:
        a("s_waitcnt vmcnt(0)")
    else:
        a.poll(F_L, 64, 26)
    F = 32
    for k in range(10):
        un, t = divmod(k, 5)
        b = 18 + 4 * un + (0 if t < 4 else 1)
        off = un * 5120 + ((t >> 1) * 64 + (t & 1) * 8 if t < 4 else 128)
        a(f"ds_read_b64_tr_b16 {q(F+4*k,2)}, v{b} offset:{off}")
        a(f"ds_read_b64_tr_b16 {q(F+4*k+2,2)}, v{b+2} offset:{off}")
    a("s_waitcnt lgkmcnt(0)")
    for k in range(10):
        a.vmem(f"buffer_store_dwordx4 {q(F+4*k)}, v5, s[40:43], s{57 + k//4} offen offset:{1024*(k%4)} {SC}")


TB_RS = 272
TB_SZ = 57 * TB_RS
CV_A = 64
CV_CS = 4160
CV_U = CV_A + 4 * CV_CS
CV_X = CV_U + 4608
CV_WAVE = CV_X + 4096
KP_BASE = 126976
PART_BASE = 145408
RP_LDS = [101632, 113920]


def kgen(a):
    a.vm = []
    a(f"s_mul_i32 s53, s6, {TB_SZ}")
    a("s_lshr_b32 s54, s6, 2")
    a("s_mul_i32 s55, s52, 384\ns_lshl_b32 s56, s54, 7\ns_add_u32 s55, s55, s56\nv_lshlrev_b32 v5, 1, v1")
    a("s_lshl_b32 s56, s52, 1\nv_mov_b32 v6, 0")
    PR, DT = 8, 92
    PR2 = 96
    a.srd(48, 18, 0, 1280)
    a.vmem(f"buffer_load_ushort v{DT}, v6, s[48:51], s56 offen", "par")
    for i in range(4):
        a.srd(32 + 4 * i, 10 + 2 * i, 0, 640 * 192 * 2)
        a.vmem(f"buffer_load_ushort v{PR+i}, v5, s[{32+4*i}:{35+4*i}], s55 offen", "par")
    for i in range(4):
        a.vmem(f"buffer_load_ushort v{PR2+i}, v5, s[{32+4*i}:{35+4*i}], s55 offen offset:256", "par2")
    a.srd(48, 20, 0, 1280)
    a.vmem("buffer_load_ushort v240, v6, s[48:51], s56 offen", "par2")
    VW, VR, DK = 6, 7, 80
    a(f"v_lshlrev_b32 v{VW}, 2, v1\nv_add_u32 v{VW}, s53, v{VW}")
    a(f"v_mul_u32_u24 v{VR}, {TB_RS}, v4\nv_lshl_add_u32 v{VR}, v3, 4, v{VR}\nv_add_u32 v{VR}, s53, v{VR}")
    for i in range(12):
        a(f"v_mov_b32 v{DK+i}, 0")
    epoch_ready(a)
    a.wait_vm("par")
    a.stamp(1)
    a(f"v_lshlrev_b32 v{DT}, 16, v{DT}\nv_mul_f32 v{DT}, {hex(LOG2E)}, v{DT}\nv_exp_f32 v{DT}, v{DT}\ns_nop 0")
    a.rnd(DT, DT)
    a.label("L_kgen")
    A2, W, Z8, Y, GC, T0, T1, T2, XT = 16, 17, 18, 20, 22, 24, 26, 28, 30
    E = [None] + [32 + 2 * i for i in range(7)]
    G1 = 46
    PK = [48, 49, 50, 51]
    pkc = [0]

    def put(row, re, im):
        r = PK[pkc[0] % 4]
        pkc[0] += 1
        a(f"v_cvt_pk_bf16_f32 v{r}, {re}, {im}")
        a(f"ds_write_b32 v{VW}, v{r} offset:{row*TB_RS}")

    def putp(row, p):
        put(row, f"v{p}", f"v{p+1}")

    a(f"v_lshlrev_b32 v{PR}, 16, v{PR}\nv_mul_f32 v{A2}, {hex(LOG2E)}, v{PR}\nv_exp_f32 v{A2}, v{A2}")
    for i in range(1, 4):
        a(f"v_lshlrev_b32 v{PR+i}, 16, v{PR+i}")
    a.rnd(A2, A2)
    a(f"v_mul_f32 v{W}, v{PR+1}, v{DT}")
    a(f"v_mul_f32 v{A2}, v{A2}, v{DT}")
    a(f"v_mul_f32 v{W}, {hex(INV2PI)}, v{W}")
    a(f"v_mul_f32 v{A2}, {hex(NLOG2E)}, v{A2}")
    a(f"v_rndne_f32 v{T0}, v{W}")
    a(f"v_mul_f32 v{Y}, v{PR+2}, v{DT}\nv_mul_f32 v{Y+1}, v{PR+3}, v{DT}")
    a(f"v_sub_f32 v{W}, v{W}, v{T0}")
    a(f"v_mul_f32 v{Y}, 2.0, v{Y}\nv_mul_f32 v{Y+1}, -2.0, v{Y+1}")

    def base(dst, mult, conj, T):
        m = {1: "1.0", 8: hex(0x41000000), 128: hex(0x43000000)}[mult]
        a(f"v_mul_f32 v{T}, {m}, v{A2}\nv_mul_f32 v{T+1}, {m}, v{W}")
        a(f"v_exp_f32 v{T}, v{T}\nv_cos_f32 v{dst}, v{T+1}\nv_sin_f32 v{dst+1}, v{T+1}\ns_nop 0")
        a(f"v_mul_f32 v{dst}, v{dst}, v{T}")
        a(f"v_mul_f32 v{dst+1}, {'-' if conj else ''}v{dst+1}, v{T}")

    base(E[1], 1, False, T0)
    base(Z8, 8, True, T1)
    base(G1, 128, False, T2)
    put(0, "1.0", "0")
    putp(1, E[1])
    putp(41, Y)
    cmul(a, E[2], E[1], E[1], T0)
    putp(8, G1)
    cmul(a, E[3], E[2], E[1], T0)
    cmul(a, E[4], E[2], E[2], T1)
    putp(2, E[2])
    cmul(a, E[5], E[4], E[1], T0)
    cmul(a, E[6], E[4], E[2], T1)
    cmul(a, E[7], E[4], E[3], T2)
    for e in range(3, 8):
        putp(e, E[e])
    ops = []
    for e in range(1, 8):
        ops.append(("x", 8 + e, G1, E[e]))
    for g in range(2, 17):
        ops.append(("g", g))
        if g in (2, 3):
            for i, e in enumerate((2, 4, 6)):
                ops.append(("x", 16 + (g - 2) * 4 + 1 + i, GC, E[e]))
        elif g < 8:
            ops.append(("x", 24 + (g - 4) * 2 + 1, GC, E[4]))
    yb = 1
    for k, op in enumerate(ops):
        if op[0] == "x":
            x = XT if (k & 1) else T2
            cmul(a, x, op[2], op[3], x)
            putp(op[1], x)
        else:
            g = op[1]
            cmul(a, GC, G1 if g == 2 else GC, G1, T1)
            row = 16 + (g - 2) * 4 if g < 4 else (24 + (g - 4) * 2 if g < 8 else 32 + (g - 8))
            putp(row, GC)
        if (k & 1) and yb < 16:
            cmul(a, Y, Y, Z8, T0)
            putp(41 + yb, Y)
            yb += 1
    assert yb == 16
    FR = 16
    a("s_waitcnt lgkmcnt(0)")
    for st in range(4):
        f = FR + 16 * st
        if st == 3:
            a("s_waitcnt lgkmcnt(8)")
        a(f"ds_read_b128 {q(f)}, v{VR} offset:{41*TB_RS + 64*st}")
        for t in range(3):
            a(f"ds_read_b128 {q(f+4+4*t)}, v{VR} offset:{16*t*TB_RS + 64*st}")
    a("s_waitcnt vmcnt(0)")
    for i in range(4):
        a(f"v_mov_b32 v{PR+i}, v{PR2+i}")
    for st in range(4):
        f = FR + 16 * st
        a(f"s_waitcnt lgkmcnt({12 - 4*st})")
        for t in range(3):
            a(f"v_mfma_f32_16x16x32_bf16 {q(DK+4*t)}, {q(f+4+4*t)}, {q(f)}, {q(DK+4*t)}")
    a("s_add_u32 s54, s54, 1\ns_cmp_lt_u32 s54, 2\ns_cbranch_scc1 L_kgen")
    a.vm = []


def conv_main(a):
    DK = 80
    a(f"s_mul_i32 s53, s7, {CV_WAVE}")
    a(f"s_mul_i32 s54, s7, 4224\ns_add_u32 s54, s54, {KP_BASE}")
    a(f"s_mul_i32 s55, s7, 3072\ns_add_u32 s55, s55, {PART_BASE}")
    a("v_lshlrev_b32 v7, 4, v1\nv_add_u32 v5, s55, v7")
    a("v_lshlrev_b32 v18, 4, v4\nv_add_u32 v18, s54, v18")
    a("v_lshrrev_b32 v16, 1, v3\nv_and_b32 v17, 1, v3")
    a("v_lshlrev_b32 v19, 8, v16\nv_lshl_add_u32 v19, v17, 3, v19\nv_add_u32 v19, v19, v18")
    a("v_cmp_gt_u32 vcc, 2, v3")
    a("v_lshlrev_b32 v20, 8, v3\nv_add_u32 v20, 512, v20\nv_lshlrev_b32 v21, 9, v3")
    a("v_cndmask_b32 v20, v21, v20, vcc\nv_add_u32 v20, v20, v18")
    for i in range(1, 4):
        a(f"v_mov_b32 v22, {4*i}\nv_mov_b32 v23, {256*(i>>1) + 8*(i&1)}")
        a(f"v_cndmask_b32 v22, v23, v22, vcc\nv_add_u32 v{23+i}, v20, v22")
    a("v_lshlrev_b32 v27, 10, v3\nv_lshl_add_u32 v27, v4, 4, v27\nv_add_u32 v27, 2048, v27\ns_movk_i32 s56, 4112")
    for i in range(4):
        a(f"v_add_u32 v{28+i}, {256*i}, v27\nv_min_u32 v{28+i}, s56, v{28+i}\nv_add_u32 v{28+i}, s54, v{28+i}")
    a("v_sub_u32 v16, 4094, v7\nv_cvt_f32_u32 v16, v16")
    a("v_cmp_eq_u32 s[58:59], 63, v1")
    a("v_add_u32 v17, s53, v7")
    a.stamp(2)
    a("s_barrier")
    for t in range(3):
        a(f"ds_read_b128 {q(40+4*t)}, v5 offset:{1024*t}")
    a("s_waitcnt lgkmcnt(0)")
    for i in range(6):
        a(f"v_pk_add_f32 {q(DK+2*i,2)}, {q(DK+2*i,2)}, {q(40+2*i,2)}")
    for i in range(6):
        a(f"v_cvt_pk_bf16_f32 v{32+i}, v{DK+2*i}, v{DK+2*i+1}")
    a("ds_write_b64 v19, v[32:33]")
    a("ds_write_b16 v20, v34\nds_write_b16_d16_hi v24, v34\nds_write_b16 v25, v35\nds_write_b16_d16_hi v26, v35")
    a("ds_write_b16 v28, v36\nds_write_b16_d16_hi v29, v36\nds_write_b16 v30, v37\nds_write_b16_d16_hi v31, v37")
    a("v_sub_u32 v38, 4080, v7\nv_add_u32 v38, s54, v38")
    a("v_and_b32 v39, 1, v1\nv_cmp_eq_u32 s[60:61], 0, v39")
    a("v_cndmask_b32 v39, 0, 8, s[58:59]\nv_sub_u32 v40, v38, v39\nv_lshrrev_b32 v39, 1, v39\nv_sub_u32 v41, v38, v39")
    a("v_subrev_u32 v38, 2056, v38\nv_subrev_u32 v40, 2056, v40\nv_subrev_u32 v41, 2056, v41")
    AD = 20
    for m in range(0, 12, 2):
        f0 = 64 + m
        a(f"v_add_f32 v{f0}, {hex(f32bits(-3072.0 - 2.0*m))}, v16\nv_add_f32 v{f0+1}, {hex(f32bits(-3072.0 - 2.0*(m+1)))}, v16")
        a(f"v_cvt_pk_bf16_f32 v{f0}, v{f0}, v{f0+1}")
        a.unpack(f0, f0)
        a(f"v_cvt_u32_f32 v{AD+m}, v{f0}\nv_cvt_u32_f32 v{AD+m+1}, v{f0+1}")
        a(f"v_add_u32 v{AD+m}, s54, v{AD+m}\nv_add_u32 v{AD+m+1}, s54, v{AD+m+1}")
    a("s_waitcnt lgkmcnt(0)")
    G = 96
    for r in range(2):
        o = 2056 - 1024 * r
        a(f"ds_read_u16 v{G+4*r}, v38 offset:{o+16}\nds_read_u16 v{G+4*r+1}, v38 offset:{o}")
        a(f"ds_read_u16 v{G+4*r+2}, v{40 if r else 38} offset:{o}")
    o = 2056 - 2048
    a(f"ds_read_u16 v{G+8}, v38 offset:{o+16}\nds_read_u16 v{G+9}, v38 offset:{o+8}\nds_read_u16 v{G+10}, v38 offset:{o}")
    a(f"ds_read_u16 v{G+11}, v41 offset:{o}\nds_read_u16 v{G+12}, v38 offset:{o-8}")
    D = 32
    for m in range(6):
        a(f"ds_read_u16 v{D+m}, v{AD+2*m}")
        if m < 5:
            a(f"ds_read_u16 v{52+m}, v{AD+2*m+1}")

    def wr(r, c0, c1, c2, c3):
        for k, c in enumerate((c0, c1, c2, c3)):
            a(f"ds_write_b128 v17, {q(c)} offset:{CV_A + k*CV_CS + 1024*r}")

    a("s_waitcnt lgkmcnt(15)\ns_waitcnt lgkmcnt(11)")
    for r in range(2):
        A, B, B2 = G + 4 * r, G + 4 * r + 1, G + 4 * r + 2
        Q = 112 + 16 * r
        a(f"v_cndmask_b32 v{G+4*r+3}, v{B}, v{A}, s[60:61]")
        W3 = G + 4 * r + 3
        a(f"v_lshl_or_b32 v{Q}, v{A}, 16, v{A}\nv_lshl_or_b32 v{Q+1}, v{W3}, 16, v{A}\nv_lshl_or_b32 v{Q+2}, v{B}, 16, v{B}")
        a(f"v_mov_b32 v{Q+3}, v{Q+2}\nv_mov_b32 v{Q+4}, v{Q+1}\nv_mov_b32 v{Q+5}, v{Q+2}\nv_mov_b32 v{Q+6}, v{Q+2}\nv_mov_b32 v{Q+7}, v{Q+2}")
        a(f"v_mov_b32 v{Q+8}, v{Q}\nv_lshl_or_b32 v{Q+9}, v{B}, 16, v{W3}\nv_mov_b32 v{Q+10}, v{Q+2}\nv_mov_b32 v{Q+11}, v{Q+2}")
        a(f"v_mov_b32 v{Q+12}, v{Q+9}\nv_mov_b32 v{Q+13}, v{Q+2}\nv_mov_b32 v{Q+14}, v{Q+2}\nv_lshl_or_b32 v{Q+15}, v{B2}, 16, v{B}")
        wr(r, Q + 12, Q + 4, Q + 8, Q)
    P_, Q_, R_, R2, S_ = G + 8, G + 9, G + 10, G + 11, G + 12
    Q = 144
    a(f"v_lshl_or_b32 v{Q}, v{P_}, 16, v{P_}\nv_lshl_or_b32 v{Q+1}, v{Q_}, 16, v{Q_}\nv_lshl_or_b32 v{Q+2}, v{R_}, 16, v{Q_}\nv_lshl_or_b32 v{Q+3}, v{R_}, 16, v{R_}")
    a(f"v_mov_b32 v{Q+4}, v{Q+1}\nv_mov_b32 v{Q+5}, v{Q+2}\nv_mov_b32 v{Q+6}, v{Q+3}\nv_lshl_or_b32 v{Q+7}, v{R2}, 16, v{R_}")
    a(f"v_lshl_or_b32 v{Q+8}, v{Q_}, 16, v{P_}\nv_mov_b32 v{Q+9}, v{Q+1}\nv_mov_b32 v{Q+10}, v{Q+3}\nv_mov_b32 v{Q+11}, v{Q+3}")
    a(f"v_mov_b32 v{Q+12}, v{Q+1}\nv_mov_b32 v{Q+13}, v{Q+3}\nv_mov_b32 v{Q+14}, v{Q+3}\nv_lshl_or_b32 v{Q+15}, v{S_}, 16, v{R2}")
    wr(2, Q + 12, Q + 4, Q + 8, Q)
    a("s_waitcnt lgkmcnt(12)")
    for m in range(5):
        a(f"v_lshl_or_b32 v{D+m}, v{52+m}, 16, v{D+m}")
    a(f"v_cndmask_b32 v{D+4}, v{D+4}, 0, s[58:59]\nv_cndmask_b32 v{D+5}, v{D+5}, 0, s[58:59]")
    C1, C2, C0 = 40, 44, 48
    for m in range(4):
        a(f"v_mov_b32 v{C1+m}, v{D+1+m}")
        a(f"v_alignbit_b32 v{C2+m}, v{D+m+1}, v{D+m}, 16")
        a(f"v_alignbit_b32 v{C0+m}, v{D+m+2}, v{D+m+1}, 16")
    wr(3, C0, C1, C2, D)
    ACC, AS, FS, VA, VF = 16, [48, 112], [80, 144], 10, 11
    T1, XF, DSV = 176, 208, 240
    a(f"v_and_b32 v5, 3, v4\nv_mul_u32_u24 v5, {CV_CS}, v5\nv_lshrrev_b32 v6, 2, v4\nv_lshlrev_b32 v6, 3, v6\nv_sub_u32 v5, v5, v6")
    a(f"v_lshlrev_b32 v6, 4, v3\nv_sub_u32 v5, v5, v6\nv_add_u32 v5, {CV_A + 4104 - 3584 - 448}, v5\nv_add_u32 v{VA}, s53, v5")
    a(f"v_lshlrev_b32 v5, 5, v4\nv_sub_u32 v5, v5, v6\nv_add_u32 v5, {CV_U + 496 - 448}, v5\nv_add_u32 v{VF}, s53, v5")
    a("v_lshlrev_b32 v8, 5, v4\nv_lshl_add_u32 v8, v3, 3, v8\nv_add_u32 v9, s53, v8")
    a("v_lshrrev_b32 v6, 3, v4\ns_mov_b32 s56, 163840\nv_mul_lo_u32 v6, v6, s56")
    a("v_and_b32 v7, 7, v4\nv_lshl_add_u32 v6, v7, 5, v6\nv_lshl_add_u32 v6, v3, 3, v6")
    a(f"v_lshlrev_b32 v{DSV}, 16, v{DSV}")
    a.srd(36, 4, WS_HT, SZ_T)
    a("s_lshl_b32 s55, s52, 8")
    a("s_waitcnt lgkmcnt(0)")
    a.stamp(3)
    a("s_barrier")
    a.stamp(4)
    if EXP & 512:
        a("s_setprio 2")

    def reads(s, c):
        o = []
        ex = 64 * (7 - c)
        for k in range(8):
            o.append(f"ds_read_b128 {q(FS[s]+4*k)}, v{VF} offset:{512*k + ex}")
            o.append(f"ds_read_b64 {q(AS[s]+4*k,2)}, v{VA} offset:{512*(7-k) + ex}")
            o.append(f"ds_read_b64 {q(AS[s]+4*k+2,2)}, v{VA} offset:{512*(7-k) + 8 + ex}")
        return o

    rd0 = reads(0, 0)
    for i, r in enumerate(rd0):
        a(r)
        if i == 11:
            a("s_waitcnt lgkmcnt(6)")
    fu, fx = [], []
    for nb in range(8):
        for hh in range(2):
            p = T1 + 4 * nb + 2 * hh
            src = T1 + 4 * nb + 2 + hh
            if hh == 0:
                fu += [f"v_lshlrev_b32 v{p}, 16, v{src}", f"v_and_b32 v{p+1}, 0xffff0000, v{src}"]
            else:
                fu += [f"v_lshlrev_b32 v{p}, 16, v{src}", f"v_and_b32 v{p+1}, 0xffff0000, v{src}"]
            fu += [f"v_pk_mul_f32 {q(p,2)}, {q(p,2)}, {q(DSV,2)} op_sel_hi:[1,0]",
                   f"v_cvt_pk_bf16_f32 v{p}, v{p}, v{p+1}",
                   f"v_and_b32 v{p+1}, 0xffff0000, v{p}", f"v_lshlrev_b32 v{p}, 16, v{p}"]
            p = XF + 4 * nb + 2 * hh
            src = XF + 4 * nb + 2 + hh
            fx += [f"v_lshlrev_b32 v{p}, 16, v{src}", f"v_and_b32 v{p+1}, 0xffff0000, v{src}"]
    fill = {c: fu[16 * (c - 1):16 * c] for c in range(1, 7)}
    fill[0] = [f"ds_read_b64 {q(T1+4*nb+2,2)}, v9 offset:{CV_U + 480 + 512*nb}" for nb in range(8)]
    fill[0] += [f"ds_read_b64 {q(XF+4*nb+2,2)}, v9 offset:{CV_X + 512*nb}" for nb in range(8)]
    fill[7] = fx
    for c in range(8):
        s = c & 1
        a("s_waitcnt lgkmcnt(0)")
        rd = reads(1 - s, c + 1) if c < 7 else []
        fl = list(fill[c])
        i = 0
        for aa in range(8):
            for m in range(8 - aa):
                cc = q(ACC + 4 * (aa + m)) if (c or aa) else "0"
                a(f"v_mfma_f32_16x16x32_bf16 {q(ACC+4*(aa+m))}, {q(AS[s]+4*aa)}, {q(FS[s]+4*m)}, {cc}")
                if i < len(rd) and rd[i]:
                    a(rd[i])
                    if i in (11, 19):
                        a("s_waitcnt lgkmcnt(8)")
                if (i >= 20 or c == 7) and fl:
                    a(fl.pop(0))
                i += 1
        assert not fl
    a.stamp(5)
    a("s_nop 4")
    for nb in range(8):
        y = ACC + 4 * nb
        o = 48 + 2 * nb
        for hh in range(2):
            t = y + 2 * hh
            a(f"v_cvt_pk_bf16_f32 v{t}, v{t}, v{t+1}")
            a.unpack(t, t)
            a(f"v_pk_add_f32 {q(t,2)}, {q(t,2)}, {q(T1+4*nb+2*hh,2)}")
            a(f"v_cvt_pk_bf16_f32 v{t}, v{t}, v{t+1}")
            a.unpack(t, t)
            a(f"v_pk_add_f32 {q(t,2)}, {q(t,2)}, {q(XF+4*nb+2*hh,2)}")
            a(f"v_cvt_pk_bf16_f32 v{o+hh}, v{t}, v{t+1}")
        a.vmem(f"buffer_store_dwordx2 {q(o,2)}, v6, s[36:39], s55 offen {SC}")
        a(f"s_add_u32 s55, s55, {2*163840}")
    a.stamp(6)
    a("s_waitcnt vmcnt(0)")
    last_of4_publish(a, LDS_CNT, F_C, 2, 120)


def conv_partner(a):
    DK = 80
    a(f"s_mul_i32 s53, s7, {CV_WAVE}")
    a(f"s_mul_i32 s55, s7, 3072\ns_add_u32 s55, s55, {PART_BASE}")
    a("v_lshlrev_b32 v7, 4, v1\nv_add_u32 v5, s55, v7")
    a("v_mov_b32 v20, 0\nv_mov_b32 v21, 0\nv_mov_b32 v22, 0\nv_mov_b32 v23, 0")
    a("v_add_u32 v9, s53, v7")
    a(f"v_lshrrev_b32 v16, 1, v1\nv_mul_u32_u24 v16, {CV_CS}, v16\nv_and_b32 v17, 1, v1\nv_lshl_add_u32 v16, v17, 4, v16\nv_add_u32 v16, s53, v16")
    for t in range(3):
        a(f"ds_write_b128 v5, {q(DK+4*t)} offset:{1024*t}")
    a.stamp(2)
    a.srd(32, 4, WS_XT, SZ_TP)
    a.srd(36, 4, WS_ST, 16384)
    a(f"s_lshl_b32 s54, s2, 8\ns_mul_i32 s61, s7, {16*T_BLK}\ns_add_u32 s54, s54, s61\ns_lshl_b32 s61, s7, 11\ns_add_u32 s62, s61, 8192")
    a(f"v_lshrrev_b32 v8, 2, v1\nv_mul_u32_u24 v8, {T_BLK}, v8\nv_and_b32 v14, 3, v1\nv_lshl_add_u32 v8, v14, 4, v8")
    a("v_lshlrev_b32 v14, 5, v1\ns_lshl_b32 s63, s7, 10\nv_add_u32 v15, s63, v7")
    a("s_waitcnt lgkmcnt(0)\ns_barrier")
    a("s_mov_b64 exec, 0x3fffffff")
    a(f"ds_write_b128 v9, v[20:23] offset:{CV_U}")
    a("s_mov_b64 exec, 0xff")
    a(f"ds_write_b128 v16, v[20:23] offset:{CV_A + 4096}")
    a("s_mov_b64 exec, -1")
    a(f"s_mul_i32 s60, s7, {16*FS_}")
    a.poll(F_L, 16, 24, "s60", fast=True)
    a.stamp(3)
    XR, NM, RI, U = 32, 48, 56, 64
    for k in range(2):
        a.vmem(f"buffer_load_dwordx4 {q(NM+4*k)}, v14, s[36:39], s61 offen offset:{16*k} {SC}", "st")
        a.vmem(f"buffer_load_dwordx4 {q(RI+4*k)}, v14, s[36:39], s62 offen offset:{16*k} {SC}", "st")
    for ch in range(4):
        a.vmem(f"buffer_load_dwordx4 {q(XR+4*ch)}, v8, s[32:35], s54 offen offset:{64*ch} {SC}", ("x", ch))
    for ch in range(4):
        a.wait_vm(("x", ch))
        for i in range(4):
            t = 80 + 2 * i
            a.unpack(t, XR + 4 * ch + i)
            a(f"v_pk_add_f32 {q(t,2)}, {q(t,2)}, {q(NM+2*i,2)}")
            a(f"v_cvt_pk_bf16_f32 v{t}, v{t}, v{t+1}")
            a.unpack(t, t)
            a(f"v_pk_mul_f32 {q(t,2)}, {q(t,2)}, {q(RI+2*i,2)}")
            a(f"v_cvt_pk_bf16_f32 v{U+4*ch+i}, v{t}, v{t+1}")
        if ch == 2:
            a(f"v_add_u32 v15, {2*CV_WAVE}, v15")
        a(f"ds_write_b128 v15, {q(U+4*ch)} offset:{CV_U + 480 + CV_WAVE*(ch&1)}")
        a(f"ds_write_b128 v15, {q(XR+4*ch)} offset:{CV_X + CV_WAVE*(ch&1)}")
    a("s_waitcnt lgkmcnt(0)")
    a.stamp(4)
    a("s_barrier")


G1_H = 5120
G1_HN = 5
G1_W = 87040
G1_WN = 3
G1_CONST = 0
G1_CS = 2048
G1_SP = 3072
G2_H, G2_HN, G2_W, G2_WN = G1_H, 3, 61440, 5
LDS_TOTAL = 163840


def tile_ids(a):
    a("s_and_b32 s12, s2, 7\ns_lshr_b32 s13, s2, 3\ns_and_b32 s14, s13, 7\ns_lshr_b32 s15, s13, 3")
    a("s_and_b32 s8, s12, 1\ns_lshl_b32 s8, s8, 3\ns_add_u32 s8, s8, s14")
    a("s_lshr_b32 s9, s12, 1\ns_lshl_b32 s10, s9, 3\ns_lshl_b32 s9, s9, 2\ns_add_u32 s9, s9, s15")
    a("s_add_u32 s10, s10, s14")
    a("s_and_b32 s11, s12, 1\ns_lshl_b32 s11, s11, 2\ns_add_u32 s11, s11, s15")
    a("v_bfe_u32 v5, v1, 2, 2")
    a("v_lshl_add_u32 v6, v3, 2, v5\nv_lshlrev_b32 v6, 8, v6")
    a("v_and_b32 v7, 3, v1\nv_lshl_add_u32 v6, v7, 3, v6")
    a("v_and_b32 v7, 1, v3\nv_lshl_add_u32 v5, v7, 2, v5")


def gemm_mfma_waves(a, done):
    tile_ids(a)
    if EXP & 16:
        sk = a.newlabel("L_nowarm")
        a(f"s_cmp_lt_u32 s2, 160\ns_cbranch_scc1 {sk}")
        a("s_sub_u32 s16, s13, 20\ns_lshl_b32 s16, s16, 2\ns_add_u32 s16, s16, s7\ns_mul_i32 s16, s16, 20480")
        a("v_lshlrev_b32 v8, 4, v1")
        for which in range(2):
            if which == 0:
                a(f"s_lshr_b32 s17, s12, 1\ns_mul_i32 s18, s17, {80*FS_}\ns_mul_i32 s17, s17, 983040")
                a.srd(32, 4, WS_W13, SZ_W13)
                a.poll(F_R, 80, 120, "s18")
            else:
                a("s_and_b32 s17, s12, 1\ns_mul_i32 s17, s17, 983040")
                a.srd(32, 4, WS_W2, SZ_W2)
                a.poll(F_R2, 32, 120)
            a("s_add_u32 s17, s17, s16")
            for i in range(20):
                a(f"buffer_load_dwordx4 {q(24+4*i)}, v8, s[32:35], s17 offen offset:{1024*(i%4)}")
                if i % 4 == 3:
                    a("s_add_u32 s17, s17, 4096")
        a("s_waitcnt vmcnt(0)")
        a.label(sk)
    a("s_barrier")
    if EXP & 1024:
        a("s_setprio 2")
    elif EXP & 512:
        a("s_setprio 0")
    a("s_and_b32 s16, s7, 1\ns_lshr_b32 s17, s7, 1")
    a("s_lshl_b32 s18, s16, 2\nv_xor_b32 v5, s18, v5")
    for nt in range(4):
        a(f"v_xor_b32 v7, {nt}, v5\nv_lshl_add_u32 v{12+nt}, v7, 5, v6")
    a("v_lshlrev_b32 v16, 4, v1\ns_mul_i32 s18, s17, 6144\nv_add_u32 v16, s18, v16")
    ACC, HS, AD = 24, [120, 160], 17
    for i in range(96):
        a(f"v_mov_b32 v{ACC+i}, 0")

    def reads(s, half):
        o = []
        for nt in range(4):
            r = HS[s] + 4 * nt
            o.append(f"ds_read_b64_tr_b16 {q(r,2)}, v{AD+nt} offset:{8192*half}")
            o.append(f"ds_read_b64_tr_b16 {q(r+2,2)}, v{AD+nt} offset:{8192*half + 4096}")
        for t in range(6):
            o.append(f"ds_read_b128 {q(HS[s]+16+4*t)}, v{AD+4} offset:{12288*half + 1024*t}")
        return o

    def setad(hs, ws):
        return [f"v_add_u32 v{AD+i}, {hs}, v{12+i}" for i in range(4)] + [f"v_add_u32 v{AD+4}, {ws}, v16"]

    for x in setad(G1_H, G1_W):
        a(x)
    a(f"s_mov_b32 s19, {G1_H}\ns_mov_b32 s20, {G1_W}\ns_mov_b32 s21, 0")
    a.srd(32, 4, WS_HM, SZ_HM)
    a.stamp(7)
    sk = a.newlabel("L_nopoll")
    a(f"s_cmp_lg_u32 s6, 0\ns_cbranch_scc1 {sk}")
    a.poll(F_R2, 32, 120)
    a.poll(F_C, 160, 120, fast=True)
    a(f"s_cmp_lg_u32 s2, 0\ns_cbranch_scc1 {sk}")
    a("v_mov_b32 v120, s3\nv_mov_b32 v121, 0\ns_mov_b64 exec, 1")
    a("buffer_store_dword v120, v121, s[92:95], 0 offen\ns_mov_b64 exec, -1")
    a.label(sk)
    a("s_barrier")
    a.stamp(8)
    a("s_waitcnt vmcnt(0)\ns_barrier")
    a.stamp(9)
    for x in reads(0, 0):
        a(x)
    a.label("L_g1")
    for s in range(2):
        if s == 0:
            a(f"s_add_u32 s19, s19, 16384\ns_cmp_eq_u32 s19, {G1_H + G1_HN*16384}\ns_cselect_b32 s19, {G1_H}, s19")
            a(f"s_add_u32 s20, s20, 24576\ns_cmp_eq_u32 s20, {G1_W + G1_WN*24576}\ns_cselect_b32 s20, {G1_W}, s20")
            a("s_waitcnt lgkmcnt(0)")
            rest = reads(1, 1) + setad("s19", "s20")
        else:
            a("s_waitcnt lgkmcnt(0)\ns_barrier")
            rest = reads(0, 0)
        i = 0
        for t in range(6):
            for nt in range(4):
                ac = ACC + 4 * (t * 4 + nt)
                a(f"v_mfma_f32_16x16x32_bf16 {q(ac)}, {q(HS[s]+16+4*t)}, {q(HS[s]+4*nt)}, {q(ac)}")
                if i < len(rest):
                    a(rest[i])
                i += 1
    a("s_add_u32 s21, s21, 1\ns_cmp_lt_u32 s21, 10\ns_cbranch_scc1 L_g1")
    a.stamp(10)
    a("s_lshl_b32 s18, s16, 10\nv_lshlrev_b32 v5, 4, v4\nv_add_u32 v5, s18, v5")
    a("s_mul_i32 s18, s17, 384\nv_lshlrev_b32 v6, 4, v3\nv_add_u32 v6, s18, v6")
    a("s_lshl_b32 s22, s8, 1\ns_add_u32 s22, s22, s16\ns_mul_i32 s22, s22, 48")
    a("s_mul_i32 s23, s9, 3\ns_add_u32 s22, s22, s23")
    a("s_lshl_b32 s23, s17, 1\ns_add_u32 s23, s23, s22\ns_lshl_b32 s23, s23, 12")
    a("s_add_u32 s22, s22, 1\ns_lshl_b32 s22, s22, 12\ns_lshl_b32 s18, s17, 9\ns_add_u32 s22, s22, s18")
    a("v_and_b32 v7, 1, v3\nv_lshlrev_b32 v7, 10, v7\nv_lshrrev_b32 v8, 1, v3\nv_lshl_add_u32 v7, v8, 8, v7\nv_lshl_add_u32 v7, v4, 4, v7")
    a("s_waitcnt lgkmcnt(0)\ns_barrier")
    KC, CSR = 184, 160
    for nt in range(4):
        a(f"ds_read_b128 {q(KC+4*nt)}, v5 offset:{G1_CONST + 256*nt}")
    for t in range(6):
        a(f"ds_read_b128 {q(CSR+4*t)}, v6 offset:{G1_CS + 64*t}")
    a("v_lshlrev_b32 v5, 4, v1")
    a("s_waitcnt lgkmcnt(0)")
    a.stamp(11)
    T = 120
    for nt in range(4):
        O = 144 + 4 * (nt & 1)
        k = KC + 4 * nt
        for jj in range(3):
            g = ACC + 4 * (jj * 4 + nt)
            u = ACC + 4 * ((3 + jj) * 4 + nt)
            for hh in range(2):
                g2, u2 = g + 2 * hh, u + 2 * hh
                a(f"v_pk_fma_f32 {q(g2,2)}, {q(CSR+4*jj+2*hh,2)}, {q(k,2)}, {q(g2,2)} op_sel_hi:[1,0,1]")
                a(f"v_pk_fma_f32 {q(u2,2)}, {q(CSR+4*(3+jj)+2*hh,2)}, {q(k,2)}, {q(u2,2)} op_sel_hi:[1,0,1]")
            for hh in range(2):
                a(f"v_pk_mul_f32 {q(T+2*hh,2)}, {q(g+2*hh,2)}, {q(k,2)} op_sel:[0,1] op_sel_hi:[1,1]")
            for i in range(4):
                a(f"v_exp_f32 v{T+i}, v{T+i}")
            for hh in range(2):
                a(f"v_pk_mul_f32 {q(g+2*hh,2)}, {q(g+2*hh,2)}, {q(u+2*hh,2)}")
            for hh in range(2):
                a(f"v_pk_fma_f32 {q(T+2*hh,2)}, {q(T+2*hh,2)}, {q(k+2,2)}, {q(k+2,2)} op_sel_hi:[1,0,0]")
            for i in range(4):
                a(f"v_rcp_f32 v{T+i}, v{T+i}")
            a("s_nop 0")
            for hh in range(2):
                a(f"v_pk_mul_f32 {q(g+2*hh,2)}, {q(g+2*hh,2)}, {q(T+2*hh,2)}")
            for hh in range(2):
                d = O + 2 * jj + hh if jj < 2 else 152 + 4 * (nt >> 1) + 2 * (nt & 1) + hh
                a(f"v_cvt_pk_bf16_f32 v{d}, v{g+2*hh}, v{g+2*hh+1}")
            if jj == 1:
                a(f"buffer_store_dwordx4 {q(O)}, v5, s[32:35], s23 offen offset:{1024*nt} {SC}")
        if nt & 1:
            S = 152 + 4 * (nt >> 1)
            a(f"s_nop 1\nv_permlane16_swap_b32 v{S}, v{S+2}\nv_permlane16_swap_b32 v{S+1}, v{S+3}")
            a(f"buffer_store_dwordx4 {q(S)}, v7, s[32:35], s22 offen offset:{1024*(nt-1)} {SC}")
    a.stamp(12)
    a.vm = []
    ACC, FS, RES, VW, VH = 16, [56, 84], 112, 132, 134
    a("s_lshl_b32 s22, s16, 1\ns_add_u32 s22, s22, s17")
    a("s_lshr_b32 s18, s10, 1\ns_mul_i32 s18, s18, 163840\ns_mul_i32 s19, s11, 20480\ns_add_u32 s18, s18, s19")
    a("s_and_b32 s19, s10, 1\ns_lshl_b32 s19, s19, 7\ns_add_u32 s18, s18, s19\ns_lshl_b32 s19, s22, 5\ns_add_u32 s18, s18, s19")
    a("v_lshlrev_b32 v10, 1, v4\nv_lshl_add_u32 v11, v3, 10, v10\nv_lshl_add_u32 v10, v3, 11, v10")
    a("s_add_u32 s19, s18, 8192\ns_add_u32 s20, s18, 16384")
    a.srd(36, 4, WS_HT, SZ_T)
    a.srd(40, 30, 0, SZ_T)
    a("s_lshl_b32 s21, s8, 4\ns_add_u32 s21, s21, s9")
    a("s_waitcnt vmcnt(0)")
    last_of4_publish(a, LDS_CNT2, F_G, 21, 140)
    a.stamp(13)
    sk = a.newlabel("L_nopub")
    a(f"s_cmp_lg_u32 s6, 0\ns_cbranch_scc1 {sk}")
    a(f"s_lshr_b32 s21, s10, 1\ns_mul_i32 s21, s21, {16*FS_}")
    a.poll(F_G, 16, 140, "s21", fast=True)
    a.label(sk)
    a("s_barrier")
    if EXP & 4:
        a(f"s_mul_i32 s21, s10, {48*4096}\ns_lshl_b32 s23, s15, 2\ns_add_u32 s23, s23, s7\ns_mul_i32 s23, s23, 12288\ns_add_u32 s21, s21, s23")
        for i in range(12):
            a.vmem(f"buffer_load_dwordx4 {q(144+4*i)}, v5, s[32:35], s21 offen offset:{1024*(i%4)} {SC}", "warm")
            if i % 4 == 3:
                a("s_add_u32 s21, s21, 4096")
    for p in range(2):
        for e in range(8):
            a.vmem(f"buffer_load_ushort v{RES+8*p+e}, v10, s[36:39], s{18+p} offen offset:{256*e} {SC}", "res")
    for e in range(4):
        a.vmem(f"buffer_load_ushort v{RES+16+e}, v11, s[36:39], s20 offen offset:{256*e} {SC}", "res")
    for i in range(40):
        a(f"v_mov_b32 v{ACC+i}, 0")
    a(f"s_lshl_b32 s19, s17, 12\ns_lshl_b32 s21, s22, 10\ns_add_u32 s19, s19, s21\nv_add_u32 v{VH}, s19, v5")
    a(f"v_xor_b32 v{VH+1}, 1024, v{VH}\nv_add_u32 v{VH}, {G2_H}, v{VH}\nv_add_u32 v{VH+1}, {G2_H}, v{VH+1}")
    a(f"s_mul_i32 s19, s17, 5120\nv_add_u32 v{VW}, s19, v5")
    a(f"v_mov_b32 v{VH+2}, v{VH}\nv_mov_b32 v{VH+3}, v{VH+1}\nv_add_u32 v{VW+1}, {G2_W + 3*20480}, v{VW}")
    a(f"s_mov_b32 s23, 0\ns_mov_b32 s24, {G2_W + 3*20480}")

    def reads2(kk, s):
        o = [f"ds_read_b128 {q(FS[s]+20+4*j)}, v{VH+2+j} offset:{kk*8192}" for j in range(2)]
        o += [f"ds_read_b128 {q(FS[s]+4*t)}, v{VW+1} offset:{kk*10240 + 1024*t}" for t in range(5)]
        return o

    a("s_lshl_b32 s18, s10, 6\ns_lshl_b32 s19, s22, 4\ns_add_u32 s18, s18, s19\ns_mul_i32 s18, s18, 1280\ns_mul_i32 s19, s11, 160\ns_add_u32 s18, s18, s19")
    a("v_mul_u32_u24 v10, 1280, v4\nv_lshl_add_u32 v11, v3, 3, v10\nv_lshl_add_u32 v10, v3, 4, v10")
    a(f"s_mul_i32 s19, s7, 5120\ns_add_u32 s19, s19, {G2_W + 2*20480}\nv_add_u32 v6, s19, v5")
    a(f"s_xor_b32 s19, s7, 2\ns_mul_i32 s19, s19, 5120\ns_add_u32 s19, s19, {G2_W + 2*20480}\nv_add_u32 v7, s19, v5")
    a("s_mov_b32 s21, 0")
    a("s_barrier")
    a.stamp(14)
    for x in reads2(0, 0):
        a(x)
    a.label("L_g2")
    for s in range(2):
        if s == 0:
            a(f"s_add_u32 s23, s23, 16384\ns_cmp_eq_u32 s23, {G2_HN*16384}\ns_cselect_b32 s23, 0, s23")
            a(f"s_add_u32 s24, s24, 20480\ns_cmp_eq_u32 s24, {G2_W + G2_WN*20480}\ns_cselect_b32 s24, {G2_W}, s24")
            a("s_waitcnt lgkmcnt(0)")
            rd = reads2(1, 1) + [f"v_add_u32 v{VH+2}, s23, v{VH}", f"v_add_u32 v{VH+3}, s23, v{VH+1}", f"v_add_u32 v{VW+1}, s24, v{VW}"]
        else:
            a("s_waitcnt lgkmcnt(0)\ns_barrier")
            rd = reads2(0, 0)
        i = 0
        for t in range(5):
            for j in range(2):
                ac = ACC + 4 * (5 * j + t)
                if not EXP & 32:
                    a(f"v_mfma_f32_16x16x32_bf16 {q(ac)}, {q(FS[s]+4*t)}, {q(FS[s]+20+4*j)}, {q(ac)}")
                for x in rd[2*i:2*i+2]:
                    a(x)
                i += 1
    a("s_add_u32 s21, s21, 1\ns_cmp_lt_u32 s21, 12\ns_cbranch_scc1 L_g2")
    a("s_nop 5")
    for t in range(5):
        a(f"ds_write_b128 v6, {q(ACC+20+4*t)} offset:{1024*t}")
    a("s_waitcnt lgkmcnt(0)\ns_barrier")
    for t in range(5):
        a(f"ds_read_b128 {q(ACC+20+4*t)}, v7 offset:{1024*t}")
    a.wait_vm("res")
    for i in range(20):
        a(f"v_lshlrev_b32 v{RES+i}, 16, v{RES+i}")
    a("s_waitcnt lgkmcnt(0)")
    O = 56
    for i in range(10):
        y = ACC + 2 * i
        a(f"v_pk_add_f32 {q(y,2)}, {q(y,2)}, {q(y+20,2)}")
        a(f"v_cvt_pk_bf16_f32 v{y}, v{y}, v{y+1}")
        a.unpack(y, y)
        a(f"v_pk_add_f32 {q(y,2)}, {q(y,2)}, {q(RES+2*i,2)}")
        a(f"v_cvt_pk_bf16_f32 v{O+i}, v{y}, v{y+1}")
        if i == 3:
            a(f"buffer_store_dwordx4 {q(O)}, v10, s[40:43], s18 offen {SCO}")
        if i == 7:
            a(f"buffer_store_dwordx4 {q(O+4)}, v10, s[40:43], s18 offen offset:64 {SCO}")
    a(f"buffer_store_dwordx2 {q(O+8,2)}, v11, s[40:43], s18 offen offset:128 {SCO}")
    a(f"s_branch {done}")


def gemm_loader_waves(a, done):
    a.vm = []
    tile_ids(a)
    a("s_mul_i32 s22, s8, 163840\ns_add_u32 s23, s22, 163840")
    a(f"s_mul_i32 s24, s9, {20*12288}\ns_add_u32 s25, s24, {20*12288}")
    a("s_lshr_b32 s20, s9, 3\ns_mul_i32 s20, s20, 5")
    a("s_lshl_b32 s16, s20, 14\ns_add_u32 s16, s16, s22\ns_mul_i32 s17, s20, 24576\ns_add_u32 s17, s17, s24")
    a("s_lshl_b32 s18, s7, 12\ns_mul_i32 s19, s7, 6144")
    a("v_lshrrev_b32 v12, 1, v4\nv_xor_b32 v12, v12, v3\nv_lshlrev_b32 v12, 5, v12")
    a("v_and_b32 v7, 1, v4\nv_lshlrev_b32 v7, 4, v7\nv_lshl_add_u32 v7, v3, 8, v7\nv_add_u32 v7, s18, v7")
    a("v_add_u32 v8, v7, v12\nv_xor_b32 v12, 128, v12\nv_add_u32 v9, v7, v12")
    if EXP & 2048:
        a("v_lshlrev_b32 v8, 4, v1\nv_add_u32 v8, s18, v8\nv_mov_b32 v9, v8")
    a("v_lshlrev_b32 v10, 4, v1\nv_add_u32 v10, s19, v10\nv_add_u32 v11, 4096, v10")
    a.srd(32, 4, WS_HT, SZ_T)
    a.srd(36, 4, WS_W13, SZ_W13)
    a.srd(40, 4, WS_CSP, SZ_CSP)
    a(f"s_mul_i32 s20, s9, {20*FS_}")
    a.poll(F_R, 20, 20, "s20")
    a.stamp(5)

    def issue_w(st):
        slot = G1_W + (st % G1_WN) * 24576
        if EXP & 4096 and st > 2:
            a.vm.append(("w", st))
            return
        a(f"s_add_u32 m0, s19, {slot}\ns_nop 0")
        for i in range(4):
            a.vmem(f"buffer_load_dwordx4 v10, s[36:39], s17 offen offset:{1024*i} {SCL} lds", ("w", st))
        a(f"s_add_u32 m0, s19, {slot + 4096}\ns_nop 0")
        for i in range(2):
            a.vmem(f"buffer_load_dwordx4 v11, s[36:39], s17 offen offset:{1024*i} {SCL} lds", ("w", st))
        a("s_add_u32 s17, s17, 24576\ns_cmp_eq_u32 s17, s25\ns_cselect_b32 s17, s24, s17")

    def issue_h(st):
        slot = G1_H + (st % G1_HN) * 16384
        if EXP & 8192 and st > 0:
            a.vm.append(("h", st))
            return
        a(f"s_add_u32 m0, s18, {slot}\ns_nop 0")
        for i in range(4):
            a.vmem(f"buffer_load_dwordx4 v{8 + (i&1)}, s[32:35], s16 offen offset:{1024*i} {SCL} lds", ("h", st))
        a("s_add_u32 s16, s16, 16384\ns_cmp_eq_u32 s16, s23\ns_cselect_b32 s16, s22, s16")

    CS = 40
    a("v_and_b32 v13, 255, v0\nv_lshlrev_b32 v13, 2, v13\ns_mul_i32 s20, s9, 15360")
    for ks in range(20):
        if ks and ks % 5 == 0:
            a("s_add_u32 s20, s20, 3840")
        a.vmem(f"buffer_load_dword v{CS+ks}, v13, s[40:43], s20 offen offset:{768*(ks % 5)} {SC}", "cs")
    SA = 14
    a("s_and_b32 s20, s9, 7\nv_xor_b32 v5, s20, v5\nv_lshl_add_u32 v14, v5, 5, v6\nv_add_u32 v15, 49152, v14")
    ONE, SACC, SF = 20, 24, 32
    for i in range(4):
        a(f"v_mov_b32 v{ONE+i}, {hex(ONES_BF)}")
    for i in range(8):
        a(f"v_mov_b32 v{SACC+i}, 0")
    a.wait_vm("cs")
    for ks in range(1, 20):
        a(f"v_add_f32 v{CS}, v{CS}, v{CS+ks}")
    a("v_and_b32 v7, 3, v4\nv_cmp_eq_u32 s[52:53], 1, v7\nv_cmp_eq_u32 s[54:55], 2, v7\nv_cmp_eq_u32 s[56:57], 3, v7")
    a("v_lshrrev_b32 v7, 2, v4\nv_cmp_eq_u32 s[58:59], v7, v3")
    a(f"s_mul_i32 s60, s11, {48*5120}\ns_mul_i32 s62, s10, {48*4096}\ns_mul_i32 s28, s7, 5120")
    a(f"s_add_u32 s61, s60, {48*5120}\ns_add_u32 s63, s62, {48*4096}")
    a(f"s_mul_i32 s26, s15, {3*20480 if EXP & 2 else 0}\ns_add_u32 s26, s26, s60\ns_mul_i32 s27, s15, {3*16384 if EXP & 2 else 0}\ns_add_u32 s27, s27, s62")
    a("v_lshlrev_b32 v60, 4, v1\nv_add_u32 v61, s18, v60\nv_add_u32 v60, s28, v60\nv_add_u32 v62, 4096, v60")
    a.srd(40, 4, WS_W2, SZ_W2)
    a.srd(44, 4, WS_HM, SZ_HM)
    a.stamp(6)
    a("s_barrier")
    for st in range(G1_WN):
        issue_w(st)
    a.stamp(7)
    a("s_barrier")
    a(f"ds_write_b32 v13, v{CS} offset:{G1_CS}")
    a(f"v_mov_b32 v16, 0\nds_write_b32 v16, v16 offset:{LDS_CNT2}")
    issue_h(0); issue_h(1)
    a.wait_vm(("h", 0))
    a.stamp(8)
    a("s_barrier")
    issue_h(2); issue_h(3); issue_h(4)

    def issue_w2(st):
        slot = G2_W + ((st + 3) % G2_WN) * 20480
        if EXP & 128 and st > 2:
            a.vm.append(("w2", st))
            return
        a(f"s_add_u32 m0, s28, {slot}\ns_nop 0")
        for i in range(4):
            a.vmem(f"buffer_load_dwordx4 v60, s[40:43], s26 offen offset:{1024*i} {SCL} lds", ("w2", st))
        a(f"s_add_u32 m0, s28, {slot + 4096}\ns_nop 0")
        a.vmem(f"buffer_load_dwordx4 v62, s[40:43], s26 offen {SCL} lds", ("w2", st))
        a("s_add_u32 s26, s26, 20480\ns_cmp_eq_u32 s26, s61\ns_cselect_b32 s26, s60, s26")

    def issue_hm(st):
        slot = G2_H + (st % G2_HN) * 16384
        if EXP & 64 and st > 0:
            a.vm.append(("hm", st))
            return
        a(f"s_add_u32 m0, s18, {slot}\ns_nop 0")
        for i in range(4):
            a.vmem(f"buffer_load_dwordx4 v61, s[44:47], s27 offen offset:{1024*i} {SCL} lds", ("hm", st))
        a("s_add_u32 s27, s27, 16384\ns_cmp_eq_u32 s27, s63\ns_cselect_b32 s27, s62, s27")

    a.srd(48, 4, WS_GR, 16 * 4096)
    a("s_and_b32 s20, s7, 1\ns_lshl_b32 s20, s20, 13\nv_add_u32 v14, s20, v14\nv_add_u32 v15, s20, v15")
    for s in range(10):
        slot = s % G1_HN
        dostat = s < 5
        if dostat:
            sk = a.newlabel("L_nost")
            a(f"s_lshr_b32 s20, s7, 1\ns_cmp_lg_u32 s20, {s & 1}\ns_cbranch_scc1 {sk}")
            off = G1_H + (slot % 3) * 16384
            a(f"ds_read_b64_tr_b16 {q(SF,2)}, v{SA + slot//3} offset:{off}")
            a(f"ds_read_b64_tr_b16 {q(SF+2,2)}, v{SA + slot//3} offset:{off + 4096}")
            a("s_waitcnt lgkmcnt(0)")
            a(f"v_mfma_f32_16x16x32_bf16 {q(SACC)}, {q(ONE)}, {q(SF)}, {q(SACC)}")
            a(f"v_mfma_f32_16x16x32_bf16 {q(SACC+4)}, {q(SF)}, {q(SF)}, {q(SACC+4)}")
            a.label(sk)
        if s == 8:
            a("s_lshl_b32 s20, s8, 12\ns_lshl_b32 s21, s7, 9\ns_add_u32 s20, s20, s21")
            a("v_and_b32 v7, 31, v1\nv_lshlrev_b32 v7, 4, v7\nv_lshrrev_b32 v36, 5, v1\nv_lshl_add_u32 v36, v36, 11, v7\nv_add_u32 v7, s21, v7\ns_mov_b32 s84, 0")
            L, D = a.newlabel("L_gp"), a.newlabel("L_gpd")
            a.label(L)
            a(f"buffer_load_dwordx4 {q(40)}, v36, s[48:51], s20 offen {SC}")
            a(f"s_add_u32 s84, s84, 1\ns_waitcnt vmcnt(0)\nv_cmp_ne_u32 vcc, s3, v42\ns_cbranch_vccz {D}")
            a(f"s_sleep 2\ns_cmp_lt_u32 s84, {POLL_MAX}\ns_cbranch_scc1 {L}")
            a.label(D)
            a("v_mov_b32 v44, v40\nv_mov_b32 v45, v41\ns_nop 1\nv_permlane32_swap_b32 v40, v44\nv_permlane32_swap_b32 v41, v45")
            a("v_add_f32 v40, v40, v44\nv_add_f32 v41, v41, v45")
            ln_finish(a, 40, 41, 42, 44, 45)
            a(f"v_mul_f32 v45, {hex(NLOG2E)}, v45\nv_mul_f32 v46, v42, v42\nv_mov_b32 v47, 0")
            a(f"ds_write_b128 v7, {q(44)} offset:{G1_CONST}")
        if s >= 1:
            if s + 2 < 10:
                issue_w(s + 2)
            elif s == 9:
                issue_w2(0); issue_w2(1)
            if s + 4 < 10:
                issue_h(s + 4)
        if s == 4:
            sq = SACC + 4
            a("s_nop 4")
            a(f"v_cndmask_b32 v{sq}, v{sq}, v{sq+1}, s[52:53]\nv_cndmask_b32 v{sq}, v{sq}, v{sq+2}, s[54:55]\nv_cndmask_b32 v{SACC+1}, v{sq}, v{sq+3}, s[56:57]")
            a(f"s_lshl_b32 s20, s7, 7\nv_lshlrev_b32 v7, 3, v4\nv_add_u32 v7, s20, v7\ns_mov_b64 exec, s[58:59]")
            a(f"ds_write_b64 v7, {q(SACC,2)} offset:{G1_SP}\ns_mov_b64 exec, -1\ns_waitcnt lgkmcnt(0)")
        if s == 5:
            sk = a.newlabel("L_nogr")
            a(f"s_cmp_lg_u32 s7, 3\ns_cbranch_scc1 {sk}")
            a("v_lshlrev_b32 v7, 3, v4")
            for w in range(4):
                a(f"ds_read_b64 {q(SF+2*w,2)}, v7 offset:{G1_SP + 128*w}")
            a("s_lshl_b32 s20, s8, 1\ns_lshr_b32 s21, s9, 3\ns_add_u32 s20, s20, s21\ns_lshl_b32 s20, s20, 3\ns_and_b32 s21, s9, 7\ns_add_u32 s20, s20, s21\ns_lshl_b32 s20, s20, 8")
            a(f"v_lshlrev_b32 v7, 4, v4\nv_mov_b32 v{SF+10}, s3\nv_mov_b32 v{SF+11}, s3\ns_waitcnt lgkmcnt(0)")
            a(f"v_pk_add_f32 {q(SF,2)}, {q(SF,2)}, {q(SF+2,2)}\nv_pk_add_f32 {q(SF+4,2)}, {q(SF+4,2)}, {q(SF+6,2)}\nv_pk_add_f32 {q(SF+8,2)}, {q(SF,2)}, {q(SF+4,2)}")
            a("s_mov_b64 exec, 0xffff")
            a(f"buffer_store_dwordx4 {q(SF+8)}, v7, s[48:51], s20 offen {SC}")
            a("s_mov_b64 exec, -1")
            a.label(sk)
        if s + 1 < 10:
            a.wait_vm(("h", s + 1))
            if s + 1 >= G1_WN:
                a.wait_vm(("w", s + 1))
        a("s_barrier")
    issue_w2(2); issue_w2(3); issue_w2(4)
    a("s_waitcnt lgkmcnt(0)")
    a.stamp(10)
    a("s_barrier")
    a.stamp(13)
    a("s_barrier")
    issue_hm(0); issue_hm(1)
    a.wait_vm(("hm", 0))
    a("s_barrier")
    issue_hm(2)
    for s in range(12):
        if s + 1 < 12:
            a.wait_vm(("hm", s + 1))
            if s + 1 >= G2_WN:
                a.wait_vm(("w2", s + 1))
        a("s_barrier")
        if s + G2_WN < 12:
            issue_w2(s + G2_WN)
        if s + G2_HN < 12:
            issue_hm(s + G2_HN)
    a("s_barrier")


def main():
    a = Asm()
    hdr = open(f"cdna_kernels/{NAME}.s.ref").read().split("\n")
    for line in hdr:
        if line.startswith("; Override") or line.startswith("; grid=") or "@launch" in line:
            continue
        if not line.startswith(";"):
            break
        a.raw(line)
    if STAMPS == 1:
        a.raw(f"; @launch kernel={KNAME} grid=(256,1,1) block=(512,1,1) lds={LDS_TOTAL}")
    else:
        a.raw(f"; @launch grid=(256,1,1) block=(512,1,1) lds={LDS_TOTAL}")
    a.raw('.amdgcn_target "amdgcn-amd-amdhsa--gfx950"\n.text')
    a.raw(f".globl {KNAME}\n.p2align 8\n.type {KNAME},@function\n{KNAME}:")
    done = "L_done"
    a("s_cmp_ge_u32 s2, 256\ns_cbranch_scc1 L_exit")
    if STAMPS:
        for i in range(16):
            a(f"s_mov_b32 s{64+i}, 0")
        a.stamp(0)
    a(f"s_load_dwordx2 s[4:5], s[0:1], {KA_WS}\ns_load_dwordx16 s[8:23], s[0:1], 0\ns_load_dwordx8 s[24:31], s[0:1], 64")
    a("v_and_b32 v1, 63, v0\nv_lshrrev_b32 v2, 6, v0\nv_lshrrev_b32 v3, 4, v1\nv_and_b32 v4, 15, v1")
    a("v_readfirstlane_b32 s6, v2")
    a("s_waitcnt lgkmcnt(0)")
    a("s_load_dword s3, s[4:5], 0")
    a("s_and_b32 s7, s6, 3")
    a.srd(92, 4, WS_FLG, SZ_FLG)
    a(f"v_mov_b32 v5, {LDS_CNT}\nv_mov_b32 v6, 0\nv_mov_b32 v7, 0\nv_mov_b32 v8, 0\nv_mov_b32 v9, 0\nds_write_b128 v5, v[6:9]")
    a("s_cmp_ge_u32 s2, 160\ns_cbranch_scc1 L_aux")
    a("s_lshl_b32 s52, s2, 2\ns_add_u32 s52, s52, s7")
    kgen(a)
    a("s_cmp_ge_u32 s6, 4\ns_cbranch_scc1 L_partner")
    conv_main(a)
    a("s_branch L_mfma")
    a.label("L_partner")
    conv_partner(a)
    a("s_branch L_loader")
    a.label("L_aux")
    a.vm = []
    a("s_cmp_ge_u32 s2, 224\ns_cbranch_scc1 L_aux_rp")
    a("s_sub_u32 s52, s2, 160")
    role_ln1(a)
    a("s_branch L_aux_go")
    a.label("L_aux_rp")
    a("s_sub_u32 s52, s2, 224")
    if not EXP & 256:
        a("s_cmp_lt_u32 s6, 6\ns_cbranch_scc1 L_aux_rp1")
        a("s_getpc_b64 s[54:55]")
        a.label("L_pc")
        a(f"s_sub_u32 s54, s54, L_pc-{KNAME}\ns_subb_u32 s55, s55, 0")
        a(f"v_lshlrev_b32 v5, 4, v1\ns_and_b32 s56, s6, 1\ns_mul_i32 s56, s56, {CODE_KB*512}\nv_add_u32 v5, s56, v5")
        for i in range(CODE_KB // 2):
            a(f"global_load_dwordx4 {q(16+4*i)}, v5, s[54:55] offset:{1024*(i%4)}")
            if i % 4 == 3:
                a("v_add_u32 v5, 4096, v5")
        if TLBW:
            a("v_lshlrev_b32 v5, 16, v1")
            a.srd(32, 4, 0, 0x1720000)
            for i in range(6):
                a(f"s_mov_b32 s56, {i << 22}")
                a(f"buffer_load_dword v{100+i}, v5, s[32:35], s56 offen {SC}")
            for k, (lo, sz) in enumerate([(24, 640*3072), (26, 640*3072), (28, 1536*1280), (30, SZ_T)]):
                a.srd(36, lo, 0, sz)
                a(f"buffer_load_dword v{106+k}, v5, s[36:39], 0 offen {SC}")
        a.label("L_aux_rp1")
    epoch_ready(a)
    a("s_cmp_ge_u32 s6, 6\ns_cbranch_scc1 L_aux_end")
    a("s_mul_i32 s53, s52, 6\ns_add_u32 s53, s53, s6")
    if W2LATE:
        a.poll(F_L, 64, 26)
    role_rp2(a)
    a.label("L_aux_end")
    a("s_waitcnt vmcnt(0)\ns_barrier")
    a("s_cmp_lg_u32 s6, 4\ns_cbranch_scc1 L_aux_go")
    a.publish(F_R2, 52, 10)
    a.label("L_aux_go")
    a.stamp(4)
    a("s_cmp_ge_u32 s6, 4\ns_cbranch_scc1 L_loader\ns_branch L_mfma")
    a.label("L_loader")
    gemm_loader_waves(a, done)
    a(f"s_branch {done}")
    a.label("L_mfma")
    gemm_mfma_waves(a, done)
    a.label(done)
    if STAMPS:
        a("s_waitcnt vmcnt(0)")
        a.stamp(15)
        if STAMPS == 2:
            a(f"s_cmp_lg_u32 s2, {int(os.environ.get('DBGWG', '0'))}\ns_cbranch_scc1 L_exit\ns_cmp_lg_u32 s6, {int(os.environ.get('DBGWV', '0'))}\ns_cbranch_scc1 L_exit")
            a("s_load_dwordx2 s[82:83], s[0:1], 96\ns_waitcnt lgkmcnt(0)")
            a.srd(88, 82, 0, 256)
            for i in range(15, -1, -1):
                a(f"s_sub_u32 s{64+i}, s{64+i}, s64")
            for i in range(16):
                a(f"v_mov_b32 v{4+i}, s{64+i}")
            a("v_mov_b32 v1, 0\ns_mov_b64 exec, 1")
            for i in range(4):
                a(f"buffer_store_dwordx4 {q(4+4*i)}, v1, s[88:91], 0 offen offset:{16*i}")
            a("s_branch L_exit")
        a.srd(88, 4, WS_STAMP, 262144)
        a("v_lshrrev_b32 v1, 6, v0\nv_lshlrev_b32 v1, 6, v1\ns_lshl_b32 s82, s2, 9\nv_add_u32 v1, s82, v1")
        for i in range(16):
            a(f"v_mov_b32 v{4+i}, s{64+i}")
        a("s_mov_b64 exec, 1")
        for i in range(4):
            a(f"buffer_store_dwordx4 {q(4+4*i)}, v1, s[88:91], 0 offen offset:{16*i}")
    a.label("L_exit")
    a("s_endpgm")
    a.raw(f".fill ({CODE_KB*1024} - (. - {KNAME})) / 4, 4, 0xbf800000")
    a.raw(f""".section .rodata,"a"
.p2align 6
.amdhsa_kernel {KNAME}
  .amdhsa_next_free_vgpr 244
  .amdhsa_next_free_sgpr 96
  .amdhsa_accum_offset 244
  .amdhsa_group_segment_fixed_size 0
  .amdhsa_kernarg_size 112
  .amdhsa_user_sgpr_count 2
  .amdhsa_user_sgpr_kernarg_segment_ptr 1
  .amdhsa_system_sgpr_workgroup_id_x 1
.end_amdhsa_kernel""")
    out = sys.argv[1] if len(sys.argv) > 1 else f"cdna_kernels/{NAME}.s"
    open(out, "w").write("\n".join(a.l) + "\n")


if __name__ == "__main__":
    main()
```

```python
import sys, os, struct

NAME = "sequential_preLN__ssm_conv_s4d__glu_gated_swiglu__prompt"
KNAME = NAME + "_kernel"
KA_WS = 104

WS_FLG = 0
FS_ = 128
F_L, F_X, F_R2, F_C, F_G, F_R = 0x1000, 0x3000, 0x5000, 0x8000, 0x10000, 0x18000
SZ_FLG = 0x30000
WS_UT = 0x100000
WS_XT = 0x400000
WS_HT = 0x700000
WS_HM = 0xA00000
WS_W13 = 0x1000000
WS_W2 = 0x1400000
WS_GR = 0x1710000
WS_ST = 0x1700000
WS_CSP = 0x1600000
WS_STAMP = 0x4000000
SZ_T = 640 * 4096
SZ_TP = SZ_T
T_BLK = 40960
SZ_HM = 32 * 48 * 4096
SZ_W13 = 16 * 20 * 12288
SZ_W2 = 8 * 48 * 5120
SZ_CSP = 320 * 768 + 1024

STAMPS = int(os.environ.get('STAMPS', '0'))
EXP = int(os.environ.get('EXP', '0'))
LOG2E, NLOG2E, INV2PI, INV640, EPS, ONES_BF = 0x3FB8AA3B, 0xBFB8AA3B, 0x3E22F983, 0x3ACCCCCD, 0x3727C5AC, 0x3F803F80
POLL_MAX = 400000
CODE_KB = 30
W2LATE = int(os.environ.get('W2LATE', '0'))
TLBW = int(os.environ.get('TLBW', '0'))
PIPE = int(os.environ.get('PIPE', '2'))
PSLEEP = int(os.environ.get('PSLEEP', '3'))
SLEEP = int(os.environ.get('SLEEP', '1'))
SC = "sc1"
SCO = os.environ.get("SCO", "")
SCL = "" if EXP & 8 else "sc1"


def f32bits(x):
    return struct.unpack("<I", struct.pack("<f", x))[0]


def q(r, n=4):
    return f"v[{r}:{r+n-1}]"


class Asm:
    def __init__(self):
        self.l = []
        self.vm = []
        self.uid = 0

    def __call__(self, s):
        for x in s.split("\n"):
            x = x.strip()
            if x:
                self.l.append("    " + x)

    def label(self, s):
        self.l.append(s + ":")

    def raw(self, s):
        self.l.append(s)

    def newlabel(self, p="L"):
        self.uid += 1
        return f"{p}_{self.uid}"

    def vmem(self, s, tag=None):
        self(s)
        self.vm.append(tag)

    def wait_vm(self, tag):
        idx = max(i for i, t in enumerate(self.vm) if t == tag)
        n = len(self.vm) - 1 - idx
        assert n <= 63, n
        self(f"s_waitcnt vmcnt({n})")

    def srd(self, sd, lo, off, size):
        if off == 0:
            self(f"s_mov_b32 s{sd}, s{lo}\ns_mov_b32 s{sd+1}, s{lo+1}")
        else:
            self(f"s_add_u32 s{sd}, s{lo}, {hex(off)}\ns_addc_u32 s{sd+1}, s{lo+1}, 0")
        self(f"s_mov_b32 s{sd+2}, {size}\ns_mov_b32 s{sd+3}, 0x20000")

    def stamp(self, i):
        if STAMPS:
            self(f"s_memrealtime s[80:81]\ns_waitcnt lgkmcnt(0)\ns_mov_b32 s{64+i}, s80")

    def unpack(self, dlo, src):
        if dlo == src:
            self(f"v_and_b32 v{dlo+1}, 0xffff0000, v{src}\nv_lshlrev_b32 v{dlo}, 16, v{src}")
        else:
            self(f"v_lshlrev_b32 v{dlo}, 16, v{src}\nv_and_b32 v{dlo+1}, 0xffff0000, v{src}")

    def rnd(self, d, s):
        self(f"v_cvt_pk_bf16_f32 v{d}, v{s}, v{s}\nv_lshlrev_b32 v{d}, 16, v{d}")

    def poll(self, off, n, vt, soff=None, fast=False):
        L, D = self.newlabel("L_poll"), self.newlabel("L_polld")
        nl = (n + 63) // 64
        for i in range(nl):
            self(f"v_add_u32 v{vt+i}, {64*i}, v1\nv_min_u32 v{vt+i}, {n-1}, v{vt+i}\nv_mul_u32_u24 v{vt+i}, {FS_}, v{vt+i}")
        if soff is None:
            self(f"s_mov_b32 s86, {off}")
        else:
            self(f"s_add_u32 s86, {soff}, {off}")
        self("s_mov_b32 s84, 0")
        np_ = PIPE if fast else 1

        def ld(k):
            for i in range(nl):
                self(f"buffer_load_dword v{vt+nl*(1+k)+i}, v{vt+i}, s[92:95], s86 offen {SC}")

        def chk(k):
            b = vt + nl * (1 + k)
            for i in range(nl):
                self(f"v_xor_b32 v{b+i}, s3, v{b+i}")
            for i in range(1, nl):
                self(f"v_or_b32 v{b}, v{b}, v{b+i}")
            self(f"v_cmp_ne_u32 vcc, 0, v{b}\ns_cbranch_vccz {D}")

        for k in range(np_ - 1):
            ld(k)
            self(f"s_sleep {PSLEEP}")
        self.label(L)
        for k in range(np_):
            ld((k + np_ - 1) % np_)
            self(f"s_waitcnt vmcnt({nl*(np_-1)})")
            chk(k)
            self(f"s_sleep {PSLEEP if fast else SLEEP}")
        self(f"s_add_u32 s84, s84, 1\ns_cmp_lt_u32 s84, {POLL_MAX}\ns_cbranch_scc1 {L}")
        self.label(D)
        if np_ > 1:
            self.vm = [None] * (nl * (np_ - 1))
        else:
            self.vm = []

    def publish(self, off, sidx, vt):
        self(f"s_mul_i32 s85, s{sidx}, {FS_}\ns_add_u32 s85, s85, {off}\nv_mov_b32 v{vt}, s3\nv_mov_b32 v{vt+1}, s85\ns_mov_b64 exec, 1")
        self.vmem(f"buffer_store_dword v{vt}, v{vt+1}, s[92:95], 0 offen {SC}")
        self("s_mov_b64 exec, -1")


def ln_finish(a, vs, vq, vt, vnegm, vrinv):
    a(f"v_mul_f32 v{vs}, {hex(INV640)}, v{vs}")
    a(f"v_mul_f32 v{vq}, {hex(INV640)}, v{vq}")
    a(f"v_fma_f32 v{vq}, -v{vs}, v{vs}, v{vq}")
    a(f"v_max_f32 v{vq}, 0, v{vq}")
    a.rnd(vnegm, vs)
    a(f"v_xor_b32 v{vnegm}, 0x80000000, v{vnegm}")
    a.rnd(vt, vq)
    a(f"v_add_f32 v{vt}, {hex(EPS)}, v{vt}")
    a.rnd(vt, vt)
    a(f"v_sqrt_f32 v{vt}, v{vt}\ns_nop 0")
    a.rnd(vt, vt)
    a(f"v_rcp_f32 v{vrinv}, v{vt}\ns_nop 0")


def cmul(a, d, x, y, t):
    a(f"v_pk_mul_f32 {q(t,2)}, {q(x,2)}, {q(y,2)} op_sel_hi:[1,0]")
    a(f"v_pk_fma_f32 {q(d,2)}, {q(x,2)}, {q(y,2)}, {q(t,2)} op_sel:[1,1,0] op_sel_hi:[0,1,1] neg_lo:[1,0,0]")


DLY = os.environ.get("DLY", "")


def delay(a, tag):
    if tag in DLY:
        a("s_sleep 32")


def epoch_ready(a):
    a("s_waitcnt lgkmcnt(0)\ns_add_u32 s3, s3, 1")


LDS_CNT = 143872


LDS_CNT2 = 4096


def last_of4_publish(a, addr, off, sidx, vt):
    sk = a.newlabel("L_notlast")
    a(f"v_mov_b32 v{vt}, {addr}\nv_mov_b32 v{vt+1}, 1\ns_mov_b64 exec, 1")
    a(f"ds_add_rtn_u32 v{vt+1}, v{vt}, v{vt+1}\ns_mov_b64 exec, -1\ns_waitcnt lgkmcnt(0)")
    a(f"v_readfirstlane_b32 s85, v{vt+1}\ns_nop 3\ns_cmp_lg_u32 s85, 3\ns_cbranch_scc1 {sk}")
    a.publish(off, sidx, vt)
    a.label(sk)


LN_RS = 1312
LN_U = 32 * LN_RS


def role_ln1(a):
    a("v_lshl_add_u32 v5, v2, 2, v3")
    a(f"s_mul_i32 s53, s52, {32*1280}")
    a("v_mul_u32_u24 v6, 1280, v5\nv_lshl_add_u32 v6, v4, 4, v6\nv_add_u32 v6, s53, v6")
    a.srd(32, 8, 0, SZ_T)
    X = 16
    for j in range(5):
        a.vmem(f"buffer_load_dwordx4 {q(X+4*j)}, v6, s[32:35], 0 offen offset:{j*256}", ("x", j))
    a(f"v_mul_u32_u24 v7, {LN_RS}, v5\nv_lshl_add_u32 v7, v4, 4, v7")
    a(f"s_mov_b32 s54, {hex(ONES_BF)}")
    a.srd(36, 4, WS_ST, 16384)
    a.srd(40, 4, WS_XT, SZ_TP)
    a("v_bfe_u32 v8, v1, 2, 2\nv_lshl_add_u32 v8, v3, 3, v8")
    a(f"v_mul_u32_u24 v8, {LN_RS}, v8\nv_and_b32 v9, 3, v1\nv_lshl_add_u32 v8, v9, 3, v8")
    a("v_mul_u32_u24 v9, 160, v2\nv_add_u32 v8, v8, v9")
    a("v_mul_u32_u24 v9, 80, v2\nv_add_u32 v9, v9, v4\nv_lshlrev_b32 v9, 6, v9\nv_lshl_add_u32 v9, v3, 4, v9")
    a(f"s_mul_i32 s53, s52, {T_BLK}\ns_add_u32 s55, s53, 4096\ns_lshl_b32 s56, s52, 7")
    a(f"v_lshlrev_b32 v10, 2, v5\nv_and_b32 v11, 1, v4\nv_lshl_add_u32 v10, v11, 7, v10\nv_add_u32 v10, {LN_U}, v10")
    R = 56
    S0, S1, Q0, Q1, NM, RI, TT = 80, 81, 82, 83, 84, 85, 88
    a(f"v_mov_b32 v{S0}, 0\nv_mov_b32 v{S1}, 0\nv_mov_b32 v{Q0}, 0\nv_mov_b32 v{Q1}, 0\nv_cmp_eq_u32 s[58:59], 1, v11")
    epoch_ready(a)
    for j in range(5):
        a.wait_vm(("x", j))
        if j == 0:
            a.stamp(1)
        a(f"ds_write_b128 v7, {q(X+4*j)} offset:{j*256}")
        for i in range(4 * j, 4 * j + 4):
            a(f"v_dot2c_f32_bf16 v{S0 + (i&1)}, s54, v{X+i}")
            a(f"v_dot2c_f32_bf16 v{Q0 + (i&1)}, v{X+i}, v{X+i}")
    a("s_waitcnt lgkmcnt(0)\ns_barrier")
    a.stamp(2)
    for i in range(5):
        a(f"ds_read_b64_tr_b16 {q(R+4*i,2)}, v8 offset:{32*i}")
        a(f"ds_read_b64_tr_b16 {q(R+4*i+2,2)}, v8 offset:{32*i + 4*LN_RS}")
    a(f"v_add_f32 v{S0}, v{S0}, v{S1}\nv_add_f32 v{Q0}, v{Q0}, v{Q1}")
    for i in range(5):
        a(f"s_waitcnt lgkmcnt({8-2*i})")
        a.vmem(f"buffer_store_dwordx4 {q(R+4*i)}, v9, s[40:43], {'s53' if i < 4 else 's55'} offen offset:{1024*(i%4)} {SC}")
    for sh in (8, 4, 2, 1):
        a(f"v_add_f32_dpp v{S0}, v{S0}, v{S0} row_ror:{sh} row_mask:0xf bank_mask:0xf")
        a(f"v_add_f32_dpp v{Q0}, v{Q0}, v{Q0} row_ror:{sh} row_mask:0xf bank_mask:0xf")
        a("s_nop 0")
    ln_finish(a, S0, Q0, TT, NM, RI)
    a(f"v_cndmask_b32 v{NM}, v{NM}, v{RI}, s[58:59]")
    a(f"ds_write_b32 v10, v{NM}")
    a("s_waitcnt lgkmcnt(0)\ns_barrier")
    sk = a.newlabel("L_lnst")
    a(f"s_cmp_lg_u32 s6, 7\ns_cbranch_scc1 {sk}")
    a(f"v_lshlrev_b32 v10, 2, v1\nv_add_u32 v11, {LN_U}, v10\nds_read_b32 v12, v11")
    a("v_lshrrev_b32 v11, 5, v1\nv_mul_u32_u24 v11, 8064, v11\nv_add_u32 v10, v10, v11\ns_waitcnt lgkmcnt(0)")
    a.vmem(f"buffer_store_dword v12, v10, s[36:39], s56 offen {SC}")
    a.label(sk)
    a("s_waitcnt vmcnt(0)\ns_barrier")
    a.stamp(3)
    sk = a.newlabel("L_lnp")
    a(f"s_cmp_lg_u32 s6, 7\ns_cbranch_scc1 {sk}")
    delay(a, "b")
    a.publish(F_L, 52, 10)
    a.label(sk)
    sk = a.newlabel("L_lnrp")
    a(f"s_cmp_ge_u32 s6, 5\ns_cbranch_scc1 {sk}")
    a(f"s_mul_i32 s55, s52, 5\ns_add_u32 s55, s55, s6\ns_mul_i32 s56, s6, 12288\ns_add_u32 s56, s56, 49152")
    rp13_issue(a)
    a("s_waitcnt vmcnt(0)")
    rp13_finish(a)
    a("s_waitcnt vmcnt(0)")
    delay(a, "c")
    a.publish(F_R, 55, 10)
    a.label(sk)


W13_J = [[0, 1, 2], [4, 5, 3]]


RP_BASE = 2 * LN_U


def rp13_issue(a):
    a("s_mul_i32 s57, s55, 205\ns_lshr_b32 s57, s57, 12")
    a("s_mul_i32 s58, s57, 20\ns_sub_u32 s58, s55, s58")
    a.srd(44, 24, 0, 640 * 3072)
    a.srd(48, 26, 0, 640 * 3072)
    a(f"s_mul_i32 s57, s57, 192\ns_mul_i32 s58, s58, {32*3072}\ns_add_u32 s57, s57, s58")
    for i in range(6):
        a(f"v_add_u32 v10, {64*i}, v1\nv_mul_u32_u24 v11, 43691, v10\nv_lshrrev_b32 v11, 19, v11")
        a(f"v_mul_u32_u24 v12, 12, v11\nv_sub_u32 v12, v10, v12\nv_mul_u32_u24 v11, 3072, v11\nv_lshl_add_u32 v13, v12, 4, v11")
        for mat in range(2):
            a(f"s_add_u32 m0, s56, {mat*6144 + i*1024}\ns_nop 0")
            a(f"buffer_load_dwordx4 v13, s[{44+4*mat}:{47+4*mat}], s57 offen lds")


def rp13_finish(a):
    a("v_lshlrev_b32 v5, 4, v1")
    a("v_bfe_u32 v6, v1, 2, 2\nv_lshl_add_u32 v6, v3, 2, v6\nv_and_b32 v7, 3, v1")
    a("v_mul_u32_u24 v16, 192, v6\nv_lshl_add_u32 v16, v7, 3, v16\nv_add_u32 v16, s56, v16")
    OH, ACC, F = 32, 80, 84
    for t in range(12):
        wn, mat, jj = t // 6, (t % 6) // 3, t % 3
        off = mat * 6144 + 32 * W13_J[wn][jj]
        a(f"ds_read_b64_tr_b16 {q(F+4*t,2)}, v16 offset:{off}")
        a(f"ds_read_b64_tr_b16 {q(F+4*t+2,2)}, v16 offset:{off + 16*192}")
    a.srd(40, 4, WS_W13, SZ_W13)
    a.srd(44, 4, WS_CSP, SZ_CSP)
    a("s_mul_i32 s57, s55, 12288\ns_add_u32 s58, s57, 4096\ns_add_u32 s59, s57, 8192")
    a("s_waitcnt lgkmcnt(0)")
    for t in range(12):
        a(f"buffer_store_dwordx4 {q(F+4*t)}, v5, s[40:43], s{57 + t//4} offen offset:{1024*(t%4)} {SC}")
    a(f"v_mov_b32 v8, {hex(ONES_BF)}")
    a("v_lshlrev_b32 v9, 6, v4\nv_lshl_add_u32 v9, v3, 4, v9\ns_mul_i32 s60, s55, 768")
    for t in range(12):
        a(f"v_cmp_eq_u32 vcc, {t}, v4\ns_nop 1")
        for i in range(4):
            a(f"v_cndmask_b32 v{OH+4*t+i}, 0, v8, vcc")
    a("s_nop 1")
    for t in range(12):
        a(f"v_mfma_f32_16x16x32_bf16 {q(ACC)}, {q(F+4*t)}, {q(OH+4*t)}, {q(ACC) if t else 0}")
    a("s_nop 7\nv_cmp_gt_u32 vcc, 12, v4\ns_and_saveexec_b64 s[82:83], vcc")
    a(f"buffer_store_dwordx4 {q(ACC)}, v9, s[44:47], s60 offen {SC}")
    a(f"s_mov_b64 exec, s[82:83]")


def role_rp2(a):
    a.vm = []
    a("s_mul_i32 s54, s6, 12288")
    a("v_lshlrev_b32 v5, 4, v1")
    a("v_bfe_u32 v6, v1, 2, 2\nv_lshl_add_u32 v6, v3, 2, v6\nv_and_b32 v7, 3, v1")
    a("s_mul_i32 s55, s53, 171\ns_lshr_b32 s55, s55, 12")
    a("s_mul_i32 s56, s55, 24\ns_sub_u32 s56, s53, s56")
    a.srd(32, 28, 0, 1536 * 1280)
    a(f"s_mul_i32 s57, s55, 160\ns_mul_i32 s58, s56, {64*1280}\ns_add_u32 s57, s57, s58\ns_add_u32 s58, s57, {32*1280}")
    for i in range(5):
        a(f"v_add_u32 v8, {64*i}, v1\nv_mul_u32_u24 v9, 52429, v8\nv_lshrrev_b32 v9, 19, v9")
        a(f"v_mul_u32_u24 v16, 10, v9\nv_sub_u32 v16, v8, v16\nv_mul_u32_u24 v9, 1280, v9\nv_lshl_add_u32 v{10+i}, v16, 4, v9")
        for un in range(2):
            a(f"s_add_u32 m0, s54, {un*5120 + i*1024}\ns_nop 0")
            a.vmem(f"buffer_load_dwordx4 v{10+i}, s[32:35], s{57+un} offen lds", "w")
    a.srd(40, 4, WS_W2, SZ_W2)
    a("s_mul_i32 s60, s56, 171\ns_lshr_b32 s60, s60, 9\ns_mul_i32 s60, s60, 3\ns_sub_u32 s60, s56, s60")
    for un in range(2):
        a(f"s_cmp_eq_u32 s60, {2 if un == 0 else 0}\ns_cselect_b32 s61, 640, 0\ns_mul_i32 s62, s61, 3\ns_sub_u32 s62, 2560, s62")
        a(f"v_mul_u32_u24 v16, 160, v6\nv_mul_u32_u24 v8, s61, v3\nv_add3_u32 v16, v16, v8, s54")
        b = 18 + 4 * un
        a(f"v_lshl_add_u32 v{b}, v7, 4, v16\nv_lshl_add_u32 v{b+1}, v7, 3, v16\nv_add_u32 v{b+2}, s62, v{b}\nv_add_u32 v{b+3}, s62, v{b+1}")
    a("s_mul_i32 s57, s53, 10240\ns_add_u32 s58, s57, 4096\ns_add_u32 s59, s57, 8192")
    if W2LATE:
        a("s_waitcnt vmcnt(0)")
    else:
        a.poll(F_L, 64, 26)
    F = 32
    for k in range(10):
        un, t = divmod(k, 5)
        b = 18 + 4 * un + (0 if t < 4 else 1)
        off = un * 5120 + ((t >> 1) * 64 + (t & 1) * 8 if t < 4 else 128)
        a(f"ds_read_b64_tr_b16 {q(F+4*k,2)}, v{b} offset:{off}")
        a(f"ds_read_b64_tr_b16 {q(F+4*k+2,2)}, v{b+2} offset:{off}")
    a("s_waitcnt lgkmcnt(0)")
    for k in range(10):
        a.vmem(f"buffer_store_dwordx4 {q(F+4*k)}, v5, s[40:43], s{57 + k//4} offen offset:{1024*(k%4)} {SC}")


TB_RS = 272
TB_SZ = 57 * TB_RS
CV_A = 64
CV_CS = 4160
CV_U = CV_A + 4 * CV_CS
CV_X = CV_U + 4608
CV_WAVE = CV_X + 4096
KP_BASE = 126976
PART_BASE = 145408
RP_LDS = [101632, 113920]


def kgen(a):
    a.vm = []
    a(f"s_mul_i32 s53, s6, {TB_SZ}")
    a("s_lshr_b32 s54, s6, 2")
    a("s_mul_i32 s55, s52, 384\ns_lshl_b32 s56, s54, 7\ns_add_u32 s55, s55, s56\nv_lshlrev_b32 v5, 1, v1")
    a("s_lshl_b32 s56, s52, 1\nv_mov_b32 v6, 0")
    PR, DT = 8, 92
    PR2 = 96
    a.srd(48, 18, 0, 1280)
    a.vmem(f"buffer_load_ushort v{DT}, v6, s[48:51], s56 offen", "par")
    for i in range(4):
        a.srd(32 + 4 * i, 10 + 2 * i, 0, 640 * 192 * 2)
        a.vmem(f"buffer_load_ushort v{PR+i}, v5, s[{32+4*i}:{35+4*i}], s55 offen", "par")
    for i in range(4):
        a.vmem(f"buffer_load_ushort v{PR2+i}, v5, s[{32+4*i}:{35+4*i}], s55 offen offset:256", "par2")
    a.srd(48, 20, 0, 1280)
    a.vmem("buffer_load_ushort v240, v6, s[48:51], s56 offen", "par2")
    VW, VR, DK = 6, 7, 80
    a(f"v_lshlrev_b32 v{VW}, 2, v1\nv_add_u32 v{VW}, s53, v{VW}")
    a(f"v_mul_u32_u24 v{VR}, {TB_RS}, v4\nv_lshl_add_u32 v{VR}, v3, 4, v{VR}\nv_add_u32 v{VR}, s53, v{VR}")
    for i in range(12):
        a(f"v_mov_b32 v{DK+i}, 0")
    epoch_ready(a)
    a.wait_vm("par")
    a.stamp(1)
    a(f"v_lshlrev_b32 v{DT}, 16, v{DT}\nv_mul_f32 v{DT}, {hex(LOG2E)}, v{DT}\nv_exp_f32 v{DT}, v{DT}\ns_nop 0")
    a.rnd(DT, DT)
    a.label("L_kgen")
    A2, W, Z8, Y, GC, T0, T1, T2, XT = 16, 17, 18, 20, 22, 24, 26, 28, 30
    E = [None] + [32 + 2 * i for i in range(7)]
    G1 = 46
    PK = [48, 49, 50, 51]
    pkc = [0]

    def put(row, re, im):
        r = PK[pkc[0] % 4]
        pkc[0] += 1
        a(f"v_cvt_pk_bf16_f32 v{r}, {re}, {im}")
        a(f"ds_write_b32 v{VW}, v{r} offset:{row*TB_RS}")

    def putp(row, p):
        put(row, f"v{p}", f"v{p+1}")

    a(f"v_lshlrev_b32 v{PR}, 16, v{PR}\nv_mul_f32 v{A2}, {hex(LOG2E)}, v{PR}\nv_exp_f32 v{A2}, v{A2}")
    for i in range(1, 4):
        a(f"v_lshlrev_b32 v{PR+i}, 16, v{PR+i}")
    a.rnd(A2, A2)
    a(f"v_mul_f32 v{W}, v{PR+1}, v{DT}")
    a(f"v_mul_f32 v{A2}, v{A2}, v{DT}")
    a(f"v_mul_f32 v{W}, {hex(INV2PI)}, v{W}")
    a(f"v_mul_f32 v{A2}, {hex(NLOG2E)}, v{A2}")
    a(f"v_rndne_f32 v{T0}, v{W}")
    a(f"v_mul_f32 v{Y}, v{PR+2}, v{DT}\nv_mul_f32 v{Y+1}, v{PR+3}, v{DT}")
    a(f"v_sub_f32 v{W}, v{W}, v{T0}")
    a(f"v_mul_f32 v{Y}, 2.0, v{Y}\nv_mul_f32 v{Y+1}, -2.0, v{Y+1}")

    def base(dst, mult, conj, T):
        m = {1: "1.0", 8: hex(0x41000000), 128: hex(0x43000000)}[mult]
        a(f"v_mul_f32 v{T}, {m}, v{A2}\nv_mul_f32 v{T+1}, {m}, v{W}")
        a(f"v_exp_f32 v{T}, v{T}\nv_cos_f32 v{dst}, v{T+1}\nv_sin_f32 v{dst+1}, v{T+1}\ns_nop 0")
        a(f"v_mul_f32 v{dst}, v{dst}, v{T}")
        a(f"v_mul_f32 v{dst+1}, {'-' if conj else ''}v{dst+1}, v{T}")

    base(E[1], 1, False, T0)
    base(Z8, 8, True, T1)
    base(G1, 128, False, T2)
    put(0, "1.0", "0")
    putp(1, E[1])
    putp(41, Y)
    cmul(a, E[2], E[1], E[1], T0)
    putp(8, G1)
    cmul(a, E[3], E[2], E[1], T0)
    cmul(a, E[4], E[2], E[2], T1)
    putp(2, E[2])
    cmul(a, E[5], E[4], E[1], T0)
    cmul(a, E[6], E[4], E[2], T1)
    cmul(a, E[7], E[4], E[3], T2)
    for e in range(3, 8):
        putp(e, E[e])
    ops = []
    for e in range(1, 8):
        ops.append(("x", 8 + e, G1, E[e]))
    for g in range(2, 17):
        ops.append(("g", g))
        if g in (2, 3):
            for i, e in enumerate((2, 4, 6)):
                ops.append(("x", 16 + (g - 2) * 4 + 1 + i, GC, E[e]))
        elif g < 8:
            ops.append(("x", 24 + (g - 4) * 2 + 1, GC, E[4]))
    yb = 1
    for k, op in enumerate(ops):
        if op[0] == "x":
            x = XT if (k & 1) else T2
            cmul(a, x, op[2], op[3], x)
            putp(op[1], x)
        else:
            g = op[1]
            cmul(a, GC, G1 if g == 2 else GC, G1, T1)
            row = 16 + (g - 2) * 4 if g < 4 else (24 + (g - 4) * 2 if g < 8 else 32 + (g - 8))
            putp(row, GC)
        if (k & 1) and yb < 16:
            cmul(a, Y, Y, Z8, T0)
            putp(41 + yb, Y)
            yb += 1
    assert yb == 16
    FR = 16
    a("s_waitcnt lgkmcnt(0)")
    for st in range(4):
        f = FR + 16 * st
        if st == 3:
            a("s_waitcnt lgkmcnt(8)")
        a(f"ds_read_b128 {q(f)}, v{VR} offset:{41*TB_RS + 64*st}")
        for t in range(3):
            a(f"ds_read_b128 {q(f+4+4*t)}, v{VR} offset:{16*t*TB_RS + 64*st}")
    a("s_waitcnt vmcnt(0)")
    for i in range(4):
        a(f"v_mov_b32 v{PR+i}, v{PR2+i}")
    for st in range(4):
        f = FR + 16 * st
        a(f"s_waitcnt lgkmcnt({12 - 4*st})")
        for t in range(3):
            a(f"v_mfma_f32_16x16x32_bf16 {q(DK+4*t)}, {q(f+4+4*t)}, {q(f)}, {q(DK+4*t)}")
    a("s_add_u32 s54, s54, 1\ns_cmp_lt_u32 s54, 2\ns_cbranch_scc1 L_kgen")
    a.vm = []


def conv_main(a):
    DK = 80
    a(f"s_mul_i32 s53, s7, {CV_WAVE}")
    a(f"s_mul_i32 s54, s7, 4224\ns_add_u32 s54, s54, {KP_BASE}")
    a(f"s_mul_i32 s55, s7, 3072\ns_add_u32 s55, s55, {PART_BASE}")
    a("v_lshlrev_b32 v7, 4, v1\nv_add_u32 v5, s55, v7")
    a("v_lshlrev_b32 v18, 4, v4\nv_add_u32 v18, s54, v18")
    a("v_lshrrev_b32 v16, 1, v3\nv_and_b32 v17, 1, v3")
    a("v_lshlrev_b32 v19, 8, v16\nv_lshl_add_u32 v19, v17, 3, v19\nv_add_u32 v19, v19, v18")
    a("v_cmp_gt_u32 vcc, 2, v3")
    a("v_lshlrev_b32 v20, 8, v3\nv_add_u32 v20, 512, v20\nv_lshlrev_b32 v21, 9, v3")
    a("v_cndmask_b32 v20, v21, v20, vcc\nv_add_u32 v20, v20, v18")
    for i in range(1, 4):
        a(f"v_mov_b32 v22, {4*i}\nv_mov_b32 v23, {256*(i>>1) + 8*(i&1)}")
        a(f"v_cndmask_b32 v22, v23, v22, vcc\nv_add_u32 v{23+i}, v20, v22")
    a("v_lshlrev_b32 v27, 10, v3\nv_lshl_add_u32 v27, v4, 4, v27\nv_add_u32 v27, 2048, v27\ns_movk_i32 s56, 4112")
    for i in range(4):
        a(f"v_add_u32 v{28+i}, {256*i}, v27\nv_min_u32 v{28+i}, s56, v{28+i}\nv_add_u32 v{28+i}, s54, v{28+i}")
    a("v_sub_u32 v16, 4094, v7\nv_cvt_f32_u32 v16, v16")
    a("v_cmp_eq_u32 s[58:59], 63, v1")
    a("v_add_u32 v17, s53, v7")
    delay(a, "a")
    a.stamp(2)
    a("s_barrier")
    for t in range(3):
        a(f"ds_read_b128 {q(40+4*t)}, v5 offset:{1024*t}")
    a("s_waitcnt lgkmcnt(0)")
    for i in range(6):
        a(f"v_pk_add_f32 {q(DK+2*i,2)}, {q(DK+2*i,2)}, {q(40+2*i,2)}")
    for i in range(6):
        a(f"v_cvt_pk_bf16_f32 v{32+i}, v{DK+2*i}, v{DK+2*i+1}")
    a("ds_write_b64 v19, v[32:33]")
    a("ds_write_b16 v20, v34\nds_write_b16_d16_hi v24, v34\nds_write_b16 v25, v35\nds_write_b16_d16_hi v26, v35")
    a("ds_write_b16 v28, v36\nds_write_b16_d16_hi v29, v36\nds_write_b16 v30, v37\nds_write_b16_d16_hi v31, v37")
    a("v_sub_u32 v38, 4080, v7\nv_add_u32 v38, s54, v38")
    a("v_and_b32 v39, 1, v1\nv_cmp_eq_u32 s[60:61], 0, v39")
    a("v_cndmask_b32 v39, 0, 8, s[58:59]\nv_sub_u32 v40, v38, v39\nv_lshrrev_b32 v39, 1, v39\nv_sub_u32 v41, v38, v39")
    a("v_subrev_u32 v38, 2056, v38\nv_subrev_u32 v40, 2056, v40\nv_subrev_u32 v41, 2056, v41")
    AD = 20
    for m in range(0, 12, 2):
        f0 = 64 + m
        a(f"v_add_f32 v{f0}, {hex(f32bits(-3072.0 - 2.0*m))}, v16\nv_add_f32 v{f0+1}, {hex(f32bits(-3072.0 - 2.0*(m+1)))}, v16")
        a(f"v_cvt_pk_bf16_f32 v{f0}, v{f0}, v{f0+1}")
        a.unpack(f0, f0)
        a(f"v_cvt_u32_f32 v{AD+m}, v{f0}\nv_cvt_u32_f32 v{AD+m+1}, v{f0+1}")
        a(f"v_add_u32 v{AD+m}, s54, v{AD+m}\nv_add_u32 v{AD+m+1}, s54, v{AD+m+1}")
    a("s_waitcnt lgkmcnt(0)")
    G = 96
    for r in range(2):
        o = 2056 - 1024 * r
        a(f"ds_read_u16 v{G+4*r}, v38 offset:{o+16}\nds_read_u16 v{G+4*r+1}, v38 offset:{o}")
        a(f"ds_read_u16 v{G+4*r+2}, v{40 if r else 38} offset:{o}")
    o = 2056 - 2048
    a(f"ds_read_u16 v{G+8}, v38 offset:{o+16}\nds_read_u16 v{G+9}, v38 offset:{o+8}\nds_read_u16 v{G+10}, v38 offset:{o}")
    a(f"ds_read_u16 v{G+11}, v41 offset:{o}\nds_read_u16 v{G+12}, v38 offset:{o-8}")
    D = 32
    for m in range(6):
        a(f"ds_read_u16 v{D+m}, v{AD+2*m}")
        if m < 5:
            a(f"ds_read_u16 v{52+m}, v{AD+2*m+1}")

    def wr(r, c0, c1, c2, c3):
        for k, c in enumerate((c0, c1, c2, c3)):
            a(f"ds_write_b128 v17, {q(c)} offset:{CV_A + k*CV_CS + 1024*r}")

    a("s_waitcnt lgkmcnt(15)\ns_waitcnt lgkmcnt(11)")
    for r in range(2):
        A, B, B2 = G + 4 * r, G + 4 * r + 1, G + 4 * r + 2
        Q = 112 + 16 * r
        a(f"v_cndmask_b32 v{G+4*r+3}, v{B}, v{A}, s[60:61]")
        W3 = G + 4 * r + 3
        a(f"v_lshl_or_b32 v{Q}, v{A}, 16, v{A}\nv_lshl_or_b32 v{Q+1}, v{W3}, 16, v{A}\nv_lshl_or_b32 v{Q+2}, v{B}, 16, v{B}")
        a(f"v_mov_b32 v{Q+3}, v{Q+2}\nv_mov_b32 v{Q+4}, v{Q+1}\nv_mov_b32 v{Q+5}, v{Q+2}\nv_mov_b32 v{Q+6}, v{Q+2}\nv_mov_b32 v{Q+7}, v{Q+2}")
        a(f"v_mov_b32 v{Q+8}, v{Q}\nv_lshl_or_b32 v{Q+9}, v{B}, 16, v{W3}\nv_mov_b32 v{Q+10}, v{Q+2}\nv_mov_b32 v{Q+11}, v{Q+2}")
        a(f"v_mov_b32 v{Q+12}, v{Q+9}\nv_mov_b32 v{Q+13}, v{Q+2}\nv_mov_b32 v{Q+14}, v{Q+2}\nv_lshl_or_b32 v{Q+15}, v{B2}, 16, v{B}")
        wr(r, Q + 12, Q + 4, Q + 8, Q)
    P_, Q_, R_, R2, S_ = G + 8, G + 9, G + 10, G + 11, G + 12
    Q = 144
    a(f"v_lshl_or_b32 v{Q}, v{P_}, 16, v{P_}\nv_lshl_or_b32 v{Q+1}, v{Q_}, 16, v{Q_}\nv_lshl_or_b32 v{Q+2}, v{R_}, 16, v{Q_}\nv_lshl_or_b32 v{Q+3}, v{R_}, 16, v{R_}")
    a(f"v_mov_b32 v{Q+4}, v{Q+1}\nv_mov_b32 v{Q+5}, v{Q+2}\nv_mov_b32 v{Q+6}, v{Q+3}\nv_lshl_or_b32 v{Q+7}, v{R2}, 16, v{R_}")
    a(f"v_lshl_or_b32 v{Q+8}, v{Q_}, 16, v{P_}\nv_mov_b32 v{Q+9}, v{Q+1}\nv_mov_b32 v{Q+10}, v{Q+3}\nv_mov_b32 v{Q+11}, v{Q+3}")
    a(f"v_mov_b32 v{Q+12}, v{Q+1}\nv_mov_b32 v{Q+13}, v{Q+3}\nv_mov_b32 v{Q+14}, v{Q+3}\nv_lshl_or_b32 v{Q+15}, v{S_}, 16, v{R2}")
    wr(2, Q + 12, Q + 4, Q + 8, Q)
    a("s_waitcnt lgkmcnt(12)")
    for m in range(5):
        a(f"v_lshl_or_b32 v{D+m}, v{52+m}, 16, v{D+m}")
    a(f"v_cndmask_b32 v{D+4}, v{D+4}, 0, s[58:59]\nv_cndmask_b32 v{D+5}, v{D+5}, 0, s[58:59]")
    C1, C2, C0 = 40, 44, 48
    for m in range(4):
        a(f"v_mov_b32 v{C1+m}, v{D+1+m}")
        a(f"v_alignbit_b32 v{C2+m}, v{D+m+1}, v{D+m}, 16")
        a(f"v_alignbit_b32 v{C0+m}, v{D+m+2}, v{D+m+1}, 16")
    wr(3, C0, C1, C2, D)
    ACC, AS, FS, VA, VF = 16, [48, 112], [80, 144], 10, 11
    T1, XF, DSV = 176, 208, 240
    a(f"v_and_b32 v5, 3, v4\nv_mul_u32_u24 v5, {CV_CS}, v5\nv_lshrrev_b32 v6, 2, v4\nv_lshlrev_b32 v6, 3, v6\nv_sub_u32 v5, v5, v6")
    a(f"v_lshlrev_b32 v6, 4, v3\nv_sub_u32 v5, v5, v6\nv_add_u32 v5, {CV_A + 4104 - 3584 - 448}, v5\nv_add_u32 v{VA}, s53, v5")
    a(f"v_lshlrev_b32 v5, 5, v4\nv_sub_u32 v5, v5, v6\nv_add_u32 v5, {CV_U + 496 - 448}, v5\nv_add_u32 v{VF}, s53, v5")
    a("v_lshlrev_b32 v8, 5, v4\nv_lshl_add_u32 v8, v3, 3, v8\nv_add_u32 v9, s53, v8")
    a("v_lshrrev_b32 v6, 3, v4\ns_mov_b32 s56, 163840\nv_mul_lo_u32 v6, v6, s56")
    a("v_and_b32 v7, 7, v4\nv_lshl_add_u32 v6, v7, 5, v6\nv_lshl_add_u32 v6, v3, 3, v6")
    a(f"v_lshlrev_b32 v{DSV}, 16, v{DSV}")
    a.srd(36, 4, WS_HT, SZ_T)
    a("s_lshl_b32 s55, s52, 8")
    a("s_waitcnt lgkmcnt(0)")
    a.stamp(3)
    a("s_barrier")
    a.stamp(4)
    if EXP & 512:
        a("s_setprio 2")

    def reads(s, c):
        o = []
        ex = 64 * (7 - c)
        for k in range(8):
            o.append(f"ds_read_b128 {q(FS[s]+4*k)}, v{VF} offset:{512*k + ex}")
            o.append(f"ds_read_b64 {q(AS[s]+4*k,2)}, v{VA} offset:{512*(7-k) + ex}")
            o.append(f"ds_read_b64 {q(AS[s]+4*k+2,2)}, v{VA} offset:{512*(7-k) + 8 + ex}")
        return o

    rd0 = reads(0, 0)
    for i, r in enumerate(rd0):
        a(r)
        if i == 11:
            a("s_waitcnt lgkmcnt(6)")
    fu, fx = [], []
    for nb in range(8):
        for hh in range(2):
            p = T1 + 4 * nb + 2 * hh
            src = T1 + 4 * nb + 2 + hh
            if hh == 0:
                fu += [f"v_lshlrev_b32 v{p}, 16, v{src}", f"v_and_b32 v{p+1}, 0xffff0000, v{src}"]
            else:
                fu += [f"v_lshlrev_b32 v{p}, 16, v{src}", f"v_and_b32 v{p+1}, 0xffff0000, v{src}"]
            fu += [f"v_pk_mul_f32 {q(p,2)}, {q(p,2)}, {q(DSV,2)} op_sel_hi:[1,0]",
                   f"v_cvt_pk_bf16_f32 v{p}, v{p}, v{p+1}",
                   f"v_and_b32 v{p+1}, 0xffff0000, v{p}", f"v_lshlrev_b32 v{p}, 16, v{p}"]
            p = XF + 4 * nb + 2 * hh
            src = XF + 4 * nb + 2 + hh
            fx += [f"v_lshlrev_b32 v{p}, 16, v{src}", f"v_and_b32 v{p+1}, 0xffff0000, v{src}"]
    fill = {c: fu[16 * (c - 1):16 * c] for c in range(1, 7)}
    fill[0] = [f"ds_read_b64 {q(T1+4*nb+2,2)}, v9 offset:{CV_U + 480 + 512*nb}" for nb in range(8)]
    fill[0] += [f"ds_read_b64 {q(XF+4*nb+2,2)}, v9 offset:{CV_X + 512*nb}" for nb in range(8)]
    fill[7] = fx
    for c in range(8):
        s = c & 1
        a("s_waitcnt lgkmcnt(0)")
        rd = reads(1 - s, c + 1) if c < 7 else []
        fl = list(fill[c])
        i = 0
        for aa in range(8):
            for m in range(8 - aa):
                cc = q(ACC + 4 * (aa + m)) if (c or aa) else "0"
                a(f"v_mfma_f32_16x16x32_bf16 {q(ACC+4*(aa+m))}, {q(AS[s]+4*aa)}, {q(FS[s]+4*m)}, {cc}")
                if i < len(rd) and rd[i]:
                    a(rd[i])
                    if i in (11, 19):
                        a("s_waitcnt lgkmcnt(8)")
                if (i >= 20 or c == 7) and fl:
                    a(fl.pop(0))
                i += 1
        assert not fl
    delay(a, "e")
    a.stamp(5)
    a("s_nop 4")
    for nb in range(8):
        y = ACC + 4 * nb
        o = 48 + 2 * nb
        for hh in range(2):
            t = y + 2 * hh
            a(f"v_cvt_pk_bf16_f32 v{t}, v{t}, v{t+1}")
            a.unpack(t, t)
            a(f"v_pk_add_f32 {q(t,2)}, {q(t,2)}, {q(T1+4*nb+2*hh,2)}")
            a(f"v_cvt_pk_bf16_f32 v{t}, v{t}, v{t+1}")
            a.unpack(t, t)
            a(f"v_pk_add_f32 {q(t,2)}, {q(t,2)}, {q(XF+4*nb+2*hh,2)}")
            a(f"v_cvt_pk_bf16_f32 v{o+hh}, v{t}, v{t+1}")
        a.vmem(f"buffer_store_dwordx2 {q(o,2)}, v6, s[36:39], s55 offen {SC}")
        a(f"s_add_u32 s55, s55, {2*163840}")
    a.stamp(6)
    a("s_waitcnt vmcnt(0)")
    last_of4_publish(a, LDS_CNT, F_C, 2, 120)


def conv_partner(a):
    DK = 80
    a(f"s_mul_i32 s53, s7, {CV_WAVE}")
    a(f"s_mul_i32 s55, s7, 3072\ns_add_u32 s55, s55, {PART_BASE}")
    a("v_lshlrev_b32 v7, 4, v1\nv_add_u32 v5, s55, v7")
    a("v_mov_b32 v20, 0\nv_mov_b32 v21, 0\nv_mov_b32 v22, 0\nv_mov_b32 v23, 0")
    a("v_add_u32 v9, s53, v7")
    a(f"v_lshrrev_b32 v16, 1, v1\nv_mul_u32_u24 v16, {CV_CS}, v16\nv_and_b32 v17, 1, v1\nv_lshl_add_u32 v16, v17, 4, v16\nv_add_u32 v16, s53, v16")
    for t in range(3):
        a(f"ds_write_b128 v5, {q(DK+4*t)} offset:{1024*t}")
    a.stamp(2)
    a.srd(32, 4, WS_XT, SZ_TP)
    a.srd(36, 4, WS_ST, 16384)
    a(f"s_lshl_b32 s54, s2, 8\ns_mul_i32 s61, s7, {16*T_BLK}\ns_add_u32 s54, s54, s61\ns_lshl_b32 s61, s7, 11\ns_add_u32 s62, s61, 8192")
    a(f"v_lshrrev_b32 v8, 2, v1\nv_mul_u32_u24 v8, {T_BLK}, v8\nv_and_b32 v14, 3, v1\nv_lshl_add_u32 v8, v14, 4, v8")
    a("v_lshlrev_b32 v14, 5, v1\ns_lshl_b32 s63, s7, 10\nv_add_u32 v15, s63, v7")
    a("s_waitcnt lgkmcnt(0)\ns_barrier")
    a("s_mov_b64 exec, 0x3fffffff")
    a(f"ds_write_b128 v9, v[20:23] offset:{CV_U}")
    a("s_mov_b64 exec, 0xff")
    a(f"ds_write_b128 v16, v[20:23] offset:{CV_A + 4096}")
    a("s_mov_b64 exec, -1")
    a(f"s_mul_i32 s60, s7, {16*FS_}")
    a.poll(F_L, 16, 24, "s60", fast=True)
    a.stamp(3)
    XR, NM, RI, U = 32, 48, 56, 64
    for k in range(2):
        a.vmem(f"buffer_load_dwordx4 {q(NM+4*k)}, v14, s[36:39], s61 offen offset:{16*k} {SC}", "st")
        a.vmem(f"buffer_load_dwordx4 {q(RI+4*k)}, v14, s[36:39], s62 offen offset:{16*k} {SC}", "st")
    for ch in range(4):
        a.vmem(f"buffer_load_dwordx4 {q(XR+4*ch)}, v8, s[32:35], s54 offen offset:{64*ch} {SC}", ("x", ch))
    for ch in range(4):
        a.wait_vm(("x", ch))
        for i in range(4):
            t = 80 + 2 * i
            a.unpack(t, XR + 4 * ch + i)
            a(f"v_pk_add_f32 {q(t,2)}, {q(t,2)}, {q(NM+2*i,2)}")
            a(f"v_cvt_pk_bf16_f32 v{t}, v{t}, v{t+1}")
            a.unpack(t, t)
            a(f"v_pk_mul_f32 {q(t,2)}, {q(t,2)}, {q(RI+2*i,2)}")
            a(f"v_cvt_pk_bf16_f32 v{U+4*ch+i}, v{t}, v{t+1}")
        if ch == 2:
            a(f"v_add_u32 v15, {2*CV_WAVE}, v15")
        a(f"ds_write_b128 v15, {q(U+4*ch)} offset:{CV_U + 480 + CV_WAVE*(ch&1)}")
        a(f"ds_write_b128 v15, {q(XR+4*ch)} offset:{CV_X + CV_WAVE*(ch&1)}")
    a("s_waitcnt lgkmcnt(0)")
    a.stamp(4)
    a("s_barrier")


G1_H = 5120
G1_HN = 5
G1_W = 87040
G1_WN = 3
G1_CONST = 0
G1_CS = 2048
G1_SP = 3072
G2_H, G2_HN, G2_W, G2_WN = G1_H, 3, 61440, 5
LDS_TOTAL = 163840


def tile_ids(a):
    a("s_and_b32 s12, s2, 7\ns_lshr_b32 s13, s2, 3\ns_and_b32 s14, s13, 7\ns_lshr_b32 s15, s13, 3")
    a("s_and_b32 s8, s12, 1\ns_lshl_b32 s8, s8, 3\ns_add_u32 s8, s8, s14")
    a("s_lshr_b32 s9, s12, 1\ns_lshl_b32 s10, s9, 3\ns_lshl_b32 s9, s9, 2\ns_add_u32 s9, s9, s15")
    a("s_add_u32 s10, s10, s14")
    a("s_and_b32 s11, s12, 1\ns_lshl_b32 s11, s11, 2\ns_add_u32 s11, s11, s15")
    a("v_bfe_u32 v5, v1, 2, 2")
    a("v_lshl_add_u32 v6, v3, 2, v5\nv_lshlrev_b32 v6, 8, v6")
    a("v_and_b32 v7, 3, v1\nv_lshl_add_u32 v6, v7, 3, v6")
    a("v_and_b32 v7, 1, v3\nv_lshl_add_u32 v5, v7, 2, v5")


def gemm_mfma_waves(a, done):
    tile_ids(a)
    if EXP & 16:
        sk = a.newlabel("L_nowarm")
        a(f"s_cmp_lt_u32 s2, 160\ns_cbranch_scc1 {sk}")
        a("s_sub_u32 s16, s13, 20\ns_lshl_b32 s16, s16, 2\ns_add_u32 s16, s16, s7\ns_mul_i32 s16, s16, 20480")
        a("v_lshlrev_b32 v8, 4, v1")
        for which in range(2):
            if which == 0:
                a(f"s_lshr_b32 s17, s12, 1\ns_mul_i32 s18, s17, {80*FS_}\ns_mul_i32 s17, s17, 983040")
                a.srd(32, 4, WS_W13, SZ_W13)
                a.poll(F_R, 80, 120, "s18")
            else:
                a("s_and_b32 s17, s12, 1\ns_mul_i32 s17, s17, 983040")
                a.srd(32, 4, WS_W2, SZ_W2)
                a.poll(F_R2, 32, 120)
            a("s_add_u32 s17, s17, s16")
            for i in range(20):
                a(f"buffer_load_dwordx4 {q(24+4*i)}, v8, s[32:35], s17 offen offset:{1024*(i%4)}")
                if i % 4 == 3:
                    a("s_add_u32 s17, s17, 4096")
        a("s_waitcnt vmcnt(0)")
        a.label(sk)
    a("s_barrier")
    if EXP & 1024:
        a("s_setprio 2")
    elif EXP & 512:
        a("s_setprio 0")
    a("s_and_b32 s16, s7, 1\ns_lshr_b32 s17, s7, 1")
    a("s_lshl_b32 s18, s16, 2\nv_xor_b32 v5, s18, v5")
    for nt in range(4):
        a(f"v_xor_b32 v7, {nt}, v5\nv_lshl_add_u32 v{12+nt}, v7, 5, v6")
    a("v_lshlrev_b32 v16, 4, v1\ns_mul_i32 s18, s17, 6144\nv_add_u32 v16, s18, v16")
    ACC, HS, AD = 24, [120, 160], 17
    for i in range(96):
        a(f"v_mov_b32 v{ACC+i}, 0")

    def reads(s, half):
        o = []
        for nt in range(4):
            r = HS[s] + 4 * nt
            o.append(f"ds_read_b64_tr_b16 {q(r,2)}, v{AD+nt} offset:{8192*half}")
            o.append(f"ds_read_b64_tr_b16 {q(r+2,2)}, v{AD+nt} offset:{8192*half + 4096}")
        for t in range(6):
            o.append(f"ds_read_b128 {q(HS[s]+16+4*t)}, v{AD+4} offset:{12288*half + 1024*t}")
        return o

    def setad(hs, ws):
        return [f"v_add_u32 v{AD+i}, {hs}, v{12+i}" for i in range(4)] + [f"v_add_u32 v{AD+4}, {ws}, v16"]

    for x in setad(G1_H, G1_W):
        a(x)
    a(f"s_mov_b32 s19, {G1_H}\ns_mov_b32 s20, {G1_W}\ns_mov_b32 s21, 0")
    a.srd(32, 4, WS_HM, SZ_HM)
    a.stamp(7)
    sk = a.newlabel("L_nopoll")
    a(f"s_cmp_lg_u32 s6, 0\ns_cbranch_scc1 {sk}")
    a.poll(F_R2, 32, 120)
    a.poll(F_C, 160, 120, fast=True)
    a(f"s_cmp_lg_u32 s2, 0\ns_cbranch_scc1 {sk}")
    a("v_mov_b32 v120, s3\nv_mov_b32 v121, 0\ns_mov_b64 exec, 1")
    a("buffer_store_dword v120, v121, s[92:95], 0 offen\ns_mov_b64 exec, -1")
    a.label(sk)
    a("s_barrier")
    a.stamp(8)
    a("s_waitcnt vmcnt(0)\ns_barrier")
    a.stamp(9)
    for x in reads(0, 0):
        a(x)
    a.label("L_g1")
    for s in range(2):
        if s == 0:
            a(f"s_add_u32 s19, s19, 16384\ns_cmp_eq_u32 s19, {G1_H + G1_HN*16384}\ns_cselect_b32 s19, {G1_H}, s19")
            a(f"s_add_u32 s20, s20, 24576\ns_cmp_eq_u32 s20, {G1_W + G1_WN*24576}\ns_cselect_b32 s20, {G1_W}, s20")
            a("s_waitcnt lgkmcnt(0)")
            rest = reads(1, 1) + setad("s19", "s20")
        else:
            a("s_waitcnt lgkmcnt(0)\ns_barrier")
            rest = reads(0, 0)
        i = 0
        for t in range(6):
            for nt in range(4):
                ac = ACC + 4 * (t * 4 + nt)
                a(f"v_mfma_f32_16x16x32_bf16 {q(ac)}, {q(HS[s]+16+4*t)}, {q(HS[s]+4*nt)}, {q(ac)}")
                if i < len(rest):
                    a(rest[i])
                i += 1
    a("s_add_u32 s21, s21, 1\ns_cmp_lt_u32 s21, 10\ns_cbranch_scc1 L_g1")
    a.stamp(10)
    a("s_lshl_b32 s18, s16, 10\nv_lshlrev_b32 v5, 4, v4\nv_add_u32 v5, s18, v5")
    a("s_mul_i32 s18, s17, 384\nv_lshlrev_b32 v6, 4, v3\nv_add_u32 v6, s18, v6")
    a("s_lshl_b32 s22, s8, 1\ns_add_u32 s22, s22, s16\ns_mul_i32 s22, s22, 48")
    a("s_mul_i32 s23, s9, 3\ns_add_u32 s22, s22, s23")
    a("s_lshl_b32 s23, s17, 1\ns_add_u32 s23, s23, s22\ns_lshl_b32 s23, s23, 12")
    a("s_add_u32 s22, s22, 1\ns_lshl_b32 s22, s22, 12\ns_lshl_b32 s18, s17, 9\ns_add_u32 s22, s22, s18")
    a("v_and_b32 v7, 1, v3\nv_lshlrev_b32 v7, 10, v7\nv_lshrrev_b32 v8, 1, v3\nv_lshl_add_u32 v7, v8, 8, v7\nv_lshl_add_u32 v7, v4, 4, v7")
    a("s_waitcnt lgkmcnt(0)\ns_barrier")
    KC, CSR = 184, 160
    for nt in range(4):
        a(f"ds_read_b128 {q(KC+4*nt)}, v5 offset:{G1_CONST + 256*nt}")
    for t in range(6):
        a(f"ds_read_b128 {q(CSR+4*t)}, v6 offset:{G1_CS + 64*t}")
    a("v_lshlrev_b32 v5, 4, v1")
    a("s_waitcnt lgkmcnt(0)")
    a.stamp(11)
    T = 120
    for nt in range(4):
        O = 144 + 4 * (nt & 1)
        k = KC + 4 * nt
        for jj in range(3):
            g = ACC + 4 * (jj * 4 + nt)
            u = ACC + 4 * ((3 + jj) * 4 + nt)
            for hh in range(2):
                g2, u2 = g + 2 * hh, u + 2 * hh
                a(f"v_pk_fma_f32 {q(g2,2)}, {q(CSR+4*jj+2*hh,2)}, {q(k,2)}, {q(g2,2)} op_sel_hi:[1,0,1]")
                a(f"v_pk_fma_f32 {q(u2,2)}, {q(CSR+4*(3+jj)+2*hh,2)}, {q(k,2)}, {q(u2,2)} op_sel_hi:[1,0,1]")
            for hh in range(2):
                a(f"v_pk_mul_f32 {q(T+2*hh,2)}, {q(g+2*hh,2)}, {q(k,2)} op_sel:[0,1] op_sel_hi:[1,1]")
            for i in range(4):
                a(f"v_exp_f32 v{T+i}, v{T+i}")
            for hh in range(2):
                a(f"v_pk_mul_f32 {q(g+2*hh,2)}, {q(g+2*hh,2)}, {q(u+2*hh,2)}")
            for hh in range(2):
                a(f"v_pk_fma_f32 {q(T+2*hh,2)}, {q(T+2*hh,2)}, {q(k+2,2)}, {q(k+2,2)} op_sel_hi:[1,0,0]")
            for i in range(4):
                a(f"v_rcp_f32 v{T+i}, v{T+i}")
            a("s_nop 0")
            for hh in range(2):
                a(f"v_pk_mul_f32 {q(g+2*hh,2)}, {q(g+2*hh,2)}, {q(T+2*hh,2)}")
            for hh in range(2):
                d = O + 2 * jj + hh if jj < 2 else 152 + 4 * (nt >> 1) + 2 * (nt & 1) + hh
                a(f"v_cvt_pk_bf16_f32 v{d}, v{g+2*hh}, v{g+2*hh+1}")
            if jj == 1:
                a(f"buffer_store_dwordx4 {q(O)}, v5, s[32:35], s23 offen offset:{1024*nt} {SC}")
        if nt & 1:
            S = 152 + 4 * (nt >> 1)
            a(f"s_nop 1\nv_permlane16_swap_b32 v{S}, v{S+2}\nv_permlane16_swap_b32 v{S+1}, v{S+3}")
            a(f"buffer_store_dwordx4 {q(S)}, v7, s[32:35], s22 offen offset:{1024*(nt-1)} {SC}")
    a.stamp(12)
    a.vm = []
    ACC, FS, RES, VW, VH = 16, [56, 84], 112, 132, 134
    a("s_lshl_b32 s22, s16, 1\ns_add_u32 s22, s22, s17")
    a("s_lshr_b32 s18, s10, 1\ns_mul_i32 s18, s18, 163840\ns_mul_i32 s19, s11, 20480\ns_add_u32 s18, s18, s19")
    a("s_and_b32 s19, s10, 1\ns_lshl_b32 s19, s19, 7\ns_add_u32 s18, s18, s19\ns_lshl_b32 s19, s22, 5\ns_add_u32 s18, s18, s19")
    a("v_lshlrev_b32 v10, 1, v4\nv_lshl_add_u32 v11, v3, 10, v10\nv_lshl_add_u32 v10, v3, 11, v10")
    a("s_add_u32 s19, s18, 8192\ns_add_u32 s20, s18, 16384")
    a.srd(36, 4, WS_HT, SZ_T)
    a.srd(40, 30, 0, SZ_T)
    a("s_lshl_b32 s21, s8, 4\ns_add_u32 s21, s21, s9")
    a("s_waitcnt vmcnt(0)")
    last_of4_publish(a, LDS_CNT2, F_G, 21, 140)
    a.stamp(13)
    sk = a.newlabel("L_nopub")
    a(f"s_cmp_lg_u32 s6, 0\ns_cbranch_scc1 {sk}")
    a(f"s_lshr_b32 s21, s10, 1\ns_mul_i32 s21, s21, {16*FS_}")
    a.poll(F_G, 16, 140, "s21", fast=True)
    a.label(sk)
    a("s_barrier")
    if EXP & 4:
        a(f"s_mul_i32 s21, s10, {48*4096}\ns_lshl_b32 s23, s15, 2\ns_add_u32 s23, s23, s7\ns_mul_i32 s23, s23, 12288\ns_add_u32 s21, s21, s23")
        for i in range(12):
            a.vmem(f"buffer_load_dwordx4 {q(144+4*i)}, v5, s[32:35], s21 offen offset:{1024*(i%4)} {SC}", "warm")
            if i % 4 == 3:
                a("s_add_u32 s21, s21, 4096")
    for p in range(2):
        for e in range(8):
            a.vmem(f"buffer_load_ushort v{RES+8*p+e}, v10, s[36:39], s{18+p} offen offset:{256*e} {SC}", "res")
    for e in range(4):
        a.vmem(f"buffer_load_ushort v{RES+16+e}, v11, s[36:39], s20 offen offset:{256*e} {SC}", "res")
    for i in range(40):
        a(f"v_mov_b32 v{ACC+i}, 0")
    a(f"s_lshl_b32 s19, s17, 12\ns_lshl_b32 s21, s22, 10\ns_add_u32 s19, s19, s21\nv_add_u32 v{VH}, s19, v5")
    a(f"v_xor_b32 v{VH+1}, 1024, v{VH}\nv_add_u32 v{VH}, {G2_H}, v{VH}\nv_add_u32 v{VH+1}, {G2_H}, v{VH+1}")
    a(f"s_mul_i32 s19, s17, 5120\nv_add_u32 v{VW}, s19, v5")
    a(f"v_mov_b32 v{VH+2}, v{VH}\nv_mov_b32 v{VH+3}, v{VH+1}\nv_add_u32 v{VW+1}, {G2_W + 3*20480}, v{VW}")
    a(f"s_mov_b32 s23, 0\ns_mov_b32 s24, {G2_W + 3*20480}")

    def reads2(kk, s):
        o = [f"ds_read_b128 {q(FS[s]+20+4*j)}, v{VH+2+j} offset:{kk*8192}" for j in range(2)]
        o += [f"ds_read_b128 {q(FS[s]+4*t)}, v{VW+1} offset:{kk*10240 + 1024*t}" for t in range(5)]
        return o

    a("s_lshl_b32 s18, s10, 6\ns_lshl_b32 s19, s22, 4\ns_add_u32 s18, s18, s19\ns_mul_i32 s18, s18, 1280\ns_mul_i32 s19, s11, 160\ns_add_u32 s18, s18, s19")
    a("v_mul_u32_u24 v10, 1280, v4\nv_lshl_add_u32 v11, v3, 3, v10\nv_lshl_add_u32 v10, v3, 4, v10")
    a(f"s_mul_i32 s19, s7, 5120\ns_add_u32 s19, s19, {G2_W + 2*20480}\nv_add_u32 v6, s19, v5")
    a(f"s_xor_b32 s19, s7, 2\ns_mul_i32 s19, s19, 5120\ns_add_u32 s19, s19, {G2_W + 2*20480}\nv_add_u32 v7, s19, v5")
    a("s_mov_b32 s21, 0")
    a("s_barrier")
    a.stamp(14)
    for x in reads2(0, 0):
        a(x)
    a.label("L_g2")
    for s in range(2):
        if s == 0:
            a(f"s_add_u32 s23, s23, 16384\ns_cmp_eq_u32 s23, {G2_HN*16384}\ns_cselect_b32 s23, 0, s23")
            a(f"s_add_u32 s24, s24, 20480\ns_cmp_eq_u32 s24, {G2_W + G2_WN*20480}\ns_cselect_b32 s24, {G2_W}, s24")
            a("s_waitcnt lgkmcnt(0)")
            rd = reads2(1, 1) + [f"v_add_u32 v{VH+2}, s23, v{VH}", f"v_add_u32 v{VH+3}, s23, v{VH+1}", f"v_add_u32 v{VW+1}, s24, v{VW}"]
        else:
            a("s_waitcnt lgkmcnt(0)\ns_barrier")
            rd = reads2(0, 0)
        i = 0
        for t in range(5):
            for j in range(2):
                ac = ACC + 4 * (5 * j + t)
                if not EXP & 32:
                    a(f"v_mfma_f32_16x16x32_bf16 {q(ac)}, {q(FS[s]+4*t)}, {q(FS[s]+20+4*j)}, {q(ac)}")
                for x in rd[2*i:2*i+2]:
                    a(x)
                i += 1
    a("s_add_u32 s21, s21, 1\ns_cmp_lt_u32 s21, 12\ns_cbranch_scc1 L_g2")
    a("s_nop 5")
    for t in range(5):
        a(f"ds_write_b128 v6, {q(ACC+20+4*t)} offset:{1024*t}")
    a("s_waitcnt lgkmcnt(0)\ns_barrier")
    for t in range(5):
        a(f"ds_read_b128 {q(ACC+20+4*t)}, v7 offset:{1024*t}")
    a.wait_vm("res")
    for i in range(20):
        a(f"v_lshlrev_b32 v{RES+i}, 16, v{RES+i}")
    a("s_waitcnt lgkmcnt(0)")
    O = 56
    for i in range(10):
        y = ACC + 2 * i
        a(f"v_pk_add_f32 {q(y,2)}, {q(y,2)}, {q(y+20,2)}")
        a(f"v_cvt_pk_bf16_f32 v{y}, v{y}, v{y+1}")
        a.unpack(y, y)
        a(f"v_pk_add_f32 {q(y,2)}, {q(y,2)}, {q(RES+2*i,2)}")
        a(f"v_cvt_pk_bf16_f32 v{O+i}, v{y}, v{y+1}")
        if i == 3:
            a(f"buffer_store_dwordx4 {q(O)}, v10, s[40:43], s18 offen {SCO}")
        if i == 7:
            a(f"buffer_store_dwordx4 {q(O+4)}, v10, s[40:43], s18 offen offset:64 {SCO}")
    a(f"buffer_store_dwordx2 {q(O+8,2)}, v11, s[40:43], s18 offen offset:128 {SCO}")
    a(f"s_branch {done}")


def gemm_loader_waves(a, done):
    a.vm = []
    tile_ids(a)
    a("s_mul_i32 s22, s8, 163840\ns_add_u32 s23, s22, 163840")
    a(f"s_mul_i32 s24, s9, {20*12288}\ns_add_u32 s25, s24, {20*12288}")
    a("s_lshr_b32 s20, s9, 3\ns_mul_i32 s20, s20, 5")
    a("s_lshl_b32 s16, s20, 14\ns_add_u32 s16, s16, s22\ns_mul_i32 s17, s20, 24576\ns_add_u32 s17, s17, s24")
    a("s_lshl_b32 s18, s7, 12\ns_mul_i32 s19, s7, 6144")
    a("v_lshrrev_b32 v12, 1, v4\nv_xor_b32 v12, v12, v3\nv_lshlrev_b32 v12, 5, v12")
    a("v_and_b32 v7, 1, v4\nv_lshlrev_b32 v7, 4, v7\nv_lshl_add_u32 v7, v3, 8, v7\nv_add_u32 v7, s18, v7")
    a("v_add_u32 v8, v7, v12\nv_xor_b32 v12, 128, v12\nv_add_u32 v9, v7, v12")
    if EXP & 2048:
        a("v_lshlrev_b32 v8, 4, v1\nv_add_u32 v8, s18, v8\nv_mov_b32 v9, v8")
    a("v_lshlrev_b32 v10, 4, v1\nv_add_u32 v10, s19, v10\nv_add_u32 v11, 4096, v10")
    a.srd(32, 4, WS_HT, SZ_T)
    a.srd(36, 4, WS_W13, SZ_W13)
    a.srd(40, 4, WS_CSP, SZ_CSP)
    a(f"s_mul_i32 s20, s9, {20*FS_}")
    a.poll(F_R, 20, 20, "s20")
    a.stamp(5)

    def issue_w(st):
        slot = G1_W + (st % G1_WN) * 24576
        if EXP & 4096 and st > 2:
            a.vm.append(("w", st))
            return
        a(f"s_add_u32 m0, s19, {slot}\ns_nop 0")
        for i in range(4):
            a.vmem(f"buffer_load_dwordx4 v10, s[36:39], s17 offen offset:{1024*i} {SCL} lds", ("w", st))
        a(f"s_add_u32 m0, s19, {slot + 4096}\ns_nop 0")
        for i in range(2):
            a.vmem(f"buffer_load_dwordx4 v11, s[36:39], s17 offen offset:{1024*i} {SCL} lds", ("w", st))
        a("s_add_u32 s17, s17, 24576\ns_cmp_eq_u32 s17, s25\ns_cselect_b32 s17, s24, s17")

    def issue_h(st):
        slot = G1_H + (st % G1_HN) * 16384
        if EXP & 8192 and st > 0:
            a.vm.append(("h", st))
            return
        a(f"s_add_u32 m0, s18, {slot}\ns_nop 0")
        for i in range(4):
            a.vmem(f"buffer_load_dwordx4 v{8 + (i&1)}, s[32:35], s16 offen offset:{1024*i} {SCL} lds", ("h", st))
        a("s_add_u32 s16, s16, 16384\ns_cmp_eq_u32 s16, s23\ns_cselect_b32 s16, s22, s16")

    CS = 40
    a("v_and_b32 v13, 255, v0\nv_lshlrev_b32 v13, 2, v13\ns_mul_i32 s20, s9, 15360")
    for ks in range(20):
        if ks and ks % 5 == 0:
            a("s_add_u32 s20, s20, 3840")
        a.vmem(f"buffer_load_dword v{CS+ks}, v13, s[40:43], s20 offen offset:{768*(ks % 5)} {SC}", "cs")
    SA = 14
    a("s_and_b32 s20, s9, 7\nv_xor_b32 v5, s20, v5\nv_lshl_add_u32 v14, v5, 5, v6\nv_add_u32 v15, 49152, v14")
    ONE, SACC, SF = 20, 24, 32
    for i in range(4):
        a(f"v_mov_b32 v{ONE+i}, {hex(ONES_BF)}")
    for i in range(8):
        a(f"v_mov_b32 v{SACC+i}, 0")
    a.wait_vm("cs")
    for ks in range(1, 20):
        a(f"v_add_f32 v{CS}, v{CS}, v{CS+ks}")
    a("v_and_b32 v7, 3, v4\nv_cmp_eq_u32 s[52:53], 1, v7\nv_cmp_eq_u32 s[54:55], 2, v7\nv_cmp_eq_u32 s[56:57], 3, v7")
    a("v_lshrrev_b32 v7, 2, v4\nv_cmp_eq_u32 s[58:59], v7, v3")
    a(f"s_mul_i32 s60, s11, {48*5120}\ns_mul_i32 s62, s10, {48*4096}\ns_mul_i32 s28, s7, 5120")
    a(f"s_add_u32 s61, s60, {48*5120}\ns_add_u32 s63, s62, {48*4096}")
    a(f"s_mul_i32 s26, s15, {3*20480 if EXP & 2 else 0}\ns_add_u32 s26, s26, s60\ns_mul_i32 s27, s15, {3*16384 if EXP & 2 else 0}\ns_add_u32 s27, s27, s62")
    a("v_lshlrev_b32 v60, 4, v1\nv_add_u32 v61, s18, v60\nv_add_u32 v60, s28, v60\nv_add_u32 v62, 4096, v60")
    a.srd(40, 4, WS_W2, SZ_W2)
    a.srd(44, 4, WS_HM, SZ_HM)
    a.stamp(6)
    a("s_barrier")
    for st in range(G1_WN):
        issue_w(st)
    a.stamp(7)
    a("s_barrier")
    a(f"ds_write_b32 v13, v{CS} offset:{G1_CS}")
    a(f"v_mov_b32 v16, 0\nds_write_b32 v16, v16 offset:{LDS_CNT2}")
    issue_h(0); issue_h(1)
    a.wait_vm(("h", 0))
    a.stamp(8)
    a("s_barrier")
    issue_h(2); issue_h(3); issue_h(4)

    def issue_w2(st):
        slot = G2_W + ((st + 3) % G2_WN) * 20480
        if EXP & 128 and st > 2:
            a.vm.append(("w2", st))
            return
        a(f"s_add_u32 m0, s28, {slot}\ns_nop 0")
        for i in range(4):
            a.vmem(f"buffer_load_dwordx4 v60, s[40:43], s26 offen offset:{1024*i} {SCL} lds", ("w2", st))
        a(f"s_add_u32 m0, s28, {slot + 4096}\ns_nop 0")
        a.vmem(f"buffer_load_dwordx4 v62, s[40:43], s26 offen {SCL} lds", ("w2", st))
        a("s_add_u32 s26, s26, 20480\ns_cmp_eq_u32 s26, s61\ns_cselect_b32 s26, s60, s26")

    def issue_hm(st):
        slot = G2_H + (st % G2_HN) * 16384
        if EXP & 64 and st > 0:
            a.vm.append(("hm", st))
            return
        a(f"s_add_u32 m0, s18, {slot}\ns_nop 0")
        for i in range(4):
            a.vmem(f"buffer_load_dwordx4 v61, s[44:47], s27 offen offset:{1024*i} {SCL} lds", ("hm", st))
        a("s_add_u32 s27, s27, 16384\ns_cmp_eq_u32 s27, s63\ns_cselect_b32 s27, s62, s27")

    a.srd(48, 4, WS_GR, 16 * 4096)
    a("s_and_b32 s20, s7, 1\ns_lshl_b32 s20, s20, 13\nv_add_u32 v14, s20, v14\nv_add_u32 v15, s20, v15")
    for s in range(10):
        slot = s % G1_HN
        dostat = s < 5
        if dostat:
            sk = a.newlabel("L_nost")
            a(f"s_lshr_b32 s20, s7, 1\ns_cmp_lg_u32 s20, {s & 1}\ns_cbranch_scc1 {sk}")
            off = G1_H + (slot % 3) * 16384
            a(f"ds_read_b64_tr_b16 {q(SF,2)}, v{SA + slot//3} offset:{off}")
            a(f"ds_read_b64_tr_b16 {q(SF+2,2)}, v{SA + slot//3} offset:{off + 4096}")
            a("s_waitcnt lgkmcnt(0)")
            a(f"v_mfma_f32_16x16x32_bf16 {q(SACC)}, {q(ONE)}, {q(SF)}, {q(SACC)}")
            a(f"v_mfma_f32_16x16x32_bf16 {q(SACC+4)}, {q(SF)}, {q(SF)}, {q(SACC+4)}")
            a.label(sk)
        if s == 8:
            a("s_lshl_b32 s20, s8, 12\ns_lshl_b32 s21, s7, 9\ns_add_u32 s20, s20, s21")
            a("v_and_b32 v7, 31, v1\nv_lshlrev_b32 v7, 4, v7\nv_lshrrev_b32 v36, 5, v1\nv_lshl_add_u32 v36, v36, 11, v7\nv_add_u32 v7, s21, v7\ns_mov_b32 s84, 0")
            L, D = a.newlabel("L_gp"), a.newlabel("L_gpd")
            a.label(L)
            a(f"buffer_load_dwordx4 {q(40)}, v36, s[48:51], s20 offen {SC}")
            a(f"s_add_u32 s84, s84, 1\ns_waitcnt vmcnt(0)\nv_cmp_ne_u32 vcc, s3, v42\ns_cbranch_vccz {D}")
            a(f"s_sleep 2\ns_cmp_lt_u32 s84, {POLL_MAX}\ns_cbranch_scc1 {L}")
            a.label(D)
            a("v_mov_b32 v44, v40\nv_mov_b32 v45, v41\ns_nop 1\nv_permlane32_swap_b32 v40, v44\nv_permlane32_swap_b32 v41, v45")
            a("v_add_f32 v40, v40, v44\nv_add_f32 v41, v41, v45")
            ln_finish(a, 40, 41, 42, 44, 45)
            a(f"v_mul_f32 v45, {hex(NLOG2E)}, v45\nv_mul_f32 v46, v42, v42\nv_mov_b32 v47, 0")
            a(f"ds_write_b128 v7, {q(44)} offset:{G1_CONST}")
        if s >= 1:
            if s + 2 < 10:
                issue_w(s + 2)
            elif s == 9:
                issue_w2(0); issue_w2(1)
            if s + 4 < 10:
                issue_h(s + 4)
        if s == 4:
            sq = SACC + 4
            a("s_nop 4")
            a(f"v_cndmask_b32 v{sq}, v{sq}, v{sq+1}, s[52:53]\nv_cndmask_b32 v{sq}, v{sq}, v{sq+2}, s[54:55]\nv_cndmask_b32 v{SACC+1}, v{sq}, v{sq+3}, s[56:57]")
            a(f"s_lshl_b32 s20, s7, 7\nv_lshlrev_b32 v7, 3, v4\nv_add_u32 v7, s20, v7\ns_mov_b64 exec, s[58:59]")
            a(f"ds_write_b64 v7, {q(SACC,2)} offset:{G1_SP}\ns_mov_b64 exec, -1\ns_waitcnt lgkmcnt(0)")
        if s == 5:
            sk = a.newlabel("L_nogr")
            a(f"s_cmp_lg_u32 s7, 3\ns_cbranch_scc1 {sk}")
            a("v_lshlrev_b32 v7, 3, v4")
            for w in range(4):
                a(f"ds_read_b64 {q(SF+2*w,2)}, v7 offset:{G1_SP + 128*w}")
            a("s_lshl_b32 s20, s8, 1\ns_lshr_b32 s21, s9, 3\ns_add_u32 s20, s20, s21\ns_lshl_b32 s20, s20, 3\ns_and_b32 s21, s9, 7\ns_add_u32 s20, s20, s21\ns_lshl_b32 s20, s20, 8")
            a(f"v_lshlrev_b32 v7, 4, v4\nv_mov_b32 v{SF+10}, s3\nv_mov_b32 v{SF+11}, s3\ns_waitcnt lgkmcnt(0)")
            a(f"v_pk_add_f32 {q(SF,2)}, {q(SF,2)}, {q(SF+2,2)}\nv_pk_add_f32 {q(SF+4,2)}, {q(SF+4,2)}, {q(SF+6,2)}\nv_pk_add_f32 {q(SF+8,2)}, {q(SF,2)}, {q(SF+4,2)}")
            a("s_mov_b64 exec, 0xffff")
            a(f"buffer_store_dwordx4 {q(SF+8)}, v7, s[48:51], s20 offen {SC}")
            a("s_mov_b64 exec, -1")
            a.label(sk)
        if s + 1 < 10:
            a.wait_vm(("h", s + 1))
            if s + 1 >= G1_WN:
                a.wait_vm(("w", s + 1))
        a("s_barrier")
    issue_w2(2); issue_w2(3); issue_w2(4)
    a("s_waitcnt lgkmcnt(0)")
    a.stamp(10)
    a("s_barrier")
    a.stamp(13)
    a("s_barrier")
    issue_hm(0); issue_hm(1)
    a.wait_vm(("hm", 0))
    a("s_barrier")
    issue_hm(2)
    for s in range(12):
        if s + 1 < 12:
            a.wait_vm(("hm", s + 1))
            if s + 1 >= G2_WN:
                a.wait_vm(("w2", s + 1))
        a("s_barrier")
        if s + G2_WN < 12:
            issue_w2(s + G2_WN)
        if s + G2_HN < 12:
            issue_hm(s + G2_HN)
    a("s_barrier")


def main():
    a = Asm()
    hdr = open(f"cdna_kernels/{NAME}.s.ref").read().split("\n")
    for line in hdr:
        if line.startswith("; Override") or line.startswith("; grid=") or "@launch" in line:
            continue
        if not line.startswith(";"):
            break
        a.raw(line)
    if STAMPS == 1:
        a.raw(f"; @launch kernel={KNAME} grid=(256,1,1) block=(512,1,1) lds={LDS_TOTAL}")
    else:
        a.raw(f"; @launch grid=(256,1,1) block=(512,1,1) lds={LDS_TOTAL}")
    a.raw('.amdgcn_target "amdgcn-amd-amdhsa--gfx950"\n.text')
    a.raw(f".globl {KNAME}\n.p2align 8\n.type {KNAME},@function\n{KNAME}:")
    done = "L_done"
    a("s_cmp_ge_u32 s2, 256\ns_cbranch_scc1 L_exit")
    if STAMPS:
        for i in range(16):
            a(f"s_mov_b32 s{64+i}, 0")
        a.stamp(0)
    a(f"s_load_dwordx2 s[4:5], s[0:1], {KA_WS}\ns_load_dwordx16 s[8:23], s[0:1], 0\ns_load_dwordx8 s[24:31], s[0:1], 64")
    a("v_and_b32 v1, 63, v0\nv_lshrrev_b32 v2, 6, v0\nv_lshrrev_b32 v3, 4, v1\nv_and_b32 v4, 15, v1")
    a("v_readfirstlane_b32 s6, v2")
    a("s_waitcnt lgkmcnt(0)")
    a("s_load_dword s3, s[4:5], 0")
    a("s_and_b32 s7, s6, 3")
    a.srd(92, 4, WS_FLG, SZ_FLG)
    a(f"v_mov_b32 v5, {LDS_CNT}\nv_mov_b32 v6, 0\nv_mov_b32 v7, 0\nv_mov_b32 v8, 0\nv_mov_b32 v9, 0\nds_write_b128 v5, v[6:9]")
    a("s_cmp_ge_u32 s2, 160\ns_cbranch_scc1 L_aux")
    a("s_lshl_b32 s52, s2, 2\ns_add_u32 s52, s52, s7")
    kgen(a)
    a("s_cmp_ge_u32 s6, 4\ns_cbranch_scc1 L_partner")
    conv_main(a)
    a("s_branch L_mfma")
    a.label("L_partner")
    conv_partner(a)
    a("s_branch L_loader")
    a.label("L_aux")
    a.vm = []
    a("s_cmp_ge_u32 s2, 224\ns_cbranch_scc1 L_aux_rp")
    a("s_sub_u32 s52, s2, 160")
    role_ln1(a)
    a("s_branch L_aux_go")
    a.label("L_aux_rp")
    a("s_sub_u32 s52, s2, 224")
    if not EXP & 256:
        a("s_cmp_lt_u32 s6, 6\ns_cbranch_scc1 L_aux_rp1")
        a("s_getpc_b64 s[54:55]")
        a.label("L_pc")
        a(f"s_sub_u32 s54, s54, L_pc-{KNAME}\ns_subb_u32 s55, s55, 0")
        a(f"v_lshlrev_b32 v5, 4, v1\ns_and_b32 s56, s6, 1\ns_mul_i32 s56, s56, {CODE_KB*512}\nv_add_u32 v5, s56, v5")
        for i in range(CODE_KB // 2):
            a(f"global_load_dwordx4 {q(16+4*i)}, v5, s[54:55] offset:{1024*(i%4)}")
            if i % 4 == 3:
                a("v_add_u32 v5, 4096, v5")
        if TLBW:
            a("v_lshlrev_b32 v5, 16, v1")
            a.srd(32, 4, 0, 0x1720000)
            for i in range(6):
                a(f"s_mov_b32 s56, {i << 22}")
                a(f"buffer_load_dword v{100+i}, v5, s[32:35], s56 offen {SC}")
            for k, (lo, sz) in enumerate([(24, 640*3072), (26, 640*3072), (28, 1536*1280), (30, SZ_T)]):
                a.srd(36, lo, 0, sz)
                a(f"buffer_load_dword v{106+k}, v5, s[36:39], 0 offen {SC}")
        a.label("L_aux_rp1")
    epoch_ready(a)
    a("s_cmp_ge_u32 s6, 6\ns_cbranch_scc1 L_aux_end")
    a("s_mul_i32 s53, s52, 6\ns_add_u32 s53, s53, s6")
    if W2LATE:
        a.poll(F_L, 64, 26)
    role_rp2(a)
    a.label("L_aux_end")
    a("s_waitcnt vmcnt(0)\ns_barrier")
    a("s_cmp_lg_u32 s6, 4\ns_cbranch_scc1 L_aux_go")
    delay(a, "d")
    a.publish(F_R2, 52, 10)
    a.label("L_aux_go")
    a.stamp(4)
    a("s_cmp_ge_u32 s6, 4\ns_cbranch_scc1 L_loader\ns_branch L_mfma")
    a.label("L_loader")
    gemm_loader_waves(a, done)
    a(f"s_branch {done}")
    a.label("L_mfma")
    gemm_mfma_waves(a, done)
    a.label(done)
    if STAMPS:
        a("s_waitcnt vmcnt(0)")
        a.stamp(15)
        if STAMPS == 2:
            a(f"s_cmp_lg_u32 s2, {int(os.environ.get('DBGWG', '0'))}\ns_cbranch_scc1 L_exit\ns_cmp_lg_u32 s6, {int(os.environ.get('DBGWV', '0'))}\ns_cbranch_scc1 L_exit")
            a("s_load_dwordx2 s[82:83], s[0:1], 96\ns_waitcnt lgkmcnt(0)")
            a.srd(88, 82, 0, 256)
            for i in range(15, -1, -1):
                a(f"s_sub_u32 s{64+i}, s{64+i}, s64")
            for i in range(16):
                a(f"v_mov_b32 v{4+i}, s{64+i}")
            a("v_mov_b32 v1, 0\ns_mov_b64 exec, 1")
            for i in range(4):
                a(f"buffer_store_dwordx4 {q(4+4*i)}, v1, s[88:91], 0 offen offset:{16*i}")
            a("s_branch L_exit")
        a.srd(88, 4, WS_STAMP, 262144)
        a("v_lshrrev_b32 v1, 6, v0\nv_lshlrev_b32 v1, 6, v1\ns_lshl_b32 s82, s2, 9\nv_add_u32 v1, s82, v1")
        for i in range(16):
            a(f"v_mov_b32 v{4+i}, s{64+i}")
        a("s_mov_b64 exec, 1")
        for i in range(4):
            a(f"buffer_store_dwordx4 {q(4+4*i)}, v1, s[88:91], 0 offen offset:{16*i}")
    a.label("L_exit")
    a("s_endpgm")
    a.raw(f".fill ({CODE_KB*1024} - (. - {KNAME})) / 4, 4, 0xbf800000")
    a.raw(f""".section .rodata,"a"
.p2align 6
.amdhsa_kernel {KNAME}
  .amdhsa_next_free_vgpr 244
  .amdhsa_next_free_sgpr 96
  .amdhsa_accum_offset 244
  .amdhsa_group_segment_fixed_size 0
  .amdhsa_kernarg_size 112
  .amdhsa_user_sgpr_count 2
  .amdhsa_user_sgpr_kernarg_segment_ptr 1
  .amdhsa_system_sgpr_workgroup_id_x 1
.end_amdhsa_kernel""")
    out = sys.argv[1] if len(sys.argv) > 1 else f"cdna_kernels/{NAME}.s"
    open(out, "w").write("\n".join(a.l) + "\n")


if __name__ == "__main__":
    main()
```

```python
import sys, os, struct

NAME = "sequential_preLN__ssm_conv_s4d__glu_gated_swiglu__prompt"
KNAME = NAME + "_kernel"
KA_WS = 104

WS_FLG = 0
FS_ = 128
F_L, F_X, F_R2, F_C, F_G, F_R = 0x1000, 0x3000, 0x5000, 0x8000, 0x10000, 0x18000
SZ_FLG = 0x30000
WS_UT = 0x100000
WS_XT = 0x400000
WS_HT = 0x700000
WS_HM = 0xA00000
WS_W13 = 0x1000000
WS_W2 = 0x1400000
WS_GR = 0x1710000
WS_ST = 0x1700000
WS_CSP = 0x1600000
WS_STAMP = 0x4000000
SZ_T = 640 * 4096
SZ_TP = SZ_T
T_BLK = 40960
SZ_HM = 32 * 48 * 4096
SZ_W13 = 16 * 20 * 12288
SZ_W2 = 8 * 48 * 5120
SZ_CSP = 320 * 768 + 1024

STAMPS = int(os.environ.get('STAMPS', '0'))
EXP = int(os.environ.get('EXP', '0'))
LOG2E, NLOG2E, INV2PI, INV640, EPS, ONES_BF = 0x3FB8AA3B, 0xBFB8AA3B, 0x3E22F983, 0x3ACCCCCD, 0x3727C5AC, 0x3F803F80
POLL_MAX = 400000
CODE_KB = 32
PD0 = int(os.environ.get('PD0', '4'))
W2LATE = int(os.environ.get('W2LATE', '0'))
TLBW = int(os.environ.get('TLBW', '0'))
PIPE = int(os.environ.get('PIPE', '2'))
PSLEEP = int(os.environ.get('PSLEEP', '3'))
SLEEP = int(os.environ.get('SLEEP', '1'))
SC = "sc1"
SCO = os.environ.get("SCO", "")
SCL = "" if EXP & 8 else "sc1"


def f32bits(x):
    return struct.unpack("<I", struct.pack("<f", x))[0]


def q(r, n=4):
    return f"v[{r}:{r+n-1}]"


class Asm:
    def __init__(self):
        self.l = []
        self.vm = []
        self.uid = 0

    def __call__(self, s):
        for x in s.split("\n"):
            x = x.strip()
            if x:
                self.l.append("    " + x)

    def label(self, s):
        self.l.append(s + ":")

    def raw(self, s):
        self.l.append(s)

    def newlabel(self, p="L"):
        self.uid += 1
        return f"{p}_{self.uid}"

    def vmem(self, s, tag=None):
        self(s)
        self.vm.append(tag)

    def wait_vm(self, tag):
        idx = max(i for i, t in enumerate(self.vm) if t == tag)
        n = len(self.vm) - 1 - idx
        assert n <= 63, n
        self(f"s_waitcnt vmcnt({n})")

    def srd(self, sd, lo, off, size):
        if off == 0:
            self(f"s_mov_b32 s{sd}, s{lo}\ns_mov_b32 s{sd+1}, s{lo+1}")
        else:
            self(f"s_add_u32 s{sd}, s{lo}, {hex(off)}\ns_addc_u32 s{sd+1}, s{lo+1}, 0")
        self(f"s_mov_b32 s{sd+2}, {size}\ns_mov_b32 s{sd+3}, 0x20000")

    def stamp(self, i):
        if STAMPS:
            self(f"s_memrealtime s[80:81]\ns_waitcnt lgkmcnt(0)\ns_mov_b32 s{64+i}, s80")

    def unpack(self, dlo, src):
        if dlo == src:
            self(f"v_and_b32 v{dlo+1}, 0xffff0000, v{src}\nv_lshlrev_b32 v{dlo}, 16, v{src}")
        else:
            self(f"v_lshlrev_b32 v{dlo}, 16, v{src}\nv_and_b32 v{dlo+1}, 0xffff0000, v{src}")

    def rnd(self, d, s):
        self(f"v_cvt_pk_bf16_f32 v{d}, v{s}, v{s}\nv_lshlrev_b32 v{d}, 16, v{d}")

    def poll(self, off, n, vt, soff=None, fast=False):
        L, D = self.newlabel("L_poll"), self.newlabel("L_polld")
        nl = (n + 63) // 64
        for i in range(nl):
            self(f"v_add_u32 v{vt+i}, {64*i}, v1\nv_min_u32 v{vt+i}, {n-1}, v{vt+i}\nv_mul_u32_u24 v{vt+i}, {FS_}, v{vt+i}")
        if soff is None:
            self(f"s_mov_b32 s86, {off}")
        else:
            self(f"s_add_u32 s86, {soff}, {off}")
        self("s_mov_b32 s84, 0")
        np_ = PIPE if fast else 1

        def ld(k):
            for i in range(nl):
                self(f"buffer_load_dword v{vt+nl*(1+k)+i}, v{vt+i}, s[92:95], s86 offen {SC}")

        def chk(k):
            b = vt + nl * (1 + k)
            for i in range(nl):
                self(f"v_xor_b32 v{b+i}, s3, v{b+i}")
            for i in range(1, nl):
                self(f"v_or_b32 v{b}, v{b}, v{b+i}")
            self(f"v_cmp_ne_u32 vcc, 0, v{b}\ns_cbranch_vccz {D}")

        for k in range(np_ - 1):
            ld(k)
            self(f"s_sleep {PSLEEP}")
        self.label(L)
        for k in range(np_):
            ld((k + np_ - 1) % np_)
            self(f"s_waitcnt vmcnt({nl*(np_-1)})")
            chk(k)
            self(f"s_sleep {PSLEEP if fast else SLEEP}")
        self(f"s_add_u32 s84, s84, 1\ns_cmp_lt_u32 s84, {POLL_MAX}\ns_cbranch_scc1 {L}")
        self.label(D)
        if np_ > 1:
            self.vm = [None] * (nl * (np_ - 1))
        else:
            self.vm = []

    def publish(self, off, sidx, vt):
        self(f"s_mul_i32 s85, s{sidx}, {FS_}\ns_add_u32 s85, s85, {off}\nv_mov_b32 v{vt}, s3\nv_mov_b32 v{vt+1}, s85\ns_mov_b64 exec, 1")
        self.vmem(f"buffer_store_dword v{vt}, v{vt+1}, s[92:95], 0 offen {SC}")
        self("s_mov_b64 exec, -1")


def ln_finish(a, vs, vq, vt, vnegm, vrinv):
    a(f"v_mul_f32 v{vs}, {hex(INV640)}, v{vs}")
    a(f"v_mul_f32 v{vq}, {hex(INV640)}, v{vq}")
    a(f"v_fma_f32 v{vq}, -v{vs}, v{vs}, v{vq}")
    a(f"v_max_f32 v{vq}, 0, v{vq}")
    a.rnd(vnegm, vs)
    a(f"v_xor_b32 v{vnegm}, 0x80000000, v{vnegm}")
    a.rnd(vt, vq)
    a(f"v_add_f32 v{vt}, {hex(EPS)}, v{vt}")
    a.rnd(vt, vt)
    a(f"v_sqrt_f32 v{vt}, v{vt}\ns_nop 0")
    a.rnd(vt, vt)
    a(f"v_rcp_f32 v{vrinv}, v{vt}\ns_nop 0")


def cmul(a, d, x, y, t):
    a(f"v_pk_mul_f32 {q(t,2)}, {q(x,2)}, {q(y,2)} op_sel_hi:[1,0]")
    a(f"v_pk_fma_f32 {q(d,2)}, {q(x,2)}, {q(y,2)}, {q(t,2)} op_sel:[1,1,0] op_sel_hi:[0,1,1] neg_lo:[1,0,0]")


DLY = os.environ.get("DLY", "")


def delay(a, tag):
    if tag in DLY:
        a("s_sleep 32")


def epoch_ready(a):
    a("s_waitcnt lgkmcnt(0)\ns_add_u32 s3, s3, 1")


LDS_CNT = 143872


LDS_CNT2 = 4096


def last_of4_publish(a, addr, off, sidx, vt):
    sk = a.newlabel("L_notlast")
    a(f"v_mov_b32 v{vt}, {addr}\nv_mov_b32 v{vt+1}, 1\ns_mov_b64 exec, 1")
    a(f"ds_add_rtn_u32 v{vt+1}, v{vt}, v{vt+1}\ns_mov_b64 exec, -1\ns_waitcnt lgkmcnt(0)")
    a(f"v_readfirstlane_b32 s85, v{vt+1}\ns_nop 3\ns_cmp_lg_u32 s85, 3\ns_cbranch_scc1 {sk}")
    a.publish(off, sidx, vt)
    a.label(sk)


LN_RS = 1312
LN_U = 32 * LN_RS


def role_ln1(a):
    a("v_lshl_add_u32 v5, v2, 2, v3")
    a(f"s_mul_i32 s53, s52, {32*1280}")
    a("v_mul_u32_u24 v6, 1280, v5\nv_lshl_add_u32 v6, v4, 4, v6\nv_add_u32 v6, s53, v6")
    a.srd(32, 8, 0, SZ_T)
    X = 16
    for j in range(5):
        a.vmem(f"buffer_load_dwordx4 {q(X+4*j)}, v6, s[32:35], 0 offen offset:{j*256}", ("x", j))
    a(f"v_mul_u32_u24 v7, {LN_RS}, v5\nv_lshl_add_u32 v7, v4, 4, v7")
    a(f"s_mov_b32 s54, {hex(ONES_BF)}")
    a.srd(36, 4, WS_ST, 16384)
    a.srd(40, 4, WS_XT, SZ_TP)
    a("v_bfe_u32 v8, v1, 2, 2\nv_lshl_add_u32 v8, v3, 3, v8")
    a(f"v_mul_u32_u24 v8, {LN_RS}, v8\nv_and_b32 v9, 3, v1\nv_lshl_add_u32 v8, v9, 3, v8")
    a("v_mul_u32_u24 v9, 160, v2\nv_add_u32 v8, v8, v9")
    a("v_mul_u32_u24 v9, 80, v2\nv_add_u32 v9, v9, v4\nv_lshlrev_b32 v9, 6, v9\nv_lshl_add_u32 v9, v3, 4, v9")
    a(f"s_mul_i32 s53, s52, {T_BLK}\ns_add_u32 s55, s53, 4096\ns_lshl_b32 s56, s52, 7")
    a(f"v_lshlrev_b32 v10, 2, v5\nv_and_b32 v11, 1, v4\nv_lshl_add_u32 v10, v11, 7, v10\nv_add_u32 v10, {LN_U}, v10")
    R = 56
    S0, S1, Q0, Q1, NM, RI, TT = 80, 81, 82, 83, 84, 85, 88
    a(f"v_mov_b32 v{S0}, 0\nv_mov_b32 v{S1}, 0\nv_mov_b32 v{Q0}, 0\nv_mov_b32 v{Q1}, 0\nv_cmp_eq_u32 s[58:59], 1, v11")
    epoch_ready(a)
    for j in range(5):
        a.wait_vm(("x", j))
        if j == 0:
            a.stamp(1)
        a(f"ds_write_b128 v7, {q(X+4*j)} offset:{j*256}")
        for i in range(4 * j, 4 * j + 4):
            a(f"v_dot2c_f32_bf16 v{S0 + (i&1)}, s54, v{X+i}")
            a(f"v_dot2c_f32_bf16 v{Q0 + (i&1)}, v{X+i}, v{X+i}")
    a("s_waitcnt lgkmcnt(0)\ns_barrier")
    a.stamp(2)
    for i in range(5):
        a(f"ds_read_b64_tr_b16 {q(R+4*i,2)}, v8 offset:{32*i}")
        a(f"ds_read_b64_tr_b16 {q(R+4*i+2,2)}, v8 offset:{32*i + 4*LN_RS}")
    a(f"v_add_f32 v{S0}, v{S0}, v{S1}\nv_add_f32 v{Q0}, v{Q0}, v{Q1}")
    for i in range(5):
        a(f"s_waitcnt lgkmcnt({8-2*i})")
        a.vmem(f"buffer_store_dwordx4 {q(R+4*i)}, v9, s[40:43], {'s53' if i < 4 else 's55'} offen offset:{1024*(i%4)} {SC}")
    for sh in (8, 4, 2, 1):
        a(f"v_add_f32_dpp v{S0}, v{S0}, v{S0} row_ror:{sh} row_mask:0xf bank_mask:0xf")
        a(f"v_add_f32_dpp v{Q0}, v{Q0}, v{Q0} row_ror:{sh} row_mask:0xf bank_mask:0xf")
        a("s_nop 0")
    ln_finish(a, S0, Q0, TT, NM, RI)
    a(f"v_cndmask_b32 v{NM}, v{NM}, v{RI}, s[58:59]")
    a(f"ds_write_b32 v10, v{NM}")
    a("s_waitcnt lgkmcnt(0)\ns_barrier")
    sk = a.newlabel("L_lnst")
    a(f"s_cmp_lg_u32 s6, 7\ns_cbranch_scc1 {sk}")
    a(f"v_lshlrev_b32 v10, 2, v1\nv_add_u32 v11, {LN_U}, v10\nds_read_b32 v12, v11")
    a("v_lshrrev_b32 v11, 5, v1\nv_mul_u32_u24 v11, 8064, v11\nv_add_u32 v10, v10, v11\ns_waitcnt lgkmcnt(0)")
    a.vmem(f"buffer_store_dword v12, v10, s[36:39], s56 offen {SC}")
    a.label(sk)
    a("s_waitcnt vmcnt(0)\ns_barrier")
    a.stamp(3)
    sk = a.newlabel("L_lnp")
    a(f"s_cmp_lg_u32 s6, 7\ns_cbranch_scc1 {sk}")
    delay(a, "b")
    a.publish(F_L, 52, 10)
    a.label(sk)
    sk = a.newlabel("L_lnrp")
    a(f"s_cmp_ge_u32 s6, 5\ns_cbranch_scc1 {sk}")
    a(f"s_mul_i32 s55, s52, 5\ns_add_u32 s55, s55, s6\ns_mul_i32 s56, s6, 12288\ns_add_u32 s56, s56, 49152")
    rp13_issue(a)
    a("s_waitcnt vmcnt(0)")
    rp13_finish(a)
    a("s_waitcnt vmcnt(0)")
    delay(a, "c")
    a.publish(F_R, 55, 10)
    a.label(sk)


W13_J = [[0, 1, 2], [4, 5, 3]]


RP_BASE = 2 * LN_U


def rp13_issue(a):
    a("s_mul_i32 s57, s55, 205\ns_lshr_b32 s57, s57, 12")
    a("s_mul_i32 s58, s57, 20\ns_sub_u32 s58, s55, s58")
    a.srd(44, 24, 0, 640 * 3072)
    a.srd(48, 26, 0, 640 * 3072)
    a(f"s_mul_i32 s57, s57, 192\ns_mul_i32 s58, s58, {32*3072}\ns_add_u32 s57, s57, s58")
    for i in range(6):
        a(f"v_add_u32 v10, {64*i}, v1\nv_mul_u32_u24 v11, 43691, v10\nv_lshrrev_b32 v11, 19, v11")
        a(f"v_mul_u32_u24 v12, 12, v11\nv_sub_u32 v12, v10, v12\nv_mul_u32_u24 v11, 3072, v11\nv_lshl_add_u32 v13, v12, 4, v11")
        for mat in range(2):
            a(f"s_add_u32 m0, s56, {mat*6144 + i*1024}\ns_nop 0")
            a(f"buffer_load_dwordx4 v13, s[{44+4*mat}:{47+4*mat}], s57 offen lds")


def rp13_finish(a):
    a("v_lshlrev_b32 v5, 4, v1")
    a("v_bfe_u32 v6, v1, 2, 2\nv_lshl_add_u32 v6, v3, 2, v6\nv_and_b32 v7, 3, v1")
    a("v_mul_u32_u24 v16, 192, v6\nv_lshl_add_u32 v16, v7, 3, v16\nv_add_u32 v16, s56, v16")
    OH, ACC, F = 32, 80, 84
    for t in range(12):
        wn, mat, jj = t // 6, (t % 6) // 3, t % 3
        off = mat * 6144 + 32 * W13_J[wn][jj]
        a(f"ds_read_b64_tr_b16 {q(F+4*t,2)}, v16 offset:{off}")
        a(f"ds_read_b64_tr_b16 {q(F+4*t+2,2)}, v16 offset:{off + 16*192}")
    a.srd(40, 4, WS_W13, SZ_W13)
    a.srd(44, 4, WS_CSP, SZ_CSP)
    a("s_mul_i32 s57, s55, 12288\ns_add_u32 s58, s57, 4096\ns_add_u32 s59, s57, 8192")
    a("s_waitcnt lgkmcnt(0)")
    for t in range(12):
        a(f"buffer_store_dwordx4 {q(F+4*t)}, v5, s[40:43], s{57 + t//4} offen offset:{1024*(t%4)} {SC}")
    a(f"v_mov_b32 v8, {hex(ONES_BF)}")
    a("v_lshlrev_b32 v9, 6, v4\nv_lshl_add_u32 v9, v3, 4, v9\ns_mul_i32 s60, s55, 768")
    for t in range(12):
        a(f"v_cmp_eq_u32 vcc, {t}, v4\ns_nop 1")
        for i in range(4):
            a(f"v_cndmask_b32 v{OH+4*t+i}, 0, v8, vcc")
    a("s_nop 1")
    for t in range(12):
        a(f"v_mfma_f32_16x16x32_bf16 {q(ACC)}, {q(F+4*t)}, {q(OH+4*t)}, {q(ACC) if t else 0}")
    a("s_nop 7\nv_cmp_gt_u32 vcc, 12, v4\ns_and_saveexec_b64 s[82:83], vcc")
    a(f"buffer_store_dwordx4 {q(ACC)}, v9, s[44:47], s60 offen {SC}")
    a(f"s_mov_b64 exec, s[82:83]")


def role_rp2(a):
    a.vm = []
    a("s_mul_i32 s54, s6, 12288")
    a("v_lshlrev_b32 v5, 4, v1")
    a("v_bfe_u32 v6, v1, 2, 2\nv_lshl_add_u32 v6, v3, 2, v6\nv_and_b32 v7, 3, v1")
    a("s_mul_i32 s55, s53, 171\ns_lshr_b32 s55, s55, 12")
    a("s_mul_i32 s56, s55, 24\ns_sub_u32 s56, s53, s56")
    a.srd(32, 28, 0, 1536 * 1280)
    a(f"s_mul_i32 s57, s55, 160\ns_mul_i32 s58, s56, {64*1280}\ns_add_u32 s57, s57, s58\ns_add_u32 s58, s57, {32*1280}")
    for i in range(5):
        a(f"v_add_u32 v8, {64*i}, v1\nv_mul_u32_u24 v9, 52429, v8\nv_lshrrev_b32 v9, 19, v9")
        a(f"v_mul_u32_u24 v16, 10, v9\nv_sub_u32 v16, v8, v16\nv_mul_u32_u24 v9, 1280, v9\nv_lshl_add_u32 v{10+i}, v16, 4, v9")
        for un in range(2):
            a(f"s_add_u32 m0, s54, {un*5120 + i*1024}\ns_nop 0")
            a.vmem(f"buffer_load_dwordx4 v{10+i}, s[32:35], s{57+un} offen lds", "w")
    a.srd(40, 4, WS_W2, SZ_W2)
    a("s_mul_i32 s60, s56, 171\ns_lshr_b32 s60, s60, 9\ns_mul_i32 s60, s60, 3\ns_sub_u32 s60, s56, s60")
    for un in range(2):
        a(f"s_cmp_eq_u32 s60, {2 if un == 0 else 0}\ns_cselect_b32 s61, 640, 0\ns_mul_i32 s62, s61, 3\ns_sub_u32 s62, 2560, s62")
        a(f"v_mul_u32_u24 v16, 160, v6\nv_mul_u32_u24 v8, s61, v3\nv_add3_u32 v16, v16, v8, s54")
        b = 18 + 4 * un
        a(f"v_lshl_add_u32 v{b}, v7, 4, v16\nv_lshl_add_u32 v{b+1}, v7, 3, v16\nv_add_u32 v{b+2}, s62, v{b}\nv_add_u32 v{b+3}, s62, v{b+1}")
    a("s_mul_i32 s57, s53, 10240\ns_add_u32 s58, s57, 4096\ns_add_u32 s59, s57, 8192")
    if W2LATE:
        a("s_waitcnt vmcnt(0)")
    else:
        a.poll(F_L, 64, 26)
    F = 32
    for k in range(10):
        un, t = divmod(k, 5)
        b = 18 + 4 * un + (0 if t < 4 else 1)
        off = un * 5120 + ((t >> 1) * 64 + (t & 1) * 8 if t < 4 else 128)
        a(f"ds_read_b64_tr_b16 {q(F+4*k,2)}, v{b} offset:{off}")
        a(f"ds_read_b64_tr_b16 {q(F+4*k+2,2)}, v{b+2} offset:{off}")
    a("s_waitcnt lgkmcnt(0)")
    for k in range(10):
        a.vmem(f"buffer_store_dwordx4 {q(F+4*k)}, v5, s[40:43], s{57 + k//4} offen offset:{1024*(k%4)} {SC}")


TB_RS = 272
TB_SZ = 57 * TB_RS
CV_A = 64
CV_CS = 4160
CV_U = CV_A + 4 * CV_CS
CV_X = CV_U + 4608
CV_WAVE = CV_X + 4096
KP_BASE = 126976
PART_BASE = 145408
RP_LDS = [101632, 113920]


def kgen(a):
    a.vm = []
    a(f"s_mul_i32 s53, s6, {TB_SZ}")
    a("s_lshr_b32 s54, s6, 2")
    a("s_mul_i32 s55, s52, 384\ns_lshl_b32 s56, s54, 7\ns_add_u32 s55, s55, s56\nv_lshlrev_b32 v5, 1, v1")
    a("s_lshl_b32 s56, s52, 1\nv_mov_b32 v6, 0")
    PR, DT = 8, 92
    PR2 = 96
    a.srd(48, 18, 0, 1280)
    a.vmem(f"buffer_load_ushort v{DT}, v6, s[48:51], s56 offen", "par")
    for i in range(4):
        a.srd(32 + 4 * i, 10 + 2 * i, 0, 640 * 192 * 2)
        a.vmem(f"buffer_load_ushort v{PR+i}, v5, s[{32+4*i}:{35+4*i}], s55 offen", "par")
    for i in range(4):
        a.vmem(f"buffer_load_ushort v{PR2+i}, v5, s[{32+4*i}:{35+4*i}], s55 offen offset:256", "par2")
    a.srd(48, 20, 0, 1280)
    a.vmem("buffer_load_ushort v240, v6, s[48:51], s56 offen", "par2")
    VW, VR, DK = 6, 7, 80
    a(f"v_lshlrev_b32 v{VW}, 2, v1\nv_add_u32 v{VW}, s53, v{VW}")
    a(f"v_mul_u32_u24 v{VR}, {TB_RS}, v4\nv_lshl_add_u32 v{VR}, v3, 4, v{VR}\nv_add_u32 v{VR}, s53, v{VR}")
    for i in range(12):
        a(f"v_mov_b32 v{DK+i}, 0")
    epoch_ready(a)
    a.wait_vm("par")
    a.stamp(1)
    a(f"v_lshlrev_b32 v{DT}, 16, v{DT}\nv_mul_f32 v{DT}, {hex(LOG2E)}, v{DT}\nv_exp_f32 v{DT}, v{DT}\ns_nop 0")
    a.rnd(DT, DT)
    a.label("L_kgen")
    A2, W, Z8, Y, GC, T0, T1, T2, XT = 16, 17, 18, 20, 22, 24, 26, 28, 30
    E = [None] + [32 + 2 * i for i in range(7)]
    G1 = 46
    PK = [48, 49, 50, 51]
    pkc = [0]

    def put(row, re, im):
        r = PK[pkc[0] % 4]
        pkc[0] += 1
        a(f"v_cvt_pk_bf16_f32 v{r}, {re}, {im}")
        a(f"ds_write_b32 v{VW}, v{r} offset:{row*TB_RS}")

    def putp(row, p):
        put(row, f"v{p}", f"v{p+1}")

    a(f"v_lshlrev_b32 v{PR}, 16, v{PR}\nv_mul_f32 v{A2}, {hex(LOG2E)}, v{PR}\nv_exp_f32 v{A2}, v{A2}")
    for i in range(1, 4):
        a(f"v_lshlrev_b32 v{PR+i}, 16, v{PR+i}")
    a.rnd(A2, A2)
    a(f"v_mul_f32 v{W}, v{PR+1}, v{DT}")
    a(f"v_mul_f32 v{A2}, v{A2}, v{DT}")
    a(f"v_mul_f32 v{W}, {hex(INV2PI)}, v{W}")
    a(f"v_mul_f32 v{A2}, {hex(NLOG2E)}, v{A2}")
    a(f"v_rndne_f32 v{T0}, v{W}")
    a(f"v_mul_f32 v{Y}, v{PR+2}, v{DT}\nv_mul_f32 v{Y+1}, v{PR+3}, v{DT}")
    a(f"v_sub_f32 v{W}, v{W}, v{T0}")
    a(f"v_mul_f32 v{Y}, 2.0, v{Y}\nv_mul_f32 v{Y+1}, -2.0, v{Y+1}")

    def base(dst, mult, conj, T):
        m = {1: "1.0", 8: hex(0x41000000), 128: hex(0x43000000)}[mult]
        a(f"v_mul_f32 v{T}, {m}, v{A2}\nv_mul_f32 v{T+1}, {m}, v{W}")
        a(f"v_exp_f32 v{T}, v{T}\nv_cos_f32 v{dst}, v{T+1}\nv_sin_f32 v{dst+1}, v{T+1}\ns_nop 0")
        a(f"v_mul_f32 v{dst}, v{dst}, v{T}")
        a(f"v_mul_f32 v{dst+1}, {'-' if conj else ''}v{dst+1}, v{T}")

    base(E[1], 1, False, T0)
    base(Z8, 8, True, T1)
    base(G1, 128, False, T2)
    put(0, "1.0", "0")
    putp(1, E[1])
    putp(41, Y)
    cmul(a, E[2], E[1], E[1], T0)
    putp(8, G1)
    cmul(a, E[3], E[2], E[1], T0)
    cmul(a, E[4], E[2], E[2], T1)
    putp(2, E[2])
    cmul(a, E[5], E[4], E[1], T0)
    cmul(a, E[6], E[4], E[2], T1)
    cmul(a, E[7], E[4], E[3], T2)
    for e in range(3, 8):
        putp(e, E[e])
    ops = []
    for e in range(1, 8):
        ops.append(("x", 8 + e, G1, E[e]))
    for g in range(2, 17):
        ops.append(("g", g))
        if g in (2, 3):
            for i, e in enumerate((2, 4, 6)):
                ops.append(("x", 16 + (g - 2) * 4 + 1 + i, GC, E[e]))
        elif g < 8:
            ops.append(("x", 24 + (g - 4) * 2 + 1, GC, E[4]))
    yb = 1
    for k, op in enumerate(ops):
        if op[0] == "x":
            x = XT if (k & 1) else T2
            cmul(a, x, op[2], op[3], x)
            putp(op[1], x)
        else:
            g = op[1]
            cmul(a, GC, G1 if g == 2 else GC, G1, T1)
            row = 16 + (g - 2) * 4 if g < 4 else (24 + (g - 4) * 2 if g < 8 else 32 + (g - 8))
            putp(row, GC)
        if (k & 1) and yb < 16:
            cmul(a, Y, Y, Z8, T0)
            putp(41 + yb, Y)
            yb += 1
    assert yb == 16
    FR = 16
    a("s_waitcnt lgkmcnt(0)")
    for st in range(4):
        f = FR + 16 * st
        if st == 3:
            a("s_waitcnt lgkmcnt(8)")
        a(f"ds_read_b128 {q(f)}, v{VR} offset:{41*TB_RS + 64*st}")
        for t in range(3):
            a(f"ds_read_b128 {q(f+4+4*t)}, v{VR} offset:{16*t*TB_RS + 64*st}")
    a("s_waitcnt vmcnt(0)")
    for i in range(4):
        a(f"v_mov_b32 v{PR+i}, v{PR2+i}")
    for st in range(4):
        f = FR + 16 * st
        a(f"s_waitcnt lgkmcnt({12 - 4*st})")
        for t in range(3):
            a(f"v_mfma_f32_16x16x32_bf16 {q(DK+4*t)}, {q(f+4+4*t)}, {q(f)}, {q(DK+4*t)}")
    a("s_add_u32 s54, s54, 1\ns_cmp_lt_u32 s54, 2\ns_cbranch_scc1 L_kgen")
    a.vm = []


def conv_main(a):
    DK = 80
    a(f"s_mul_i32 s53, s7, {CV_WAVE}")
    a(f"s_mul_i32 s54, s7, 4224\ns_add_u32 s54, s54, {KP_BASE}")
    a(f"s_mul_i32 s55, s7, 3072\ns_add_u32 s55, s55, {PART_BASE}")
    a("v_lshlrev_b32 v7, 4, v1\nv_add_u32 v5, s55, v7")
    a("v_lshlrev_b32 v18, 4, v4\nv_add_u32 v18, s54, v18")
    a("v_lshrrev_b32 v16, 1, v3\nv_and_b32 v17, 1, v3")
    a("v_lshlrev_b32 v19, 8, v16\nv_lshl_add_u32 v19, v17, 3, v19\nv_add_u32 v19, v19, v18")
    a("v_cmp_gt_u32 vcc, 2, v3")
    a("v_lshlrev_b32 v20, 8, v3\nv_add_u32 v20, 512, v20\nv_lshlrev_b32 v21, 9, v3")
    a("v_cndmask_b32 v20, v21, v20, vcc\nv_add_u32 v20, v20, v18")
    for i in range(1, 4):
        a(f"v_mov_b32 v22, {4*i}\nv_mov_b32 v23, {256*(i>>1) + 8*(i&1)}")
        a(f"v_cndmask_b32 v22, v23, v22, vcc\nv_add_u32 v{23+i}, v20, v22")
    a("v_lshlrev_b32 v27, 10, v3\nv_lshl_add_u32 v27, v4, 4, v27\nv_add_u32 v27, 2048, v27\ns_movk_i32 s56, 4112")
    for i in range(4):
        a(f"v_add_u32 v{28+i}, {256*i}, v27\nv_min_u32 v{28+i}, s56, v{28+i}\nv_add_u32 v{28+i}, s54, v{28+i}")
    a("v_sub_u32 v16, 4094, v7\nv_cvt_f32_u32 v16, v16")
    a("v_cmp_eq_u32 s[58:59], 63, v1")
    a("v_add_u32 v17, s53, v7")
    delay(a, "a")
    a.stamp(2)
    a("s_barrier")
    for t in range(3):
        a(f"ds_read_b128 {q(40+4*t)}, v5 offset:{1024*t}")
    a("s_waitcnt lgkmcnt(0)")
    for i in range(6):
        a(f"v_pk_add_f32 {q(DK+2*i,2)}, {q(DK+2*i,2)}, {q(40+2*i,2)}")
    for i in range(6):
        a(f"v_cvt_pk_bf16_f32 v{32+i}, v{DK+2*i}, v{DK+2*i+1}")
    a("ds_write_b64 v19, v[32:33]")
    a("ds_write_b16 v20, v34\nds_write_b16_d16_hi v24, v34\nds_write_b16 v25, v35\nds_write_b16_d16_hi v26, v35")
    a("ds_write_b16 v28, v36\nds_write_b16_d16_hi v29, v36\nds_write_b16 v30, v37\nds_write_b16_d16_hi v31, v37")
    a("v_sub_u32 v38, 4080, v7\nv_add_u32 v38, s54, v38")
    a("v_and_b32 v39, 1, v1\nv_cmp_eq_u32 s[60:61], 0, v39")
    a("v_cndmask_b32 v39, 0, 8, s[58:59]\nv_sub_u32 v40, v38, v39\nv_lshrrev_b32 v39, 1, v39\nv_sub_u32 v41, v38, v39")
    a("v_subrev_u32 v38, 2056, v38\nv_subrev_u32 v40, 2056, v40\nv_subrev_u32 v41, 2056, v41")
    AD = 20
    for m in range(0, 12, 2):
        f0 = 64 + m
        a(f"v_add_f32 v{f0}, {hex(f32bits(-3072.0 - 2.0*m))}, v16\nv_add_f32 v{f0+1}, {hex(f32bits(-3072.0 - 2.0*(m+1)))}, v16")
        a(f"v_cvt_pk_bf16_f32 v{f0}, v{f0}, v{f0+1}")
        a.unpack(f0, f0)
        a(f"v_cvt_u32_f32 v{AD+m}, v{f0}\nv_cvt_u32_f32 v{AD+m+1}, v{f0+1}")
        a(f"v_add_u32 v{AD+m}, s54, v{AD+m}\nv_add_u32 v{AD+m+1}, s54, v{AD+m+1}")
    a("s_waitcnt lgkmcnt(0)")
    G = 96
    for r in range(2):
        o = 2056 - 1024 * r
        a(f"ds_read_u16 v{G+4*r}, v38 offset:{o+16}\nds_read_u16 v{G+4*r+1}, v38 offset:{o}")
        a(f"ds_read_u16 v{G+4*r+2}, v{40 if r else 38} offset:{o}")
    o = 2056 - 2048
    a(f"ds_read_u16 v{G+8}, v38 offset:{o+16}\nds_read_u16 v{G+9}, v38 offset:{o+8}\nds_read_u16 v{G+10}, v38 offset:{o}")
    a(f"ds_read_u16 v{G+11}, v41 offset:{o}\nds_read_u16 v{G+12}, v38 offset:{o-8}")
    D = 32
    for m in range(6):
        a(f"ds_read_u16 v{D+m}, v{AD+2*m}")
        if m < 5:
            a(f"ds_read_u16 v{52+m}, v{AD+2*m+1}")

    def wr(r, c0, c1, c2, c3):
        for k, c in enumerate((c0, c1, c2, c3)):
            a(f"ds_write_b128 v17, {q(c)} offset:{CV_A + k*CV_CS + 1024*r}")

    a("s_waitcnt lgkmcnt(15)\ns_waitcnt lgkmcnt(11)")
    for r in range(2):
        A, B, B2 = G + 4 * r, G + 4 * r + 1, G + 4 * r + 2
        Q = 112 + 16 * r
        a(f"v_cndmask_b32 v{G+4*r+3}, v{B}, v{A}, s[60:61]")
        W3 = G + 4 * r + 3
        a(f"v_lshl_or_b32 v{Q}, v{A}, 16, v{A}\nv_lshl_or_b32 v{Q+1}, v{W3}, 16, v{A}\nv_lshl_or_b32 v{Q+2}, v{B}, 16, v{B}")
        a(f"v_mov_b32 v{Q+3}, v{Q+2}\nv_mov_b32 v{Q+4}, v{Q+1}\nv_mov_b32 v{Q+5}, v{Q+2}\nv_mov_b32 v{Q+6}, v{Q+2}\nv_mov_b32 v{Q+7}, v{Q+2}")
        a(f"v_mov_b32 v{Q+8}, v{Q}\nv_lshl_or_b32 v{Q+9}, v{B}, 16, v{W3}\nv_mov_b32 v{Q+10}, v{Q+2}\nv_mov_b32 v{Q+11}, v{Q+2}")
        a(f"v_mov_b32 v{Q+12}, v{Q+9}\nv_mov_b32 v{Q+13}, v{Q+2}\nv_mov_b32 v{Q+14}, v{Q+2}\nv_lshl_or_b32 v{Q+15}, v{B2}, 16, v{B}")
        wr(r, Q + 12, Q + 4, Q + 8, Q)
    P_, Q_, R_, R2, S_ = G + 8, G + 9, G + 10, G + 11, G + 12
    Q = 144
    a(f"v_lshl_or_b32 v{Q}, v{P_}, 16, v{P_}\nv_lshl_or_b32 v{Q+1}, v{Q_}, 16, v{Q_}\nv_lshl_or_b32 v{Q+2}, v{R_}, 16, v{Q_}\nv_lshl_or_b32 v{Q+3}, v{R_}, 16, v{R_}")
    a(f"v_mov_b32 v{Q+4}, v{Q+1}\nv_mov_b32 v{Q+5}, v{Q+2}\nv_mov_b32 v{Q+6}, v{Q+3}\nv_lshl_or_b32 v{Q+7}, v{R2}, 16, v{R_}")
    a(f"v_lshl_or_b32 v{Q+8}, v{Q_}, 16, v{P_}\nv_mov_b32 v{Q+9}, v{Q+1}\nv_mov_b32 v{Q+10}, v{Q+3}\nv_mov_b32 v{Q+11}, v{Q+3}")
    a(f"v_mov_b32 v{Q+12}, v{Q+1}\nv_mov_b32 v{Q+13}, v{Q+3}\nv_mov_b32 v{Q+14}, v{Q+3}\nv_lshl_or_b32 v{Q+15}, v{S_}, 16, v{R2}")
    wr(2, Q + 12, Q + 4, Q + 8, Q)
    a("s_waitcnt lgkmcnt(12)")
    for m in range(5):
        a(f"v_lshl_or_b32 v{D+m}, v{52+m}, 16, v{D+m}")
    a(f"v_cndmask_b32 v{D+4}, v{D+4}, 0, s[58:59]\nv_cndmask_b32 v{D+5}, v{D+5}, 0, s[58:59]")
    C1, C2, C0 = 40, 44, 48
    for m in range(4):
        a(f"v_mov_b32 v{C1+m}, v{D+1+m}")
        a(f"v_alignbit_b32 v{C2+m}, v{D+m+1}, v{D+m}, 16")
        a(f"v_alignbit_b32 v{C0+m}, v{D+m+2}, v{D+m+1}, 16")
    wr(3, C0, C1, C2, D)
    ACC, AS, FS, VA, VF = 16, [48, 112], [80, 144], 10, 11
    T1, XF, DSV = 176, 208, 240
    a(f"v_and_b32 v5, 3, v4\nv_mul_u32_u24 v5, {CV_CS}, v5\nv_lshrrev_b32 v6, 2, v4\nv_lshlrev_b32 v6, 3, v6\nv_sub_u32 v5, v5, v6")
    a(f"v_lshlrev_b32 v6, 4, v3\nv_sub_u32 v5, v5, v6\nv_add_u32 v5, {CV_A + 4104 - 3584 - 448}, v5\nv_add_u32 v{VA}, s53, v5")
    a(f"v_lshlrev_b32 v5, 5, v4\nv_sub_u32 v5, v5, v6\nv_add_u32 v5, {CV_U + 496 - 448}, v5\nv_add_u32 v{VF}, s53, v5")
    a("v_lshlrev_b32 v8, 5, v4\nv_lshl_add_u32 v8, v3, 3, v8\nv_add_u32 v9, s53, v8")
    a("v_lshrrev_b32 v6, 3, v4\ns_mov_b32 s56, 163840\nv_mul_lo_u32 v6, v6, s56")
    a("v_and_b32 v7, 7, v4\nv_lshl_add_u32 v6, v7, 5, v6\nv_lshl_add_u32 v6, v3, 3, v6")
    a(f"v_lshlrev_b32 v{DSV}, 16, v{DSV}")
    a.srd(36, 4, WS_HT, SZ_T)
    a("s_lshl_b32 s55, s52, 8")
    a("s_waitcnt lgkmcnt(0)")
    a.stamp(3)
    a("s_barrier")
    a.stamp(4)
    if EXP & 512:
        a("s_setprio 2")

    def reads(s, c):
        o = []
        ex = 64 * (7 - c)
        for k in range(8):
            o.append(f"ds_read_b128 {q(FS[s]+4*k)}, v{VF} offset:{512*k + ex}")
            o.append(f"ds_read_b64 {q(AS[s]+4*k,2)}, v{VA} offset:{512*(7-k) + ex}")
            o.append(f"ds_read_b64 {q(AS[s]+4*k+2,2)}, v{VA} offset:{512*(7-k) + 8 + ex}")
        return o

    rd0 = reads(0, 0)
    for i, r in enumerate(rd0):
        a(r)
        if i == 11:
            a("s_waitcnt lgkmcnt(6)")
    fu, fx = [], []
    for nb in range(8):
        for hh in range(2):
            p = T1 + 4 * nb + 2 * hh
            src = T1 + 4 * nb + 2 + hh
            if hh == 0:
                fu += [f"v_lshlrev_b32 v{p}, 16, v{src}", f"v_and_b32 v{p+1}, 0xffff0000, v{src}"]
            else:
                fu += [f"v_lshlrev_b32 v{p}, 16, v{src}", f"v_and_b32 v{p+1}, 0xffff0000, v{src}"]
            fu += [f"v_pk_mul_f32 {q(p,2)}, {q(p,2)}, {q(DSV,2)} op_sel_hi:[1,0]",
                   f"v_cvt_pk_bf16_f32 v{p}, v{p}, v{p+1}",
                   f"v_and_b32 v{p+1}, 0xffff0000, v{p}", f"v_lshlrev_b32 v{p}, 16, v{p}"]
            p = XF + 4 * nb + 2 * hh
            src = XF + 4 * nb + 2 + hh
            fx += [f"v_lshlrev_b32 v{p}, 16, v{src}", f"v_and_b32 v{p+1}, 0xffff0000, v{src}"]
    fill = {c: fu[16 * (c - 1):16 * c] for c in range(1, 7)}
    fill[0] = [f"ds_read_b64 {q(T1+4*nb+2,2)}, v9 offset:{CV_U + 480 + 512*nb}" for nb in range(8)]
    fill[0] += [f"ds_read_b64 {q(XF+4*nb+2,2)}, v9 offset:{CV_X + 512*nb}" for nb in range(8)]
    fill[7] = fx
    for c in range(8):
        s = c & 1
        a("s_waitcnt lgkmcnt(0)")
        rd = reads(1 - s, c + 1) if c < 7 else []
        fl = list(fill[c])
        i = 0
        for aa in range(8):
            for m in range(8 - aa):
                cc = q(ACC + 4 * (aa + m)) if (c or aa) else "0"
                a(f"v_mfma_f32_16x16x32_bf16 {q(ACC+4*(aa+m))}, {q(AS[s]+4*aa)}, {q(FS[s]+4*m)}, {cc}")
                if i < len(rd) and rd[i]:
                    a(rd[i])
                    if i in (11, 19):
                        a("s_waitcnt lgkmcnt(8)")
                if (i >= 20 or c == 7) and fl:
                    a(fl.pop(0))
                i += 1
        assert not fl
    delay(a, "e")
    a.stamp(5)
    a("s_nop 4")
    for nb in range(8):
        y = ACC + 4 * nb
        o = 48 + 2 * nb
        for hh in range(2):
            t = y + 2 * hh
            a(f"v_cvt_pk_bf16_f32 v{t}, v{t}, v{t+1}")
            a.unpack(t, t)
            a(f"v_pk_add_f32 {q(t,2)}, {q(t,2)}, {q(T1+4*nb+2*hh,2)}")
            a(f"v_cvt_pk_bf16_f32 v{t}, v{t}, v{t+1}")
            a.unpack(t, t)
            a(f"v_pk_add_f32 {q(t,2)}, {q(t,2)}, {q(XF+4*nb+2*hh,2)}")
            a(f"v_cvt_pk_bf16_f32 v{o+hh}, v{t}, v{t+1}")
        a.vmem(f"buffer_store_dwordx2 {q(o,2)}, v6, s[36:39], s55 offen {SC}")
        a(f"s_add_u32 s55, s55, {2*163840}")
    a.stamp(6)
    a("s_waitcnt vmcnt(0)")
    last_of4_publish(a, LDS_CNT, F_C, 2, 120)


def conv_partner(a):
    DK = 80
    a(f"s_mul_i32 s53, s7, {CV_WAVE}")
    a(f"s_mul_i32 s55, s7, 3072\ns_add_u32 s55, s55, {PART_BASE}")
    a("v_lshlrev_b32 v7, 4, v1\nv_add_u32 v5, s55, v7")
    a("v_mov_b32 v20, 0\nv_mov_b32 v21, 0\nv_mov_b32 v22, 0\nv_mov_b32 v23, 0")
    a("v_add_u32 v9, s53, v7")
    a(f"v_lshrrev_b32 v16, 1, v1\nv_mul_u32_u24 v16, {CV_CS}, v16\nv_and_b32 v17, 1, v1\nv_lshl_add_u32 v16, v17, 4, v16\nv_add_u32 v16, s53, v16")
    for t in range(3):
        a(f"ds_write_b128 v5, {q(DK+4*t)} offset:{1024*t}")
    a.stamp(2)
    a.srd(32, 4, WS_XT, SZ_TP)
    a.srd(36, 4, WS_ST, 16384)
    a(f"s_lshl_b32 s54, s2, 8\ns_mul_i32 s61, s7, {16*T_BLK}\ns_add_u32 s54, s54, s61\ns_lshl_b32 s61, s7, 11\ns_add_u32 s62, s61, 8192")
    a(f"v_lshrrev_b32 v8, 2, v1\nv_mul_u32_u24 v8, {T_BLK}, v8\nv_and_b32 v14, 3, v1\nv_lshl_add_u32 v8, v14, 4, v8")
    a("v_lshlrev_b32 v14, 5, v1\ns_lshl_b32 s63, s7, 10\nv_add_u32 v15, s63, v7")
    a("s_waitcnt lgkmcnt(0)\ns_barrier")
    a("s_mov_b64 exec, 0x3fffffff")
    a(f"ds_write_b128 v9, v[20:23] offset:{CV_U}")
    a("s_mov_b64 exec, 0xff")
    a(f"ds_write_b128 v16, v[20:23] offset:{CV_A + 4096}")
    a("s_mov_b64 exec, -1")
    a(f"s_mul_i32 s60, s7, {16*FS_}")
    a.poll(F_L, 16, 24, "s60", fast=True)
    a.stamp(3)
    XR, NM, RI, U = 32, 48, 56, 64
    for k in range(2):
        a.vmem(f"buffer_load_dwordx4 {q(NM+4*k)}, v14, s[36:39], s61 offen offset:{16*k} {SC}", "st")
        a.vmem(f"buffer_load_dwordx4 {q(RI+4*k)}, v14, s[36:39], s62 offen offset:{16*k} {SC}", "st")
    for ch in range(4):
        a.vmem(f"buffer_load_dwordx4 {q(XR+4*ch)}, v8, s[32:35], s54 offen offset:{64*ch} {SC}", ("x", ch))
    for ch in range(4):
        a.wait_vm(("x", ch))
        for i in range(4):
            t = 80 + 2 * i
            a.unpack(t, XR + 4 * ch + i)
            a(f"v_pk_add_f32 {q(t,2)}, {q(t,2)}, {q(NM+2*i,2)}")
            a(f"v_cvt_pk_bf16_f32 v{t}, v{t}, v{t+1}")
            a.unpack(t, t)
            a(f"v_pk_mul_f32 {q(t,2)}, {q(t,2)}, {q(RI+2*i,2)}")
            a(f"v_cvt_pk_bf16_f32 v{U+4*ch+i}, v{t}, v{t+1}")
        if ch == 2:
            a(f"v_add_u32 v15, {2*CV_WAVE}, v15")
        a(f"ds_write_b128 v15, {q(U+4*ch)} offset:{CV_U + 480 + CV_WAVE*(ch&1)}")
        a(f"ds_write_b128 v15, {q(XR+4*ch)} offset:{CV_X + CV_WAVE*(ch&1)}")
    a("s_waitcnt lgkmcnt(0)")
    a.stamp(4)
    a("s_barrier")


G1_H = 5120
G1_HN = 5
G1_W = 87040
G1_WN = 3
G1_CONST = 0
G1_CS = 2048
G1_SP = 3072
G2_W = 5120
G2_SLOT = [0, 1, 2, 6, 3, 4, 5]
LDS_TOTAL = 163840


def tile_ids(a):
    a("s_and_b32 s12, s2, 7\ns_lshr_b32 s13, s2, 3\ns_and_b32 s14, s13, 7\ns_lshr_b32 s15, s13, 3")
    a("s_and_b32 s8, s12, 1\ns_lshl_b32 s8, s8, 3\ns_add_u32 s8, s8, s14")
    a("s_lshr_b32 s9, s12, 1\ns_lshl_b32 s10, s9, 3\ns_lshl_b32 s9, s9, 2\ns_add_u32 s9, s9, s15")
    a("s_add_u32 s10, s10, s14")
    a("s_and_b32 s11, s12, 1\ns_lshl_b32 s11, s11, 2\ns_add_u32 s11, s11, s15")
    a("v_bfe_u32 v5, v1, 2, 2")
    a("v_lshl_add_u32 v6, v3, 2, v5\nv_lshlrev_b32 v6, 8, v6")
    a("v_and_b32 v7, 3, v1\nv_lshl_add_u32 v6, v7, 3, v6")
    a("v_and_b32 v7, 1, v3\nv_lshl_add_u32 v5, v7, 2, v5")


def gemm_mfma_waves(a, done):
    tile_ids(a)
    if EXP & 16:
        sk = a.newlabel("L_nowarm")
        a(f"s_cmp_lt_u32 s2, 160\ns_cbranch_scc1 {sk}")
        a("s_sub_u32 s16, s13, 20\ns_lshl_b32 s16, s16, 2\ns_add_u32 s16, s16, s7\ns_mul_i32 s16, s16, 20480")
        a("v_lshlrev_b32 v8, 4, v1")
        for which in range(2):
            if which == 0:
                a(f"s_lshr_b32 s17, s12, 1\ns_mul_i32 s18, s17, {80*FS_}\ns_mul_i32 s17, s17, 983040")
                a.srd(32, 4, WS_W13, SZ_W13)
                a.poll(F_R, 80, 120, "s18")
            else:
                a("s_and_b32 s17, s12, 1\ns_mul_i32 s17, s17, 983040")
                a.srd(32, 4, WS_W2, SZ_W2)
                a.poll(F_R2, 32, 120)
            a("s_add_u32 s17, s17, s16")
            for i in range(20):
                a(f"buffer_load_dwordx4 {q(24+4*i)}, v8, s[32:35], s17 offen offset:{1024*(i%4)}")
                if i % 4 == 3:
                    a("s_add_u32 s17, s17, 4096")
        a("s_waitcnt vmcnt(0)")
        a.label(sk)
    a("s_barrier")
    if EXP & 1024:
        a("s_setprio 2")
    elif EXP & 512:
        a("s_setprio 0")
    a("s_and_b32 s16, s7, 1\ns_lshr_b32 s17, s7, 1")
    a("s_lshl_b32 s18, s16, 2\nv_xor_b32 v5, s18, v5")
    for nt in range(4):
        a(f"v_xor_b32 v7, {nt}, v5\nv_lshl_add_u32 v{12+nt}, v7, 5, v6")
    a("v_lshlrev_b32 v16, 4, v1\ns_mul_i32 s18, s17, 6144\nv_add_u32 v16, s18, v16")
    ACC, HS, AD = 24, [120, 160], 17
    for i in range(96):
        a(f"v_mov_b32 v{ACC+i}, 0")

    def reads(s, half):
        o = []
        for nt in range(4):
            r = HS[s] + 4 * nt
            o.append(f"ds_read_b64_tr_b16 {q(r,2)}, v{AD+nt} offset:{8192*half}")
            o.append(f"ds_read_b64_tr_b16 {q(r+2,2)}, v{AD+nt} offset:{8192*half + 4096}")
        for t in range(6):
            o.append(f"ds_read_b128 {q(HS[s]+16+4*t)}, v{AD+4} offset:{12288*half + 1024*t}")
        return o

    def setad(hs, ws):
        return [f"v_add_u32 v{AD+i}, {hs}, v{12+i}" for i in range(4)] + [f"v_add_u32 v{AD+4}, {ws}, v16"]

    for x in setad(G1_H, G1_W):
        a(x)
    a(f"s_mov_b32 s19, {G1_H}\ns_mov_b32 s20, {G1_W}\ns_mov_b32 s21, 0")
    a.srd(32, 4, WS_HM, SZ_HM)
    a.stamp(7)
    sk = a.newlabel("L_nopoll")
    a(f"s_cmp_lg_u32 s6, 0\ns_cbranch_scc1 {sk}")
    a.poll(F_R2, 32, 120)
    a.poll(F_C, 160, 120, fast=True)
    a(f"s_cmp_lg_u32 s2, 0\ns_cbranch_scc1 {sk}")
    a("v_mov_b32 v120, s3\nv_mov_b32 v121, 0\ns_mov_b64 exec, 1")
    a("buffer_store_dword v120, v121, s[92:95], 0 offen\ns_mov_b64 exec, -1")
    a.label(sk)
    a("s_barrier")
    a.stamp(8)
    a("s_waitcnt vmcnt(0)\ns_barrier")
    a.stamp(9)
    for x in reads(0, 0):
        a(x)
    a.label("L_g1")
    for s in range(2):
        if s == 0:
            a(f"s_add_u32 s19, s19, 16384\ns_cmp_eq_u32 s19, {G1_H + G1_HN*16384}\ns_cselect_b32 s19, {G1_H}, s19")
            a(f"s_add_u32 s20, s20, 24576\ns_cmp_eq_u32 s20, {G1_W + G1_WN*24576}\ns_cselect_b32 s20, {G1_W}, s20")
            a("s_waitcnt lgkmcnt(0)")
            rest = reads(1, 1) + setad("s19", "s20")
        else:
            a("s_waitcnt lgkmcnt(0)\ns_barrier")
            rest = reads(0, 0)
        i = 0
        for t in range(6):
            for nt in range(4):
                ac = ACC + 4 * (t * 4 + nt)
                a(f"v_mfma_f32_16x16x32_bf16 {q(ac)}, {q(HS[s]+16+4*t)}, {q(HS[s]+4*nt)}, {q(ac)}")
                if i < len(rest):
                    a(rest[i])
                i += 1
    a("s_add_u32 s21, s21, 1\ns_cmp_lt_u32 s21, 10\ns_cbranch_scc1 L_g1")
    a.stamp(10)
    a("s_lshl_b32 s18, s16, 10\nv_lshlrev_b32 v5, 4, v4\nv_add_u32 v5, s18, v5")
    a("s_mul_i32 s18, s17, 384\nv_lshlrev_b32 v6, 4, v3\nv_add_u32 v6, s18, v6")
    a("s_lshl_b32 s22, s8, 1\ns_add_u32 s22, s22, s16\ns_mul_i32 s22, s22, 48")
    a("s_mul_i32 s23, s9, 3\ns_add_u32 s22, s22, s23")
    a("s_lshl_b32 s23, s17, 1\ns_add_u32 s23, s23, s22\ns_lshl_b32 s23, s23, 12")
    a("s_add_u32 s22, s22, 1\ns_lshl_b32 s22, s22, 12\ns_lshl_b32 s18, s17, 9\ns_add_u32 s22, s22, s18")
    a("v_and_b32 v7, 1, v3\nv_lshlrev_b32 v7, 10, v7\nv_lshrrev_b32 v8, 1, v3\nv_lshl_add_u32 v7, v8, 8, v7\nv_lshl_add_u32 v7, v4, 4, v7")
    a("s_waitcnt lgkmcnt(0)\ns_barrier")
    KC, CSR = 184, 160
    for nt in range(4):
        a(f"ds_read_b128 {q(KC+4*nt)}, v5 offset:{G1_CONST + 256*nt}")
    for t in range(6):
        a(f"ds_read_b128 {q(CSR+4*t)}, v6 offset:{G1_CS + 64*t}")
    a("v_lshlrev_b32 v5, 4, v1")
    a("s_waitcnt lgkmcnt(0)")
    delay(a, "f")
    a.stamp(11)
    T = 120
    for nt in range(4):
        O = 144 + 4 * (nt & 1)
        k = KC + 4 * nt
        for jj in range(3):
            g = ACC + 4 * (jj * 4 + nt)
            u = ACC + 4 * ((3 + jj) * 4 + nt)
            for hh in range(2):
                g2, u2 = g + 2 * hh, u + 2 * hh
                a(f"v_pk_fma_f32 {q(g2,2)}, {q(CSR+4*jj+2*hh,2)}, {q(k,2)}, {q(g2,2)} op_sel_hi:[1,0,1]")
                a(f"v_pk_fma_f32 {q(u2,2)}, {q(CSR+4*(3+jj)+2*hh,2)}, {q(k,2)}, {q(u2,2)} op_sel_hi:[1,0,1]")
            for hh in range(2):
                a(f"v_pk_mul_f32 {q(T+2*hh,2)}, {q(g+2*hh,2)}, {q(k,2)} op_sel:[0,1] op_sel_hi:[1,1]")
            for i in range(4):
                a(f"v_exp_f32 v{T+i}, v{T+i}")
            for hh in range(2):
                a(f"v_pk_mul_f32 {q(g+2*hh,2)}, {q(g+2*hh,2)}, {q(u+2*hh,2)}")
            for hh in range(2):
                a(f"v_pk_fma_f32 {q(T+2*hh,2)}, {q(T+2*hh,2)}, {q(k+2,2)}, {q(k+2,2)} op_sel_hi:[1,0,0]")
            for i in range(4):
                a(f"v_rcp_f32 v{T+i}, v{T+i}")
            a("s_nop 0")
            for hh in range(2):
                a(f"v_pk_mul_f32 {q(g+2*hh,2)}, {q(g+2*hh,2)}, {q(T+2*hh,2)}")
            for hh in range(2):
                d = O + 2 * jj + hh if jj < 2 else 152 + 4 * (nt >> 1) + 2 * (nt & 1) + hh
                a(f"v_cvt_pk_bf16_f32 v{d}, v{g+2*hh}, v{g+2*hh+1}")
            if jj == 1:
                a(f"buffer_store_dwordx4 {q(O)}, v5, s[32:35], s23 offen offset:{1024*nt} {SC}")
        if nt & 1:
            S = 152 + 4 * (nt >> 1)
            a(f"s_nop 1\nv_permlane16_swap_b32 v{S}, v{S+2}\nv_permlane16_swap_b32 v{S+1}, v{S+3}")
            a(f"buffer_store_dwordx4 {q(S)}, v7, s[32:35], s22 offen offset:{1024*(nt-1)} {SC}")
    a.stamp(12)
    a.vm = []
    ACC, FS, RES, VW, VH, HR, PD = 16, [56, 76], 96, 116, 120, 144, 12
    a("s_lshl_b32 s22, s16, 1\ns_add_u32 s22, s22, s17")
    a("s_lshr_b32 s18, s10, 1\ns_mul_i32 s18, s18, 163840\ns_mul_i32 s19, s11, 20480\ns_add_u32 s18, s18, s19")
    a("s_and_b32 s19, s10, 1\ns_lshl_b32 s19, s19, 7\ns_add_u32 s18, s18, s19\ns_lshl_b32 s19, s22, 5\ns_add_u32 s18, s18, s19")
    a("v_lshlrev_b32 v10, 1, v4\nv_lshl_add_u32 v11, v3, 10, v10\nv_lshl_add_u32 v10, v3, 11, v10")
    a("s_add_u32 s19, s18, 8192\ns_add_u32 s20, s18, 16384")
    a.srd(36, 4, WS_HT, SZ_T)
    a.srd(40, 30, 0, SZ_T)
    a("s_lshl_b32 s21, s8, 4\ns_add_u32 s21, s21, s9")
    a("s_waitcnt vmcnt(0)")
    last_of4_publish(a, LDS_CNT2, F_G, 21, 140)
    a.stamp(13)
    for p in range(2):
        for e in range(8):
            a.vmem(f"buffer_load_ushort v{RES+8*p+e}, v10, s[36:39], s{18+p} offen offset:{256*e} {SC}", "res")
    for e in range(4):
        a.vmem(f"buffer_load_ushort v{RES+16+e}, v11, s[36:39], s20 offen offset:{256*e} {SC}", "res")
    for i in range(40):
        a(f"v_mov_b32 v{ACC+i}, 0")
    a(f"s_lshl_b32 s19, s17, 12\ns_lshl_b32 s21, s22, 10\ns_add_u32 s19, s19, s21\nv_add_u32 v{VH}, s19, v5\nv_xor_b32 v{VH+1}, 1024, v{VH}")
    a(f"s_mul_i32 s19, s17, 5120\nv_add_u32 v{VW}, s19, v5\nv_add_u32 v{VW+1}, 61440, v{VW}\nv_add_u32 v{VW+2}, 122880, v{VW}")
    a("s_lshl_b32 s18, s10, 6\ns_lshl_b32 s19, s22, 4\ns_add_u32 s18, s18, s19\ns_mul_i32 s18, s18, 1280\ns_mul_i32 s19, s11, 160\ns_add_u32 s18, s18, s19")
    a("v_mul_u32_u24 v10, 1280, v4\nv_lshl_add_u32 v11, v3, 3, v10\nv_lshl_add_u32 v10, v3, 4, v10")
    a(f"s_mul_i32 s19, s7, 5120\ns_add_u32 s19, s19, {G2_W + 4*20480}\nv_add_u32 v6, s19, v5")
    a(f"s_xor_b32 s19, s7, 2\ns_mul_i32 s19, s19, 5120\ns_add_u32 s19, s19, {G2_W + 4*20480}\nv_add_u32 v7, s19, v5")
    a(f"s_mul_i32 s23, s10, {48*4096}")
    sk = a.newlabel("L_nopub")
    a(f"s_cmp_lg_u32 s6, 0\ns_cbranch_scc1 {sk}")
    a(f"s_lshr_b32 s21, s10, 1\ns_mul_i32 s21, s21, {16*FS_}")
    vm_save = list(a.vm)
    a.poll(F_G, 16, 140, "s21", fast=True)
    a.vm = vm_save
    a.label(sk)
    a("s_barrier")

    def hload(n):
        return [("v", f"buffer_load_dwordx4 {q(HR + 8*(n % PD) + 4*j)}, v{VH+j}, s[32:35], s23 offen {SC}", ("hm", n)) for j in range(2)] + [("a", "s_add_u32 s23, s23, 8192", None)]

    def wreads(n, s):
        st, kk = divmod(n, 2)
        off = G2_W + G2_SLOT[st % 7] * 20480 + kk * 10240
        return [("a", f"ds_read_b128 {q(FS[s]+4*t)}, v{VW + off // 61440} offset:{off % 61440 + 1024*t}", None) for t in range(5)]

    def put(x):
        if x[0] == "v":
            a.vmem(x[1], x[2])
        else:
            a(x[1])

    for x in wreads(0, 0):
        put(x)
    nxt = PD0
    for n in range(PD0):
        for x in hload(n):
            put(x)
    for n in range(24):
        s = n & 1
        a.wait_vm(("hm", n))
        if n == 0:
            a.stamp(14)
        a("s_waitcnt lgkmcnt(0)")
        if n in (5, 9, 13, 19):
            a("s_barrier")
        ex = wreads(n + 1, 1 - s) if n < 23 else []
        for _ in range(3):
            if nxt < 24 and nxt <= n - 1 + PD:
                ex += hload(nxt)
                nxt += 1
        for t in range(5):
            for j in range(2):
                ac = ACC + 4 * (5 * j + t)
                a(f"v_mfma_f32_16x16x32_bf16 {q(ac)}, {q(FS[s]+4*t)}, {q(HR + 8*(n % PD) + 4*j)}, {q(ac)}")
                if ex:
                    put(ex.pop(0))
        for x in ex:
            put(x)
    a("s_nop 3")
    a("s_nop 5")
    for t in range(5):
        a(f"ds_write_b128 v6, {q(ACC+20+4*t)} offset:{1024*t}")
    a("s_waitcnt lgkmcnt(0)\ns_barrier")
    for t in range(5):
        a(f"ds_read_b128 {q(ACC+20+4*t)}, v7 offset:{1024*t}")
    delay(a, "g")
    a.wait_vm("res")
    for i in range(20):
        a(f"v_lshlrev_b32 v{RES+i}, 16, v{RES+i}")
    a("s_waitcnt lgkmcnt(0)")
    O = 56
    for i in range(10):
        y = ACC + 2 * i
        a(f"v_pk_add_f32 {q(y,2)}, {q(y,2)}, {q(y+20,2)}")
        a(f"v_cvt_pk_bf16_f32 v{y}, v{y}, v{y+1}")
        a.unpack(y, y)
        a(f"v_pk_add_f32 {q(y,2)}, {q(y,2)}, {q(RES+2*i,2)}")
        a(f"v_cvt_pk_bf16_f32 v{O+i}, v{y}, v{y+1}")
        if i == 3:
            a(f"buffer_store_dwordx4 {q(O)}, v10, s[40:43], s18 offen {SCO}")
        if i == 7:
            a(f"buffer_store_dwordx4 {q(O+4)}, v10, s[40:43], s18 offen offset:64 {SCO}")
    a(f"buffer_store_dwordx2 {q(O+8,2)}, v11, s[40:43], s18 offen offset:128 {SCO}")
    a(f"s_branch {done}")


def gemm_loader_waves(a, done):
    a.vm = []
    tile_ids(a)
    a("s_mul_i32 s22, s8, 163840\ns_add_u32 s23, s22, 163840")
    a(f"s_mul_i32 s24, s9, {20*12288}\ns_add_u32 s25, s24, {20*12288}")
    a("s_lshr_b32 s20, s9, 3\ns_mul_i32 s20, s20, 5")
    a("s_lshl_b32 s16, s20, 14\ns_add_u32 s16, s16, s22\ns_mul_i32 s17, s20, 24576\ns_add_u32 s17, s17, s24")
    a("s_lshl_b32 s18, s7, 12\ns_mul_i32 s19, s7, 6144")
    a("v_lshrrev_b32 v12, 1, v4\nv_xor_b32 v12, v12, v3\nv_lshlrev_b32 v12, 5, v12")
    a("v_and_b32 v7, 1, v4\nv_lshlrev_b32 v7, 4, v7\nv_lshl_add_u32 v7, v3, 8, v7\nv_add_u32 v7, s18, v7")
    a("v_add_u32 v8, v7, v12\nv_xor_b32 v12, 128, v12\nv_add_u32 v9, v7, v12")
    if EXP & 2048:
        a("v_lshlrev_b32 v8, 4, v1\nv_add_u32 v8, s18, v8\nv_mov_b32 v9, v8")
    a("v_lshlrev_b32 v10, 4, v1\nv_add_u32 v10, s19, v10\nv_add_u32 v11, 4096, v10")
    a.srd(32, 4, WS_HT, SZ_T)
    a.srd(36, 4, WS_W13, SZ_W13)
    a.srd(40, 4, WS_CSP, SZ_CSP)
    a(f"s_mul_i32 s20, s9, {20*FS_}")
    a.poll(F_R, 20, 20, "s20")
    a.stamp(5)

    def issue_w(st):
        slot = G1_W + (st % G1_WN) * 24576
        if EXP & 4096 and st > 2:
            a.vm.append(("w", st))
            return
        a(f"s_add_u32 m0, s19, {slot}\ns_nop 0")
        for i in range(4):
            a.vmem(f"buffer_load_dwordx4 v10, s[36:39], s17 offen offset:{1024*i} {SCL} lds", ("w", st))
        a(f"s_add_u32 m0, s19, {slot + 4096}\ns_nop 0")
        for i in range(2):
            a.vmem(f"buffer_load_dwordx4 v11, s[36:39], s17 offen offset:{1024*i} {SCL} lds", ("w", st))
        a("s_add_u32 s17, s17, 24576\ns_cmp_eq_u32 s17, s25\ns_cselect_b32 s17, s24, s17")

    def issue_h(st):
        slot = G1_H + (st % G1_HN) * 16384
        if EXP & 8192 and st > 0:
            a.vm.append(("h", st))
            return
        a(f"s_add_u32 m0, s18, {slot}\ns_nop 0")
        for i in range(4):
            a.vmem(f"buffer_load_dwordx4 v{8 + (i&1)}, s[32:35], s16 offen offset:{1024*i} {SCL} lds", ("h", st))
        a("s_add_u32 s16, s16, 16384\ns_cmp_eq_u32 s16, s23\ns_cselect_b32 s16, s22, s16")

    CS = 40
    a("v_and_b32 v13, 255, v0\nv_lshlrev_b32 v13, 2, v13\ns_mul_i32 s20, s9, 15360")
    for ks in range(20):
        if ks and ks % 5 == 0:
            a("s_add_u32 s20, s20, 3840")
        a.vmem(f"buffer_load_dword v{CS+ks}, v13, s[40:43], s20 offen offset:{768*(ks % 5)} {SC}", "cs")
    SA = 14
    a("s_and_b32 s20, s9, 7\nv_xor_b32 v5, s20, v5\nv_lshl_add_u32 v14, v5, 5, v6\nv_add_u32 v15, 49152, v14")
    ONE, SACC, SF = 20, 24, 32
    for i in range(4):
        a(f"v_mov_b32 v{ONE+i}, {hex(ONES_BF)}")
    for i in range(8):
        a(f"v_mov_b32 v{SACC+i}, 0")
    a.wait_vm("cs")
    for ks in range(1, 20):
        a(f"v_add_f32 v{CS}, v{CS}, v{CS+ks}")
    a("v_and_b32 v7, 3, v4\nv_cmp_eq_u32 s[52:53], 1, v7\nv_cmp_eq_u32 s[54:55], 2, v7\nv_cmp_eq_u32 s[56:57], 3, v7")
    a("v_lshrrev_b32 v7, 2, v4\nv_cmp_eq_u32 s[58:59], v7, v3")
    a(f"s_mul_i32 s60, s11, {48*5120}\ns_mul_i32 s62, s10, {48*4096}\ns_mul_i32 s28, s7, 5120")
    a(f"s_add_u32 s61, s60, {48*5120}\ns_add_u32 s63, s62, {48*4096}")
    a(f"s_mul_i32 s26, s15, {3*20480 if EXP & 2 else 0}\ns_add_u32 s26, s26, s60\ns_mul_i32 s27, s15, {3*16384 if EXP & 2 else 0}\ns_add_u32 s27, s27, s62")
    a("v_lshlrev_b32 v60, 4, v1\nv_add_u32 v61, s18, v60\nv_add_u32 v60, s28, v60\nv_add_u32 v62, 4096, v60")
    a.srd(40, 4, WS_W2, SZ_W2)
    a.srd(44, 4, WS_HM, SZ_HM)
    a.stamp(6)
    a("s_barrier")
    for st in range(G1_WN):
        issue_w(st)
    a.stamp(7)
    a("s_barrier")
    a(f"ds_write_b32 v13, v{CS} offset:{G1_CS}")
    a(f"v_mov_b32 v16, 0\nds_write_b32 v16, v16 offset:{LDS_CNT2}")
    issue_h(0); issue_h(1)
    a.wait_vm(("h", 0))
    a.stamp(8)
    a("s_barrier")
    issue_h(2); issue_h(3); issue_h(4)

    def issue_w2(st):
        slot = G2_W + G2_SLOT[st % 7] * 20480
        if EXP & 128 and st > 2:
            a.vm.append(("w2", st))
            return
        a(f"s_add_u32 m0, s28, {slot}\ns_nop 0")
        for i in range(4):
            a.vmem(f"buffer_load_dwordx4 v60, s[40:43], s26 offen offset:{1024*i} {SCL} lds", ("w2", st))
        a(f"s_add_u32 m0, s28, {slot + 4096}\ns_nop 0")
        a.vmem(f"buffer_load_dwordx4 v62, s[40:43], s26 offen {SCL} lds", ("w2", st))
        a("s_add_u32 s26, s26, 20480\ns_cmp_eq_u32 s26, s61\ns_cselect_b32 s26, s60, s26")

    a.srd(48, 4, WS_GR, 16 * 4096)
    a("s_and_b32 s20, s7, 1\ns_lshl_b32 s20, s20, 13\nv_add_u32 v14, s20, v14\nv_add_u32 v15, s20, v15")
    for s in range(10):
        slot = s % G1_HN
        dostat = s < 5
        if dostat:
            sk = a.newlabel("L_nost")
            a(f"s_lshr_b32 s20, s7, 1\ns_cmp_lg_u32 s20, {s & 1}\ns_cbranch_scc1 {sk}")
            off = G1_H + (slot % 3) * 16384
            a(f"ds_read_b64_tr_b16 {q(SF,2)}, v{SA + slot//3} offset:{off}")
            a(f"ds_read_b64_tr_b16 {q(SF+2,2)}, v{SA + slot//3} offset:{off + 4096}")
            a("s_waitcnt lgkmcnt(0)")
            a(f"v_mfma_f32_16x16x32_bf16 {q(SACC)}, {q(ONE)}, {q(SF)}, {q(SACC)}")
            a(f"v_mfma_f32_16x16x32_bf16 {q(SACC+4)}, {q(SF)}, {q(SF)}, {q(SACC+4)}")
            a.label(sk)
        if s == 8:
            a("s_lshl_b32 s20, s8, 12\ns_lshl_b32 s21, s7, 9\ns_add_u32 s20, s20, s21")
            a("v_and_b32 v7, 31, v1\nv_lshlrev_b32 v7, 4, v7\nv_lshrrev_b32 v36, 5, v1\nv_lshl_add_u32 v36, v36, 11, v7\nv_add_u32 v7, s21, v7\ns_mov_b32 s84, 0")
            L, D = a.newlabel("L_gp"), a.newlabel("L_gpd")
            a.label(L)
            a(f"buffer_load_dwordx4 {q(40)}, v36, s[48:51], s20 offen {SC}")
            a(f"s_add_u32 s84, s84, 1\ns_waitcnt vmcnt(0)\nv_cmp_ne_u32 vcc, s3, v42\ns_cbranch_vccz {D}")
            a(f"s_sleep 2\ns_cmp_lt_u32 s84, {POLL_MAX}\ns_cbranch_scc1 {L}")
            a.label(D)
            a("v_mov_b32 v44, v40\nv_mov_b32 v45, v41\ns_nop 1\nv_permlane32_swap_b32 v40, v44\nv_permlane32_swap_b32 v41, v45")
            a("v_add_f32 v40, v40, v44\nv_add_f32 v41, v41, v45")
            ln_finish(a, 40, 41, 42, 44, 45)
            a(f"v_mul_f32 v45, {hex(NLOG2E)}, v45\nv_mul_f32 v46, v42, v42\nv_mov_b32 v47, 0")
            a(f"ds_write_b128 v7, {q(44)} offset:{G1_CONST}")
        if s >= 1:
            if s + 2 < 10:
                issue_w(s + 2)
            if s in (7, 8):
                issue_w2(s - 7)
            elif s == 9:
                issue_w2(2); issue_w2(3)
            if s + 4 < 10:
                issue_h(s + 4)
        if s == 4:
            sq = SACC + 4
            a("s_nop 4")
            a(f"v_cndmask_b32 v{sq}, v{sq}, v{sq+1}, s[52:53]\nv_cndmask_b32 v{sq}, v{sq}, v{sq+2}, s[54:55]\nv_cndmask_b32 v{SACC+1}, v{sq}, v{sq+3}, s[56:57]")
            a(f"s_lshl_b32 s20, s7, 7\nv_lshlrev_b32 v7, 3, v4\nv_add_u32 v7, s20, v7\ns_mov_b64 exec, s[58:59]")
            a(f"ds_write_b64 v7, {q(SACC,2)} offset:{G1_SP}\ns_mov_b64 exec, -1\ns_waitcnt lgkmcnt(0)")
        if s == 5:
            sk = a.newlabel("L_nogr")
            a(f"s_cmp_lg_u32 s7, 3\ns_cbranch_scc1 {sk}")
            a("v_lshlrev_b32 v7, 3, v4")
            for w in range(4):
                a(f"ds_read_b64 {q(SF+2*w,2)}, v7 offset:{G1_SP + 128*w}")
            a("s_lshl_b32 s20, s8, 1\ns_lshr_b32 s21, s9, 3\ns_add_u32 s20, s20, s21\ns_lshl_b32 s20, s20, 3\ns_and_b32 s21, s9, 7\ns_add_u32 s20, s20, s21\ns_lshl_b32 s20, s20, 8")
            a(f"v_lshlrev_b32 v7, 4, v4\nv_mov_b32 v{SF+10}, s3\nv_mov_b32 v{SF+11}, s3\ns_waitcnt lgkmcnt(0)")
            a(f"v_pk_add_f32 {q(SF,2)}, {q(SF,2)}, {q(SF+2,2)}\nv_pk_add_f32 {q(SF+4,2)}, {q(SF+4,2)}, {q(SF+6,2)}\nv_pk_add_f32 {q(SF+8,2)}, {q(SF,2)}, {q(SF+4,2)}")
            a("s_mov_b64 exec, 0xffff")
            a(f"buffer_store_dwordx4 {q(SF+8)}, v7, s[48:51], s20 offen {SC}")
            a("s_mov_b64 exec, -1")
            a.label(sk)
        if s + 1 < 10:
            a.wait_vm(("h", s + 1))
            if s + 1 >= G1_WN:
                a.wait_vm(("w", s + 1))
        a("s_barrier")
    issue_w2(4); issue_w2(5); issue_w2(6)
    a("s_waitcnt lgkmcnt(0)")
    a.stamp(10)
    a("s_barrier")
    a.stamp(13)
    a("s_waitcnt vmcnt(0)\ns_barrier")
    a("s_barrier")
    issue_w2(7); issue_w2(8); issue_w2(9)
    a("s_barrier")
    issue_w2(10); issue_w2(11)
    a.wait_vm(("w2", 9))
    a("s_barrier\ns_waitcnt vmcnt(0)\ns_barrier")
    a("s_barrier")


def main():
    a = Asm()
    hdr = open(f"cdna_kernels/{NAME}.s.ref").read().split("\n")
    for line in hdr:
        if line.startswith("; Override") or line.startswith("; grid=") or "@launch" in line:
            continue
        if not line.startswith(";"):
            break
        a.raw(line)
    if STAMPS == 1:
        a.raw(f"; @launch kernel={KNAME} grid=(256,1,1) block=(512,1,1) lds={LDS_TOTAL}")
    else:
        a.raw(f"; @launch grid=(256,1,1) block=(512,1,1) lds={LDS_TOTAL}")
    a.raw('.amdgcn_target "amdgcn-amd-amdhsa--gfx950"\n.text')
    a.raw(f".globl {KNAME}\n.p2align 8\n.type {KNAME},@function\n{KNAME}:")
    done = "L_done"
    a("s_cmp_ge_u32 s2, 256\ns_cbranch_scc1 L_exit")
    if STAMPS:
        for i in range(16):
            a(f"s_mov_b32 s{64+i}, 0")
        a.stamp(0)
    a(f"s_load_dwordx2 s[4:5], s[0:1], {KA_WS}\ns_load_dwordx16 s[8:23], s[0:1], 0\ns_load_dwordx8 s[24:31], s[0:1], 64")
    a("v_and_b32 v1, 63, v0\nv_lshrrev_b32 v2, 6, v0\nv_lshrrev_b32 v3, 4, v1\nv_and_b32 v4, 15, v1")
    a("v_readfirstlane_b32 s6, v2")
    a("s_waitcnt lgkmcnt(0)")
    a("s_load_dword s3, s[4:5], 0")
    a("s_and_b32 s7, s6, 3")
    a.srd(92, 4, WS_FLG, SZ_FLG)
    a(f"v_mov_b32 v5, {LDS_CNT}\nv_mov_b32 v6, 0\nv_mov_b32 v7, 0\nv_mov_b32 v8, 0\nv_mov_b32 v9, 0\nds_write_b128 v5, v[6:9]")
    delay(a, "h")
    a("s_cmp_ge_u32 s2, 160\ns_cbranch_scc1 L_aux")
    a("s_lshl_b32 s52, s2, 2\ns_add_u32 s52, s52, s7")
    kgen(a)
    a("s_cmp_ge_u32 s6, 4\ns_cbranch_scc1 L_partner")
    conv_main(a)
    a("s_branch L_mfma")
    a.label("L_partner")
    conv_partner(a)
    a("s_branch L_loader")
    a.label("L_aux")
    a.vm = []
    a("s_cmp_ge_u32 s2, 224\ns_cbranch_scc1 L_aux_rp")
    a("s_sub_u32 s52, s2, 160")
    role_ln1(a)
    a("s_branch L_aux_go")
    a.label("L_aux_rp")
    a("s_sub_u32 s52, s2, 224")
    if not EXP & 256:
        a("s_cmp_lt_u32 s6, 6\ns_cbranch_scc1 L_aux_rp1")
        a("s_getpc_b64 s[54:55]")
        a.label("L_pc")
        a(f"s_sub_u32 s54, s54, L_pc-{KNAME}\ns_subb_u32 s55, s55, 0")
        a(f"v_lshlrev_b32 v5, 4, v1\ns_and_b32 s56, s6, 1\ns_mul_i32 s56, s56, {CODE_KB*512}\nv_add_u32 v5, s56, v5")
        for i in range(CODE_KB // 2):
            a(f"global_load_dwordx4 {q(16+4*i)}, v5, s[54:55] offset:{1024*(i%4)}")
            if i % 4 == 3:
                a("v_add_u32 v5, 4096, v5")
        if TLBW:
            a("v_lshlrev_b32 v5, 16, v1")
            a.srd(32, 4, 0, 0x1720000)
            for i in range(6):
                a(f"s_mov_b32 s56, {i << 22}")
                a(f"buffer_load_dword v{100+i}, v5, s[32:35], s56 offen {SC}")
            for k, (lo, sz) in enumerate([(24, 640*3072), (26, 640*3072), (28, 1536*1280), (30, SZ_T)]):
                a.srd(36, lo, 0, sz)
                a(f"buffer_load_dword v{106+k}, v5, s[36:39], 0 offen {SC}")
        a.label("L_aux_rp1")
    epoch_ready(a)
    a("s_cmp_ge_u32 s6, 6\ns_cbranch_scc1 L_aux_end")
    a("s_mul_i32 s53, s52, 6\ns_add_u32 s53, s53, s6")
    if W2LATE:
        a.poll(F_L, 64, 26)
    role_rp2(a)
    a.label("L_aux_end")
    a("s_waitcnt vmcnt(0)\ns_barrier")
    a("s_cmp_lg_u32 s6, 4\ns_cbranch_scc1 L_aux_go")
    delay(a, "d")
    a.publish(F_R2, 52, 10)
    a.label("L_aux_go")
    a.stamp(4)
    a("s_cmp_ge_u32 s6, 4\ns_cbranch_scc1 L_loader\ns_branch L_mfma")
    a.label("L_loader")
    gemm_loader_waves(a, done)
    a(f"s_branch {done}")
    a.label("L_mfma")
    gemm_mfma_waves(a, done)
    a.label(done)
    if STAMPS:
        a("s_waitcnt vmcnt(0)")
        a.stamp(15)
        if STAMPS == 2:
            a(f"s_cmp_lg_u32 s2, {int(os.environ.get('DBGWG', '0'))}\ns_cbranch_scc1 L_exit\ns_cmp_lg_u32 s6, {int(os.environ.get('DBGWV', '0'))}\ns_cbranch_scc1 L_exit")
            a("s_load_dwordx2 s[82:83], s[0:1], 96\ns_waitcnt lgkmcnt(0)")
            a.srd(88, 82, 0, 256)
            for i in range(15, -1, -1):
                a(f"s_sub_u32 s{64+i}, s{64+i}, s64")
            for i in range(16):
                a(f"v_mov_b32 v{4+i}, s{64+i}")
            a("v_mov_b32 v1, 0\ns_mov_b64 exec, 1")
            for i in range(4):
                a(f"buffer_store_dwordx4 {q(4+4*i)}, v1, s[88:91], 0 offen offset:{16*i}")
            a("s_branch L_exit")
        a.srd(88, 4, WS_STAMP, 262144)
        a("v_lshrrev_b32 v1, 6, v0\nv_lshlrev_b32 v1, 6, v1\ns_lshl_b32 s82, s2, 9\nv_add_u32 v1, s82, v1")
        for i in range(16):
            a(f"v_mov_b32 v{4+i}, s{64+i}")
        a("s_mov_b64 exec, 1")
        for i in range(4):
            a(f"buffer_store_dwordx4 {q(4+4*i)}, v1, s[88:91], 0 offen offset:{16*i}")
    a.label("L_exit")
    a("s_endpgm")
    a.raw(f".fill ({CODE_KB*1024} - (. - {KNAME})) / 4, 4, 0xbf800000")
    a.raw(f""".section .rodata,"a"
.p2align 6
.amdhsa_kernel {KNAME}
  .amdhsa_next_free_vgpr 244
  .amdhsa_next_free_sgpr 96
  .amdhsa_accum_offset 244
  .amdhsa_group_segment_fixed_size 0
  .amdhsa_kernarg_size 112
  .amdhsa_user_sgpr_count 2
  .amdhsa_user_sgpr_kernarg_segment_ptr 1
  .amdhsa_system_sgpr_workgroup_id_x 1
.end_amdhsa_kernel""")
    out = sys.argv[1] if len(sys.argv) > 1 else f"cdna_kernels/{NAME}.s"
    open(out, "w").write("\n".join(a.l) + "\n")


if __name__ == "__main__":
    main()
```

```python
import sys, os, struct

NAME = "sequential_preLN__ssm_conv_s4d__glu_gated_swiglu__prompt"
KNAME = NAME + "_kernel"
KA_WS = 104

WS_FLG = 0
FS_ = 128
F_L, F_X, F_R2, F_C, F_G, F_R = 0x1000, 0x3000, 0x5000, 0x8000, 0x10000, 0x18000
SZ_FLG = 0x30000
WS_UT = 0x100000
WS_XT = 0x400000
WS_HT = 0x700000
WS_HM = 0xA00000
WS_W13 = 0x1000000
WS_W2 = 0x1400000
WS_GR = 0x1710000
WS_ST = 0x1700000
WS_CSP = 0x1600000
WS_STAMP = 0x4000000
SZ_T = 640 * 4096
SZ_TP = SZ_T
T_BLK = 40960
SZ_HM = 32 * 48 * 4096
SZ_W13 = 16 * 20 * 12288
SZ_W2 = 8 * 48 * 5120
SZ_CSP = 320 * 768 + 1024

STAMPS = int(os.environ.get('STAMPS', '0'))
EXP = int(os.environ.get('EXP', '0'))
LOG2E, NLOG2E, INV2PI, INV640, EPS, ONES_BF = 0x3FB8AA3B, 0xBFB8AA3B, 0x3E22F983, 0x3ACCCCCD, 0x3727C5AC, 0x3F803F80
POLL_MAX = 400000
CODE_KB = 32
PD0 = int(os.environ.get('PD0', '3'))
W2WARM = int(os.environ.get('W2WARM', '0'))
G2MAP = int(os.environ.get('G2MAP', '0'))
W2LATE = int(os.environ.get('W2LATE', '0'))
TLBW = int(os.environ.get('TLBW', '0'))
PIPE = int(os.environ.get('PIPE', '2'))
PSLEEP = int(os.environ.get('PSLEEP', '3'))
SLEEP = int(os.environ.get('SLEEP', '1'))
SC = "sc1"
SCO = os.environ.get("SCO", "")
SCL = "" if EXP & 8 else "sc1"


def f32bits(x):
    return struct.unpack("<I", struct.pack("<f", x))[0]


def q(r, n=4):
    return f"v[{r}:{r+n-1}]"


class Asm:
    def __init__(self):
        self.l = []
        self.vm = []
        self.uid = 0

    def __call__(self, s):
        for x in s.split("\n"):
            x = x.strip()
            if x:
                self.l.append("    " + x)

    def label(self, s):
        self.l.append(s + ":")

    def raw(self, s):
        self.l.append(s)

    def newlabel(self, p="L"):
        self.uid += 1
        return f"{p}_{self.uid}"

    def vmem(self, s, tag=None):
        self(s)
        self.vm.append(tag)

    def wait_vm(self, tag):
        idx = max(i for i, t in enumerate(self.vm) if t == tag)
        n = len(self.vm) - 1 - idx
        assert n <= 63, n
        self(f"s_waitcnt vmcnt({n})")

    def srd(self, sd, lo, off, size):
        if off == 0:
            self(f"s_mov_b32 s{sd}, s{lo}\ns_mov_b32 s{sd+1}, s{lo+1}")
        else:
            self(f"s_add_u32 s{sd}, s{lo}, {hex(off)}\ns_addc_u32 s{sd+1}, s{lo+1}, 0")
        self(f"s_mov_b32 s{sd+2}, {size}\ns_mov_b32 s{sd+3}, 0x20000")

    def stamp(self, i):
        if STAMPS:
            self(f"s_memrealtime s[80:81]\ns_waitcnt lgkmcnt(0)\ns_mov_b32 s{64+i}, s80")

    def unpack(self, dlo, src):
        if dlo == src:
            self(f"v_and_b32 v{dlo+1}, 0xffff0000, v{src}\nv_lshlrev_b32 v{dlo}, 16, v{src}")
        else:
            self(f"v_lshlrev_b32 v{dlo}, 16, v{src}\nv_and_b32 v{dlo+1}, 0xffff0000, v{src}")

    def rnd(self, d, s):
        self(f"v_cvt_pk_bf16_f32 v{d}, v{s}, v{s}\nv_lshlrev_b32 v{d}, 16, v{d}")

    def poll(self, off, n, vt, soff=None, fast=False):
        L, D = self.newlabel("L_poll"), self.newlabel("L_polld")
        nl = (n + 63) // 64
        for i in range(nl):
            self(f"v_add_u32 v{vt+i}, {64*i}, v1\nv_min_u32 v{vt+i}, {n-1}, v{vt+i}\nv_mul_u32_u24 v{vt+i}, {FS_}, v{vt+i}")
        if soff is None:
            self(f"s_mov_b32 s86, {off}")
        else:
            self(f"s_add_u32 s86, {soff}, {off}")
        self("s_mov_b32 s84, 0")
        np_ = PIPE if fast else 1

        def ld(k):
            for i in range(nl):
                self(f"buffer_load_dword v{vt+nl*(1+k)+i}, v{vt+i}, s[92:95], s86 offen {SC}")

        def chk(k):
            b = vt + nl * (1 + k)
            for i in range(nl):
                self(f"v_xor_b32 v{b+i}, s3, v{b+i}")
            for i in range(1, nl):
                self(f"v_or_b32 v{b}, v{b}, v{b+i}")
            self(f"v_cmp_ne_u32 vcc, 0, v{b}\ns_cbranch_vccz {D}")

        for k in range(np_ - 1):
            ld(k)
            self(f"s_sleep {PSLEEP}")
        self.label(L)
        for k in range(np_):
            ld((k + np_ - 1) % np_)
            self(f"s_waitcnt vmcnt({nl*(np_-1)})")
            chk(k)
            self(f"s_sleep {PSLEEP if fast else SLEEP}")
        self(f"s_add_u32 s84, s84, 1\ns_cmp_lt_u32 s84, {POLL_MAX}\ns_cbranch_scc1 {L}")
        self.label(D)
        if np_ > 1:
            self.vm = [None] * (nl * (np_ - 1))
        else:
            self.vm = []

    def publish(self, off, sidx, vt):
        self(f"s_mul_i32 s85, s{sidx}, {FS_}\ns_add_u32 s85, s85, {off}\nv_mov_b32 v{vt}, s3\nv_mov_b32 v{vt+1}, s85\ns_mov_b64 exec, 1")
        self.vmem(f"buffer_store_dword v{vt}, v{vt+1}, s[92:95], 0 offen {SC}")
        self("s_mov_b64 exec, -1")


def ln_finish(a, vs, vq, vt, vnegm, vrinv):
    a(f"v_mul_f32 v{vs}, {hex(INV640)}, v{vs}")
    a(f"v_mul_f32 v{vq}, {hex(INV640)}, v{vq}")
    a(f"v_fma_f32 v{vq}, -v{vs}, v{vs}, v{vq}")
    a(f"v_max_f32 v{vq}, 0, v{vq}")
    a.rnd(vnegm, vs)
    a(f"v_xor_b32 v{vnegm}, 0x80000000, v{vnegm}")
    a.rnd(vt, vq)
    a(f"v_add_f32 v{vt}, {hex(EPS)}, v{vt}")
    a.rnd(vt, vt)
    a(f"v_sqrt_f32 v{vt}, v{vt}\ns_nop 0")
    a.rnd(vt, vt)
    a(f"v_rcp_f32 v{vrinv}, v{vt}\ns_nop 0")


def cmul(a, d, x, y, t):
    a(f"v_pk_mul_f32 {q(t,2)}, {q(x,2)}, {q(y,2)} op_sel_hi:[1,0]")
    a(f"v_pk_fma_f32 {q(d,2)}, {q(x,2)}, {q(y,2)}, {q(t,2)} op_sel:[1,1,0] op_sel_hi:[0,1,1] neg_lo:[1,0,0]")


DLY = os.environ.get("DLY", "")


def delay(a, tag):
    if tag in DLY:
        a("s_sleep 32")


def epoch_ready(a):
    a("s_waitcnt lgkmcnt(0)\ns_add_u32 s3, s3, 1")


LDS_CNT = 163824


LDS_CNT2 = 4096


def last_of4_publish(a, addr, off, sidx, vt):
    sk = a.newlabel("L_notlast")
    a(f"v_mov_b32 v{vt}, {addr}\nv_mov_b32 v{vt+1}, 1\ns_mov_b64 exec, 1")
    a(f"ds_add_rtn_u32 v{vt+1}, v{vt}, v{vt+1}\ns_mov_b64 exec, -1\ns_waitcnt lgkmcnt(0)")
    a(f"v_readfirstlane_b32 s85, v{vt+1}\ns_nop 3\ns_cmp_lg_u32 s85, 3\ns_cbranch_scc1 {sk}")
    a.publish(off, sidx, vt)
    a.label(sk)


LN_RS = 1312
LN_U = 32 * LN_RS


def role_ln1(a):
    a("v_lshl_add_u32 v5, v2, 2, v3")
    a(f"s_mul_i32 s53, s52, {32*1280}")
    a("v_mul_u32_u24 v6, 1280, v5\nv_lshl_add_u32 v6, v4, 4, v6\nv_add_u32 v6, s53, v6")
    a.srd(32, 8, 0, SZ_T)
    X = 16
    for j in range(5):
        a.vmem(f"buffer_load_dwordx4 {q(X+4*j)}, v6, s[32:35], 0 offen offset:{j*256}", ("x", j))
    a(f"v_mul_u32_u24 v7, {LN_RS}, v5\nv_lshl_add_u32 v7, v4, 4, v7")
    a(f"s_mov_b32 s54, {hex(ONES_BF)}")
    a.srd(36, 4, WS_ST, 16384)
    a.srd(40, 4, WS_XT, SZ_TP)
    a("v_bfe_u32 v8, v1, 2, 2\nv_lshl_add_u32 v8, v3, 3, v8")
    a(f"v_mul_u32_u24 v8, {LN_RS}, v8\nv_and_b32 v9, 3, v1\nv_lshl_add_u32 v8, v9, 3, v8")
    a("v_mul_u32_u24 v9, 160, v2\nv_add_u32 v8, v8, v9")
    a("v_mul_u32_u24 v9, 80, v2\nv_add_u32 v9, v9, v4\nv_lshlrev_b32 v9, 6, v9\nv_lshl_add_u32 v9, v3, 4, v9")
    a(f"s_mul_i32 s53, s52, {T_BLK}\ns_add_u32 s55, s53, 4096\ns_lshl_b32 s56, s52, 7")
    a(f"v_lshlrev_b32 v10, 2, v5\nv_and_b32 v11, 1, v4\nv_lshl_add_u32 v10, v11, 7, v10\nv_add_u32 v10, {LN_U}, v10")
    R = 56
    S0, S1, Q0, Q1, NM, RI, TT = 80, 81, 82, 83, 84, 85, 88
    a(f"v_mov_b32 v{S0}, 0\nv_mov_b32 v{S1}, 0\nv_mov_b32 v{Q0}, 0\nv_mov_b32 v{Q1}, 0\nv_cmp_eq_u32 s[58:59], 1, v11")
    epoch_ready(a)
    for j in range(5):
        a.wait_vm(("x", j))
        if j == 0:
            a.stamp(1)
        a(f"ds_write_b128 v7, {q(X+4*j)} offset:{j*256}")
        for i in range(4 * j, 4 * j + 4):
            a(f"v_dot2c_f32_bf16 v{S0 + (i&1)}, s54, v{X+i}")
            a(f"v_dot2c_f32_bf16 v{Q0 + (i&1)}, v{X+i}, v{X+i}")
    a("s_waitcnt lgkmcnt(0)\ns_barrier")
    a.stamp(2)
    for i in range(5):
        a(f"ds_read_b64_tr_b16 {q(R+4*i,2)}, v8 offset:{32*i}")
        a(f"ds_read_b64_tr_b16 {q(R+4*i+2,2)}, v8 offset:{32*i + 4*LN_RS}")
    a(f"v_add_f32 v{S0}, v{S0}, v{S1}\nv_add_f32 v{Q0}, v{Q0}, v{Q1}")
    for i in range(5):
        a(f"s_waitcnt lgkmcnt({8-2*i})")
        a.vmem(f"buffer_store_dwordx4 {q(R+4*i)}, v9, s[40:43], {'s53' if i < 4 else 's55'} offen offset:{1024*(i%4)} {SC}")
    for sh in (8, 4, 2, 1):
        a(f"v_add_f32_dpp v{S0}, v{S0}, v{S0} row_ror:{sh} row_mask:0xf bank_mask:0xf")
        a(f"v_add_f32_dpp v{Q0}, v{Q0}, v{Q0} row_ror:{sh} row_mask:0xf bank_mask:0xf")
        a("s_nop 0")
    ln_finish(a, S0, Q0, TT, NM, RI)
    a(f"v_cndmask_b32 v{NM}, v{NM}, v{RI}, s[58:59]")
    a(f"ds_write_b32 v10, v{NM}")
    a("s_waitcnt lgkmcnt(0)\ns_barrier")
    sk = a.newlabel("L_lnst")
    a(f"s_cmp_lg_u32 s6, 7\ns_cbranch_scc1 {sk}")
    a(f"v_lshlrev_b32 v10, 2, v1\nv_add_u32 v11, {LN_U}, v10\nds_read_b32 v12, v11")
    a("v_lshrrev_b32 v11, 5, v1\nv_mul_u32_u24 v11, 8064, v11\nv_add_u32 v10, v10, v11\ns_waitcnt lgkmcnt(0)")
    a.vmem(f"buffer_store_dword v12, v10, s[36:39], s56 offen {SC}")
    a.label(sk)
    a("s_waitcnt vmcnt(0)\ns_barrier")
    a.stamp(3)
    sk = a.newlabel("L_lnp")
    a(f"s_cmp_lg_u32 s6, 7\ns_cbranch_scc1 {sk}")
    delay(a, "b")
    a.publish(F_L, 52, 10)
    a.label(sk)
    sk = a.newlabel("L_lnrp")
    a(f"s_cmp_ge_u32 s6, 5\ns_cbranch_scc1 {sk}")
    a(f"s_mul_i32 s55, s52, 5\ns_add_u32 s55, s55, s6\ns_mul_i32 s56, s6, 12288\ns_add_u32 s56, s56, 49152")
    rp13_issue(a)
    a("s_waitcnt vmcnt(0)")
    rp13_finish(a)
    a("s_waitcnt vmcnt(0)")
    delay(a, "c")
    a.publish(F_R, 55, 10)
    a.label(sk)


W13_J = [[0, 1, 2], [4, 5, 3]]


RP_BASE = 2 * LN_U


def rp13_issue(a):
    a("s_mul_i32 s57, s55, 205\ns_lshr_b32 s57, s57, 12")
    a("s_mul_i32 s58, s57, 20\ns_sub_u32 s58, s55, s58")
    a.srd(44, 24, 0, 640 * 3072)
    a.srd(48, 26, 0, 640 * 3072)
    a(f"s_mul_i32 s57, s57, 192\ns_mul_i32 s58, s58, {32*3072}\ns_add_u32 s57, s57, s58")
    for i in range(6):
        a(f"v_add_u32 v10, {64*i}, v1\nv_mul_u32_u24 v11, 43691, v10\nv_lshrrev_b32 v11, 19, v11")
        a(f"v_mul_u32_u24 v12, 12, v11\nv_sub_u32 v12, v10, v12\nv_mul_u32_u24 v11, 3072, v11\nv_lshl_add_u32 v13, v12, 4, v11")
        for mat in range(2):
            a(f"s_add_u32 m0, s56, {mat*6144 + i*1024}\ns_nop 0")
            a(f"buffer_load_dwordx4 v13, s[{44+4*mat}:{47+4*mat}], s57 offen lds")


def rp13_finish(a):
    a("v_lshlrev_b32 v5, 4, v1")
    a("v_bfe_u32 v6, v1, 2, 2\nv_lshl_add_u32 v6, v3, 2, v6\nv_and_b32 v7, 3, v1")
    a("v_mul_u32_u24 v16, 192, v6\nv_lshl_add_u32 v16, v7, 3, v16\nv_add_u32 v16, s56, v16")
    OH, ACC, F = 32, 80, 84
    for t in range(12):
        wn, mat, jj = t // 6, (t % 6) // 3, t % 3
        off = mat * 6144 + 32 * W13_J[wn][jj]
        a(f"ds_read_b64_tr_b16 {q(F+4*t,2)}, v16 offset:{off}")
        a(f"ds_read_b64_tr_b16 {q(F+4*t+2,2)}, v16 offset:{off + 16*192}")
    a.srd(40, 4, WS_W13, SZ_W13)
    a.srd(44, 4, WS_CSP, SZ_CSP)
    a("s_mul_i32 s57, s55, 12288\ns_add_u32 s58, s57, 4096\ns_add_u32 s59, s57, 8192")
    a("s_waitcnt lgkmcnt(0)")
    for t in range(12):
        a(f"buffer_store_dwordx4 {q(F+4*t)}, v5, s[40:43], s{57 + t//4} offen offset:{1024*(t%4)} {SC}")
    a(f"v_mov_b32 v8, {hex(ONES_BF)}")
    a("v_lshlrev_b32 v9, 6, v4\nv_lshl_add_u32 v9, v3, 4, v9\ns_mul_i32 s60, s55, 768")
    for t in range(12):
        a(f"v_cmp_eq_u32 vcc, {t}, v4\ns_nop 1")
        for i in range(4):
            a(f"v_cndmask_b32 v{OH+4*t+i}, 0, v8, vcc")
    a("s_nop 1")
    for t in range(12):
        a(f"v_mfma_f32_16x16x32_bf16 {q(ACC)}, {q(F+4*t)}, {q(OH+4*t)}, {q(ACC) if t else 0}")
    a("s_nop 7\nv_cmp_gt_u32 vcc, 12, v4\ns_and_saveexec_b64 s[82:83], vcc")
    a(f"buffer_store_dwordx4 {q(ACC)}, v9, s[44:47], s60 offen {SC}")
    a(f"s_mov_b64 exec, s[82:83]")


def role_rp2(a):
    a.vm = []
    a("s_mul_i32 s54, s6, 12288")
    a("v_lshlrev_b32 v5, 4, v1")
    a("v_bfe_u32 v6, v1, 2, 2\nv_lshl_add_u32 v6, v3, 2, v6\nv_and_b32 v7, 3, v1")
    a("s_mul_i32 s55, s53, 171\ns_lshr_b32 s55, s55, 12")
    a("s_mul_i32 s56, s55, 24\ns_sub_u32 s56, s53, s56")
    a.srd(32, 28, 0, 1536 * 1280)
    a(f"s_mul_i32 s57, s55, 160\ns_mul_i32 s58, s56, {64*1280}\ns_add_u32 s57, s57, s58\ns_add_u32 s58, s57, {32*1280}")
    for i in range(5):
        a(f"v_add_u32 v8, {64*i}, v1\nv_mul_u32_u24 v9, 52429, v8\nv_lshrrev_b32 v9, 19, v9")
        a(f"v_mul_u32_u24 v16, 10, v9\nv_sub_u32 v16, v8, v16\nv_mul_u32_u24 v9, 1280, v9\nv_lshl_add_u32 v{10+i}, v16, 4, v9")
        for un in range(2):
            a(f"s_add_u32 m0, s54, {un*5120 + i*1024}\ns_nop 0")
            a.vmem(f"buffer_load_dwordx4 v{10+i}, s[32:35], s{57+un} offen lds", "w")
    a.srd(40, 4, WS_W2, SZ_W2)
    a("s_mul_i32 s60, s56, 171\ns_lshr_b32 s60, s60, 9\ns_mul_i32 s60, s60, 3\ns_sub_u32 s60, s56, s60")
    for un in range(2):
        a(f"s_cmp_eq_u32 s60, {2 if un == 0 else 0}\ns_cselect_b32 s61, 640, 0\ns_mul_i32 s62, s61, 3\ns_sub_u32 s62, 2560, s62")
        a(f"v_mul_u32_u24 v16, 160, v6\nv_mul_u32_u24 v8, s61, v3\nv_add3_u32 v16, v16, v8, s54")
        b = 18 + 4 * un
        a(f"v_lshl_add_u32 v{b}, v7, 4, v16\nv_lshl_add_u32 v{b+1}, v7, 3, v16\nv_add_u32 v{b+2}, s62, v{b}\nv_add_u32 v{b+3}, s62, v{b+1}")
    a("s_mul_i32 s57, s53, 10240\ns_add_u32 s58, s57, 4096\ns_add_u32 s59, s57, 8192")
    if W2LATE:
        a("s_waitcnt vmcnt(0)")
    else:
        a.poll(F_L, 64, 26)
    F = 32
    for k in range(10):
        un, t = divmod(k, 5)
        b = 18 + 4 * un + (0 if t < 4 else 1)
        off = un * 5120 + ((t >> 1) * 64 + (t & 1) * 8 if t < 4 else 128)
        a(f"ds_read_b64_tr_b16 {q(F+4*k,2)}, v{b} offset:{off}")
        a(f"ds_read_b64_tr_b16 {q(F+4*k+2,2)}, v{b+2} offset:{off}")
    a("s_waitcnt lgkmcnt(0)")
    for k in range(10):
        a.vmem(f"buffer_store_dwordx4 {q(F+4*k)}, v5, s[40:43], s{57 + k//4} offen offset:{1024*(k%4)} {SC}")


TB_RS = 272
TB_SZ = 57 * TB_RS
CV_CS = 1344
CV_A = 0
CV_D2 = 4 * CV_CS
CV_D3 = CV_D2 + 2048
CV_U = CV_D3 + 1280
CV_X = CV_U + 4608
CV_W3 = CV_X + 4096
CV_W5 = CV_W3 + 3104
CV_W7 = CV_W5 + 3104
CV_W9 = CV_W7 + 2080
CV_WAVE = CV_W9 + 2080
KP_BASE = 126976
PART_BASE = 145408
RP_LDS = [101632, 113920]


def kgen(a):
    a.vm = []
    a(f"s_mul_i32 s53, s6, {TB_SZ}")
    a("s_lshr_b32 s54, s6, 2")
    a("s_mul_i32 s55, s52, 384\ns_lshl_b32 s56, s54, 7\ns_add_u32 s55, s55, s56\nv_lshlrev_b32 v5, 1, v1")
    a("s_lshl_b32 s56, s52, 1\nv_mov_b32 v6, 0")
    PR, DT = 8, 92
    PR2 = 96
    a.srd(48, 18, 0, 1280)
    a.vmem(f"buffer_load_ushort v{DT}, v6, s[48:51], s56 offen", "par")
    for i in range(4):
        a.srd(32 + 4 * i, 10 + 2 * i, 0, 640 * 192 * 2)
        a.vmem(f"buffer_load_ushort v{PR+i}, v5, s[{32+4*i}:{35+4*i}], s55 offen", "par")
    for i in range(4):
        a.vmem(f"buffer_load_ushort v{PR2+i}, v5, s[{32+4*i}:{35+4*i}], s55 offen offset:256", "par2")
    a.srd(48, 20, 0, 1280)
    a.vmem("buffer_load_ushort v240, v6, s[48:51], s56 offen", "par2")
    VW, VR, DK = 6, 7, 80
    a(f"v_lshlrev_b32 v{VW}, 2, v1\nv_add_u32 v{VW}, s53, v{VW}")
    a(f"v_mul_u32_u24 v{VR}, {TB_RS}, v4\nv_lshl_add_u32 v{VR}, v3, 4, v{VR}\nv_add_u32 v{VR}, s53, v{VR}")
    for i in range(12):
        a(f"v_mov_b32 v{DK+i}, 0")
    a("s_cmp_ge_u32 s6, 4\ns_cbranch_scc1 L_kg_nopre")
    conv_main_pre(a)
    a.label("L_kg_nopre")
    epoch_ready(a)
    a.wait_vm("par")
    a.stamp(1)
    a(f"v_lshlrev_b32 v{DT}, 16, v{DT}\nv_mul_f32 v{DT}, {hex(LOG2E)}, v{DT}\nv_exp_f32 v{DT}, v{DT}\ns_nop 0")
    a.rnd(DT, DT)
    a.label("L_kgen")
    A2, W, Z8, Y, GC, T0, T1, T2, XT = 16, 17, 18, 20, 22, 24, 26, 28, 30
    E = [None] + [32 + 2 * i for i in range(7)]
    G1 = 46
    PK = [48, 49, 50, 51]
    pkc = [0]

    def put(row, re, im):
        r = PK[pkc[0] % 4]
        pkc[0] += 1
        a(f"v_cvt_pk_bf16_f32 v{r}, {re}, {im}")
        a(f"ds_write_b32 v{VW}, v{r} offset:{row*TB_RS}")

    def putp(row, p):
        put(row, f"v{p}", f"v{p+1}")

    a(f"v_lshlrev_b32 v{PR}, 16, v{PR}\nv_mul_f32 v{A2}, {hex(LOG2E)}, v{PR}\nv_exp_f32 v{A2}, v{A2}")
    for i in range(1, 4):
        a(f"v_lshlrev_b32 v{PR+i}, 16, v{PR+i}")
    a.rnd(A2, A2)
    a(f"v_mul_f32 v{W}, v{PR+1}, v{DT}")
    a(f"v_mul_f32 v{A2}, v{A2}, v{DT}")
    a(f"v_mul_f32 v{W}, {hex(INV2PI)}, v{W}")
    a(f"v_mul_f32 v{A2}, {hex(NLOG2E)}, v{A2}")
    a(f"v_rndne_f32 v{T0}, v{W}")
    a(f"v_mul_f32 v{Y}, v{PR+2}, v{DT}\nv_mul_f32 v{Y+1}, v{PR+3}, v{DT}")
    a(f"v_sub_f32 v{W}, v{W}, v{T0}")
    a(f"v_mul_f32 v{Y}, 2.0, v{Y}\nv_mul_f32 v{Y+1}, -2.0, v{Y+1}")

    def base(dst, mult, conj, T):
        m = {1: "1.0", 8: hex(0x41000000), 128: hex(0x43000000)}[mult]
        a(f"v_mul_f32 v{T}, {m}, v{A2}\nv_mul_f32 v{T+1}, {m}, v{W}")
        a(f"v_exp_f32 v{T}, v{T}\nv_cos_f32 v{dst}, v{T+1}\nv_sin_f32 v{dst+1}, v{T+1}\ns_nop 0")
        a(f"v_mul_f32 v{dst}, v{dst}, v{T}")
        a(f"v_mul_f32 v{dst+1}, {'-' if conj else ''}v{dst+1}, v{T}")

    base(E[1], 1, False, T0)
    base(Z8, 8, True, T1)
    base(G1, 128, False, T2)
    put(0, "1.0", "0")
    putp(1, E[1])
    putp(41, Y)
    cmul(a, E[2], E[1], E[1], T0)
    putp(8, G1)
    cmul(a, E[3], E[2], E[1], T0)
    cmul(a, E[4], E[2], E[2], T1)
    putp(2, E[2])
    cmul(a, E[5], E[4], E[1], T0)
    cmul(a, E[6], E[4], E[2], T1)
    cmul(a, E[7], E[4], E[3], T2)
    for e in range(3, 8):
        putp(e, E[e])
    ops = []
    for e in range(1, 8):
        ops.append(("x", 8 + e, G1, E[e]))
    for g in range(2, 17):
        ops.append(("g", g))
        if g in (2, 3):
            for i, e in enumerate((2, 4, 6)):
                ops.append(("x", 16 + (g - 2) * 4 + 1 + i, GC, E[e]))
        elif g < 8:
            ops.append(("x", 24 + (g - 4) * 2 + 1, GC, E[4]))
    yb = 1
    for k, op in enumerate(ops):
        if op[0] == "x":
            x = XT if (k & 1) else T2
            cmul(a, x, op[2], op[3], x)
            putp(op[1], x)
        else:
            g = op[1]
            cmul(a, GC, G1 if g == 2 else GC, G1, T1)
            row = 16 + (g - 2) * 4 if g < 4 else (24 + (g - 4) * 2 if g < 8 else 32 + (g - 8))
            putp(row, GC)
        if (k & 1) and yb < 16:
            cmul(a, Y, Y, Z8, T0)
            putp(41 + yb, Y)
            yb += 1
    assert yb == 16
    FR = 16
    a("s_waitcnt lgkmcnt(0)")
    for st in range(4):
        f = FR + 16 * st
        if st == 3:
            a("s_waitcnt lgkmcnt(8)")
        a(f"ds_read_b128 {q(f)}, v{VR} offset:{41*TB_RS + 64*st}")
        for t in range(3):
            a(f"ds_read_b128 {q(f+4+4*t)}, v{VR} offset:{16*t*TB_RS + 64*st}")
    a("s_waitcnt vmcnt(0)")
    for i in range(4):
        a(f"v_mov_b32 v{PR+i}, v{PR2+i}")
    for st in range(4):
        f = FR + 16 * st
        a(f"s_waitcnt lgkmcnt({12 - 4*st})")
        for t in range(3):
            a(f"v_mfma_f32_16x16x32_bf16 {q(DK+4*t)}, {q(f+4+4*t)}, {q(f)}, {q(DK+4*t)}")
    a("s_add_u32 s54, s54, 1\ns_cmp_lt_u32 s54, 2\ns_cbranch_scc1 L_kgen")
    a.vm = []


R_SC = 100
R_AD = 110
R_SP, R_ZH, R_GW, R_PT = 122, 123, 124, 125
R_DA, R_DL, R_DN, R_DD = 126, 127, 128, 129
VA, VF, VB2, VB3, VW2, VW3, VUX, VHO = 168, 169, 170, 171, 172, 173, 174, 175


def conv_main_pre(a):
    a(f"s_mul_i32 s57, s7, {CV_WAVE}\ns_mul_i32 s62, s7, 4224\ns_add_u32 s62, s62, {KP_BASE}")
    a(f"s_mul_i32 s63, s7, 3072\ns_add_u32 s63, s63, {PART_BASE}")
    a(f"v_lshlrev_b32 v140, 4, v1\nv_add_u32 v{R_PT}, s63, v140\nv_add_u32 v{R_GW}, s57, v140")
    a("v_lshlrev_b32 v141, 4, v4\nv_add_u32 v141, s62, v141")
    a("v_lshrrev_b32 v142, 1, v3\nv_and_b32 v143, 1, v3\nv_cmp_gt_u32 vcc, 2, v3")
    a(f"v_lshlrev_b32 v144, 8, v142\nv_lshl_add_u32 v144, v143, 3, v144\nv_add_u32 v{R_SC}, v144, v141")
    a("v_lshlrev_b32 v144, 8, v3\nv_add_u32 v144, 512, v144\nv_lshlrev_b32 v145, 9, v3")
    a(f"v_cndmask_b32 v144, v145, v144, vcc\nv_add_u32 v{R_SC+1}, v144, v141")
    for i in range(1, 4):
        a(f"v_mov_b32 v144, {4*i}\nv_mov_b32 v145, {256*(i>>1) + 8*(i&1)}")
        a(f"v_cndmask_b32 v144, v145, v144, vcc\nv_add_u32 v{R_SC+1+i}, v{R_SC+1}, v144")
    a("v_lshlrev_b32 v144, 10, v3\nv_lshl_add_u32 v144, v4, 4, v144\nv_add_u32 v144, 2048, v144\ns_movk_i32 s63, 4112")
    for i in range(4):
        r = R_SC + 5 + i
        a(f"v_add_u32 v{r}, {256*i}, v144\nv_min_u32 v{r}, s63, v{r}\nv_add_u32 v{r}, s62, v{r}")
    a("v_cmp_eq_u32 s[58:59], 63, v1")
    a(f"v_mul_u32_u24 v144, 43691, v1\nv_lshrrev_b32 v144, 19, v144\nv_mul_u32_u24 v144, {CV_CS - 192}, v144\nv_add_u32 v{R_ZH}, v144, v{R_GW}")
    a("v_add_u32 v144, 509, v3\nv_add_u32 v144, v144, v4\nv_add_u32 v145, 1015, v4\nv_cmp_lt_u32 vcc, 11, v4")
    a("s_movk_i32 s63, 517\nv_cmp_ge_u32 s[60:61], s63, v144\nv_cndmask_b32 v144, v144, v145, vcc")
    a("v_subrev_u32 v145, 12, v4\nv_cmp_gt_u32 s[82:83], 2, v145")
    a(f"v_mov_b32 v145, {128 + 1080}\nv_mov_b32 v146, 2104\nv_cndmask_b32 v145, v145, v146, vcc\ns_or_b64 s[60:61], s[60:61], s[82:83]")
    a(f"v_mul_u32_u24 v146, {CV_CS + 2}, v3\nv_add3_u32 v145, v145, v146, s57\nv_lshlrev_b32 v144, 1, v144\nv_sub_u32 v{R_SP}, v145, v144\nv_cvt_f32_u32 v144, v144")
    a("v_sub_u32 v145, 1022, v140\nv_cvt_f32_u32 v145, v145")
    for m in range(0, 12, 2):
        f0 = R_AD + m
        a(f"v_add_f32 v{f0}, {hex(f32bits(-2.0*m))}, v145")
        a(f"v_add_f32 v{f0+1}, {hex(f32bits(-2.0*(m+1)))}, v145" if m < 10 else f"v_mov_b32 v{f0+1}, v144")
        a(f"v_cvt_pk_bf16_f32 v{f0}, v{f0}, v{f0+1}")
        a.unpack(f0, f0)
        a(f"v_cvt_u32_f32 v{f0}, v{f0}\nv_cvt_u32_f32 v{f0+1}, v{f0+1}")
        a(f"v_add_u32 v{f0}, s62, v{f0}\nv_add_u32 v{f0+1}, s62, v{f0+1}")
    a("v_cmp_gt_u32 vcc, 32, v1\nv_cmp_le_u32 s[82:83], 42, v1\nv_subrev_u32 v144, 32, v1\nv_lshrrev_b32 v146, 3, v1")
    a("v_cndmask_b32 v145, 0, 1, s[82:83]\nv_cndmask_b32 v145, v145, v146, vcc")
    a("v_mul_u32_u24 v146, 10, v145\nv_sub_u32 v144, v144, v146\nv_and_b32 v146, 7, v1\nv_cndmask_b32 v144, v144, v146, vcc")
    a("v_mov_b32 v146, 127\nv_mov_b32 v147, 79\nv_cndmask_b32 v146, v146, v147, vcc\nv_lshlrev_b32 v147, 3, v144\nv_sub_u32 v146, v146, v147")
    a("v_add_u32 v147, 1, v145\nv_lshlrev_b32 v148, 4, v147\nv_lshlrev_b32 v147, 3, v147\nv_cndmask_b32 v147, v148, v147, vcc")
    a(f"v_lshl_add_u32 v147, v146, 5, v147\nv_add_u32 v147, s62, v147\nv_subrev_u32 v{R_DA}, 320, v147")
    a(f"v_cmp_gt_u32 s[82:83], 8, v1\nv_mov_b32 v147, 64\nv_cndmask_b32 v147, v147, 32, vcc")
    a(f"v_cndmask_b32 v{R_DN}, v147, 31, s[82:83]\nv_cndmask_b32 v147, v147, 33, s[82:83]\nv_sub_u32 v{R_DL}, v146, v147")
    a(f"v_mov_b32 v146, 160\nv_mov_b32 v147, 128\nv_cndmask_b32 v146, v146, v147, vcc\nv_mov_b32 v147, {CV_D3}\nv_mov_b32 v148, {CV_D2}\nv_cndmask_b32 v147, v147, v148, vcc")
    a(f"v_mul_u32_u24 v148, v146, v145\nv_lshl_add_u32 v147, v148, 2, v147\nv_lshl_add_u32 v147, v144, 4, v147\nv_add_u32 v{R_DD}, s57, v147")
    for k in range(1, 4):
        a(f"v_add_u32 v{R_DD+k}, v{R_DD+k-1}, v146")
    a("v_and_b32 v144, 3, v4\nv_lshrrev_b32 v145, 2, v4\nv_lshlrev_b32 v145, 3, v145\nv_lshlrev_b32 v146, 4, v3")
    a(f"v_mul_u32_u24 v{VA}, {CV_CS}, v144\nv_sub_u32 v{VA}, v{VA}, v145\nv_sub_u32 v{VA}, v{VA}, v146\nv_add_u32 v{VA}, {CV_A + 72}, v{VA}\nv_add_u32 v{VA}, s57, v{VA}")
    a(f"v_lshlrev_b32 v{VF}, 5, v4\nv_sub_u32 v{VF}, v{VF}, v146\nv_add_u32 v{VF}, {CV_U + 496 - 448}, v{VF}\nv_add_u32 v{VF}, s57, v{VF}")
    a("v_lshl_add_u32 v144, v142, 2, v144\nv_lshlrev_b32 v146, 3, v143\nv_sub_u32 v146, v146, v145\nv_add3_u32 v146, v146, 24, s57")
    a(f"v_lshl_add_u32 v{VB2}, v144, 7, v146\nv_add_u32 v{VB2}, {CV_D2}, v{VB2}\nv_mul_u32_u24 v{VB3}, 160, v144\nv_add_u32 v{VB3}, v{VB3}, v146\nv_add_u32 v{VB3}, {CV_D3}, v{VB3}")
    a("v_bfe_u32 v144, v1, 2, 2\nv_lshl_add_u32 v144, v143, 2, v144\nv_lshlrev_b32 v144, 5, v144\nv_and_b32 v145, 3, v1\nv_lshl_add_u32 v144, v145, 3, v144\nv_add_u32 v144, s57, v144")
    a(f"v_mul_u32_u24 v{VW2}, {CV_W5 - CV_W3 - 8}, v142\nv_add3_u32 v{VW2}, v{VW2}, v144, 8\nv_add_u32 v{VW2}, {CV_W3}, v{VW2}")
    a(f"v_mul_u32_u24 v{VW3}, {CV_W9 - CV_W7 - 16}, v142\nv_add3_u32 v{VW3}, v{VW3}, v144, 16\nv_add_u32 v{VW3}, {CV_W7}, v{VW3}")
    a(f"v_lshlrev_b32 v144, 5, v4\nv_lshl_add_u32 v144, v3, 3, v144\nv_add_u32 v{VUX}, s57, v144")
    for i in range(4):
        a(f"v_mov_b32 v{136+i}, 0")


def conv_main(a):
    DK = 80
    delay(a, "a")
    a.stamp(2)
    a("s_barrier")
    for t in range(3):
        a(f"ds_read_b128 {q(40+4*t)}, v{R_PT} offset:{1024*t}")
    a(f"s_mov_b32 s82, -1\ns_mov_b32 s83, 0xffff\ns_mov_b64 exec, s[82:83]\nds_write_b128 v{R_ZH}, v[136:139]\ns_mov_b64 exec, -1")
    a("s_waitcnt lgkmcnt(1)")
    for i in range(6):
        a(f"v_pk_add_f32 {q(DK+2*i,2)}, {q(DK+2*i,2)}, {q(40+2*i,2)}")
    for i in range(6):
        a(f"v_cvt_pk_bf16_f32 v{32+i}, v{DK+2*i}, v{DK+2*i+1}")
    a(f"ds_write_b64 v{R_SC}, v[32:33]")
    for i in range(4):
        a(f"ds_write_b16 v{R_SC+1+2*i}, v{34+i}\nds_write_b16_d16_hi v{R_SC+2+2*i}, v{34+i}")
    D, H, E = 16, 52, 64
    for m in range(6):
        a(f"ds_read_u16 v{D+m}, v{R_AD+2*m}")
        a(f"ds_read_u16 v{H+m}, v{R_AD+2*m+1}")
        if m == 1:
            a("s_waitcnt lgkmcnt(4)")
    for m in range(11):
        if m == 3:
            a("s_waitcnt lgkmcnt(3)")
        a(f"ds_read_u16 v{E+m}, v{R_DA} offset:{32*(10-m)}")
    a("s_mov_b64 exec, s[60:61]")
    a(f"ds_write_b16 v{R_SP}, v{H+5}")
    a("s_mov_b64 exec, -1")

    def windows(D, dst, C):
        C1, C2, C0 = C, C + 4, C + 8
        for m in range(4):
            a(f"v_mov_b32 v{C1+m}, v{D+1+m}")
            a(f"v_alignbit_b32 v{C2+m}, v{D+m+1}, v{D+m}, 16")
            a(f"v_alignbit_b32 v{C0+m}, v{D+m+2}, v{D+m+1}, 16")
        for k, c in enumerate((C0, C1, C2, D)):
            a(f"ds_write_b128 {dst(k)}".replace("DATA", q(c)))

    for m in range(5):
        a(f"v_lshl_or_b32 v{D+m}, v{H+m}, 16, v{D+m}")
    a(f"v_cndmask_b32 v{D+4}, v{D+4}, 0, s[58:59]\nv_cndmask_b32 v{D+5}, v{D+5}, 0, s[58:59]")
    windows(D, lambda k: f"v{R_GW}, DATA offset:{CV_A + k*CV_CS + 192}", 24)
    for m in range(11):
        a(f"v_subrev_u32 v{40+m}, {m}, v{R_DL}")
    a("s_waitcnt lgkmcnt(5)")
    for m in range(0, 11, 2):
        a(f"v_cmp_lt_u32 vcc, v{40+m}, v{R_DN}")
        if m < 10:
            a(f"v_cmp_lt_u32 s[82:83], v{41+m}, v{R_DN}")
        a(f"s_nop {0 if m < 10 else 1}\nv_cndmask_b32 v{E+m}, 0, v{E+m}, vcc")
        if m < 10:
            a(f"v_cndmask_b32 v{E+m+1}, 0, v{E+m+1}, s[82:83]")
    D2 = 76
    for m in range(5):
        a(f"v_lshl_or_b32 v{D2+m}, v{E+2*m+1}, 16, v{E+2*m}")
    a(f"v_mov_b32 v{D2+5}, v{E+10}")
    a("s_mov_b32 s82, -1\ns_mov_b32 s83, 0xfffff\ns_mov_b64 exec, s[82:83]")
    windows(D2, lambda k: f"v{R_DD+k}, DATA", 84)
    a("s_mov_b64 exec, -1")
    ACC = 16
    AS, FS, AX = [48, 88], [56, 96], 128
    T1, XF, DSV = 176, 208, 240
    a(f"v_lshlrev_b32 v{DSV}, 16, v{DSV}")
    a(f"v_lshrrev_b32 v144, 3, v4\ns_mov_b32 s63, 163840\nv_mul_lo_u32 v144, v144, s63")
    a(f"v_and_b32 v145, 7, v4\nv_lshl_add_u32 v144, v145, 5, v144\nv_lshl_add_u32 v{VHO}, v3, 3, v144")
    a.srd(36, 4, WS_HT, SZ_T)
    a("s_lshl_b32 s55, s52, 8")
    a("s_waitcnt lgkmcnt(0)")
    a.stamp(3)
    a("s_barrier")
    a.stamp(4)

    def rdA(r, qq):
        off = 1152 - 64 * qq if qq <= 16 else 0
        return [f"ds_read_b64 {q(r,2)}, v{VA} offset:{off}", f"ds_read_b64 {q(r+2,2)}, v{VA} offset:{off+8}"]

    def reads(s, c):
        o = rdA(AS[s], c)
        o += [f"ds_read_b128 {q(FS[s]+4*k)}, v{VF} offset:{512*k + 64*(7-c)}" for k in range(8)]
        return o + rdA(AS[s] + 4, 8 + c)

    def rd2(r, v, off, second):
        return [f"{'ds_read_b64_tr_b16' if second == 256 else 'ds_read_b64'} {q(r,2)}, v{v} offset:{off}",
                f"{'ds_read_b64_tr_b16' if second == 256 else 'ds_read_b64'} {q(r+2,2)}, v{v} offset:{off+second}"]

    def mf(nb, A, B, zero=False):
        return f"v_mfma_f32_16x16x32_bf16 {q(ACC+4*nb)}, {q(A)}, {q(B)}, {0 if zero else q(ACC+4*nb)}"

    def emit(mfs, extra):
        extra = list(extra)
        n = len(mfs)
        for i, m in enumerate(mfs):
            a(m)
            k = (len(extra) + (n - i) - 1) // (n - i)
            for _ in range(min(k, 3)):
                a(extra.pop(0))
        for x in extra:
            a(x)

    for i, r in enumerate(reads(0, 0) + rdA(AX, 16) + rdA(AX + 4, 32)):
        a(r)
        if i == 11:
            a("s_waitcnt lgkmcnt(6)")
    fu, fx = [], []
    for nb in range(8):
        for hh in range(2):
            p, src = T1 + 4 * nb + 2 * hh, T1 + 4 * nb + 2 + hh
            fu += [f"v_lshlrev_b32 v{p}, 16, v{src}", f"v_and_b32 v{p+1}, 0xffff0000, v{src}",
                   f"v_pk_mul_f32 {q(p,2)}, {q(p,2)}, {q(DSV,2)} op_sel_hi:[1,0]",
                   f"v_cvt_pk_bf16_f32 v{p}, v{p}, v{p+1}",
                   f"v_and_b32 v{p+1}, 0xffff0000, v{p}", f"v_lshlrev_b32 v{p}, 16, v{p}"]
            p, src = XF + 4 * nb + 2 * hh, XF + 4 * nb + 2 + hh
            fx += [f"v_lshlrev_b32 v{p}, 16, v{src}", f"v_and_b32 v{p+1}, 0xffff0000, v{src}"]
    ux = [f"ds_read_b64 {q(T1+4*nb+2,2)}, v{VUX} offset:{CV_U + 480 + 512*nb}" for nb in range(8)]
    ux += [f"ds_read_b64 {q(XF+4*nb+2,2)}, v{VUX} offset:{CV_X + 512*nb}" for nb in range(8)]
    B2 = {(p, d): 128 + 4 * (3 * p + d - 2) for p in range(2) for d in (2, 3, 4)}
    B3 = {d: 152 + 4 * (d - 4) for d in (4, 5, 6, 7)}
    WA = {g: 48 + 4 * g for g in range(6)}
    W3r = {g: 72 + 4 * g for g in range(4)}
    WB = {g: 88 + 4 * g for g in range(6)}
    far1 = []
    for d in (2, 3, 4):
        far1 += rd2(B2[0, d], VB2, 32 * (4 - d), 16)
    for g in range(6):
        far1 += rd2(WA[g], VW2, 512 * g + 16, 256)
    for d in (2, 3, 4):
        far1 += rd2(B2[1, d], VB2, 1024 + 32 * (4 - d), 16)
    far2 = []
    for g in range(6):
        far2 += rd2(WB[g], VW2, 512 * g, 256)
    far3 = []
    for g in range(4):
        far3 += rd2(W3r[g], VW3, 512 * g, 256) + rd2(B3[4 + g], VB3, 32 * (3 - g), 16)
    for c in range(8):
        s_ = c & 1
        a("s_waitcnt lgkmcnt(0)")
        mfs = [mf(m, AS[s_], FS[s_] + 4 * m, c == 0) for m in range(8)] + [mf(m + 1, AS[s_] + 4, FS[s_] + 4 * m) for m in range(7)]
        if c == 0:
            mfs += [mf(m + 2, AX, FS[0] + 4 * m) for m in range(6)] + [mf(m + 4, AX + 4, FS[0] + 4 * m) for m in range(4)]
            emit(mfs, reads(1, 1) + ["s_waitcnt lgkmcnt(4)"] + ux[:8] + ["s_waitcnt lgkmcnt(6)"] + ux[8:])
        elif c < 7:
            emit(mfs, reads(1 - s_, c + 1) + fu[16 * (c - 1):16 * c])
        else:
            a("s_barrier")
            emit(mfs, far1[:12] + ["s_waitcnt lgkmcnt(4)"] + far1[12:])
    a("s_waitcnt lgkmcnt(0)")
    emit([mf(g + d, WA[g], B2[0, d]) for d in (2, 3, 4) for g in range(8 - d) if g < 6], far2 + ["s_waitcnt lgkmcnt(2)"] + far3[:12])
    a("s_waitcnt lgkmcnt(12)")
    emit([mf(g + d, WB[g], B2[1, d]) for d in (2, 3, 4) for g in range(8 - d) if g < 6], far3[12:] + fx[:20])
    a("s_waitcnt lgkmcnt(0)")
    emit([mf(g + d, W3r[g], B3[d]) for d in (4, 5, 6, 7) for g in range(8 - d)], fx[20:])
    delay(a, "e")
    a.stamp(5)
    a("s_nop 4")
    for nb in range(8):
        y = ACC + 4 * nb
        o = 112 + 2 * nb
        for hh in range(2):
            t = y + 2 * hh
            a(f"v_cvt_pk_bf16_f32 v{t}, v{t}, v{t+1}")
            a.unpack(t, t)
            a(f"v_pk_add_f32 {q(t,2)}, {q(t,2)}, {q(T1+4*nb+2*hh,2)}")
            a(f"v_cvt_pk_bf16_f32 v{t}, v{t}, v{t+1}")
            a.unpack(t, t)
            a(f"v_pk_add_f32 {q(t,2)}, {q(t,2)}, {q(XF+4*nb+2*hh,2)}")
            a(f"v_cvt_pk_bf16_f32 v{o+hh}, v{t}, v{t+1}")
        a.vmem(f"buffer_store_dwordx2 {q(o,2)}, v{VHO}, s[36:39], s55 offen {SC}")
        a(f"s_add_u32 s55, s55, {2*163840}")
    a.stamp(6)
    a("s_waitcnt vmcnt(0)")
    last_of4_publish(a, LDS_CNT, F_C, 2, 120)


def conv_partner(a):
    DK = 80
    a(f"s_mul_i32 s53, s7, {CV_WAVE}")
    a(f"s_mul_i32 s55, s7, 3072\ns_add_u32 s55, s55, {PART_BASE}")
    a("v_lshlrev_b32 v7, 4, v1\nv_add_u32 v5, s55, v7")
    a("v_mov_b32 v20, 0\nv_mov_b32 v21, 0\nv_mov_b32 v22, 0\nv_mov_b32 v23, 0")
    a("v_add_u32 v9, s53, v7")
    a(f"v_lshrrev_b32 v16, 1, v1\nv_mul_u32_u24 v16, {CV_CS}, v16\nv_and_b32 v17, 1, v1\nv_lshl_add_u32 v16, v17, 4, v16\nv_add_u32 v16, {CV_A + 1216}, v16")
    for k, ad in enumerate([CV_W3, CV_W5, CV_W7, CV_W9, CV_W5 - 16, CV_W7 - 16, CV_W9 - 16, CV_WAVE - 16]):
        a(f"v_mov_b32 v17, {ad}\nv_cmp_eq_u32 vcc, {8+k}, v1\ns_nop 1\nv_cndmask_b32 v16, v16, v17, vcc")
    a("v_add_u32 v16, s53, v16")
    for t in range(3):
        a(f"ds_write_b128 v5, {q(DK+4*t)} offset:{1024*t}")
    a.stamp(2)
    a.srd(32, 4, WS_XT, SZ_TP)
    a.srd(36, 4, WS_ST, 16384)
    a(f"s_lshl_b32 s54, s2, 8\ns_mul_i32 s61, s7, {16*T_BLK}\ns_add_u32 s54, s54, s61\ns_lshl_b32 s61, s7, 11\ns_add_u32 s62, s61, 8192")
    a(f"v_lshrrev_b32 v8, 2, v1\nv_mul_u32_u24 v8, {T_BLK}, v8\nv_and_b32 v14, 3, v1\nv_lshl_add_u32 v8, v14, 4, v8")
    a("v_lshlrev_b32 v14, 5, v1\ns_lshl_b32 s63, s7, 10\nv_add_u32 v15, s63, v7")
    a("s_waitcnt lgkmcnt(0)\ns_barrier")
    a("s_mov_b64 exec, 0x3fffffff")
    a(f"ds_write_b128 v9, v[20:23] offset:{CV_U}")
    a("s_mov_b64 exec, 0xffff")
    a(f"ds_write_b128 v16, v[20:23]")
    a("s_mov_b64 exec, -1")
    a(f"s_mul_i32 s60, s7, {16*FS_}")
    a.poll(F_L, 16, 24, "s60", fast=True)
    a.stamp(3)
    XR, NM, RI, U = 32, 48, 56, 64
    for k in range(2):
        a.vmem(f"buffer_load_dwordx4 {q(NM+4*k)}, v14, s[36:39], s61 offen offset:{16*k} {SC}", "st")
        a.vmem(f"buffer_load_dwordx4 {q(RI+4*k)}, v14, s[36:39], s62 offen offset:{16*k} {SC}", "st")
    for ch in range(4):
        a.vmem(f"buffer_load_dwordx4 {q(XR+4*ch)}, v8, s[32:35], s54 offen offset:{64*ch} {SC}", ("x", ch))
    for ch in range(4):
        a.wait_vm(("x", ch))
        for i in range(4):
            t = 80 + 2 * i
            a.unpack(t, XR + 4 * ch + i)
            a(f"v_pk_add_f32 {q(t,2)}, {q(t,2)}, {q(NM+2*i,2)}")
            a(f"v_cvt_pk_bf16_f32 v{t}, v{t}, v{t+1}")
            a.unpack(t, t)
            a(f"v_pk_mul_f32 {q(t,2)}, {q(t,2)}, {q(RI+2*i,2)}")
            a(f"v_cvt_pk_bf16_f32 v{U+4*ch+i}, v{t}, v{t+1}")
        if ch == 2:
            a(f"v_add_u32 v15, {2*CV_WAVE}, v15")
        a(f"ds_write_b128 v15, {q(U+4*ch)} offset:{CV_U + 480 + CV_WAVE*(ch&1)}")
        a(f"ds_write_b128 v15, {q(XR+4*ch)} offset:{CV_X + CV_WAVE*(ch&1)}")
    a("s_waitcnt lgkmcnt(0)")
    a.stamp(4)
    a("s_barrier")
    for r in range(3):
        P = 32 + 8 * r
        a(f"ds_read_b64 {q(P,2)}, v9 offset:{CV_U + 480 - 16 - 8 + 1024*r}")
        a(f"ds_read_b128 {q(P+2)}, v9 offset:{CV_U + 480 - 16 + 1024*r}")
        a(f"ds_read_b64 {q(P+6,2)}, v9 offset:{CV_U + 480 + 1024*r}")
    Ef, S_, O_ = 64, 80, 96
    for r in range(3):
        P = 32 + 8 * r
        a(f"s_waitcnt lgkmcnt({[6, 7, 8][r]})")
        for i in range(8):
            a.unpack(Ef + 2 * i, P + i)
        e = lambda k: Ef + 4 + k
        for h in range(1, 5 if r < 2 else 3):
            if h & 1:
                for i in range(8):
                    a(f"v_add_f32 v{88+i}, v{e(i-h)}, v{e(i+h)}")
            else:
                for i in range(0, 8, 2):
                    a(f"v_pk_add_f32 {q(88+i,2)}, {q(e(i-h),2)}, {q(e(i+h),2)}")
            for i in range(0, 8, 2):
                a(f"v_pk_add_f32 {q(S_+i,2)}, {q(88+i,2)}, {q(e(i) if h == 1 else S_+i,2)}")
            O = O_ + 4 * (h - 1)
            for i in range(4):
                a(f"v_cvt_pk_bf16_f32 v{O+i}, v{S_+2*i}, v{S_+2*i+1}")
            a(f"ds_write_b128 v9, {q(O)} offset:{[CV_W3, CV_W5, CV_W7, CV_W9][h-1] + 16 + 1024*r}")
    a("s_waitcnt lgkmcnt(0)\ns_barrier")


G1_H = 5120
G1_HN = 5
G1_W = 87040
G1_WN = 3
G1_CONST = 0
G1_CS = 2048
G1_SP = 3072
G2_W = 5120
G2_SLOT = [0, 1, 2, 6, 3, 4, 5]
LDS_TOTAL = 163840


def tile_ids(a):
    a("s_and_b32 s12, s2, 7\ns_lshr_b32 s13, s2, 3\ns_and_b32 s14, s13, 7\ns_lshr_b32 s15, s13, 3")
    a("s_and_b32 s8, s12, 1\ns_lshl_b32 s8, s8, 3\ns_add_u32 s8, s8, s14")
    a("s_lshr_b32 s9, s12, 1\ns_lshl_b32 s10, s9, 3\ns_lshl_b32 s9, s9, 2\ns_add_u32 s9, s9, s15")
    a("s_add_u32 s10, s10, s14")
    a("s_and_b32 s11, s12, 1\ns_lshl_b32 s11, s11, 2\ns_add_u32 s11, s11, s15")
    if G2MAP == 1:
        a("s_lshl_b32 s10, s12, 2\ns_and_b32 s11, s13, 3\ns_add_u32 s10, s10, s11\ns_lshr_b32 s11, s13, 2")
    if G2MAP == 2:
        a("s_and_b32 s10, s12, 1\ns_lshl_b32 s10, s10, 4\ns_and_b32 s11, s13, 15\ns_add_u32 s10, s10, s11\ns_lshr_b32 s11, s12, 1\ns_lshl_b32 s11, s11, 1\ns_lshr_b32 s14, s13, 4\ns_add_u32 s11, s11, s14")
    a("v_bfe_u32 v5, v1, 2, 2")
    a("v_lshl_add_u32 v6, v3, 2, v5\nv_lshlrev_b32 v6, 8, v6")
    a("v_and_b32 v7, 3, v1\nv_lshl_add_u32 v6, v7, 3, v6")
    a("v_and_b32 v7, 1, v3\nv_lshl_add_u32 v5, v7, 2, v5")


def gemm_mfma_waves(a, done):
    tile_ids(a)
    if EXP & 16:
        sk = a.newlabel("L_nowarm")
        a(f"s_cmp_lt_u32 s2, 160\ns_cbranch_scc1 {sk}")
        a("s_sub_u32 s16, s13, 20\ns_lshl_b32 s16, s16, 2\ns_add_u32 s16, s16, s7\ns_mul_i32 s16, s16, 20480")
        a("v_lshlrev_b32 v8, 4, v1")
        for which in range(2):
            if which == 0:
                a(f"s_lshr_b32 s17, s12, 1\ns_mul_i32 s18, s17, {80*FS_}\ns_mul_i32 s17, s17, 983040")
                a.srd(32, 4, WS_W13, SZ_W13)
                a.poll(F_R, 80, 120, "s18")
            else:
                a("s_and_b32 s17, s12, 1\ns_mul_i32 s17, s17, 983040")
                a.srd(32, 4, WS_W2, SZ_W2)
                a.poll(F_R2, 32, 120)
            a("s_add_u32 s17, s17, s16")
            for i in range(20):
                a(f"buffer_load_dwordx4 {q(24+4*i)}, v8, s[32:35], s17 offen offset:{1024*(i%4)}")
                if i % 4 == 3:
                    a("s_add_u32 s17, s17, 4096")
        a("s_waitcnt vmcnt(0)")
        a.label(sk)
    a("s_barrier")
    if EXP & 1024:
        a("s_setprio 2")
    elif EXP & 512:
        a("s_setprio 0")
    a("s_and_b32 s16, s7, 1\ns_lshr_b32 s17, s7, 1")
    a("s_lshl_b32 s18, s16, 2\nv_xor_b32 v5, s18, v5")
    for nt in range(4):
        a(f"v_xor_b32 v7, {nt}, v5\nv_lshl_add_u32 v{12+nt}, v7, 5, v6")
    a("v_lshlrev_b32 v16, 4, v1\ns_mul_i32 s18, s17, 6144\nv_add_u32 v16, s18, v16")
    ACC, HS, AD = 24, [120, 160], 17
    for i in range(96):
        a(f"v_mov_b32 v{ACC+i}, 0")

    def reads(s, half):
        o = []
        for nt in range(4):
            r = HS[s] + 4 * nt
            o.append(f"ds_read_b64_tr_b16 {q(r,2)}, v{AD+nt} offset:{8192*half}")
            o.append(f"ds_read_b64_tr_b16 {q(r+2,2)}, v{AD+nt} offset:{8192*half + 4096}")
        for t in range(6):
            o.append(f"ds_read_b128 {q(HS[s]+16+4*t)}, v{AD+4} offset:{12288*half + 1024*t}")
        return o

    def setad(hs, ws):
        return [f"v_add_u32 v{AD+i}, {hs}, v{12+i}" for i in range(4)] + [f"v_add_u32 v{AD+4}, {ws}, v16"]

    for x in setad(G1_H, G1_W):
        a(x)
    a(f"s_mov_b32 s19, {G1_H}\ns_mov_b32 s20, {G1_W}\ns_mov_b32 s21, 0")
    a.srd(32, 4, WS_HM, SZ_HM)
    a.stamp(7)
    sk = a.newlabel("L_nopoll")
    a(f"s_cmp_lg_u32 s6, 0\ns_cbranch_scc1 {sk}")
    a.poll(F_R2, 32, 120)
    a.poll(F_C, 160, 120, fast=True)
    a(f"s_cmp_lg_u32 s2, 0\ns_cbranch_scc1 {sk}")
    a("v_mov_b32 v120, s3\nv_mov_b32 v121, 0\ns_mov_b64 exec, 1")
    a("buffer_store_dword v120, v121, s[92:95], 0 offen\ns_mov_b64 exec, -1")
    a.label(sk)
    a("s_barrier")
    a.stamp(8)
    a("s_waitcnt vmcnt(0)\ns_barrier")
    a.stamp(9)
    for x in reads(0, 0):
        a(x)
    a.label("L_g1")
    for s in range(2):
        if s == 0:
            a(f"s_add_u32 s19, s19, 16384\ns_cmp_eq_u32 s19, {G1_H + G1_HN*16384}\ns_cselect_b32 s19, {G1_H}, s19")
            a(f"s_add_u32 s20, s20, 24576\ns_cmp_eq_u32 s20, {G1_W + G1_WN*24576}\ns_cselect_b32 s20, {G1_W}, s20")
            a("s_waitcnt lgkmcnt(0)")
            rest = reads(1, 1) + setad("s19", "s20")
        else:
            a("s_waitcnt lgkmcnt(0)\ns_barrier")
            rest = reads(0, 0)
        i = 0
        for t in range(6):
            for nt in range(4):
                ac = ACC + 4 * (t * 4 + nt)
                a(f"v_mfma_f32_16x16x32_bf16 {q(ac)}, {q(HS[s]+16+4*t)}, {q(HS[s]+4*nt)}, {q(ac)}")
                if i < len(rest):
                    a(rest[i])
                i += 1
    a("s_add_u32 s21, s21, 1\ns_cmp_lt_u32 s21, 10\ns_cbranch_scc1 L_g1")
    a.stamp(10)
    a("s_lshl_b32 s18, s16, 10\nv_lshlrev_b32 v5, 4, v4\nv_add_u32 v5, s18, v5")
    a("s_mul_i32 s18, s17, 384\nv_lshlrev_b32 v6, 4, v3\nv_add_u32 v6, s18, v6")
    a("s_lshl_b32 s22, s8, 1\ns_add_u32 s22, s22, s16\ns_mul_i32 s22, s22, 48")
    a("s_mul_i32 s23, s9, 3\ns_add_u32 s22, s22, s23")
    a("s_lshl_b32 s23, s17, 1\ns_add_u32 s23, s23, s22\ns_lshl_b32 s23, s23, 12")
    a("s_add_u32 s22, s22, 1\ns_lshl_b32 s22, s22, 12\ns_lshl_b32 s18, s17, 9\ns_add_u32 s22, s22, s18")
    a("v_and_b32 v7, 1, v3\nv_lshlrev_b32 v7, 10, v7\nv_lshrrev_b32 v8, 1, v3\nv_lshl_add_u32 v7, v8, 8, v7\nv_lshl_add_u32 v7, v4, 4, v7")
    a("s_waitcnt lgkmcnt(0)\ns_barrier")
    KC, CSR = 184, 160
    for nt in range(4):
        a(f"ds_read_b128 {q(KC+4*nt)}, v5 offset:{G1_CONST + 256*nt}")
    for t in range(6):
        a(f"ds_read_b128 {q(CSR+4*t)}, v6 offset:{G1_CS + 64*t}")
    a("v_lshlrev_b32 v5, 4, v1")
    a("s_waitcnt lgkmcnt(0)")
    delay(a, "f")
    a.stamp(11)
    T = 120
    for nt in range(4):
        O = 144 + 4 * (nt & 1)
        k = KC + 4 * nt
        for jj in range(3):
            g = ACC + 4 * (jj * 4 + nt)
            u = ACC + 4 * ((3 + jj) * 4 + nt)
            for hh in range(2):
                g2, u2 = g + 2 * hh, u + 2 * hh
                a(f"v_pk_fma_f32 {q(g2,2)}, {q(CSR+4*jj+2*hh,2)}, {q(k,2)}, {q(g2,2)} op_sel_hi:[1,0,1]")
                a(f"v_pk_fma_f32 {q(u2,2)}, {q(CSR+4*(3+jj)+2*hh,2)}, {q(k,2)}, {q(u2,2)} op_sel_hi:[1,0,1]")
            for hh in range(2):
                a(f"v_pk_mul_f32 {q(T+2*hh,2)}, {q(g+2*hh,2)}, {q(k,2)} op_sel:[0,1] op_sel_hi:[1,1]")
            for i in range(4):
                a(f"v_exp_f32 v{T+i}, v{T+i}")
            for hh in range(2):
                a(f"v_pk_mul_f32 {q(g+2*hh,2)}, {q(g+2*hh,2)}, {q(u+2*hh,2)}")
            for hh in range(2):
                a(f"v_pk_fma_f32 {q(T+2*hh,2)}, {q(T+2*hh,2)}, {q(k+2,2)}, {q(k+2,2)} op_sel_hi:[1,0,0]")
            for i in range(4):
                a(f"v_rcp_f32 v{T+i}, v{T+i}")
            a("s_nop 0")
            for hh in range(2):
                a(f"v_pk_mul_f32 {q(g+2*hh,2)}, {q(g+2*hh,2)}, {q(T+2*hh,2)}")
            for hh in range(2):
                d = O + 2 * jj + hh if jj < 2 else 152 + 4 * (nt >> 1) + 2 * (nt & 1) + hh
                a(f"v_cvt_pk_bf16_f32 v{d}, v{g+2*hh}, v{g+2*hh+1}")
            if jj == 1:
                a(f"buffer_store_dwordx4 {q(O)}, v5, s[32:35], s23 offen offset:{1024*nt} {SC}")
        if nt & 1:
            S = 152 + 4 * (nt >> 1)
            a(f"s_nop 1\nv_permlane16_swap_b32 v{S}, v{S+2}\nv_permlane16_swap_b32 v{S+1}, v{S+3}")
            a(f"buffer_store_dwordx4 {q(S)}, v7, s[32:35], s22 offen offset:{1024*(nt-1)} {SC}")
    a.stamp(12)
    a.vm = []
    ACC, FS, RES, VW, VH, HR, PD = 16, [56, 76], 96, 116, 120, 144, 12
    a("s_lshl_b32 s22, s16, 1\ns_add_u32 s22, s22, s17")
    a("s_lshr_b32 s18, s10, 1\ns_mul_i32 s18, s18, 163840\ns_mul_i32 s19, s11, 20480\ns_add_u32 s18, s18, s19")
    a("s_and_b32 s19, s10, 1\ns_lshl_b32 s19, s19, 7\ns_add_u32 s18, s18, s19\ns_lshl_b32 s19, s22, 5\ns_add_u32 s18, s18, s19")
    a("v_lshlrev_b32 v10, 1, v4\nv_lshl_add_u32 v11, v3, 10, v10\nv_lshl_add_u32 v10, v3, 11, v10")
    a("s_add_u32 s19, s18, 8192\ns_add_u32 s20, s18, 16384")
    a.srd(36, 4, WS_HT, SZ_T)
    a.srd(40, 30, 0, SZ_T)
    a("s_lshl_b32 s21, s8, 4\ns_add_u32 s21, s21, s9")
    a("s_waitcnt vmcnt(0)")
    last_of4_publish(a, LDS_CNT2, F_G, 21, 140)
    a.stamp(13)
    for p in range(2):
        for e in range(8):
            a.vmem(f"buffer_load_ushort v{RES+8*p+e}, v10, s[36:39], s{18+p} offen offset:{256*e} {SC}", "res")
    for e in range(4):
        a.vmem(f"buffer_load_ushort v{RES+16+e}, v11, s[36:39], s20 offen offset:{256*e} {SC}", "res")
    for i in range(40):
        a(f"v_mov_b32 v{ACC+i}, 0")
    a(f"s_lshl_b32 s19, s17, 12\ns_lshl_b32 s21, s22, 10\ns_add_u32 s19, s19, s21\nv_add_u32 v{VH}, s19, v5\nv_xor_b32 v{VH+1}, 1024, v{VH}")
    a(f"s_mul_i32 s19, s17, 5120\nv_add_u32 v{VW}, s19, v5\nv_add_u32 v{VW+1}, 61440, v{VW}\nv_add_u32 v{VW+2}, 122880, v{VW}")
    a("s_lshl_b32 s18, s10, 6\ns_lshl_b32 s19, s22, 4\ns_add_u32 s18, s18, s19\ns_mul_i32 s18, s18, 1280\ns_mul_i32 s19, s11, 160\ns_add_u32 s18, s18, s19")
    a("v_mul_u32_u24 v10, 1280, v4\nv_lshl_add_u32 v11, v3, 3, v10\nv_lshl_add_u32 v10, v3, 4, v10")
    a(f"s_mul_i32 s19, s7, 5120\ns_add_u32 s19, s19, {G2_W + 4*20480}\nv_add_u32 v6, s19, v5")
    a(f"s_xor_b32 s19, s7, 2\ns_mul_i32 s19, s19, 5120\ns_add_u32 s19, s19, {G2_W + 4*20480}\nv_add_u32 v7, s19, v5")
    a(f"s_mul_i32 s24, s10, {48*4096}\ns_add_u32 s25, s24, {48*4096}\ns_mul_i32 s23, s15, {3*16384 if EXP & 2 else 0}\ns_add_u32 s23, s23, s24")
    sk = a.newlabel("L_nopub")
    a(f"s_cmp_lg_u32 s6, 0\ns_cbranch_scc1 {sk}")
    a(f"s_lshr_b32 s21, s10, 1\ns_mul_i32 s21, s21, {16*FS_}")
    vm_save = list(a.vm)
    a.poll(F_G, 16, 140, "s21", fast=True)
    a.vm = vm_save
    a.label(sk)
    a("s_barrier")

    def hload(n):
        return [("v", f"buffer_load_dwordx4 {q(HR + 8*(n % PD) + 4*j)}, v{VH+j}, s[32:35], s23 offen {SC}", ("hm", n)) for j in range(2)] + [("a", "s_add_u32 s23, s23, 8192\ns_cmp_eq_u32 s23, s25\ns_cselect_b32 s23, s24, s23" if EXP & 2 else "s_add_u32 s23, s23, 8192", None)]

    def wreads(n, s):
        st, kk = divmod(n, 2)
        off = G2_W + G2_SLOT[st % 7] * 20480 + kk * 10240
        return [("a", f"ds_read_b128 {q(FS[s]+4*t)}, v{VW + off // 61440} offset:{off % 61440 + 1024*t}", None) for t in range(5)]

    def put(x):
        if x[0] == "v":
            a.vmem(x[1], x[2])
        else:
            a(x[1])

    for x in wreads(0, 0):
        put(x)
    nxt = PD0
    for n in range(PD0):
        for x in hload(n):
            put(x)
    for n in range(24):
        s = n & 1
        a.wait_vm(("hm", n))
        if n == 0:
            a.stamp(14)
        a("s_waitcnt lgkmcnt(0)")
        if n in (5, 9, 13, 19):
            a("s_barrier")
        ex = wreads(n + 1, 1 - s) if n < 23 else []
        for _ in range(3):
            if nxt < 24 and nxt <= n - 1 + PD:
                ex += hload(nxt)
                nxt += 1
        for t in range(5):
            for j in range(2):
                ac = ACC + 4 * (5 * j + t)
                a(f"v_mfma_f32_16x16x32_bf16 {q(ac)}, {q(FS[s]+4*t)}, {q(HR + 8*(n % PD) + 4*j)}, {q(ac)}")
                if ex:
                    put(ex.pop(0))
        for x in ex:
            put(x)
    a("s_nop 3")
    a("s_nop 5")
    for t in range(5):
        a(f"ds_write_b128 v6, {q(ACC+20+4*t)} offset:{1024*t}")
    a("s_waitcnt lgkmcnt(0)\ns_barrier")
    for t in range(5):
        a(f"ds_read_b128 {q(ACC+20+4*t)}, v7 offset:{1024*t}")
    delay(a, "g")
    a.wait_vm("res")
    for i in range(20):
        a(f"v_lshlrev_b32 v{RES+i}, 16, v{RES+i}")
    a("s_waitcnt lgkmcnt(0)")
    O = 56
    for i in range(10):
        y = ACC + 2 * i
        a(f"v_pk_add_f32 {q(y,2)}, {q(y,2)}, {q(y+20,2)}")
        a(f"v_cvt_pk_bf16_f32 v{y}, v{y}, v{y+1}")
        a.unpack(y, y)
        a(f"v_pk_add_f32 {q(y,2)}, {q(y,2)}, {q(RES+2*i,2)}")
        a(f"v_cvt_pk_bf16_f32 v{O+i}, v{y}, v{y+1}")
        if i == 3:
            a(f"buffer_store_dwordx4 {q(O)}, v10, s[40:43], s18 offen {SCO}")
        if i == 7:
            a(f"buffer_store_dwordx4 {q(O+4)}, v10, s[40:43], s18 offen offset:64 {SCO}")
    a(f"buffer_store_dwordx2 {q(O+8,2)}, v11, s[40:43], s18 offen offset:128 {SCO}")
    a(f"s_branch {done}")


def gemm_loader_waves(a, done):
    a.vm = []
    tile_ids(a)
    a("s_mul_i32 s22, s8, 163840\ns_add_u32 s23, s22, 163840")
    a(f"s_mul_i32 s24, s9, {20*12288}\ns_add_u32 s25, s24, {20*12288}")
    a("s_lshr_b32 s20, s9, 3\ns_mul_i32 s20, s20, 5")
    a("s_lshl_b32 s16, s20, 14\ns_add_u32 s16, s16, s22\ns_mul_i32 s17, s20, 24576\ns_add_u32 s17, s17, s24")
    a("s_lshl_b32 s18, s7, 12\ns_mul_i32 s19, s7, 6144")
    a("v_lshrrev_b32 v12, 1, v4\nv_xor_b32 v12, v12, v3\nv_lshlrev_b32 v12, 5, v12")
    a("v_and_b32 v7, 1, v4\nv_lshlrev_b32 v7, 4, v7\nv_lshl_add_u32 v7, v3, 8, v7\nv_add_u32 v7, s18, v7")
    a("v_add_u32 v8, v7, v12\nv_xor_b32 v12, 128, v12\nv_add_u32 v9, v7, v12")
    if EXP & 2048:
        a("v_lshlrev_b32 v8, 4, v1\nv_add_u32 v8, s18, v8\nv_mov_b32 v9, v8")
    a("v_lshlrev_b32 v10, 4, v1\nv_add_u32 v10, s19, v10\nv_add_u32 v11, 4096, v10")
    a.srd(32, 4, WS_HT, SZ_T)
    a.srd(36, 4, WS_W13, SZ_W13)
    a.srd(40, 4, WS_CSP, SZ_CSP)
    a(f"s_mul_i32 s20, s9, {20*FS_}")
    a.poll(F_R, 20, 20, "s20")
    a.stamp(5)

    def issue_w(st):
        slot = G1_W + (st % G1_WN) * 24576
        if EXP & 4096 and st > 2:
            a.vm.append(("w", st))
            return
        a(f"s_add_u32 m0, s19, {slot}\ns_nop 0")
        for i in range(4):
            a.vmem(f"buffer_load_dwordx4 v10, s[36:39], s17 offen offset:{1024*i} {SCL} lds", ("w", st))
        a(f"s_add_u32 m0, s19, {slot + 4096}\ns_nop 0")
        for i in range(2):
            a.vmem(f"buffer_load_dwordx4 v11, s[36:39], s17 offen offset:{1024*i} {SCL} lds", ("w", st))
        a("s_add_u32 s17, s17, 24576\ns_cmp_eq_u32 s17, s25\ns_cselect_b32 s17, s24, s17")

    def issue_h(st):
        slot = G1_H + (st % G1_HN) * 16384
        if EXP & 8192 and st > 0:
            a.vm.append(("h", st))
            return
        a(f"s_add_u32 m0, s18, {slot}\ns_nop 0")
        for i in range(4):
            a.vmem(f"buffer_load_dwordx4 v{8 + (i&1)}, s[32:35], s16 offen offset:{1024*i} {SCL} lds", ("h", st))
        a("s_add_u32 s16, s16, 16384\ns_cmp_eq_u32 s16, s23\ns_cselect_b32 s16, s22, s16")

    CS = 40
    a("v_and_b32 v13, 255, v0\nv_lshlrev_b32 v13, 2, v13\ns_mul_i32 s20, s9, 15360")
    for ks in range(20):
        if ks and ks % 5 == 0:
            a("s_add_u32 s20, s20, 3840")
        a.vmem(f"buffer_load_dword v{CS+ks}, v13, s[40:43], s20 offen offset:{768*(ks % 5)} {SC}", "cs")
    SA = 14
    a("s_and_b32 s20, s9, 7\nv_xor_b32 v5, s20, v5\nv_lshl_add_u32 v14, v5, 5, v6\nv_add_u32 v15, 49152, v14")
    ONE, SACC, SF = 20, 24, 32
    for i in range(4):
        a(f"v_mov_b32 v{ONE+i}, {hex(ONES_BF)}")
    for i in range(8):
        a(f"v_mov_b32 v{SACC+i}, 0")
    a.wait_vm("cs")
    for ks in range(1, 20):
        a(f"v_add_f32 v{CS}, v{CS}, v{CS+ks}")
    a("v_and_b32 v7, 3, v4\nv_cmp_eq_u32 s[52:53], 1, v7\nv_cmp_eq_u32 s[54:55], 2, v7\nv_cmp_eq_u32 s[56:57], 3, v7")
    a("v_lshrrev_b32 v7, 2, v4\nv_cmp_eq_u32 s[58:59], v7, v3")
    a(f"s_mul_i32 s60, s11, {48*5120}\ns_mul_i32 s62, s10, {48*4096}\ns_mul_i32 s28, s7, 5120")
    a(f"s_add_u32 s61, s60, {48*5120}\ns_add_u32 s63, s62, {48*4096}")
    a(f"s_mul_i32 s26, s15, {3*20480 if EXP & 2 else 0}\ns_add_u32 s26, s26, s60\ns_mul_i32 s27, s15, {3*16384 if EXP & 2 else 0}\ns_add_u32 s27, s27, s62")
    a("v_lshlrev_b32 v60, 4, v1\nv_add_u32 v61, s18, v60\nv_add_u32 v60, s28, v60\nv_add_u32 v62, 4096, v60")
    a.srd(40, 4, WS_W2, SZ_W2)
    a.srd(44, 4, WS_HM, SZ_HM)
    a.stamp(6)
    a("s_barrier")
    for st in range(G1_WN):
        issue_w(st)
    a.stamp(7)
    a("s_barrier")
    a(f"ds_write_b32 v13, v{CS} offset:{G1_CS}")
    a(f"v_mov_b32 v16, 0\nds_write_b32 v16, v16 offset:{LDS_CNT2}")
    issue_h(0); issue_h(1)
    a.wait_vm(("h", 0))
    a.stamp(8)
    a("s_barrier")
    issue_h(2); issue_h(3); issue_h(4)

    def issue_w2(st):
        slot = G2_W + G2_SLOT[st % 7] * 20480
        if EXP & 128 and st > 2:
            a.vm.append(("w2", st))
            return
        a(f"s_add_u32 m0, s28, {slot}\ns_nop 0")
        for i in range(4):
            a.vmem(f"buffer_load_dwordx4 v60, s[40:43], s26 offen offset:{1024*i} {SCL} lds", ("w2", st))
        a(f"s_add_u32 m0, s28, {slot + 4096}\ns_nop 0")
        a.vmem(f"buffer_load_dwordx4 v62, s[40:43], s26 offen {SCL} lds", ("w2", st))
        a("s_add_u32 s26, s26, 20480\ns_cmp_eq_u32 s26, s61\ns_cselect_b32 s26, s60, s26")

    a.srd(48, 4, WS_GR, 16 * 4096)
    a("s_and_b32 s20, s7, 1\ns_lshl_b32 s20, s20, 13\nv_add_u32 v14, s20, v14\nv_add_u32 v15, s20, v15")
    for s in range(10):
        slot = s % G1_HN
        dostat = s < 5
        if dostat:
            sk = a.newlabel("L_nost")
            a(f"s_lshr_b32 s20, s7, 1\ns_cmp_lg_u32 s20, {s & 1}\ns_cbranch_scc1 {sk}")
            off = G1_H + (slot % 3) * 16384
            a(f"ds_read_b64_tr_b16 {q(SF,2)}, v{SA + slot//3} offset:{off}")
            a(f"ds_read_b64_tr_b16 {q(SF+2,2)}, v{SA + slot//3} offset:{off + 4096}")
            a("s_waitcnt lgkmcnt(0)")
            a(f"v_mfma_f32_16x16x32_bf16 {q(SACC)}, {q(ONE)}, {q(SF)}, {q(SACC)}")
            a(f"v_mfma_f32_16x16x32_bf16 {q(SACC+4)}, {q(SF)}, {q(SF)}, {q(SACC+4)}")
            a.label(sk)
        if s == 8:
            a("s_lshl_b32 s20, s8, 12\ns_lshl_b32 s21, s7, 9\ns_add_u32 s20, s20, s21")
            a("v_and_b32 v7, 31, v1\nv_lshlrev_b32 v7, 4, v7\nv_lshrrev_b32 v36, 5, v1\nv_lshl_add_u32 v36, v36, 11, v7\nv_add_u32 v7, s21, v7\ns_mov_b32 s84, 0")
            L, D = a.newlabel("L_gp"), a.newlabel("L_gpd")
            a.label(L)
            a(f"buffer_load_dwordx4 {q(40)}, v36, s[48:51], s20 offen {SC}")
            a(f"s_add_u32 s84, s84, 1\ns_waitcnt vmcnt(0)\nv_cmp_ne_u32 vcc, s3, v42\ns_cbranch_vccz {D}")
            a(f"s_sleep 2\ns_cmp_lt_u32 s84, {POLL_MAX}\ns_cbranch_scc1 {L}")
            a.label(D)
            a("v_mov_b32 v44, v40\nv_mov_b32 v45, v41\ns_nop 1\nv_permlane32_swap_b32 v40, v44\nv_permlane32_swap_b32 v41, v45")
            a("v_add_f32 v40, v40, v44\nv_add_f32 v41, v41, v45")
            ln_finish(a, 40, 41, 42, 44, 45)
            a(f"v_mul_f32 v45, {hex(NLOG2E)}, v45\nv_mul_f32 v46, v42, v42\nv_mov_b32 v47, 0")
            a(f"ds_write_b128 v7, {q(44)} offset:{G1_CONST}")
        if s >= 1:
            if s + 2 < 10:
                issue_w(s + 2)
            if s in (7, 8):
                issue_w2(s - 7)
            elif s == 9:
                issue_w2(2); issue_w2(3)
            if s + 4 < 10:
                issue_h(s + 4)
        if s == 4:
            sq = SACC + 4
            a("s_nop 4")
            a(f"v_cndmask_b32 v{sq}, v{sq}, v{sq+1}, s[52:53]\nv_cndmask_b32 v{sq}, v{sq}, v{sq+2}, s[54:55]\nv_cndmask_b32 v{SACC+1}, v{sq}, v{sq+3}, s[56:57]")
            a(f"s_lshl_b32 s20, s7, 7\nv_lshlrev_b32 v7, 3, v4\nv_add_u32 v7, s20, v7\ns_mov_b64 exec, s[58:59]")
            a(f"ds_write_b64 v7, {q(SACC,2)} offset:{G1_SP}\ns_mov_b64 exec, -1\ns_waitcnt lgkmcnt(0)")
        if s == 5:
            sk = a.newlabel("L_nogr")
            a(f"s_cmp_lg_u32 s7, 3\ns_cbranch_scc1 {sk}")
            a("v_lshlrev_b32 v7, 3, v4")
            for w in range(4):
                a(f"ds_read_b64 {q(SF+2*w,2)}, v7 offset:{G1_SP + 128*w}")
            a("s_lshl_b32 s20, s8, 1\ns_lshr_b32 s21, s9, 3\ns_add_u32 s20, s20, s21\ns_lshl_b32 s20, s20, 3\ns_and_b32 s21, s9, 7\ns_add_u32 s20, s20, s21\ns_lshl_b32 s20, s20, 8")
            a(f"v_lshlrev_b32 v7, 4, v4\nv_mov_b32 v{SF+10}, s3\nv_mov_b32 v{SF+11}, s3\ns_waitcnt lgkmcnt(0)")
            a(f"v_pk_add_f32 {q(SF,2)}, {q(SF,2)}, {q(SF+2,2)}\nv_pk_add_f32 {q(SF+4,2)}, {q(SF+4,2)}, {q(SF+6,2)}\nv_pk_add_f32 {q(SF+8,2)}, {q(SF,2)}, {q(SF+4,2)}")
            a("s_mov_b64 exec, 0xffff")
            a(f"buffer_store_dwordx4 {q(SF+8)}, v7, s[48:51], s20 offen {SC}")
            a("s_mov_b64 exec, -1")
            a.label(sk)
        if s + 1 < 10:
            a.wait_vm(("h", s + 1))
            if s + 1 >= G1_WN:
                a.wait_vm(("w", s + 1))
        a("s_barrier")
    issue_w2(4); issue_w2(5); issue_w2(6)
    if W2WARM:
        nsh = {0: 8, 1: 4}[G2MAP]
        per = 102400 // (4 * nsh)
        a(f"s_and_b32 s20, s13, {nsh-1}\ns_lshl_b32 s20, s20, 2\ns_add_u32 s20, s20, s7\ns_mul_i32 s20, s20, {per}\ns_add_u32 s20, s20, s26\nv_lshlrev_b32 v64, 4, v1")
        for i in range((per + 1023) // 1024):
            a.vmem(f"buffer_load_dwordx4 {q(68+4*i)}, v64, s[40:43], s20 offen offset:{1024*(i%4)} {SCL}", "warm")
            if i % 4 == 3:
                a("s_add_u32 s20, s20, 4096")
    a("s_waitcnt lgkmcnt(0)")
    a.stamp(10)
    a("s_barrier")
    a.stamp(13)
    a("s_waitcnt vmcnt(0)\ns_barrier")
    a("s_barrier")
    issue_w2(7); issue_w2(8); issue_w2(9)
    a("s_barrier")
    issue_w2(10); issue_w2(11)
    a.wait_vm(("w2", 9))
    a("s_barrier\ns_waitcnt vmcnt(0)\ns_barrier")
    a("s_barrier")


def main():
    a = Asm()
    hdr = open(f"cdna_kernels/{NAME}.s.ref").read().split("\n")
    for line in hdr:
        if line.startswith("; Override") or line.startswith("; grid=") or "@launch" in line:
            continue
        if not line.startswith(";"):
            break
        a.raw(line)
    if STAMPS == 1:
        a.raw(f"; @launch kernel={KNAME} grid=(256,1,1) block=(512,1,1) lds={LDS_TOTAL}")
    else:
        a.raw(f"; @launch grid=(256,1,1) block=(512,1,1) lds={LDS_TOTAL}")
    a.raw('.amdgcn_target "amdgcn-amd-amdhsa--gfx950"\n.text')
    a.raw(f".globl {KNAME}\n.p2align 8\n.type {KNAME},@function\n{KNAME}:")
    done = "L_done"
    a("s_cmp_ge_u32 s2, 256\ns_cbranch_scc1 L_exit")
    if STAMPS:
        for i in range(16):
            a(f"s_mov_b32 s{64+i}, 0")
        a.stamp(0)
    a(f"s_load_dwordx2 s[4:5], s[0:1], {KA_WS}\ns_load_dwordx16 s[8:23], s[0:1], 0\ns_load_dwordx8 s[24:31], s[0:1], 64")
    a("v_and_b32 v1, 63, v0\nv_lshrrev_b32 v2, 6, v0\nv_lshrrev_b32 v3, 4, v1\nv_and_b32 v4, 15, v1")
    a("v_readfirstlane_b32 s6, v2")
    a("s_waitcnt lgkmcnt(0)")
    a("s_load_dword s3, s[4:5], 0")
    a("s_and_b32 s7, s6, 3")
    a.srd(92, 4, WS_FLG, SZ_FLG)
    a(f"v_mov_b32 v5, {LDS_CNT}\nv_mov_b32 v6, 0\nv_mov_b32 v7, 0\nv_mov_b32 v8, 0\nv_mov_b32 v9, 0\nds_write_b128 v5, v[6:9]")
    delay(a, "h")
    a("s_cmp_ge_u32 s2, 160\ns_cbranch_scc1 L_aux")
    a("s_lshl_b32 s52, s2, 2\ns_add_u32 s52, s52, s7")
    kgen(a)
    a("s_cmp_ge_u32 s6, 4\ns_cbranch_scc1 L_partner")
    conv_main(a)
    a("s_branch L_mfma")
    a.label("L_partner")
    conv_partner(a)
    a("s_branch L_loader")
    a.label("L_aux")
    a.vm = []
    a("s_cmp_ge_u32 s2, 224\ns_cbranch_scc1 L_aux_rp")
    a("s_sub_u32 s52, s2, 160")
    role_ln1(a)
    a("s_branch L_aux_go")
    a.label("L_aux_rp")
    a("s_sub_u32 s52, s2, 224")
    if not EXP & 256:
        a("s_cmp_lt_u32 s6, 6\ns_cbranch_scc1 L_aux_rp1")
        a("s_getpc_b64 s[54:55]")
        a.label("L_pc")
        a(f"s_sub_u32 s54, s54, L_pc-{KNAME}\ns_subb_u32 s55, s55, 0")
        a(f"v_lshlrev_b32 v5, 4, v1\ns_and_b32 s56, s6, 1\ns_mul_i32 s56, s56, {CODE_KB*512}\nv_add_u32 v5, s56, v5")
        for i in range(CODE_KB // 2):
            a(f"global_load_dwordx4 {q(16+4*i)}, v5, s[54:55] offset:{1024*(i%4)}")
            if i % 4 == 3:
                a("v_add_u32 v5, 4096, v5")
        if TLBW:
            a("v_lshlrev_b32 v5, 16, v1")
            a.srd(32, 4, 0, 0x1720000)
            for i in range(6):
                a(f"s_mov_b32 s56, {i << 22}")
                a(f"buffer_load_dword v{100+i}, v5, s[32:35], s56 offen {SC}")
            for k, (lo, sz) in enumerate([(24, 640*3072), (26, 640*3072), (28, 1536*1280), (30, SZ_T)]):
                a.srd(36, lo, 0, sz)
                a(f"buffer_load_dword v{106+k}, v5, s[36:39], 0 offen {SC}")
        a.label("L_aux_rp1")
    epoch_ready(a)
    a("s_cmp_ge_u32 s6, 6\ns_cbranch_scc1 L_aux_end")
    a("s_mul_i32 s53, s52, 6\ns_add_u32 s53, s53, s6")
    if W2LATE:
        a.poll(F_L, 64, 26)
    role_rp2(a)
    a.label("L_aux_end")
    a("s_waitcnt vmcnt(0)\ns_barrier")
    a("s_cmp_lg_u32 s6, 4\ns_cbranch_scc1 L_aux_go")
    delay(a, "d")
    a.publish(F_R2, 52, 10)
    a.label("L_aux_go")
    a.stamp(4)
    a("s_cmp_ge_u32 s6, 4\ns_cbranch_scc1 L_loader\ns_branch L_mfma")
    a.label("L_loader")
    gemm_loader_waves(a, done)
    a(f"s_branch {done}")
    a.label("L_mfma")
    gemm_mfma_waves(a, done)
    a.label(done)
    if STAMPS:
        a("s_waitcnt vmcnt(0)")
        a.stamp(15)
        if STAMPS == 2:
            a(f"s_cmp_lg_u32 s2, {int(os.environ.get('DBGWG', '0'))}\ns_cbranch_scc1 L_exit\ns_cmp_lg_u32 s6, {int(os.environ.get('DBGWV', '0'))}\ns_cbranch_scc1 L_exit")
            a("s_load_dwordx2 s[82:83], s[0:1], 96\ns_waitcnt lgkmcnt(0)")
            a.srd(88, 82, 0, 256)
            for i in range(15, -1, -1):
                a(f"s_sub_u32 s{64+i}, s{64+i}, s64")
            for i in range(16):
                a(f"v_mov_b32 v{4+i}, s{64+i}")
            a("v_mov_b32 v1, 0\ns_mov_b64 exec, 1")
            for i in range(4):
                a(f"buffer_store_dwordx4 {q(4+4*i)}, v1, s[88:91], 0 offen offset:{16*i}")
            a("s_branch L_exit")
        a.srd(88, 4, WS_STAMP, 262144)
        a("v_lshrrev_b32 v1, 6, v0\nv_lshlrev_b32 v1, 6, v1\ns_lshl_b32 s82, s2, 9\nv_add_u32 v1, s82, v1")
        for i in range(16):
            a(f"v_mov_b32 v{4+i}, s{64+i}")
        a("s_mov_b64 exec, 1")
        for i in range(4):
            a(f"buffer_store_dwordx4 {q(4+4*i)}, v1, s[88:91], 0 offen offset:{16*i}")
    a.label("L_exit")
    a("s_endpgm")
    a.raw(f".fill ({CODE_KB*1024} - (. - {KNAME})) / 4, 4, 0xbf800000")
    a.raw(f""".section .rodata,"a"
.p2align 6
.amdhsa_kernel {KNAME}
  .amdhsa_next_free_vgpr 244
  .amdhsa_next_free_sgpr 96
  .amdhsa_accum_offset 244
  .amdhsa_group_segment_fixed_size 0
  .amdhsa_kernarg_size 112
  .amdhsa_user_sgpr_count 2
  .amdhsa_user_sgpr_kernarg_segment_ptr 1
  .amdhsa_system_sgpr_workgroup_id_x 1
.end_amdhsa_kernel""")
    out = sys.argv[1] if len(sys.argv) > 1 else f"cdna_kernels/{NAME}.s"
    open(out, "w").write("\n".join(a.l) + "\n")


if __name__ == "__main__":
    main()
```

```python
import sys, os, struct

NAME = "sequential_preLN__ssm_conv_s4d__glu_gated_swiglu__prompt"
KNAME = NAME + "_kernel"
KA_WS = 104

WS_FLG = 0
FS_ = 128
F_L, F_X, F_R2, F_C, F_G, F_R = 0x1000, 0x3000, 0x5000, 0x8000, 0x10000, 0x18000
SZ_FLG = 0x30000
WS_UT = 0x100000
WS_XT = 0x400000
WS_HT = 0x700000
WS_HM = 0xA00000
WS_W13 = 0x1000000
WS_W2 = 0x1400000
WS_GR = 0x1710000
WS_ST = 0x1700000
WS_CSP = 0x1600000
WS_STAMP = 0x4000000
SZ_T = 640 * 4096
SZ_TP = SZ_T
T_BLK = 40960
SZ_HM = 32 * 48 * 4096
SZ_W13 = 16 * 20 * 12288
SZ_W2 = 8 * 48 * 5120
SZ_CSP = 320 * 768 + 1024

STAMPS = int(os.environ.get('STAMPS', '0'))
EXP = int(os.environ.get('EXP', '0'))
LOG2E, NLOG2E, INV2PI, INV640, EPS, ONES_BF = 0x3FB8AA3B, 0xBFB8AA3B, 0x3E22F983, 0x3ACCCCCD, 0x3727C5AC, 0x3F803F80
POLL_MAX = 400000
CODE_KB = 32
LSLEEP = int(os.environ.get('LSLEEP', '8'))
PD0 = int(os.environ.get('PD0', '3'))
W2WARM = int(os.environ.get('W2WARM', '0'))
G2MAP = int(os.environ.get('G2MAP', '0'))
W2LATE = int(os.environ.get('W2LATE', '0'))
TLBW = int(os.environ.get('TLBW', '0'))
PIPE = int(os.environ.get('PIPE', '2'))
PSLEEP = int(os.environ.get('PSLEEP', '3'))
SLEEP = int(os.environ.get('SLEEP', '1'))
SC = "sc1"
SCO = os.environ.get("SCO", "")
SCL = "" if EXP & 8 else "sc1"


def f32bits(x):
    return struct.unpack("<I", struct.pack("<f", x))[0]


def q(r, n=4):
    return f"v[{r}:{r+n-1}]"


class Asm:
    def __init__(self):
        self.l = []
        self.vm = []
        self.uid = 0

    def __call__(self, s):
        for x in s.split("\n"):
            x = x.strip()
            if x:
                self.l.append("    " + x)

    def label(self, s):
        self.l.append(s + ":")

    def raw(self, s):
        self.l.append(s)

    def newlabel(self, p="L"):
        self.uid += 1
        return f"{p}_{self.uid}"

    def vmem(self, s, tag=None):
        self(s)
        self.vm.append(tag)

    def wait_vm(self, tag):
        idx = max(i for i, t in enumerate(self.vm) if t == tag)
        n = len(self.vm) - 1 - idx
        assert n <= 63, n
        self(f"s_waitcnt vmcnt({n})")

    def srd(self, sd, lo, off, size):
        if off == 0:
            self(f"s_mov_b32 s{sd}, s{lo}\ns_mov_b32 s{sd+1}, s{lo+1}")
        else:
            self(f"s_add_u32 s{sd}, s{lo}, {hex(off)}\ns_addc_u32 s{sd+1}, s{lo+1}, 0")
        self(f"s_mov_b32 s{sd+2}, {size}\ns_mov_b32 s{sd+3}, 0x20000")

    def stamp(self, i):
        if STAMPS:
            self(f"s_memrealtime s[80:81]\ns_waitcnt lgkmcnt(0)\ns_mov_b32 s{64+i}, s80")

    def unpack(self, dlo, src):
        if dlo == src:
            self(f"v_and_b32 v{dlo+1}, 0xffff0000, v{src}\nv_lshlrev_b32 v{dlo}, 16, v{src}")
        else:
            self(f"v_lshlrev_b32 v{dlo}, 16, v{src}\nv_and_b32 v{dlo+1}, 0xffff0000, v{src}")

    def rnd(self, d, s):
        self(f"v_cvt_pk_bf16_f32 v{d}, v{s}, v{s}\nv_lshlrev_b32 v{d}, 16, v{d}")

    def poll(self, off, n, vt, soff=None, fast=False, sleep=None):
        L, D = self.newlabel("L_poll"), self.newlabel("L_polld")
        nl = (n + 63) // 64
        for i in range(nl):
            self(f"v_add_u32 v{vt+i}, {64*i}, v1\nv_min_u32 v{vt+i}, {n-1}, v{vt+i}\nv_mul_u32_u24 v{vt+i}, {FS_}, v{vt+i}")
        if soff is None:
            self(f"s_mov_b32 s86, {off}")
        else:
            self(f"s_add_u32 s86, {soff}, {off}")
        self("s_mov_b32 s84, 0")
        np_ = PIPE if fast else 1

        def ld(k):
            for i in range(nl):
                self(f"buffer_load_dword v{vt+nl*(1+k)+i}, v{vt+i}, s[92:95], s86 offen {SC}")

        def chk(k):
            b = vt + nl * (1 + k)
            for i in range(nl):
                self(f"v_xor_b32 v{b+i}, s3, v{b+i}")
            for i in range(1, nl):
                self(f"v_or_b32 v{b}, v{b}, v{b+i}")
            self(f"v_cmp_ne_u32 vcc, 0, v{b}\ns_cbranch_vccz {D}")

        for k in range(np_ - 1):
            ld(k)
            self(f"s_sleep {PSLEEP}")
        self.label(L)
        for k in range(np_):
            ld((k + np_ - 1) % np_)
            self(f"s_waitcnt vmcnt({nl*(np_-1)})")
            chk(k)
            self(f"s_sleep {sleep if sleep else (PSLEEP if fast else SLEEP)}")
        self(f"s_add_u32 s84, s84, 1\ns_cmp_lt_u32 s84, {POLL_MAX}\ns_cbranch_scc1 {L}")
        self.label(D)
        if np_ > 1:
            self.vm = [None] * (nl * (np_ - 1))
        else:
            self.vm = []

    def publish(self, off, sidx, vt):
        self(f"s_mul_i32 s85, s{sidx}, {FS_}\ns_add_u32 s85, s85, {off}\nv_mov_b32 v{vt}, s3\nv_mov_b32 v{vt+1}, s85\ns_mov_b64 exec, 1")
        self.vmem(f"buffer_store_dword v{vt}, v{vt+1}, s[92:95], 0 offen {SC}")
        self("s_mov_b64 exec, -1")


def ln_finish(a, vs, vq, vt, vnegm, vrinv):
    a(f"v_mul_f32 v{vs}, {hex(INV640)}, v{vs}")
    a(f"v_mul_f32 v{vq}, {hex(INV640)}, v{vq}")
    a(f"v_fma_f32 v{vq}, -v{vs}, v{vs}, v{vq}")
    a(f"v_max_f32 v{vq}, 0, v{vq}")
    a.rnd(vnegm, vs)
    a(f"v_xor_b32 v{vnegm}, 0x80000000, v{vnegm}")
    a.rnd(vt, vq)
    a(f"v_add_f32 v{vt}, {hex(EPS)}, v{vt}")
    a.rnd(vt, vt)
    a(f"v_sqrt_f32 v{vt}, v{vt}\ns_nop 0")
    a.rnd(vt, vt)
    a(f"v_rcp_f32 v{vrinv}, v{vt}\ns_nop 0")


def cmul(a, d, x, y, t):
    a(f"v_pk_mul_f32 {q(t,2)}, {q(x,2)}, {q(y,2)} op_sel_hi:[1,0]")
    a(f"v_pk_fma_f32 {q(d,2)}, {q(x,2)}, {q(y,2)}, {q(t,2)} op_sel:[1,1,0] op_sel_hi:[0,1,1] neg_lo:[1,0,0]")


DLY = os.environ.get("DLY", "")


def delay(a, tag):
    if tag in DLY:
        a("s_sleep 32")


def epoch_ready(a):
    a("s_waitcnt lgkmcnt(0)\ns_add_u32 s3, s3, 1")


LDS_CNT = 163824


LDS_CNT2 = 4096


def last_of4_publish(a, addr, off, sidx, vt):
    sk = a.newlabel("L_notlast")
    a(f"v_mov_b32 v{vt}, {addr}\nv_mov_b32 v{vt+1}, 1\ns_mov_b64 exec, 1")
    a(f"ds_add_rtn_u32 v{vt+1}, v{vt}, v{vt+1}\ns_mov_b64 exec, -1\ns_waitcnt lgkmcnt(0)")
    a(f"v_readfirstlane_b32 s85, v{vt+1}\ns_nop 3\ns_cmp_lg_u32 s85, 3\ns_cbranch_scc1 {sk}")
    a.publish(off, sidx, vt)
    a.label(sk)


LN_RS = 1312
LN_U = 32 * LN_RS


def role_ln1(a):
    a("v_lshl_add_u32 v5, v2, 2, v3")
    a(f"s_mul_i32 s53, s52, {32*1280}")
    a("v_mul_u32_u24 v6, 1280, v5\nv_lshl_add_u32 v6, v4, 4, v6\nv_add_u32 v6, s53, v6")
    a.srd(32, 8, 0, SZ_T)
    X = 16
    for j in range(5):
        a.vmem(f"buffer_load_dwordx4 {q(X+4*j)}, v6, s[32:35], 0 offen offset:{j*256}", ("x", j))
    a(f"v_mul_u32_u24 v7, {LN_RS}, v5\nv_lshl_add_u32 v7, v4, 4, v7")
    a(f"s_mov_b32 s54, {hex(ONES_BF)}")
    a.srd(36, 4, WS_ST, 16384)
    a.srd(40, 4, WS_XT, SZ_TP)
    a("v_bfe_u32 v8, v1, 2, 2\nv_lshl_add_u32 v8, v3, 3, v8")
    a(f"v_mul_u32_u24 v8, {LN_RS}, v8\nv_and_b32 v9, 3, v1\nv_lshl_add_u32 v8, v9, 3, v8")
    a("v_mul_u32_u24 v9, 160, v2\nv_add_u32 v8, v8, v9")
    a("v_mul_u32_u24 v9, 80, v2\nv_add_u32 v9, v9, v4\nv_lshlrev_b32 v9, 6, v9\nv_lshl_add_u32 v9, v3, 4, v9")
    a(f"s_mul_i32 s53, s52, {T_BLK}\ns_add_u32 s55, s53, 4096\ns_lshl_b32 s56, s52, 7")
    a(f"v_lshlrev_b32 v10, 2, v5\nv_and_b32 v11, 1, v4\nv_lshl_add_u32 v10, v11, 7, v10\nv_add_u32 v10, {LN_U}, v10")
    R = 56
    S0, S1, Q0, Q1, NM, RI, TT = 80, 81, 82, 83, 84, 85, 88
    a(f"v_mov_b32 v{S0}, 0\nv_mov_b32 v{S1}, 0\nv_mov_b32 v{Q0}, 0\nv_mov_b32 v{Q1}, 0\nv_cmp_eq_u32 s[58:59], 1, v11")
    epoch_ready(a)
    for j in range(5):
        a.wait_vm(("x", j))
        if j == 0:
            a.stamp(1)
        a(f"ds_write_b128 v7, {q(X+4*j)} offset:{j*256}")
        for i in range(4 * j, 4 * j + 4):
            a(f"v_dot2c_f32_bf16 v{S0 + (i&1)}, s54, v{X+i}")
            a(f"v_dot2c_f32_bf16 v{Q0 + (i&1)}, v{X+i}, v{X+i}")
    a("s_waitcnt lgkmcnt(0)\ns_barrier")
    a.stamp(2)
    for i in range(5):
        a(f"ds_read_b64_tr_b16 {q(R+4*i,2)}, v8 offset:{32*i}")
        a(f"ds_read_b64_tr_b16 {q(R+4*i+2,2)}, v8 offset:{32*i + 4*LN_RS}")
    a(f"v_add_f32 v{S0}, v{S0}, v{S1}\nv_add_f32 v{Q0}, v{Q0}, v{Q1}")
    for i in range(5):
        a(f"s_waitcnt lgkmcnt({8-2*i})")
        a.vmem(f"buffer_store_dwordx4 {q(R+4*i)}, v9, s[40:43], {'s53' if i < 4 else 's55'} offen offset:{1024*(i%4)} {SC}")
    for sh in (8, 4, 2, 1):
        a(f"v_add_f32_dpp v{S0}, v{S0}, v{S0} row_ror:{sh} row_mask:0xf bank_mask:0xf")
        a(f"v_add_f32_dpp v{Q0}, v{Q0}, v{Q0} row_ror:{sh} row_mask:0xf bank_mask:0xf")
        a("s_nop 0")
    ln_finish(a, S0, Q0, TT, NM, RI)
    a(f"v_cndmask_b32 v{NM}, v{NM}, v{RI}, s[58:59]")
    a(f"ds_write_b32 v10, v{NM}")
    a("s_waitcnt lgkmcnt(0)\ns_barrier")
    sk = a.newlabel("L_lnst")
    a(f"s_cmp_lg_u32 s6, 7\ns_cbranch_scc1 {sk}")
    a(f"v_lshlrev_b32 v10, 2, v1\nv_add_u32 v11, {LN_U}, v10\nds_read_b32 v12, v11")
    a("v_lshrrev_b32 v11, 5, v1\nv_mul_u32_u24 v11, 8064, v11\nv_add_u32 v10, v10, v11\ns_waitcnt lgkmcnt(0)")
    a.vmem(f"buffer_store_dword v12, v10, s[36:39], s56 offen {SC}")
    a.label(sk)
    a("s_waitcnt vmcnt(0)\ns_barrier")
    a.stamp(3)
    sk = a.newlabel("L_lnp")
    a(f"s_cmp_lg_u32 s6, 7\ns_cbranch_scc1 {sk}")
    delay(a, "b")
    a.publish(F_L, 52, 10)
    a.label(sk)
    sk = a.newlabel("L_lnrp")
    a(f"s_cmp_ge_u32 s6, 5\ns_cbranch_scc1 {sk}")
    a(f"s_mul_i32 s55, s52, 5\ns_add_u32 s55, s55, s6\ns_mul_i32 s56, s6, 12288\ns_add_u32 s56, s56, 49152")
    rp13_issue(a)
    a("s_waitcnt vmcnt(0)")
    rp13_finish(a)
    a("s_waitcnt vmcnt(0)")
    delay(a, "c")
    a.publish(F_R, 55, 10)
    a.label(sk)


W13_J = [[0, 1, 2], [4, 5, 3]]


RP_BASE = 2 * LN_U


def rp13_issue(a):
    a("s_mul_i32 s57, s55, 205\ns_lshr_b32 s57, s57, 12")
    a("s_mul_i32 s58, s57, 20\ns_sub_u32 s58, s55, s58")
    a.srd(44, 24, 0, 640 * 3072)
    a.srd(48, 26, 0, 640 * 3072)
    a(f"s_mul_i32 s57, s57, 192\ns_mul_i32 s58, s58, {32*3072}\ns_add_u32 s57, s57, s58")
    for i in range(6):
        a(f"v_add_u32 v10, {64*i}, v1\nv_mul_u32_u24 v11, 43691, v10\nv_lshrrev_b32 v11, 19, v11")
        a(f"v_mul_u32_u24 v12, 12, v11\nv_sub_u32 v12, v10, v12\nv_mul_u32_u24 v11, 3072, v11\nv_lshl_add_u32 v13, v12, 4, v11")
        for mat in range(2):
            a(f"s_add_u32 m0, s56, {mat*6144 + i*1024}\ns_nop 0")
            a(f"buffer_load_dwordx4 v13, s[{44+4*mat}:{47+4*mat}], s57 offen lds")


def rp13_finish(a):
    a("v_lshlrev_b32 v5, 4, v1")
    a("v_bfe_u32 v6, v1, 2, 2\nv_lshl_add_u32 v6, v3, 2, v6\nv_and_b32 v7, 3, v1")
    a("v_mul_u32_u24 v16, 192, v6\nv_lshl_add_u32 v16, v7, 3, v16\nv_add_u32 v16, s56, v16")
    OH, ACC, F = 32, 80, 84
    for t in range(12):
        wn, mat, jj = t // 6, (t % 6) // 3, t % 3
        off = mat * 6144 + 32 * W13_J[wn][jj]
        a(f"ds_read_b64_tr_b16 {q(F+4*t,2)}, v16 offset:{off}")
        a(f"ds_read_b64_tr_b16 {q(F+4*t+2,2)}, v16 offset:{off + 16*192}")
    a.srd(40, 4, WS_W13, SZ_W13)
    a.srd(44, 4, WS_CSP, SZ_CSP)
    a("s_mul_i32 s57, s55, 12288\ns_add_u32 s58, s57, 4096\ns_add_u32 s59, s57, 8192")
    a("s_waitcnt lgkmcnt(0)")
    for t in range(12):
        a(f"buffer_store_dwordx4 {q(F+4*t)}, v5, s[40:43], s{57 + t//4} offen offset:{1024*(t%4)} {SC}")
    a(f"v_mov_b32 v8, {hex(ONES_BF)}")
    a("v_lshlrev_b32 v9, 6, v4\nv_lshl_add_u32 v9, v3, 4, v9\ns_mul_i32 s60, s55, 768")
    for t in range(12):
        a(f"v_cmp_eq_u32 vcc, {t}, v4\ns_nop 1")
        for i in range(4):
            a(f"v_cndmask_b32 v{OH+4*t+i}, 0, v8, vcc")
    a("s_nop 1")
    for t in range(12):
        a(f"v_mfma_f32_16x16x32_bf16 {q(ACC)}, {q(F+4*t)}, {q(OH+4*t)}, {q(ACC) if t else 0}")
    a("s_nop 7\nv_cmp_gt_u32 vcc, 12, v4\ns_and_saveexec_b64 s[82:83], vcc")
    a(f"buffer_store_dwordx4 {q(ACC)}, v9, s[44:47], s60 offen {SC}")
    a(f"s_mov_b64 exec, s[82:83]")


def role_rp2(a):
    a.vm = []
    a("s_mul_i32 s54, s6, 12288")
    a("v_lshlrev_b32 v5, 4, v1")
    a("v_bfe_u32 v6, v1, 2, 2\nv_lshl_add_u32 v6, v3, 2, v6\nv_and_b32 v7, 3, v1")
    a("s_mul_i32 s55, s53, 171\ns_lshr_b32 s55, s55, 12")
    a("s_mul_i32 s56, s55, 24\ns_sub_u32 s56, s53, s56")
    a.srd(32, 28, 0, 1536 * 1280)
    a(f"s_mul_i32 s57, s55, 160\ns_mul_i32 s58, s56, {64*1280}\ns_add_u32 s57, s57, s58\ns_add_u32 s58, s57, {32*1280}")
    for i in range(5):
        a(f"v_add_u32 v8, {64*i}, v1\nv_mul_u32_u24 v9, 52429, v8\nv_lshrrev_b32 v9, 19, v9")
        a(f"v_mul_u32_u24 v16, 10, v9\nv_sub_u32 v16, v8, v16\nv_mul_u32_u24 v9, 1280, v9\nv_lshl_add_u32 v{10+i}, v16, 4, v9")
        for un in range(2):
            a(f"s_add_u32 m0, s54, {un*5120 + i*1024}\ns_nop 0")
            a.vmem(f"buffer_load_dwordx4 v{10+i}, s[32:35], s{57+un} offen lds", "w")
    a.srd(40, 4, WS_W2, SZ_W2)
    a("s_mul_i32 s60, s56, 171\ns_lshr_b32 s60, s60, 9\ns_mul_i32 s60, s60, 3\ns_sub_u32 s60, s56, s60")
    for un in range(2):
        a(f"s_cmp_eq_u32 s60, {2 if un == 0 else 0}\ns_cselect_b32 s61, 640, 0\ns_mul_i32 s62, s61, 3\ns_sub_u32 s62, 2560, s62")
        a(f"v_mul_u32_u24 v16, 160, v6\nv_mul_u32_u24 v8, s61, v3\nv_add3_u32 v16, v16, v8, s54")
        b = 18 + 4 * un
        a(f"v_lshl_add_u32 v{b}, v7, 4, v16\nv_lshl_add_u32 v{b+1}, v7, 3, v16\nv_add_u32 v{b+2}, s62, v{b}\nv_add_u32 v{b+3}, s62, v{b+1}")
    a("s_mul_i32 s57, s53, 10240\ns_add_u32 s58, s57, 4096\ns_add_u32 s59, s57, 8192")
    if W2LATE:
        a("s_waitcnt vmcnt(0)")
    else:
        a(f"s_lshl_b32 s60, s52, {8}")
        a.poll(F_L, 1, 26, "s60", sleep=LSLEEP)
    F = 32
    for k in range(10):
        un, t = divmod(k, 5)
        b = 18 + 4 * un + (0 if t < 4 else 1)
        off = un * 5120 + ((t >> 1) * 64 + (t & 1) * 8 if t < 4 else 128)
        a(f"ds_read_b64_tr_b16 {q(F+4*k,2)}, v{b} offset:{off}")
        a(f"ds_read_b64_tr_b16 {q(F+4*k+2,2)}, v{b+2} offset:{off}")
    a("s_waitcnt lgkmcnt(0)")
    for k in range(10):
        a.vmem(f"buffer_store_dwordx4 {q(F+4*k)}, v5, s[40:43], s{57 + k//4} offen offset:{1024*(k%4)} {SC}")


TB_RS = 272
TB_SZ = 57 * TB_RS
CV_CS = 1344
CV_A = 0
CV_D2 = 4 * CV_CS
CV_D3 = CV_D2 + 2048
CV_U = CV_D3 + 1280
CV_X = CV_U + 4608
CV_W3 = CV_X + 4096
CV_W5 = CV_W3 + 3104
CV_W7 = CV_W5 + 3104
CV_W9 = CV_W7 + 2080
CV_WAVE = CV_W9 + 2080
KP_BASE = 126976
PART_BASE = 145408
RP_LDS = [101632, 113920]


def kgen(a):
    a.vm = []
    a(f"s_mul_i32 s53, s6, {TB_SZ}")
    a("s_lshr_b32 s54, s6, 2")
    a("s_mul_i32 s55, s52, 384\ns_lshl_b32 s56, s54, 7\ns_add_u32 s55, s55, s56\nv_lshlrev_b32 v5, 1, v1")
    a("s_lshl_b32 s56, s52, 1\nv_mov_b32 v6, 0")
    PR, DT = 8, 92
    PR2 = 96
    a.srd(48, 18, 0, 1280)
    a.vmem(f"buffer_load_ushort v{DT}, v6, s[48:51], s56 offen", "par")
    for i in range(4):
        a.srd(32 + 4 * i, 10 + 2 * i, 0, 640 * 192 * 2)
        a.vmem(f"buffer_load_ushort v{PR+i}, v5, s[{32+4*i}:{35+4*i}], s55 offen", "par")
    for i in range(4):
        a.vmem(f"buffer_load_ushort v{PR2+i}, v5, s[{32+4*i}:{35+4*i}], s55 offen offset:256", "par2")
    a.srd(48, 20, 0, 1280)
    a.vmem("buffer_load_ushort v240, v6, s[48:51], s56 offen", "par2")
    VW, VR, DK = 6, 7, 80
    a(f"v_lshlrev_b32 v{VW}, 2, v1\nv_add_u32 v{VW}, s53, v{VW}")
    a(f"v_mul_u32_u24 v{VR}, {TB_RS}, v4\nv_lshl_add_u32 v{VR}, v3, 4, v{VR}\nv_add_u32 v{VR}, s53, v{VR}")
    for i in range(12):
        a(f"v_mov_b32 v{DK+i}, 0")
    a("s_cmp_ge_u32 s6, 4\ns_cbranch_scc1 L_kg_nopre")
    conv_main_pre(a)
    a.label("L_kg_nopre")
    epoch_ready(a)
    a.wait_vm("par")
    a.stamp(1)
    a(f"v_lshlrev_b32 v{DT}, 16, v{DT}\nv_mul_f32 v{DT}, {hex(LOG2E)}, v{DT}\nv_exp_f32 v{DT}, v{DT}\ns_nop 0")
    a.rnd(DT, DT)
    a.label("L_kgen")
    A2, W, Z8, Y, GC, T0, T1, T2, XT = 16, 17, 18, 20, 22, 24, 26, 28, 30
    E = [None] + [32 + 2 * i for i in range(7)]
    G1 = 46
    PK = [48, 49, 50, 51]
    pkc = [0]

    def put(row, re, im):
        r = PK[pkc[0] % 4]
        pkc[0] += 1
        a(f"v_cvt_pk_bf16_f32 v{r}, {re}, {im}")
        a(f"ds_write_b32 v{VW}, v{r} offset:{row*TB_RS}")

    def putp(row, p):
        put(row, f"v{p}", f"v{p+1}")

    a(f"v_lshlrev_b32 v{PR}, 16, v{PR}\nv_mul_f32 v{A2}, {hex(LOG2E)}, v{PR}\nv_exp_f32 v{A2}, v{A2}")
    for i in range(1, 4):
        a(f"v_lshlrev_b32 v{PR+i}, 16, v{PR+i}")
    a.rnd(A2, A2)
    a(f"v_mul_f32 v{W}, v{PR+1}, v{DT}")
    a(f"v_mul_f32 v{A2}, v{A2}, v{DT}")
    a(f"v_mul_f32 v{W}, {hex(INV2PI)}, v{W}")
    a(f"v_mul_f32 v{A2}, {hex(NLOG2E)}, v{A2}")
    a(f"v_rndne_f32 v{T0}, v{W}")
    a(f"v_mul_f32 v{Y}, v{PR+2}, v{DT}\nv_mul_f32 v{Y+1}, v{PR+3}, v{DT}")
    a(f"v_sub_f32 v{W}, v{W}, v{T0}")
    a(f"v_mul_f32 v{Y}, 2.0, v{Y}\nv_mul_f32 v{Y+1}, -2.0, v{Y+1}")

    def base(dst, mult, conj, T):
        m = {1: "1.0", 8: hex(0x41000000), 128: hex(0x43000000)}[mult]
        a(f"v_mul_f32 v{T}, {m}, v{A2}\nv_mul_f32 v{T+1}, {m}, v{W}")
        a(f"v_exp_f32 v{T}, v{T}\nv_cos_f32 v{dst}, v{T+1}\nv_sin_f32 v{dst+1}, v{T+1}\ns_nop 0")
        a(f"v_mul_f32 v{dst}, v{dst}, v{T}")
        a(f"v_mul_f32 v{dst+1}, {'-' if conj else ''}v{dst+1}, v{T}")

    base(E[1], 1, False, T0)
    base(Z8, 8, True, T1)
    base(G1, 128, False, T2)
    put(0, "1.0", "0")
    putp(1, E[1])
    putp(41, Y)
    cmul(a, E[2], E[1], E[1], T0)
    putp(8, G1)
    cmul(a, E[3], E[2], E[1], T0)
    cmul(a, E[4], E[2], E[2], T1)
    putp(2, E[2])
    cmul(a, E[5], E[4], E[1], T0)
    cmul(a, E[6], E[4], E[2], T1)
    cmul(a, E[7], E[4], E[3], T2)
    for e in range(3, 8):
        putp(e, E[e])
    ops = []
    for e in range(1, 8):
        ops.append(("x", 8 + e, G1, E[e]))
    for g in range(2, 17):
        ops.append(("g", g))
        if g in (2, 3):
            for i, e in enumerate((2, 4, 6)):
                ops.append(("x", 16 + (g - 2) * 4 + 1 + i, GC, E[e]))
        elif g < 8:
            ops.append(("x", 24 + (g - 4) * 2 + 1, GC, E[4]))
    yb = 1
    for k, op in enumerate(ops):
        if op[0] == "x":
            x = XT if (k & 1) else T2
            cmul(a, x, op[2], op[3], x)
            putp(op[1], x)
        else:
            g = op[1]
            cmul(a, GC, G1 if g == 2 else GC, G1, T1)
            row = 16 + (g - 2) * 4 if g < 4 else (24 + (g - 4) * 2 if g < 8 else 32 + (g - 8))
            putp(row, GC)
        if (k & 1) and yb < 16:
            cmul(a, Y, Y, Z8, T0)
            putp(41 + yb, Y)
            yb += 1
    assert yb == 16
    FR = 16
    a("s_waitcnt lgkmcnt(0)")
    for st in range(4):
        f = FR + 16 * st
        if st == 3:
            a("s_waitcnt lgkmcnt(8)")
        a(f"ds_read_b128 {q(f)}, v{VR} offset:{41*TB_RS + 64*st}")
        for t in range(3):
            a(f"ds_read_b128 {q(f+4+4*t)}, v{VR} offset:{16*t*TB_RS + 64*st}")
    a("s_waitcnt vmcnt(0)")
    for i in range(4):
        a(f"v_mov_b32 v{PR+i}, v{PR2+i}")
    for st in range(4):
        f = FR + 16 * st
        a(f"s_waitcnt lgkmcnt({12 - 4*st})")
        for t in range(3):
            a(f"v_mfma_f32_16x16x32_bf16 {q(DK+4*t)}, {q(f+4+4*t)}, {q(f)}, {q(DK+4*t)}")
    a("s_add_u32 s54, s54, 1\ns_cmp_lt_u32 s54, 2\ns_cbranch_scc1 L_kgen")
    a.vm = []


R_SC = 100
R_AD = 110
R_SP, R_ZH, R_GW, R_PT = 122, 123, 124, 125
R_DA, R_DL, R_DN, R_DD = 126, 127, 128, 129
VA, VF, VB2, VB3, VW2, VW3, VUX, VHO = 168, 169, 170, 171, 172, 173, 174, 175


def conv_main_pre(a):
    a(f"s_mul_i32 s57, s7, {CV_WAVE}\ns_mul_i32 s62, s7, 4224\ns_add_u32 s62, s62, {KP_BASE}")
    a(f"s_mul_i32 s63, s7, 3072\ns_add_u32 s63, s63, {PART_BASE}")
    a(f"v_lshlrev_b32 v140, 4, v1\nv_add_u32 v{R_PT}, s63, v140\nv_add_u32 v{R_GW}, s57, v140")
    a("v_lshlrev_b32 v141, 4, v4\nv_add_u32 v141, s62, v141")
    a("v_lshrrev_b32 v142, 1, v3\nv_and_b32 v143, 1, v3\nv_cmp_gt_u32 vcc, 2, v3")
    a(f"v_lshlrev_b32 v144, 8, v142\nv_lshl_add_u32 v144, v143, 3, v144\nv_add_u32 v{R_SC}, v144, v141")
    a("v_lshlrev_b32 v144, 8, v3\nv_add_u32 v144, 512, v144\nv_lshlrev_b32 v145, 9, v3")
    a(f"v_cndmask_b32 v144, v145, v144, vcc\nv_add_u32 v{R_SC+1}, v144, v141")
    for i in range(1, 4):
        a(f"v_mov_b32 v144, {4*i}\nv_mov_b32 v145, {256*(i>>1) + 8*(i&1)}")
        a(f"v_cndmask_b32 v144, v145, v144, vcc\nv_add_u32 v{R_SC+1+i}, v{R_SC+1}, v144")
    a("v_lshlrev_b32 v144, 10, v3\nv_lshl_add_u32 v144, v4, 4, v144\nv_add_u32 v144, 2048, v144\ns_movk_i32 s63, 4112")
    for i in range(4):
        r = R_SC + 5 + i
        a(f"v_add_u32 v{r}, {256*i}, v144\nv_min_u32 v{r}, s63, v{r}\nv_add_u32 v{r}, s62, v{r}")
    a("v_cmp_eq_u32 s[58:59], 63, v1")
    a(f"v_mul_u32_u24 v144, 43691, v1\nv_lshrrev_b32 v144, 19, v144\nv_mul_u32_u24 v144, {CV_CS - 192}, v144\nv_add_u32 v{R_ZH}, v144, v{R_GW}")
    a("v_add_u32 v144, 509, v3\nv_add_u32 v144, v144, v4\nv_add_u32 v145, 1015, v4\nv_cmp_lt_u32 vcc, 11, v4")
    a("s_movk_i32 s63, 517\nv_cmp_ge_u32 s[60:61], s63, v144\nv_cndmask_b32 v144, v144, v145, vcc")
    a("v_subrev_u32 v145, 12, v4\nv_cmp_gt_u32 s[82:83], 2, v145")
    a(f"v_mov_b32 v145, {128 + 1080}\nv_mov_b32 v146, 2104\nv_cndmask_b32 v145, v145, v146, vcc\ns_or_b64 s[60:61], s[60:61], s[82:83]")
    a(f"v_mul_u32_u24 v146, {CV_CS + 2}, v3\nv_add3_u32 v145, v145, v146, s57\nv_lshlrev_b32 v144, 1, v144\nv_sub_u32 v{R_SP}, v145, v144\nv_cvt_f32_u32 v144, v144")
    a("v_sub_u32 v145, 1022, v140\nv_cvt_f32_u32 v145, v145")
    for m in range(0, 12, 2):
        f0 = R_AD + m
        a(f"v_add_f32 v{f0}, {hex(f32bits(-2.0*m))}, v145")
        a(f"v_add_f32 v{f0+1}, {hex(f32bits(-2.0*(m+1)))}, v145" if m < 10 else f"v_mov_b32 v{f0+1}, v144")
        a(f"v_cvt_pk_bf16_f32 v{f0}, v{f0}, v{f0+1}")
        a.unpack(f0, f0)
        a(f"v_cvt_u32_f32 v{f0}, v{f0}\nv_cvt_u32_f32 v{f0+1}, v{f0+1}")
        a(f"v_add_u32 v{f0}, s62, v{f0}\nv_add_u32 v{f0+1}, s62, v{f0+1}")
    a("v_cmp_gt_u32 vcc, 32, v1\nv_cmp_le_u32 s[82:83], 42, v1\nv_subrev_u32 v144, 32, v1\nv_lshrrev_b32 v146, 3, v1")
    a("v_cndmask_b32 v145, 0, 1, s[82:83]\nv_cndmask_b32 v145, v145, v146, vcc")
    a("v_mul_u32_u24 v146, 10, v145\nv_sub_u32 v144, v144, v146\nv_and_b32 v146, 7, v1\nv_cndmask_b32 v144, v144, v146, vcc")
    a("v_mov_b32 v146, 127\nv_mov_b32 v147, 79\nv_cndmask_b32 v146, v146, v147, vcc\nv_lshlrev_b32 v147, 3, v144\nv_sub_u32 v146, v146, v147")
    a("v_add_u32 v147, 1, v145\nv_lshlrev_b32 v148, 4, v147\nv_lshlrev_b32 v147, 3, v147\nv_cndmask_b32 v147, v148, v147, vcc")
    a(f"v_lshl_add_u32 v147, v146, 5, v147\nv_add_u32 v147, s62, v147\nv_subrev_u32 v{R_DA}, 320, v147")
    a(f"v_cmp_gt_u32 s[82:83], 8, v1\nv_mov_b32 v147, 64\nv_cndmask_b32 v147, v147, 32, vcc")
    a(f"v_cndmask_b32 v{R_DN}, v147, 31, s[82:83]\nv_cndmask_b32 v147, v147, 33, s[82:83]\nv_sub_u32 v{R_DL}, v146, v147")
    a(f"v_mov_b32 v146, 160\nv_mov_b32 v147, 128\nv_cndmask_b32 v146, v146, v147, vcc\nv_mov_b32 v147, {CV_D3}\nv_mov_b32 v148, {CV_D2}\nv_cndmask_b32 v147, v147, v148, vcc")
    a(f"v_mul_u32_u24 v148, v146, v145\nv_lshl_add_u32 v147, v148, 2, v147\nv_lshl_add_u32 v147, v144, 4, v147\nv_add_u32 v{R_DD}, s57, v147")
    for k in range(1, 4):
        a(f"v_add_u32 v{R_DD+k}, v{R_DD+k-1}, v146")
    a("v_and_b32 v144, 3, v4\nv_lshrrev_b32 v145, 2, v4\nv_lshlrev_b32 v145, 3, v145\nv_lshlrev_b32 v146, 4, v3")
    a(f"v_mul_u32_u24 v{VA}, {CV_CS}, v144\nv_sub_u32 v{VA}, v{VA}, v145\nv_sub_u32 v{VA}, v{VA}, v146\nv_add_u32 v{VA}, {CV_A + 72}, v{VA}\nv_add_u32 v{VA}, s57, v{VA}")
    a(f"v_lshlrev_b32 v{VF}, 5, v4\nv_sub_u32 v{VF}, v{VF}, v146\nv_add_u32 v{VF}, {CV_U + 496 - 448}, v{VF}\nv_add_u32 v{VF}, s57, v{VF}")
    a("v_lshl_add_u32 v144, v142, 2, v144\nv_lshlrev_b32 v146, 3, v143\nv_sub_u32 v146, v146, v145\nv_add3_u32 v146, v146, 24, s57")
    a(f"v_lshl_add_u32 v{VB2}, v144, 7, v146\nv_add_u32 v{VB2}, {CV_D2}, v{VB2}\nv_mul_u32_u24 v{VB3}, 160, v144\nv_add_u32 v{VB3}, v{VB3}, v146\nv_add_u32 v{VB3}, {CV_D3}, v{VB3}")
    a("v_bfe_u32 v144, v1, 2, 2\nv_lshl_add_u32 v144, v143, 2, v144\nv_lshlrev_b32 v144, 5, v144\nv_and_b32 v145, 3, v1\nv_lshl_add_u32 v144, v145, 3, v144\nv_add_u32 v144, s57, v144")
    a(f"v_mul_u32_u24 v{VW2}, {CV_W5 - CV_W3 - 8}, v142\nv_add3_u32 v{VW2}, v{VW2}, v144, 8\nv_add_u32 v{VW2}, {CV_W3}, v{VW2}")
    a(f"v_mul_u32_u24 v{VW3}, {CV_W9 - CV_W7 - 16}, v142\nv_add3_u32 v{VW3}, v{VW3}, v144, 16\nv_add_u32 v{VW3}, {CV_W7}, v{VW3}")
    a(f"v_lshlrev_b32 v144, 5, v4\nv_lshl_add_u32 v144, v3, 3, v144\nv_add_u32 v{VUX}, s57, v144")
    for i in range(4):
        a(f"v_mov_b32 v{136+i}, 0")


def conv_main(a):
    DK = 80
    delay(a, "a")
    a.stamp(2)
    a("s_barrier")
    for t in range(3):
        a(f"ds_read_b128 {q(40+4*t)}, v{R_PT} offset:{1024*t}")
    a(f"s_mov_b32 s82, -1\ns_mov_b32 s83, 0xffff\ns_mov_b64 exec, s[82:83]\nds_write_b128 v{R_ZH}, v[136:139]\ns_mov_b64 exec, -1")
    a("s_waitcnt lgkmcnt(1)")
    for i in range(6):
        a(f"v_pk_add_f32 {q(DK+2*i,2)}, {q(DK+2*i,2)}, {q(40+2*i,2)}")
    for i in range(6):
        a(f"v_cvt_pk_bf16_f32 v{32+i}, v{DK+2*i}, v{DK+2*i+1}")
    a(f"ds_write_b64 v{R_SC}, v[32:33]")
    for i in range(4):
        a(f"ds_write_b16 v{R_SC+1+2*i}, v{34+i}\nds_write_b16_d16_hi v{R_SC+2+2*i}, v{34+i}")
    D, H, E = 16, 52, 64
    for m in range(6):
        a(f"ds_read_u16 v{D+m}, v{R_AD+2*m}")
        a(f"ds_read_u16 v{H+m}, v{R_AD+2*m+1}")
        if m == 1:
            a("s_waitcnt lgkmcnt(4)")
    for m in range(11):
        if m == 3:
            a("s_waitcnt lgkmcnt(3)")
        a(f"ds_read_u16 v{E+m}, v{R_DA} offset:{32*(10-m)}")
    a("s_mov_b64 exec, s[60:61]")
    a(f"ds_write_b16 v{R_SP}, v{H+5}")
    a("s_mov_b64 exec, -1")

    def windows(D, dst, C):
        C1, C2, C0 = C, C + 4, C + 8
        for m in range(4):
            a(f"v_mov_b32 v{C1+m}, v{D+1+m}")
            a(f"v_alignbit_b32 v{C2+m}, v{D+m+1}, v{D+m}, 16")
            a(f"v_alignbit_b32 v{C0+m}, v{D+m+2}, v{D+m+1}, 16")
        for k, c in enumerate((C0, C1, C2, D)):
            a(f"ds_write_b128 {dst(k)}".replace("DATA", q(c)))

    for m in range(5):
        a(f"v_lshl_or_b32 v{D+m}, v{H+m}, 16, v{D+m}")
    a(f"v_cndmask_b32 v{D+4}, v{D+4}, 0, s[58:59]\nv_cndmask_b32 v{D+5}, v{D+5}, 0, s[58:59]")
    windows(D, lambda k: f"v{R_GW}, DATA offset:{CV_A + k*CV_CS + 192}", 24)
    for m in range(11):
        a(f"v_subrev_u32 v{40+m}, {m}, v{R_DL}")
    a("s_waitcnt lgkmcnt(5)")
    for m in range(0, 11, 2):
        a(f"v_cmp_lt_u32 vcc, v{40+m}, v{R_DN}")
        if m < 10:
            a(f"v_cmp_lt_u32 s[82:83], v{41+m}, v{R_DN}")
        a(f"s_nop {0 if m < 10 else 1}\nv_cndmask_b32 v{E+m}, 0, v{E+m}, vcc")
        if m < 10:
            a(f"v_cndmask_b32 v{E+m+1}, 0, v{E+m+1}, s[82:83]")
    D2 = 76
    for m in range(5):
        a(f"v_lshl_or_b32 v{D2+m}, v{E+2*m+1}, 16, v{E+2*m}")
    a(f"v_mov_b32 v{D2+5}, v{E+10}")
    a("s_mov_b32 s82, -1\ns_mov_b32 s83, 0xfffff\ns_mov_b64 exec, s[82:83]")
    windows(D2, lambda k: f"v{R_DD+k}, DATA", 84)
    a("s_mov_b64 exec, -1")
    ACC = 16
    AS, FS, AX = [48, 88], [56, 96], 128
    T1, XF, DSV = 176, 208, 240
    a(f"v_lshlrev_b32 v{DSV}, 16, v{DSV}")
    a(f"v_lshrrev_b32 v144, 3, v4\ns_mov_b32 s63, 163840\nv_mul_lo_u32 v144, v144, s63")
    a(f"v_and_b32 v145, 7, v4\nv_lshl_add_u32 v144, v145, 5, v144\nv_lshl_add_u32 v{VHO}, v3, 3, v144")
    a.srd(36, 4, WS_HT, SZ_T)
    a("s_lshl_b32 s55, s52, 8")
    a("s_waitcnt lgkmcnt(0)")
    a.stamp(3)
    a("s_barrier")
    a.stamp(4)

    def rdA(r, qq):
        off = 1152 - 64 * qq if qq <= 16 else 0
        return [f"ds_read_b64 {q(r,2)}, v{VA} offset:{off}", f"ds_read_b64 {q(r+2,2)}, v{VA} offset:{off+8}"]

    def reads(s, c):
        o = rdA(AS[s], c)
        o += [f"ds_read_b128 {q(FS[s]+4*k)}, v{VF} offset:{512*k + 64*(7-c)}" for k in range(8)]
        return o + rdA(AS[s] + 4, 8 + c)

    def rd2(r, v, off, second):
        return [f"{'ds_read_b64_tr_b16' if second == 256 else 'ds_read_b64'} {q(r,2)}, v{v} offset:{off}",
                f"{'ds_read_b64_tr_b16' if second == 256 else 'ds_read_b64'} {q(r+2,2)}, v{v} offset:{off+second}"]

    def mf(nb, A, B, zero=False):
        return f"v_mfma_f32_16x16x32_bf16 {q(ACC+4*nb)}, {q(A)}, {q(B)}, {0 if zero else q(ACC+4*nb)}"

    def emit(mfs, extra):
        extra = list(extra)
        n = len(mfs)
        for i, m in enumerate(mfs):
            a(m)
            k = (len(extra) + (n - i) - 1) // (n - i)
            for _ in range(min(k, 3)):
                a(extra.pop(0))
        for x in extra:
            a(x)

    for i, r in enumerate(reads(0, 0) + rdA(AX, 16) + rdA(AX + 4, 32)):
        a(r)
        if i == 11:
            a("s_waitcnt lgkmcnt(6)")
    fu, fx = [], []
    for nb in range(8):
        for hh in range(2):
            p, src = T1 + 4 * nb + 2 * hh, T1 + 4 * nb + 2 + hh
            fu += [f"v_lshlrev_b32 v{p}, 16, v{src}", f"v_and_b32 v{p+1}, 0xffff0000, v{src}",
                   f"v_pk_mul_f32 {q(p,2)}, {q(p,2)}, {q(DSV,2)} op_sel_hi:[1,0]",
                   f"v_cvt_pk_bf16_f32 v{p}, v{p}, v{p+1}",
                   f"v_and_b32 v{p+1}, 0xffff0000, v{p}", f"v_lshlrev_b32 v{p}, 16, v{p}"]
            p, src = XF + 4 * nb + 2 * hh, XF + 4 * nb + 2 + hh
            fx += [f"v_lshlrev_b32 v{p}, 16, v{src}", f"v_and_b32 v{p+1}, 0xffff0000, v{src}"]
    ux = [f"ds_read_b64 {q(T1+4*nb+2,2)}, v{VUX} offset:{CV_U + 480 + 512*nb}" for nb in range(8)]
    ux += [f"ds_read_b64 {q(XF+4*nb+2,2)}, v{VUX} offset:{CV_X + 512*nb}" for nb in range(8)]
    B2 = {(p, d): 128 + 4 * (3 * p + d - 2) for p in range(2) for d in (2, 3, 4)}
    B3 = {d: 152 + 4 * (d - 4) for d in (4, 5, 6, 7)}
    WA = {g: 48 + 4 * g for g in range(6)}
    W3r = {g: 72 + 4 * g for g in range(4)}
    WB = {g: 88 + 4 * g for g in range(6)}
    far1 = []
    for d in (2, 3, 4):
        far1 += rd2(B2[0, d], VB2, 32 * (4 - d), 16)
    for g in range(6):
        far1 += rd2(WA[g], VW2, 512 * g + 16, 256)
    for d in (2, 3, 4):
        far1 += rd2(B2[1, d], VB2, 1024 + 32 * (4 - d), 16)
    far2 = []
    for g in range(6):
        far2 += rd2(WB[g], VW2, 512 * g, 256)
    far3 = []
    for g in range(4):
        far3 += rd2(W3r[g], VW3, 512 * g, 256) + rd2(B3[4 + g], VB3, 32 * (3 - g), 16)
    for c in range(8):
        s_ = c & 1
        a("s_waitcnt lgkmcnt(0)")
        mfs = [mf(m, AS[s_], FS[s_] + 4 * m, c == 0) for m in range(8)] + [mf(m + 1, AS[s_] + 4, FS[s_] + 4 * m) for m in range(7)]
        if c == 0:
            mfs += [mf(m + 2, AX, FS[0] + 4 * m) for m in range(6)] + [mf(m + 4, AX + 4, FS[0] + 4 * m) for m in range(4)]
            emit(mfs, reads(1, 1) + ["s_waitcnt lgkmcnt(4)"] + ux[:8] + ["s_waitcnt lgkmcnt(6)"] + ux[8:])
        elif c < 7:
            emit(mfs, reads(1 - s_, c + 1) + fu[16 * (c - 1):16 * c])
        else:
            a("s_barrier")
            emit(mfs, far1[:12] + ["s_waitcnt lgkmcnt(4)"] + far1[12:])
    a("s_waitcnt lgkmcnt(0)")
    emit([mf(g + d, WA[g], B2[0, d]) for d in (2, 3, 4) for g in range(8 - d) if g < 6], far2 + ["s_waitcnt lgkmcnt(2)"] + far3[:12])
    a("s_waitcnt lgkmcnt(12)")
    emit([mf(g + d, WB[g], B2[1, d]) for d in (2, 3, 4) for g in range(8 - d) if g < 6], far3[12:] + fx[:20])
    a("s_waitcnt lgkmcnt(0)")
    emit([mf(g + d, W3r[g], B3[d]) for d in (4, 5, 6, 7) for g in range(8 - d)], fx[20:])
    delay(a, "e")
    a.stamp(5)
    a("s_nop 4")
    for nb in range(8):
        y = ACC + 4 * nb
        o = 112 + 2 * nb
        for hh in range(2):
            t = y + 2 * hh
            a(f"v_cvt_pk_bf16_f32 v{t}, v{t}, v{t+1}")
            a.unpack(t, t)
            a(f"v_pk_add_f32 {q(t,2)}, {q(t,2)}, {q(T1+4*nb+2*hh,2)}")
            a(f"v_cvt_pk_bf16_f32 v{t}, v{t}, v{t+1}")
            a.unpack(t, t)
            a(f"v_pk_add_f32 {q(t,2)}, {q(t,2)}, {q(XF+4*nb+2*hh,2)}")
            a(f"v_cvt_pk_bf16_f32 v{o+hh}, v{t}, v{t+1}")
        a.vmem(f"buffer_store_dwordx2 {q(o,2)}, v{VHO}, s[36:39], s55 offen {SC}")
        a(f"s_add_u32 s55, s55, {2*163840}")
    a.stamp(6)
    a("s_waitcnt vmcnt(0)")
    last_of4_publish(a, LDS_CNT, F_C, 2, 120)


def conv_partner(a):
    DK = 80
    a(f"s_mul_i32 s53, s7, {CV_WAVE}")
    a(f"s_mul_i32 s55, s7, 3072\ns_add_u32 s55, s55, {PART_BASE}")
    a("v_lshlrev_b32 v7, 4, v1\nv_add_u32 v5, s55, v7")
    a("v_mov_b32 v20, 0\nv_mov_b32 v21, 0\nv_mov_b32 v22, 0\nv_mov_b32 v23, 0")
    a("v_add_u32 v9, s53, v7")
    a(f"v_lshrrev_b32 v16, 1, v1\nv_mul_u32_u24 v16, {CV_CS}, v16\nv_and_b32 v17, 1, v1\nv_lshl_add_u32 v16, v17, 4, v16\nv_add_u32 v16, {CV_A + 1216}, v16")
    for k, ad in enumerate([CV_W3, CV_W5, CV_W7, CV_W9, CV_W5 - 16, CV_W7 - 16, CV_W9 - 16, CV_WAVE - 16]):
        a(f"v_mov_b32 v17, {ad}\nv_cmp_eq_u32 vcc, {8+k}, v1\ns_nop 1\nv_cndmask_b32 v16, v16, v17, vcc")
    a("v_add_u32 v16, s53, v16")
    for t in range(3):
        a(f"ds_write_b128 v5, {q(DK+4*t)} offset:{1024*t}")
    a.stamp(2)
    a.srd(32, 4, WS_XT, SZ_TP)
    a.srd(36, 4, WS_ST, 16384)
    a(f"s_lshl_b32 s54, s2, 8\ns_mul_i32 s61, s7, {16*T_BLK}\ns_add_u32 s54, s54, s61\ns_lshl_b32 s61, s7, 11\ns_add_u32 s62, s61, 8192")
    a(f"v_lshrrev_b32 v8, 2, v1\nv_mul_u32_u24 v8, {T_BLK}, v8\nv_and_b32 v14, 3, v1\nv_lshl_add_u32 v8, v14, 4, v8")
    a("v_lshlrev_b32 v14, 5, v1\ns_lshl_b32 s63, s7, 10\nv_add_u32 v15, s63, v7")
    a("s_waitcnt lgkmcnt(0)\ns_barrier")
    a("s_mov_b64 exec, 0x3fffffff")
    a(f"ds_write_b128 v9, v[20:23] offset:{CV_U}")
    a("s_mov_b64 exec, 0xffff")
    a(f"ds_write_b128 v16, v[20:23]")
    a("s_mov_b64 exec, -1")
    a(f"s_mul_i32 s60, s7, {16*FS_}")
    a.poll(F_L, 16, 24, "s60", fast=True)
    a.stamp(3)
    XR, NM, RI, U = 32, 48, 56, 64
    for k in range(2):
        a.vmem(f"buffer_load_dwordx4 {q(NM+4*k)}, v14, s[36:39], s61 offen offset:{16*k} {SC}", "st")
        a.vmem(f"buffer_load_dwordx4 {q(RI+4*k)}, v14, s[36:39], s62 offen offset:{16*k} {SC}", "st")
    for ch in range(4):
        a.vmem(f"buffer_load_dwordx4 {q(XR+4*ch)}, v8, s[32:35], s54 offen offset:{64*ch} {SC}", ("x", ch))
    for ch in range(4):
        a.wait_vm(("x", ch))
        for i in range(4):
            t = 80 + 2 * i
            a.unpack(t, XR + 4 * ch + i)
            a(f"v_pk_add_f32 {q(t,2)}, {q(t,2)}, {q(NM+2*i,2)}")
            a(f"v_cvt_pk_bf16_f32 v{t}, v{t}, v{t+1}")
            a.unpack(t, t)
            a(f"v_pk_mul_f32 {q(t,2)}, {q(t,2)}, {q(RI+2*i,2)}")
            a(f"v_cvt_pk_bf16_f32 v{U+4*ch+i}, v{t}, v{t+1}")
        if ch == 2:
            a(f"v_add_u32 v15, {2*CV_WAVE}, v15")
        a(f"ds_write_b128 v15, {q(U+4*ch)} offset:{CV_U + 480 + CV_WAVE*(ch&1)}")
        a(f"ds_write_b128 v15, {q(XR+4*ch)} offset:{CV_X + CV_WAVE*(ch&1)}")
    a("s_waitcnt lgkmcnt(0)")
    a.stamp(4)
    a("s_barrier")
    for r in range(3):
        P = 32 + 8 * r
        a(f"ds_read_b64 {q(P,2)}, v9 offset:{CV_U + 480 - 16 - 8 + 1024*r}")
        a(f"ds_read_b128 {q(P+2)}, v9 offset:{CV_U + 480 - 16 + 1024*r}")
        a(f"ds_read_b64 {q(P+6,2)}, v9 offset:{CV_U + 480 + 1024*r}")
    Ef, S_, O_ = 64, 80, 96
    for r in range(3):
        P = 32 + 8 * r
        a(f"s_waitcnt lgkmcnt({[6, 7, 8][r]})")
        for i in range(8):
            a.unpack(Ef + 2 * i, P + i)
        e = lambda k: Ef + 4 + k
        for h in range(1, 5 if r < 2 else 3):
            if h & 1:
                for i in range(8):
                    a(f"v_add_f32 v{88+i}, v{e(i-h)}, v{e(i+h)}")
            else:
                for i in range(0, 8, 2):
                    a(f"v_pk_add_f32 {q(88+i,2)}, {q(e(i-h),2)}, {q(e(i+h),2)}")
            for i in range(0, 8, 2):
                a(f"v_pk_add_f32 {q(S_+i,2)}, {q(88+i,2)}, {q(e(i) if h == 1 else S_+i,2)}")
            O = O_ + 4 * (h - 1)
            for i in range(4):
                a(f"v_cvt_pk_bf16_f32 v{O+i}, v{S_+2*i}, v{S_+2*i+1}")
            a(f"ds_write_b128 v9, {q(O)} offset:{[CV_W3, CV_W5, CV_W7, CV_W9][h-1] + 16 + 1024*r}")
    a("s_waitcnt lgkmcnt(0)\ns_barrier")


G1_H = 5120
G1_HN = 5
G1_W = 87040
G1_WN = 3
G1_CONST = 0
G1_CS = 2048
G1_SP = 3072
G2_W = 5120
G2_SLOT = [0, 1, 2, 6, 3, 4, 5]
LDS_TOTAL = 163840


def tile_ids(a):
    a("s_and_b32 s12, s2, 7\ns_lshr_b32 s13, s2, 3\ns_and_b32 s14, s13, 7\ns_lshr_b32 s15, s13, 3")
    a("s_and_b32 s8, s12, 1\ns_lshl_b32 s8, s8, 3\ns_add_u32 s8, s8, s14")
    a("s_lshr_b32 s9, s12, 1\ns_lshl_b32 s10, s9, 3\ns_lshl_b32 s9, s9, 2\ns_add_u32 s9, s9, s15")
    a("s_add_u32 s10, s10, s14")
    a("s_and_b32 s11, s12, 1\ns_lshl_b32 s11, s11, 2\ns_add_u32 s11, s11, s15")
    if G2MAP == 1:
        a("s_lshl_b32 s10, s12, 2\ns_and_b32 s11, s13, 3\ns_add_u32 s10, s10, s11\ns_lshr_b32 s11, s13, 2")
    if G2MAP == 2:
        a("s_and_b32 s10, s12, 1\ns_lshl_b32 s10, s10, 4\ns_and_b32 s11, s13, 15\ns_add_u32 s10, s10, s11\ns_lshr_b32 s11, s12, 1\ns_lshl_b32 s11, s11, 1\ns_lshr_b32 s14, s13, 4\ns_add_u32 s11, s11, s14")
    a("v_bfe_u32 v5, v1, 2, 2")
    a("v_lshl_add_u32 v6, v3, 2, v5\nv_lshlrev_b32 v6, 8, v6")
    a("v_and_b32 v7, 3, v1\nv_lshl_add_u32 v6, v7, 3, v6")
    a("v_and_b32 v7, 1, v3\nv_lshl_add_u32 v5, v7, 2, v5")


def gemm_mfma_waves(a, done):
    tile_ids(a)
    if EXP & 16:
        sk = a.newlabel("L_nowarm")
        a(f"s_cmp_lt_u32 s2, 160\ns_cbranch_scc1 {sk}")
        a("s_sub_u32 s16, s13, 20\ns_lshl_b32 s16, s16, 2\ns_add_u32 s16, s16, s7\ns_mul_i32 s16, s16, 20480")
        a("v_lshlrev_b32 v8, 4, v1")
        for which in range(2):
            if which == 0:
                a(f"s_lshr_b32 s17, s12, 1\ns_mul_i32 s18, s17, {80*FS_}\ns_mul_i32 s17, s17, 983040")
                a.srd(32, 4, WS_W13, SZ_W13)
                a.poll(F_R, 80, 120, "s18")
            else:
                a("s_and_b32 s17, s12, 1\ns_mul_i32 s17, s17, 983040")
                a.srd(32, 4, WS_W2, SZ_W2)
                a.poll(F_R2, 32, 120, sleep=LSLEEP)
            a("s_add_u32 s17, s17, s16")
            for i in range(20):
                a(f"buffer_load_dwordx4 {q(24+4*i)}, v8, s[32:35], s17 offen offset:{1024*(i%4)}")
                if i % 4 == 3:
                    a("s_add_u32 s17, s17, 4096")
        a("s_waitcnt vmcnt(0)")
        a.label(sk)
    a("s_barrier")
    if EXP & 1024:
        a("s_setprio 2")
    elif EXP & 512:
        a("s_setprio 0")
    a("s_and_b32 s16, s7, 1\ns_lshr_b32 s17, s7, 1")
    a("s_lshl_b32 s18, s16, 2\nv_xor_b32 v5, s18, v5")
    for nt in range(4):
        a(f"v_xor_b32 v7, {nt}, v5\nv_lshl_add_u32 v{12+nt}, v7, 5, v6")
    a("v_lshlrev_b32 v16, 4, v1\ns_mul_i32 s18, s17, 6144\nv_add_u32 v16, s18, v16")
    ACC, HS, AD = 24, [120, 160], 17
    for i in range(96):
        a(f"v_mov_b32 v{ACC+i}, 0")

    def reads(s, half):
        o = []
        for nt in range(4):
            r = HS[s] + 4 * nt
            o.append(f"ds_read_b64_tr_b16 {q(r,2)}, v{AD+nt} offset:{8192*half}")
            o.append(f"ds_read_b64_tr_b16 {q(r+2,2)}, v{AD+nt} offset:{8192*half + 4096}")
        for t in range(6):
            o.append(f"ds_read_b128 {q(HS[s]+16+4*t)}, v{AD+4} offset:{12288*half + 1024*t}")
        return o

    def setad(hs, ws):
        return [f"v_add_u32 v{AD+i}, {hs}, v{12+i}" for i in range(4)] + [f"v_add_u32 v{AD+4}, {ws}, v16"]

    for x in setad(G1_H, G1_W):
        a(x)
    a(f"s_mov_b32 s19, {G1_H}\ns_mov_b32 s20, {G1_W}\ns_mov_b32 s21, 0")
    a.srd(32, 4, WS_HM, SZ_HM)
    a.stamp(7)
    sk = a.newlabel("L_nopoll")
    a(f"s_cmp_lg_u32 s6, 0\ns_cbranch_scc1 {sk}")
    a.poll(F_R2, 32, 120, sleep=LSLEEP)
    a(f"s_and_b32 s21, s2, 127\ns_mul_i32 s21, s21, {FS_}")
    a.poll(F_C, 1, 120, "s21", sleep=LSLEEP)
    a("s_mov_b32 s21, 0")
    a.poll(F_C, 160, 120, fast=True)
    a(f"s_cmp_lg_u32 s2, 0\ns_cbranch_scc1 {sk}")
    a("v_mov_b32 v120, s3\nv_mov_b32 v121, 0\ns_mov_b64 exec, 1")
    a("buffer_store_dword v120, v121, s[92:95], 0 offen\ns_mov_b64 exec, -1")
    a.label(sk)
    a("s_barrier")
    a.stamp(8)
    a("s_waitcnt vmcnt(0)\ns_barrier")
    a.stamp(9)
    for x in reads(0, 0):
        a(x)
    a.label("L_g1")
    for s in range(2):
        if s == 0:
            a(f"s_add_u32 s19, s19, 16384\ns_cmp_eq_u32 s19, {G1_H + G1_HN*16384}\ns_cselect_b32 s19, {G1_H}, s19")
            a(f"s_add_u32 s20, s20, 24576\ns_cmp_eq_u32 s20, {G1_W + G1_WN*24576}\ns_cselect_b32 s20, {G1_W}, s20")
            a("s_waitcnt lgkmcnt(0)")
            rest = reads(1, 1) + setad("s19", "s20")
        else:
            a("s_waitcnt lgkmcnt(0)\ns_barrier")
            rest = reads(0, 0)
        i = 0
        for t in range(6):
            for nt in range(4):
                ac = ACC + 4 * (t * 4 + nt)
                a(f"v_mfma_f32_16x16x32_bf16 {q(ac)}, {q(HS[s]+16+4*t)}, {q(HS[s]+4*nt)}, {q(ac)}")
                if i < len(rest):
                    a(rest[i])
                i += 1
    a("s_add_u32 s21, s21, 1\ns_cmp_lt_u32 s21, 10\ns_cbranch_scc1 L_g1")
    a.stamp(10)
    a("s_lshl_b32 s18, s16, 10\nv_lshlrev_b32 v5, 4, v4\nv_add_u32 v5, s18, v5")
    a("s_mul_i32 s18, s17, 384\nv_lshlrev_b32 v6, 4, v3\nv_add_u32 v6, s18, v6")
    a("s_lshl_b32 s22, s8, 1\ns_add_u32 s22, s22, s16\ns_mul_i32 s22, s22, 48")
    a("s_mul_i32 s23, s9, 3\ns_add_u32 s22, s22, s23")
    a("s_lshl_b32 s23, s17, 1\ns_add_u32 s23, s23, s22\ns_lshl_b32 s23, s23, 12")
    a("s_add_u32 s22, s22, 1\ns_lshl_b32 s22, s22, 12\ns_lshl_b32 s18, s17, 9\ns_add_u32 s22, s22, s18")
    a("v_and_b32 v7, 1, v3\nv_lshlrev_b32 v7, 10, v7\nv_lshrrev_b32 v8, 1, v3\nv_lshl_add_u32 v7, v8, 8, v7\nv_lshl_add_u32 v7, v4, 4, v7")
    a("s_waitcnt lgkmcnt(0)\ns_barrier")
    KC, CSR = 184, 160
    for nt in range(4):
        a(f"ds_read_b128 {q(KC+4*nt)}, v5 offset:{G1_CONST + 256*nt}")
    for t in range(6):
        a(f"ds_read_b128 {q(CSR+4*t)}, v6 offset:{G1_CS + 64*t}")
    a("v_lshlrev_b32 v5, 4, v1")
    a("s_waitcnt lgkmcnt(0)")
    delay(a, "f")
    a.stamp(11)
    T = 120
    for nt in range(4):
        O = 144 + 4 * (nt & 1)
        k = KC + 4 * nt
        for jj in range(3):
            g = ACC + 4 * (jj * 4 + nt)
            u = ACC + 4 * ((3 + jj) * 4 + nt)
            for hh in range(2):
                g2, u2 = g + 2 * hh, u + 2 * hh
                a(f"v_pk_fma_f32 {q(g2,2)}, {q(CSR+4*jj+2*hh,2)}, {q(k,2)}, {q(g2,2)} op_sel_hi:[1,0,1]")
                a(f"v_pk_fma_f32 {q(u2,2)}, {q(CSR+4*(3+jj)+2*hh,2)}, {q(k,2)}, {q(u2,2)} op_sel_hi:[1,0,1]")
            for hh in range(2):
                a(f"v_pk_mul_f32 {q(T+2*hh,2)}, {q(g+2*hh,2)}, {q(k,2)} op_sel:[0,1] op_sel_hi:[1,1]")
            for i in range(4):
                a(f"v_exp_f32 v{T+i}, v{T+i}")
            for hh in range(2):
                a(f"v_pk_mul_f32 {q(g+2*hh,2)}, {q(g+2*hh,2)}, {q(u+2*hh,2)}")
            for hh in range(2):
                a(f"v_pk_fma_f32 {q(T+2*hh,2)}, {q(T+2*hh,2)}, {q(k+2,2)}, {q(k+2,2)} op_sel_hi:[1,0,0]")
            for i in range(4):
                a(f"v_rcp_f32 v{T+i}, v{T+i}")
            a("s_nop 0")
            for hh in range(2):
                a(f"v_pk_mul_f32 {q(g+2*hh,2)}, {q(g+2*hh,2)}, {q(T+2*hh,2)}")
            for hh in range(2):
                d = O + 2 * jj + hh if jj < 2 else 152 + 4 * (nt >> 1) + 2 * (nt & 1) + hh
                a(f"v_cvt_pk_bf16_f32 v{d}, v{g+2*hh}, v{g+2*hh+1}")
            if jj == 1:
                a(f"buffer_store_dwordx4 {q(O)}, v5, s[32:35], s23 offen offset:{1024*nt} {SC}")
        if nt & 1:
            S = 152 + 4 * (nt >> 1)
            a(f"s_nop 1\nv_permlane16_swap_b32 v{S}, v{S+2}\nv_permlane16_swap_b32 v{S+1}, v{S+3}")
            a(f"buffer_store_dwordx4 {q(S)}, v7, s[32:35], s22 offen offset:{1024*(nt-1)} {SC}")
    a.stamp(12)
    a.vm = []
    ACC, FS, RES, VW, VH, HR, PD = 16, [56, 76], 96, 116, 120, 144, 12
    a("s_lshl_b32 s22, s16, 1\ns_add_u32 s22, s22, s17")
    a("s_lshr_b32 s18, s10, 1\ns_mul_i32 s18, s18, 163840\ns_mul_i32 s19, s11, 20480\ns_add_u32 s18, s18, s19")
    a("s_and_b32 s19, s10, 1\ns_lshl_b32 s19, s19, 7\ns_add_u32 s18, s18, s19\ns_lshl_b32 s19, s22, 5\ns_add_u32 s18, s18, s19")
    a("v_lshlrev_b32 v10, 1, v4\nv_lshl_add_u32 v11, v3, 10, v10\nv_lshl_add_u32 v10, v3, 11, v10")
    a("s_add_u32 s19, s18, 8192\ns_add_u32 s20, s18, 16384")
    a.srd(36, 4, WS_HT, SZ_T)
    a.srd(40, 30, 0, SZ_T)
    a("s_lshl_b32 s21, s8, 4\ns_add_u32 s21, s21, s9")
    a("s_waitcnt vmcnt(0)")
    last_of4_publish(a, LDS_CNT2, F_G, 21, 140)
    a.stamp(13)
    for p in range(2):
        for e in range(8):
            a.vmem(f"buffer_load_ushort v{RES+8*p+e}, v10, s[36:39], s{18+p} offen offset:{256*e} {SC}", "res")
    for e in range(4):
        a.vmem(f"buffer_load_ushort v{RES+16+e}, v11, s[36:39], s20 offen offset:{256*e} {SC}", "res")
    for i in range(40):
        a(f"v_mov_b32 v{ACC+i}, 0")
    a(f"s_lshl_b32 s19, s17, 12\ns_lshl_b32 s21, s22, 10\ns_add_u32 s19, s19, s21\nv_add_u32 v{VH}, s19, v5\nv_xor_b32 v{VH+1}, 1024, v{VH}")
    a(f"s_mul_i32 s19, s17, 5120\nv_add_u32 v{VW}, s19, v5\nv_add_u32 v{VW+1}, 61440, v{VW}\nv_add_u32 v{VW+2}, 122880, v{VW}")
    a("s_lshl_b32 s18, s10, 6\ns_lshl_b32 s19, s22, 4\ns_add_u32 s18, s18, s19\ns_mul_i32 s18, s18, 1280\ns_mul_i32 s19, s11, 160\ns_add_u32 s18, s18, s19")
    a("v_mul_u32_u24 v10, 1280, v4\nv_lshl_add_u32 v11, v3, 3, v10\nv_lshl_add_u32 v10, v3, 4, v10")
    a(f"s_mul_i32 s19, s7, 5120\ns_add_u32 s19, s19, {G2_W + 4*20480}\nv_add_u32 v6, s19, v5")
    a(f"s_xor_b32 s19, s7, 2\ns_mul_i32 s19, s19, 5120\ns_add_u32 s19, s19, {G2_W + 4*20480}\nv_add_u32 v7, s19, v5")
    a(f"s_mul_i32 s24, s10, {48*4096}\ns_add_u32 s25, s24, {48*4096}\ns_mul_i32 s23, s15, {3*16384 if EXP & 2 else 0}\ns_add_u32 s23, s23, s24")
    sk = a.newlabel("L_nopub")
    a(f"s_cmp_lg_u32 s6, 0\ns_cbranch_scc1 {sk}")
    a(f"s_lshr_b32 s21, s10, 1\ns_mul_i32 s21, s21, {16*FS_}")
    vm_save = list(a.vm)
    a.poll(F_G, 16, 140, "s21", fast=True)
    a.vm = vm_save
    a.label(sk)
    a("s_barrier")

    def hload(n):
        return [("v", f"buffer_load_dwordx4 {q(HR + 8*(n % PD) + 4*j)}, v{VH+j}, s[32:35], s23 offen {SC}", ("hm", n)) for j in range(2)] + [("a", "s_add_u32 s23, s23, 8192\ns_cmp_eq_u32 s23, s25\ns_cselect_b32 s23, s24, s23" if EXP & 2 else "s_add_u32 s23, s23, 8192", None)]

    def wreads(n, s):
        st, kk = divmod(n, 2)
        off = G2_W + G2_SLOT[st % 7] * 20480 + kk * 10240
        return [("a", f"ds_read_b128 {q(FS[s]+4*t)}, v{VW + off // 61440} offset:{off % 61440 + 1024*t}", None) for t in range(5)]

    def put(x):
        if x[0] == "v":
            a.vmem(x[1], x[2])
        else:
            a(x[1])

    for x in wreads(0, 0):
        put(x)
    nxt = PD0
    for n in range(PD0):
        for x in hload(n):
            put(x)
    for n in range(24):
        s = n & 1
        a.wait_vm(("hm", n))
        if n == 0:
            a.stamp(14)
        a("s_waitcnt lgkmcnt(0)")
        if n in (5, 9, 13, 19):
            a("s_barrier")
        ex = wreads(n + 1, 1 - s) if n < 23 else []
        for _ in range(3):
            if nxt < 24 and nxt <= n - 1 + PD:
                ex += hload(nxt)
                nxt += 1
        for t in range(5):
            for j in range(2):
                ac = ACC + 4 * (5 * j + t)
                a(f"v_mfma_f32_16x16x32_bf16 {q(ac)}, {q(FS[s]+4*t)}, {q(HR + 8*(n % PD) + 4*j)}, {q(ac)}")
                if ex:
                    put(ex.pop(0))
        for x in ex:
            put(x)
    a("s_nop 3")
    a("s_nop 5")
    for t in range(5):
        a(f"ds_write_b128 v6, {q(ACC+20+4*t)} offset:{1024*t}")
    a("s_waitcnt lgkmcnt(0)\ns_barrier")
    for t in range(5):
        a(f"ds_read_b128 {q(ACC+20+4*t)}, v7 offset:{1024*t}")
    delay(a, "g")
    a.wait_vm("res")
    for i in range(20):
        a(f"v_lshlrev_b32 v{RES+i}, 16, v{RES+i}")
    a("s_waitcnt lgkmcnt(0)")
    O = 56
    for i in range(10):
        y = ACC + 2 * i
        a(f"v_pk_add_f32 {q(y,2)}, {q(y,2)}, {q(y+20,2)}")
        a(f"v_cvt_pk_bf16_f32 v{y}, v{y}, v{y+1}")
        a.unpack(y, y)
        a(f"v_pk_add_f32 {q(y,2)}, {q(y,2)}, {q(RES+2*i,2)}")
        a(f"v_cvt_pk_bf16_f32 v{O+i}, v{y}, v{y+1}")
        if i == 3:
            a(f"buffer_store_dwordx4 {q(O)}, v10, s[40:43], s18 offen {SCO}")
        if i == 7:
            a(f"buffer_store_dwordx4 {q(O+4)}, v10, s[40:43], s18 offen offset:64 {SCO}")
    a(f"buffer_store_dwordx2 {q(O+8,2)}, v11, s[40:43], s18 offen offset:128 {SCO}")
    a(f"s_branch {done}")


def gemm_loader_waves(a, done):
    a.vm = []
    tile_ids(a)
    a("s_mul_i32 s22, s8, 163840\ns_add_u32 s23, s22, 163840")
    a(f"s_mul_i32 s24, s9, {20*12288}\ns_add_u32 s25, s24, {20*12288}")
    a("s_lshr_b32 s20, s9, 3\ns_mul_i32 s20, s20, 5")
    a("s_lshl_b32 s16, s20, 14\ns_add_u32 s16, s16, s22\ns_mul_i32 s17, s20, 24576\ns_add_u32 s17, s17, s24")
    a("s_lshl_b32 s18, s7, 12\ns_mul_i32 s19, s7, 6144")
    a("v_lshrrev_b32 v12, 1, v4\nv_xor_b32 v12, v12, v3\nv_lshlrev_b32 v12, 5, v12")
    a("v_and_b32 v7, 1, v4\nv_lshlrev_b32 v7, 4, v7\nv_lshl_add_u32 v7, v3, 8, v7\nv_add_u32 v7, s18, v7")
    a("v_add_u32 v8, v7, v12\nv_xor_b32 v12, 128, v12\nv_add_u32 v9, v7, v12")
    if EXP & 2048:
        a("v_lshlrev_b32 v8, 4, v1\nv_add_u32 v8, s18, v8\nv_mov_b32 v9, v8")
    a("v_lshlrev_b32 v10, 4, v1\nv_add_u32 v10, s19, v10\nv_add_u32 v11, 4096, v10")
    a.srd(32, 4, WS_HT, SZ_T)
    a.srd(36, 4, WS_W13, SZ_W13)
    a.srd(88, 4, WS_CSP, SZ_CSP)
    sk = a.newlabel("L_nofr")
    a(f"s_cmp_lg_u32 s7, 0\ns_cbranch_scc1 {sk}\ns_mul_i32 s20, s9, {20*FS_}")
    a.poll(F_R, 20, 20, "s20", sleep=LSLEEP)
    a.label(sk)
    a.stamp(5)

    def issue_w(st):
        slot = G1_W + (st % G1_WN) * 24576
        if EXP & 4096 and st > 2:
            a.vm.append(("w", st))
            return
        a(f"s_add_u32 m0, s19, {slot}\ns_nop 0")
        for i in range(4):
            a.vmem(f"buffer_load_dwordx4 v10, s[36:39], s17 offen offset:{1024*i} {SCL} lds", ("w", st))
        a(f"s_add_u32 m0, s19, {slot + 4096}\ns_nop 0")
        for i in range(2):
            a.vmem(f"buffer_load_dwordx4 v11, s[36:39], s17 offen offset:{1024*i} {SCL} lds", ("w", st))
        a("s_add_u32 s17, s17, 24576\ns_cmp_eq_u32 s17, s25\ns_cselect_b32 s17, s24, s17")

    def issue_h(st):
        slot = G1_H + (st % G1_HN) * 16384
        if EXP & 8192 and st > 0:
            a.vm.append(("h", st))
            return
        a(f"s_add_u32 m0, s18, {slot}\ns_nop 0")
        for i in range(4):
            a.vmem(f"buffer_load_dwordx4 v{8 + (i&1)}, s[32:35], s16 offen offset:{1024*i} {SCL} lds", ("h", st))
        a("s_add_u32 s16, s16, 16384\ns_cmp_eq_u32 s16, s23\ns_cselect_b32 s16, s22, s16")

    CS = 64
    a("v_and_b32 v13, 255, v0\nv_lshlrev_b32 v13, 2, v13")
    SA = 14
    a("s_and_b32 s20, s9, 7\nv_xor_b32 v5, s20, v5\nv_lshl_add_u32 v14, v5, 5, v6\nv_add_u32 v15, 49152, v14")
    ONE, SACC, SF = 20, 24, 32
    for i in range(4):
        a(f"v_mov_b32 v{ONE+i}, {hex(ONES_BF)}")
    for i in range(8):
        a(f"v_mov_b32 v{SACC+i}, 0")
    a("v_and_b32 v7, 3, v4\nv_cmp_eq_u32 s[52:53], 1, v7\nv_cmp_eq_u32 s[54:55], 2, v7\nv_cmp_eq_u32 s[56:57], 3, v7")
    a("v_lshrrev_b32 v7, 2, v4\nv_cmp_eq_u32 s[58:59], v7, v3")
    a(f"s_mul_i32 s60, s11, {48*5120}\ns_mul_i32 s62, s10, {48*4096}\ns_mul_i32 s28, s7, 5120")
    a(f"s_add_u32 s61, s60, {48*5120}\ns_add_u32 s63, s62, {48*4096}")
    a(f"s_mul_i32 s26, s15, {3*20480 if EXP & 2 else 0}\ns_add_u32 s26, s26, s60\ns_mul_i32 s27, s15, {3*16384 if EXP & 2 else 0}\ns_add_u32 s27, s27, s62")
    a("v_lshlrev_b32 v60, 4, v1\nv_add_u32 v61, s18, v60\nv_add_u32 v60, s28, v60\nv_add_u32 v62, 4096, v60")
    a.srd(40, 4, WS_W2, SZ_W2)
    a.srd(44, 4, WS_HM, SZ_HM)
    a.stamp(6)
    a("s_barrier")
    for st in range(G1_WN):
        issue_w(st)
    a.stamp(7)
    a("s_barrier")
    a(f"v_mov_b32 v16, 0\nds_write_b32 v16, v16 offset:{LDS_CNT2}")
    issue_h(0); issue_h(1)
    a.wait_vm(("h", 0))
    a.stamp(8)
    a("s_barrier")
    issue_h(2); issue_h(3); issue_h(4)

    def issue_w2(st):
        slot = G2_W + G2_SLOT[st % 7] * 20480
        if EXP & 128 and st > 2:
            a.vm.append(("w2", st))
            return
        a(f"s_add_u32 m0, s28, {slot}\ns_nop 0")
        for i in range(4):
            a.vmem(f"buffer_load_dwordx4 v60, s[40:43], s26 offen offset:{1024*i} {SCL} lds", ("w2", st))
        a(f"s_add_u32 m0, s28, {slot + 4096}\ns_nop 0")
        a.vmem(f"buffer_load_dwordx4 v62, s[40:43], s26 offen {SCL} lds", ("w2", st))
        a("s_add_u32 s26, s26, 20480\ns_cmp_eq_u32 s26, s61\ns_cselect_b32 s26, s60, s26")

    a.srd(48, 4, WS_GR, 16 * 4096)
    a("s_and_b32 s20, s7, 1\ns_lshl_b32 s20, s20, 13\nv_add_u32 v14, s20, v14\nv_add_u32 v15, s20, v15")
    for s in range(10):
        slot = s % G1_HN
        dostat = s < 5
        if dostat:
            sk = a.newlabel("L_nost")
            a(f"s_lshr_b32 s20, s7, 1\ns_cmp_lg_u32 s20, {s & 1}\ns_cbranch_scc1 {sk}")
            off = G1_H + (slot % 3) * 16384
            a(f"ds_read_b64_tr_b16 {q(SF,2)}, v{SA + slot//3} offset:{off}")
            a(f"ds_read_b64_tr_b16 {q(SF+2,2)}, v{SA + slot//3} offset:{off + 4096}")
            a("s_waitcnt lgkmcnt(0)")
            a(f"v_mfma_f32_16x16x32_bf16 {q(SACC)}, {q(ONE)}, {q(SF)}, {q(SACC)}")
            a(f"v_mfma_f32_16x16x32_bf16 {q(SACC+4)}, {q(SF)}, {q(SF)}, {q(SACC+4)}")
            a.label(sk)
        if s == 8:
            a("s_lshl_b32 s20, s8, 12\ns_lshl_b32 s21, s7, 9\ns_add_u32 s20, s20, s21")
            a("v_and_b32 v7, 31, v1\nv_lshlrev_b32 v7, 4, v7\nv_lshrrev_b32 v36, 5, v1\nv_lshl_add_u32 v36, v36, 11, v7\nv_add_u32 v7, s21, v7\ns_mov_b32 s84, 0")
            L, D = a.newlabel("L_gp"), a.newlabel("L_gpd")
            a.label(L)
            a(f"buffer_load_dwordx4 {q(40)}, v36, s[48:51], s20 offen {SC}")
            a(f"s_add_u32 s84, s84, 1\ns_waitcnt vmcnt(0)\nv_cmp_ne_u32 vcc, s3, v42\ns_cbranch_vccz {D}")
            a(f"s_sleep 2\ns_cmp_lt_u32 s84, {POLL_MAX}\ns_cbranch_scc1 {L}")
            a.label(D)
            a("v_mov_b32 v44, v40\nv_mov_b32 v45, v41\ns_nop 1\nv_permlane32_swap_b32 v40, v44\nv_permlane32_swap_b32 v41, v45")
            a("v_add_f32 v40, v40, v44\nv_add_f32 v41, v41, v45")
            ln_finish(a, 40, 41, 42, 44, 45)
            a(f"v_mul_f32 v45, {hex(NLOG2E)}, v45\nv_mul_f32 v46, v42, v42\nv_mov_b32 v47, 0")
            a(f"ds_write_b128 v7, {q(44)} offset:{G1_CONST}")
        if s >= 1:
            if s + 2 < 10:
                issue_w(s + 2)
            if s in (7, 8):
                issue_w2(s - 7)
            elif s == 9:
                issue_w2(2); issue_w2(3)
            if s + 4 < 10:
                issue_h(s + 4)
        if s == 6:
            a("s_mul_i32 s20, s9, 15360")
            for ks in range(20):
                if ks and ks % 5 == 0:
                    a("s_add_u32 s20, s20, 3840")
                a.vmem(f"buffer_load_dword v{CS+ks}, v13, s[88:91], s20 offen offset:{768*(ks % 5)} {SC}", "cs")
        if s == 9:
            for ks in range(1, 20):
                a(f"v_add_f32 v{CS}, v{CS}, v{CS+ks}")
            a(f"ds_write_b32 v13, v{CS} offset:{G1_CS}")
        if s == 4:
            sq = SACC + 4
            a("s_nop 4")
            a(f"v_cndmask_b32 v{sq}, v{sq}, v{sq+1}, s[52:53]\nv_cndmask_b32 v{sq}, v{sq}, v{sq+2}, s[54:55]\nv_cndmask_b32 v{SACC+1}, v{sq}, v{sq+3}, s[56:57]")
            a(f"s_lshl_b32 s20, s7, 7\nv_lshlrev_b32 v7, 3, v4\nv_add_u32 v7, s20, v7\ns_mov_b64 exec, s[58:59]")
            a(f"ds_write_b64 v7, {q(SACC,2)} offset:{G1_SP}\ns_mov_b64 exec, -1\ns_waitcnt lgkmcnt(0)")
        if s == 5:
            sk = a.newlabel("L_nogr")
            a(f"s_cmp_lg_u32 s7, 3\ns_cbranch_scc1 {sk}")
            a("v_lshlrev_b32 v7, 3, v4")
            for w in range(4):
                a(f"ds_read_b64 {q(SF+2*w,2)}, v7 offset:{G1_SP + 128*w}")
            a("s_lshl_b32 s20, s8, 1\ns_lshr_b32 s21, s9, 3\ns_add_u32 s20, s20, s21\ns_lshl_b32 s20, s20, 3\ns_and_b32 s21, s9, 7\ns_add_u32 s20, s20, s21\ns_lshl_b32 s20, s20, 8")
            a(f"v_lshlrev_b32 v7, 4, v4\nv_mov_b32 v{SF+10}, s3\nv_mov_b32 v{SF+11}, s3\ns_waitcnt lgkmcnt(0)")
            a(f"v_pk_add_f32 {q(SF,2)}, {q(SF,2)}, {q(SF+2,2)}\nv_pk_add_f32 {q(SF+4,2)}, {q(SF+4,2)}, {q(SF+6,2)}\nv_pk_add_f32 {q(SF+8,2)}, {q(SF,2)}, {q(SF+4,2)}")
            a("s_mov_b64 exec, 0xffff")
            a(f"buffer_store_dwordx4 {q(SF+8)}, v7, s[48:51], s20 offen {SC}")
            a("s_mov_b64 exec, -1")
            a.label(sk)
        if s + 1 < 10:
            a.wait_vm(("h", s + 1))
            if s + 1 >= G1_WN:
                a.wait_vm(("w", s + 1))
        a("s_barrier")
    issue_w2(4); issue_w2(5); issue_w2(6)
    if W2WARM:
        nsh = {0: 8, 1: 4}[G2MAP]
        per = 102400 // (4 * nsh)
        a(f"s_and_b32 s20, s13, {nsh-1}\ns_lshl_b32 s20, s20, 2\ns_add_u32 s20, s20, s7\ns_mul_i32 s20, s20, {per}\ns_add_u32 s20, s20, s26\nv_lshlrev_b32 v64, 4, v1")
        for i in range((per + 1023) // 1024):
            a.vmem(f"buffer_load_dwordx4 {q(68+4*i)}, v64, s[40:43], s20 offen offset:{1024*(i%4)} {SCL}", "warm")
            if i % 4 == 3:
                a("s_add_u32 s20, s20, 4096")
    a("s_waitcnt lgkmcnt(0)")
    a.stamp(10)
    a("s_barrier")
    a.stamp(13)
    a("s_waitcnt vmcnt(0)\ns_barrier")
    a("s_barrier")
    issue_w2(7); issue_w2(8); issue_w2(9)
    a("s_barrier")
    issue_w2(10); issue_w2(11)
    a.wait_vm(("w2", 9))
    a("s_barrier\ns_waitcnt vmcnt(0)\ns_barrier")
    a("s_barrier")


def main():
    a = Asm()
    hdr = open(f"cdna_kernels/{NAME}.s.ref").read().split("\n")
    for line in hdr:
        if line.startswith("; Override") or line.startswith("; grid=") or "@launch" in line:
            continue
        if not line.startswith(";"):
            break
        a.raw(line)
    if STAMPS == 1:
        a.raw(f"; @launch kernel={KNAME} grid=(256,1,1) block=(512,1,1) lds={LDS_TOTAL}")
    else:
        a.raw(f"; @launch grid=(256,1,1) block=(512,1,1) lds={LDS_TOTAL}")
    a.raw('.amdgcn_target "amdgcn-amd-amdhsa--gfx950"\n.text')
    a.raw(f".globl {KNAME}\n.p2align 8\n.type {KNAME},@function\n{KNAME}:")
    done = "L_done"
    a("s_cmp_ge_u32 s2, 256\ns_cbranch_scc1 L_exit")
    if STAMPS:
        for i in range(16):
            a(f"s_mov_b32 s{64+i}, 0")
        a.stamp(0)
    a(f"s_load_dwordx2 s[4:5], s[0:1], {KA_WS}\ns_load_dwordx16 s[8:23], s[0:1], 0\ns_load_dwordx8 s[24:31], s[0:1], 64")
    a("v_and_b32 v1, 63, v0\nv_lshrrev_b32 v2, 6, v0\nv_lshrrev_b32 v3, 4, v1\nv_and_b32 v4, 15, v1")
    a("v_readfirstlane_b32 s6, v2")
    a("s_waitcnt lgkmcnt(0)")
    a("s_load_dword s3, s[4:5], 0")
    a("s_and_b32 s7, s6, 3")
    a.srd(92, 4, WS_FLG, SZ_FLG)
    a(f"v_mov_b32 v5, {LDS_CNT}\nv_mov_b32 v6, 0\nv_mov_b32 v7, 0\nv_mov_b32 v8, 0\nv_mov_b32 v9, 0\nds_write_b128 v5, v[6:9]")
    delay(a, "h")
    a("s_cmp_ge_u32 s2, 160\ns_cbranch_scc1 L_aux")
    a("s_lshl_b32 s52, s2, 2\ns_add_u32 s52, s52, s7")
    kgen(a)
    a("s_cmp_ge_u32 s6, 4\ns_cbranch_scc1 L_partner")
    conv_main(a)
    a("s_branch L_mfma")
    a.label("L_partner")
    conv_partner(a)
    a("s_branch L_loader")
    a.label("L_aux")
    a.vm = []
    a("s_cmp_ge_u32 s2, 224\ns_cbranch_scc1 L_aux_rp")
    a("s_sub_u32 s52, s2, 160")
    role_ln1(a)
    a("s_branch L_aux_go")
    a.label("L_aux_rp")
    a("s_sub_u32 s52, s2, 224")
    if not EXP & 256:
        a("s_cmp_lt_u32 s6, 6\ns_cbranch_scc1 L_aux_rp1")
        a("s_getpc_b64 s[54:55]")
        a.label("L_pc")
        a(f"s_sub_u32 s54, s54, L_pc-{KNAME}\ns_subb_u32 s55, s55, 0")
        a(f"v_lshlrev_b32 v5, 4, v1\ns_and_b32 s56, s6, 1\ns_mul_i32 s56, s56, {CODE_KB*512}\nv_add_u32 v5, s56, v5")
        for i in range(CODE_KB // 2):
            a(f"global_load_dwordx4 {q(16+4*i)}, v5, s[54:55] offset:{1024*(i%4)}")
            if i % 4 == 3:
                a("v_add_u32 v5, 4096, v5")
        if TLBW:
            a("v_lshlrev_b32 v5, 16, v1")
            a.srd(32, 4, 0, 0x1720000)
            for i in range(6):
                a(f"s_mov_b32 s56, {i << 22}")
                a(f"buffer_load_dword v{100+i}, v5, s[32:35], s56 offen {SC}")
            for k, (lo, sz) in enumerate([(24, 640*3072), (26, 640*3072), (28, 1536*1280), (30, SZ_T)]):
                a.srd(36, lo, 0, sz)
                a(f"buffer_load_dword v{106+k}, v5, s[36:39], 0 offen {SC}")
        a.label("L_aux_rp1")
    epoch_ready(a)
    a("s_cmp_ge_u32 s6, 6\ns_cbranch_scc1 L_aux_end")
    a("s_mul_i32 s53, s52, 6\ns_add_u32 s53, s53, s6")
    if W2LATE:
        a.poll(F_L, 64, 26)
    role_rp2(a)
    a.label("L_aux_end")
    a("s_waitcnt vmcnt(0)\ns_barrier")
    a("s_cmp_lg_u32 s6, 4\ns_cbranch_scc1 L_aux_go")
    delay(a, "d")
    a.publish(F_R2, 52, 10)
    a.label("L_aux_go")
    a.stamp(4)
    a("s_cmp_ge_u32 s6, 4\ns_cbranch_scc1 L_loader\ns_branch L_mfma")
    a.label("L_loader")
    gemm_loader_waves(a, done)
    a(f"s_branch {done}")
    a.label("L_mfma")
    gemm_mfma_waves(a, done)
    a.label(done)
    if STAMPS:
        a("s_waitcnt vmcnt(0)")
        a.stamp(15)
        if STAMPS == 2:
            a(f"s_cmp_lg_u32 s2, {int(os.environ.get('DBGWG', '0'))}\ns_cbranch_scc1 L_exit\ns_cmp_lg_u32 s6, {int(os.environ.get('DBGWV', '0'))}\ns_cbranch_scc1 L_exit")
            a("s_load_dwordx2 s[82:83], s[0:1], 96\ns_waitcnt lgkmcnt(0)")
            a.srd(88, 82, 0, 256)
            for i in range(15, -1, -1):
                a(f"s_sub_u32 s{64+i}, s{64+i}, s64")
            for i in range(16):
                a(f"v_mov_b32 v{4+i}, s{64+i}")
            a("v_mov_b32 v1, 0\ns_mov_b64 exec, 1")
            for i in range(4):
                a(f"buffer_store_dwordx4 {q(4+4*i)}, v1, s[88:91], 0 offen offset:{16*i}")
            a("s_branch L_exit")
        a.srd(88, 4, WS_STAMP, 262144)
        a("v_lshrrev_b32 v1, 6, v0\nv_lshlrev_b32 v1, 6, v1\ns_lshl_b32 s82, s2, 9\nv_add_u32 v1, s82, v1")
        for i in range(16):
            a(f"v_mov_b32 v{4+i}, s{64+i}")
        a("s_mov_b64 exec, 1")
        for i in range(4):
            a(f"buffer_store_dwordx4 {q(4+4*i)}, v1, s[88:91], 0 offen offset:{16*i}")
    a.label("L_exit")
    a("s_endpgm")
    a.raw(f".fill ({CODE_KB*1024} - (. - {KNAME})) / 4, 4, 0xbf800000")
    a.raw(f""".section .rodata,"a"
.p2align 6
.amdhsa_kernel {KNAME}
  .amdhsa_next_free_vgpr 244
  .amdhsa_next_free_sgpr 96
  .amdhsa_accum_offset 244
  .amdhsa_group_segment_fixed_size 0
  .amdhsa_kernarg_size 112
  .amdhsa_user_sgpr_count 2
  .amdhsa_user_sgpr_kernarg_segment_ptr 1
  .amdhsa_system_sgpr_workgroup_id_x 1
.end_amdhsa_kernel""")
    out = sys.argv[1] if len(sys.argv) > 1 else f"cdna_kernels/{NAME}.s"
    open(out, "w").write("\n".join(a.l) + "\n")


if __name__ == "__main__":
    main()
```

```python
import sys, os, struct

NAME = "sequential_preLN__ssm_conv_s4d__glu_gated_swiglu__prompt"
KNAME = NAME + "_kernel"
KA_WS = 104

WS_FLG = 0
FS_ = 128
F_L, F_X, F_R2, F_C, F_G, F_R = 0x1000, 0x3000, 0x5000, 0x8000, 0x10000, 0x18000
SZ_FLG = 0x30000
WS_UT = 0x100000
WS_XT = 0x400000
WS_HT = 0x700000
WS_HM = 0xA00000
WS_W13 = 0x1000000
WS_W2 = 0x1400000
WS_GR = 0x1710000
WS_ST = 0x1700000
WS_CSP = 0x1600000
WS_STAMP = 0x4000000
SZ_T = 640 * 4096
SZ_TP = SZ_T
T_BLK = 40960
SZ_HM = 32 * 48 * 4096
SZ_W13 = 16 * 20 * 12288
SZ_W2 = 8 * 48 * 5120
SZ_CSP = 320 * 768 + 1024

STAMPS = int(os.environ.get('STAMPS', '0'))
EXP = int(os.environ.get('EXP', '0'))
LOG2E, NLOG2E, INV2PI, INV640, EPS, ONES_BF = 0x3FB8AA3B, 0xBFB8AA3B, 0x3E22F983, 0x3ACCCCCD, 0x3727C5AC, 0x3F803F80
POLL_MAX = 400000
CODE_KB = 32
PD0 = int(os.environ.get('PD0', '3'))
W2WARM = int(os.environ.get('W2WARM', '0'))
G2MAP = int(os.environ.get('G2MAP', '0'))
W2LATE = int(os.environ.get('W2LATE', '0'))
TLBW = int(os.environ.get('TLBW', '0'))
PIPE = int(os.environ.get('PIPE', '2'))
PSLEEP = int(os.environ.get('PSLEEP', '3'))
SLEEP = int(os.environ.get('SLEEP', '1'))
SC = "sc1"
SCO = os.environ.get("SCO", "")
SCL = "" if EXP & 8 else "sc1"


def f32bits(x):
    return struct.unpack("<I", struct.pack("<f", x))[0]


def q(r, n=4):
    return f"v[{r}:{r+n-1}]"


class Asm:
    def __init__(self):
        self.l = []
        self.vm = []
        self.uid = 0

    def __call__(self, s):
        for x in s.split("\n"):
            x = x.strip()
            if x:
                self.l.append("    " + x)

    def label(self, s):
        self.l.append(s + ":")

    def raw(self, s):
        self.l.append(s)

    def newlabel(self, p="L"):
        self.uid += 1
        return f"{p}_{self.uid}"

    def vmem(self, s, tag=None):
        self(s)
        self.vm.append(tag)

    def wait_vm(self, tag):
        idx = max(i for i, t in enumerate(self.vm) if t == tag)
        n = len(self.vm) - 1 - idx
        assert n <= 63, n
        self(f"s_waitcnt vmcnt({n})")

    def srd(self, sd, lo, off, size):
        if off == 0:
            self(f"s_mov_b32 s{sd}, s{lo}\ns_mov_b32 s{sd+1}, s{lo+1}")
        else:
            self(f"s_add_u32 s{sd}, s{lo}, {hex(off)}\ns_addc_u32 s{sd+1}, s{lo+1}, 0")
        self(f"s_mov_b32 s{sd+2}, {size}\ns_mov_b32 s{sd+3}, 0x20000")

    def stamp(self, i):
        if STAMPS:
            self(f"s_memrealtime s[80:81]\ns_waitcnt lgkmcnt(0)\ns_mov_b32 s{64+i}, s80")

    def unpack(self, dlo, src):
        if dlo == src:
            self(f"v_and_b32 v{dlo+1}, 0xffff0000, v{src}\nv_lshlrev_b32 v{dlo}, 16, v{src}")
        else:
            self(f"v_lshlrev_b32 v{dlo}, 16, v{src}\nv_and_b32 v{dlo+1}, 0xffff0000, v{src}")

    def rnd(self, d, s):
        self(f"v_cvt_pk_bf16_f32 v{d}, v{s}, v{s}\nv_lshlrev_b32 v{d}, 16, v{d}")

    def poll(self, off, n, vt, soff=None, fast=False, sleep=None):
        L, D = self.newlabel("L_poll"), self.newlabel("L_polld")
        nl = (n + 63) // 64
        for i in range(nl):
            self(f"v_add_u32 v{vt+i}, {64*i}, v1\nv_min_u32 v{vt+i}, {n-1}, v{vt+i}\nv_mul_u32_u24 v{vt+i}, {FS_}, v{vt+i}")
        if soff is None:
            self(f"s_mov_b32 s86, {off}")
        else:
            self(f"s_add_u32 s86, {soff}, {off}")
        self("s_mov_b32 s84, 0")
        np_ = PIPE if fast else 1

        def ld(k):
            for i in range(nl):
                self(f"buffer_load_dword v{vt+nl*(1+k)+i}, v{vt+i}, s[92:95], s86 offen {SC}")

        def chk(k):
            b = vt + nl * (1 + k)
            for i in range(nl):
                self(f"v_xor_b32 v{b+i}, s3, v{b+i}")
            for i in range(1, nl):
                self(f"v_or_b32 v{b}, v{b}, v{b+i}")
            self(f"v_cmp_ne_u32 vcc, 0, v{b}\ns_cbranch_vccz {D}")

        for k in range(np_ - 1):
            ld(k)
            self(f"s_sleep {PSLEEP}")
        self.label(L)
        for k in range(np_):
            ld((k + np_ - 1) % np_)
            self(f"s_waitcnt vmcnt({nl*(np_-1)})")
            chk(k)
            self(f"s_sleep {sleep if sleep else (PSLEEP if fast else SLEEP)}")
        self(f"s_add_u32 s84, s84, 1\ns_cmp_lt_u32 s84, {POLL_MAX}\ns_cbranch_scc1 {L}")
        self.label(D)
        if np_ > 1:
            self.vm = [None] * (nl * (np_ - 1))
        else:
            self.vm = []

    def publish(self, off, sidx, vt):
        self(f"s_mul_i32 s85, s{sidx}, {FS_}\ns_add_u32 s85, s85, {off}\nv_mov_b32 v{vt}, s3\nv_mov_b32 v{vt+1}, s85\ns_mov_b64 exec, 1")
        self.vmem(f"buffer_store_dword v{vt}, v{vt+1}, s[92:95], 0 offen {SC}")
        self("s_mov_b64 exec, -1")


def ln_finish(a, vs, vq, vt, vnegm, vrinv):
    a(f"v_mul_f32 v{vs}, {hex(INV640)}, v{vs}")
    a(f"v_mul_f32 v{vq}, {hex(INV640)}, v{vq}")
    a(f"v_fma_f32 v{vq}, -v{vs}, v{vs}, v{vq}")
    a(f"v_max_f32 v{vq}, 0, v{vq}")
    a.rnd(vnegm, vs)
    a(f"v_xor_b32 v{vnegm}, 0x80000000, v{vnegm}")
    a.rnd(vt, vq)
    a(f"v_add_f32 v{vt}, {hex(EPS)}, v{vt}")
    a.rnd(vt, vt)
    a(f"v_sqrt_f32 v{vt}, v{vt}\ns_nop 0")
    a.rnd(vt, vt)
    a(f"v_rcp_f32 v{vrinv}, v{vt}\ns_nop 0")


def cmul(a, d, x, y, t):
    a(f"v_pk_mul_f32 {q(t,2)}, {q(x,2)}, {q(y,2)} op_sel_hi:[1,0]")
    a(f"v_pk_fma_f32 {q(d,2)}, {q(x,2)}, {q(y,2)}, {q(t,2)} op_sel:[1,1,0] op_sel_hi:[0,1,1] neg_lo:[1,0,0]")


DLY = os.environ.get("DLY", "")


def delay(a, tag):
    if tag in DLY:
        a("s_sleep 32")


def epoch_ready(a):
    a("s_waitcnt lgkmcnt(0)\ns_add_u32 s3, s3, 1")


LDS_CNT = 163824


LDS_CNT2 = 4096


def last_of4_publish(a, addr, off, sidx, vt):
    sk = a.newlabel("L_notlast")
    a(f"v_mov_b32 v{vt}, {addr}\nv_mov_b32 v{vt+1}, 1\ns_mov_b64 exec, 1")
    a(f"ds_add_rtn_u32 v{vt+1}, v{vt}, v{vt+1}\ns_mov_b64 exec, -1\ns_waitcnt lgkmcnt(0)")
    a(f"v_readfirstlane_b32 s85, v{vt+1}\ns_nop 3\ns_cmp_lg_u32 s85, 3\ns_cbranch_scc1 {sk}")
    a.publish(off, sidx, vt)
    a.label(sk)


LN_RS = 1312
LN_U = 32 * LN_RS


def role_ln1(a):
    a("v_lshl_add_u32 v5, v2, 2, v3")
    a(f"s_mul_i32 s53, s52, {32*1280}")
    a("v_mul_u32_u24 v6, 1280, v5\nv_lshl_add_u32 v6, v4, 4, v6\nv_add_u32 v6, s53, v6")
    a.srd(32, 8, 0, SZ_T)
    X = 16
    for j in range(5):
        a.vmem(f"buffer_load_dwordx4 {q(X+4*j)}, v6, s[32:35], 0 offen offset:{j*256}", ("x", j))
    a(f"v_mul_u32_u24 v7, {LN_RS}, v5\nv_lshl_add_u32 v7, v4, 4, v7")
    a(f"s_mov_b32 s54, {hex(ONES_BF)}")
    a.srd(36, 4, WS_ST, 16384)
    a.srd(40, 4, WS_XT, SZ_TP)
    a("v_bfe_u32 v8, v1, 2, 2\nv_lshl_add_u32 v8, v3, 3, v8")
    a(f"v_mul_u32_u24 v8, {LN_RS}, v8\nv_and_b32 v9, 3, v1\nv_lshl_add_u32 v8, v9, 3, v8")
    a("v_mul_u32_u24 v9, 160, v2\nv_add_u32 v8, v8, v9")
    a("v_mul_u32_u24 v9, 80, v2\nv_add_u32 v9, v9, v4\nv_lshlrev_b32 v9, 6, v9\nv_lshl_add_u32 v9, v3, 4, v9")
    a(f"s_mul_i32 s53, s52, {T_BLK}\ns_add_u32 s55, s53, 4096\ns_lshl_b32 s56, s52, 7")
    a(f"v_lshlrev_b32 v10, 2, v5\nv_and_b32 v11, 1, v4\nv_lshl_add_u32 v10, v11, 7, v10\nv_add_u32 v10, {LN_U}, v10")
    R = 56
    S0, S1, Q0, Q1, NM, RI, TT = 80, 81, 82, 83, 84, 85, 88
    a(f"v_mov_b32 v{S0}, 0\nv_mov_b32 v{S1}, 0\nv_mov_b32 v{Q0}, 0\nv_mov_b32 v{Q1}, 0\nv_cmp_eq_u32 s[58:59], 1, v11")
    epoch_ready(a)
    for j in range(5):
        a.wait_vm(("x", j))
        if j == 0:
            a.stamp(1)
        a(f"ds_write_b128 v7, {q(X+4*j)} offset:{j*256}")
        for i in range(4 * j, 4 * j + 4):
            a(f"v_dot2c_f32_bf16 v{S0 + (i&1)}, s54, v{X+i}")
            a(f"v_dot2c_f32_bf16 v{Q0 + (i&1)}, v{X+i}, v{X+i}")
    a("s_waitcnt lgkmcnt(0)\ns_barrier")
    a.stamp(2)
    for i in range(5):
        a(f"ds_read_b64_tr_b16 {q(R+4*i,2)}, v8 offset:{32*i}")
        a(f"ds_read_b64_tr_b16 {q(R+4*i+2,2)}, v8 offset:{32*i + 4*LN_RS}")
    a(f"v_add_f32 v{S0}, v{S0}, v{S1}\nv_add_f32 v{Q0}, v{Q0}, v{Q1}")
    for i in range(5):
        a(f"s_waitcnt lgkmcnt({8-2*i})")
        a.vmem(f"buffer_store_dwordx4 {q(R+4*i)}, v9, s[40:43], {'s53' if i < 4 else 's55'} offen offset:{1024*(i%4)} {SC}")
    for sh in (8, 4, 2, 1):
        a(f"v_add_f32_dpp v{S0}, v{S0}, v{S0} row_ror:{sh} row_mask:0xf bank_mask:0xf")
        a(f"v_add_f32_dpp v{Q0}, v{Q0}, v{Q0} row_ror:{sh} row_mask:0xf bank_mask:0xf")
        a("s_nop 0")
    ln_finish(a, S0, Q0, TT, NM, RI)
    a(f"v_cndmask_b32 v{NM}, v{NM}, v{RI}, s[58:59]")
    a(f"ds_write_b32 v10, v{NM}")
    a("s_waitcnt lgkmcnt(0)\ns_barrier")
    sk = a.newlabel("L_lnst")
    a(f"s_cmp_lg_u32 s6, 7\ns_cbranch_scc1 {sk}")
    a(f"v_lshlrev_b32 v10, 2, v1\nv_add_u32 v11, {LN_U}, v10\nds_read_b32 v12, v11")
    a("v_lshrrev_b32 v11, 5, v1\nv_mul_u32_u24 v11, 8064, v11\nv_add_u32 v10, v10, v11\ns_waitcnt lgkmcnt(0)")
    a.vmem(f"buffer_store_dword v12, v10, s[36:39], s56 offen {SC}")
    a.label(sk)
    a("s_waitcnt vmcnt(0)\ns_barrier")
    a.stamp(3)
    sk = a.newlabel("L_lnp")
    a(f"s_cmp_lg_u32 s6, 7\ns_cbranch_scc1 {sk}")
    delay(a, "b")
    a.publish(F_L, 52, 10)
    a.label(sk)
    sk = a.newlabel("L_lnrp")
    a(f"s_cmp_ge_u32 s6, 5\ns_cbranch_scc1 {sk}")
    a(f"s_mul_i32 s55, s52, 5\ns_add_u32 s55, s55, s6\ns_mul_i32 s56, s6, 12288\ns_add_u32 s56, s56, 49152")
    rp13_issue(a)
    a("s_waitcnt vmcnt(0)")
    rp13_finish(a)
    a("s_waitcnt vmcnt(0)")
    delay(a, "c")
    a.publish(F_R, 55, 10)
    a.label(sk)


W13_J = [[0, 1, 2], [4, 5, 3]]


RP_BASE = 2 * LN_U


def rp13_issue(a):
    a("s_mul_i32 s57, s55, 205\ns_lshr_b32 s57, s57, 12")
    a("s_mul_i32 s58, s57, 20\ns_sub_u32 s58, s55, s58")
    a.srd(44, 24, 0, 640 * 3072)
    a.srd(48, 26, 0, 640 * 3072)
    a(f"s_mul_i32 s57, s57, 192\ns_mul_i32 s58, s58, {32*3072}\ns_add_u32 s57, s57, s58")
    for i in range(6):
        a(f"v_add_u32 v10, {64*i}, v1\nv_mul_u32_u24 v11, 43691, v10\nv_lshrrev_b32 v11, 19, v11")
        a(f"v_mul_u32_u24 v12, 12, v11\nv_sub_u32 v12, v10, v12\nv_mul_u32_u24 v11, 3072, v11\nv_lshl_add_u32 v13, v12, 4, v11")
        for mat in range(2):
            a(f"s_add_u32 m0, s56, {mat*6144 + i*1024}\ns_nop 0")
            a(f"buffer_load_dwordx4 v13, s[{44+4*mat}:{47+4*mat}], s57 offen lds")


def rp13_finish(a):
    a("v_lshlrev_b32 v5, 4, v1")
    a("v_bfe_u32 v6, v1, 2, 2\nv_lshl_add_u32 v6, v3, 2, v6\nv_and_b32 v7, 3, v1")
    a("v_mul_u32_u24 v16, 192, v6\nv_lshl_add_u32 v16, v7, 3, v16\nv_add_u32 v16, s56, v16")
    OH, ACC, F = 32, 80, 84
    for t in range(12):
        wn, mat, jj = t // 6, (t % 6) // 3, t % 3
        off = mat * 6144 + 32 * W13_J[wn][jj]
        a(f"ds_read_b64_tr_b16 {q(F+4*t,2)}, v16 offset:{off}")
        a(f"ds_read_b64_tr_b16 {q(F+4*t+2,2)}, v16 offset:{off + 16*192}")
    a.srd(40, 4, WS_W13, SZ_W13)
    a.srd(44, 4, WS_CSP, SZ_CSP)
    a("s_mul_i32 s57, s55, 12288\ns_add_u32 s58, s57, 4096\ns_add_u32 s59, s57, 8192")
    a("s_waitcnt lgkmcnt(0)")
    for t in range(12):
        a(f"buffer_store_dwordx4 {q(F+4*t)}, v5, s[40:43], s{57 + t//4} offen offset:{1024*(t%4)} {SC}")
    a(f"v_mov_b32 v8, {hex(ONES_BF)}")
    a("v_lshlrev_b32 v9, 6, v4\nv_lshl_add_u32 v9, v3, 4, v9\ns_mul_i32 s60, s55, 768")
    for t in range(12):
        a(f"v_cmp_eq_u32 vcc, {t}, v4\ns_nop 1")
        for i in range(4):
            a(f"v_cndmask_b32 v{OH+4*t+i}, 0, v8, vcc")
    a("s_nop 1")
    for t in range(12):
        a(f"v_mfma_f32_16x16x32_bf16 {q(ACC)}, {q(F+4*t)}, {q(OH+4*t)}, {q(ACC) if t else 0}")
    a("s_nop 7\nv_cmp_gt_u32 vcc, 12, v4\ns_and_saveexec_b64 s[82:83], vcc")
    a(f"buffer_store_dwordx4 {q(ACC)}, v9, s[44:47], s60 offen {SC}")
    a(f"s_mov_b64 exec, s[82:83]")


def role_rp2(a):
    a.vm = []
    a("s_mul_i32 s54, s6, 12288")
    a("v_lshlrev_b32 v5, 4, v1")
    a("v_bfe_u32 v6, v1, 2, 2\nv_lshl_add_u32 v6, v3, 2, v6\nv_and_b32 v7, 3, v1")
    a("s_mul_i32 s55, s53, 171\ns_lshr_b32 s55, s55, 12")
    a("s_mul_i32 s56, s55, 24\ns_sub_u32 s56, s53, s56")
    a.srd(32, 28, 0, 1536 * 1280)
    a(f"s_mul_i32 s57, s55, 160\ns_mul_i32 s58, s56, {64*1280}\ns_add_u32 s57, s57, s58\ns_add_u32 s58, s57, {32*1280}")
    for i in range(5):
        a(f"v_add_u32 v8, {64*i}, v1\nv_mul_u32_u24 v9, 52429, v8\nv_lshrrev_b32 v9, 19, v9")
        a(f"v_mul_u32_u24 v16, 10, v9\nv_sub_u32 v16, v8, v16\nv_mul_u32_u24 v9, 1280, v9\nv_lshl_add_u32 v{10+i}, v16, 4, v9")
        for un in range(2):
            a(f"s_add_u32 m0, s54, {un*5120 + i*1024}\ns_nop 0")
            a.vmem(f"buffer_load_dwordx4 v{10+i}, s[32:35], s{57+un} offen lds", "w")
    a.srd(40, 4, WS_W2, SZ_W2)
    a("s_mul_i32 s60, s56, 171\ns_lshr_b32 s60, s60, 9\ns_mul_i32 s60, s60, 3\ns_sub_u32 s60, s56, s60")
    for un in range(2):
        a(f"s_cmp_eq_u32 s60, {2 if un == 0 else 0}\ns_cselect_b32 s61, 640, 0\ns_mul_i32 s62, s61, 3\ns_sub_u32 s62, 2560, s62")
        a(f"v_mul_u32_u24 v16, 160, v6\nv_mul_u32_u24 v8, s61, v3\nv_add3_u32 v16, v16, v8, s54")
        b = 18 + 4 * un
        a(f"v_lshl_add_u32 v{b}, v7, 4, v16\nv_lshl_add_u32 v{b+1}, v7, 3, v16\nv_add_u32 v{b+2}, s62, v{b}\nv_add_u32 v{b+3}, s62, v{b+1}")
    a("s_mul_i32 s57, s53, 10240\ns_add_u32 s58, s57, 4096\ns_add_u32 s59, s57, 8192")
    if W2LATE:
        a("s_waitcnt vmcnt(0)")
    else:
        a(f"s_lshl_b32 s60, s52, {8}")
        a.poll(F_L, 1, 26, "s60", sleep=6)
    F = 32
    for k in range(10):
        un, t = divmod(k, 5)
        b = 18 + 4 * un + (0 if t < 4 else 1)
        off = un * 5120 + ((t >> 1) * 64 + (t & 1) * 8 if t < 4 else 128)
        a(f"ds_read_b64_tr_b16 {q(F+4*k,2)}, v{b} offset:{off}")
        a(f"ds_read_b64_tr_b16 {q(F+4*k+2,2)}, v{b+2} offset:{off}")
    a("s_waitcnt lgkmcnt(0)")
    for k in range(10):
        a.vmem(f"buffer_store_dwordx4 {q(F+4*k)}, v5, s[40:43], s{57 + k//4} offen offset:{1024*(k%4)} {SC}")


TB_RS = 272
TB_SZ = 57 * TB_RS
CV_CS = 1344
CV_A = 0
CV_D2 = 4 * CV_CS
CV_D3 = CV_D2 + 2048
CV_U = CV_D3 + 1280
CV_X = CV_U + 4608
CV_W3 = CV_X + 4096
CV_W5 = CV_W3 + 3104
CV_W7 = CV_W5 + 3104
CV_W9 = CV_W7 + 2080
CV_WAVE = CV_W9 + 2080
KP_BASE = 126976
PART_BASE = 145408
RP_LDS = [101632, 113920]


def kgen(a):
    a.vm = []
    a(f"s_mul_i32 s53, s6, {TB_SZ}")
    a("s_lshr_b32 s54, s6, 2")
    a("s_mul_i32 s55, s52, 384\ns_lshl_b32 s56, s54, 7\ns_add_u32 s55, s55, s56\nv_lshlrev_b32 v5, 1, v1")
    a("s_lshl_b32 s56, s52, 1\nv_mov_b32 v6, 0")
    PR, DT = 8, 92
    PR2 = 96
    a.srd(48, 18, 0, 1280)
    a.vmem(f"buffer_load_ushort v{DT}, v6, s[48:51], s56 offen", "par")
    for i in range(4):
        a.srd(32 + 4 * i, 10 + 2 * i, 0, 640 * 192 * 2)
        a.vmem(f"buffer_load_ushort v{PR+i}, v5, s[{32+4*i}:{35+4*i}], s55 offen", "par")
    for i in range(4):
        a.vmem(f"buffer_load_ushort v{PR2+i}, v5, s[{32+4*i}:{35+4*i}], s55 offen offset:256", "par2")
    a.srd(48, 20, 0, 1280)
    a.vmem("buffer_load_ushort v240, v6, s[48:51], s56 offen", "par2")
    VW, VR, DK = 6, 7, 80
    a(f"v_lshlrev_b32 v{VW}, 2, v1\nv_add_u32 v{VW}, s53, v{VW}")
    a(f"v_mul_u32_u24 v{VR}, {TB_RS}, v4\nv_lshl_add_u32 v{VR}, v3, 4, v{VR}\nv_add_u32 v{VR}, s53, v{VR}")
    for i in range(12):
        a(f"v_mov_b32 v{DK+i}, 0")
    a("s_cmp_ge_u32 s6, 4\ns_cbranch_scc1 L_kg_nopre")
    conv_main_pre(a)
    a.label("L_kg_nopre")
    epoch_ready(a)
    a.wait_vm("par")
    a.stamp(1)
    a(f"v_lshlrev_b32 v{DT}, 16, v{DT}\nv_mul_f32 v{DT}, {hex(LOG2E)}, v{DT}\nv_exp_f32 v{DT}, v{DT}\ns_nop 0")
    a.rnd(DT, DT)
    a.label("L_kgen")
    A2, W, Z8, Y, GC, T0, T1, T2, XT = 16, 17, 18, 20, 22, 24, 26, 28, 30
    E = [None] + [32 + 2 * i for i in range(7)]
    G1 = 46
    PK = [48, 49, 50, 51]
    pkc = [0]

    def put(row, re, im):
        r = PK[pkc[0] % 4]
        pkc[0] += 1
        a(f"v_cvt_pk_bf16_f32 v{r}, {re}, {im}")
        a(f"ds_write_b32 v{VW}, v{r} offset:{row*TB_RS}")

    def putp(row, p):
        put(row, f"v{p}", f"v{p+1}")

    a(f"v_lshlrev_b32 v{PR}, 16, v{PR}\nv_mul_f32 v{A2}, {hex(LOG2E)}, v{PR}\nv_exp_f32 v{A2}, v{A2}")
    for i in range(1, 4):
        a(f"v_lshlrev_b32 v{PR+i}, 16, v{PR+i}")
    a.rnd(A2, A2)
    a(f"v_mul_f32 v{W}, v{PR+1}, v{DT}")
    a(f"v_mul_f32 v{A2}, v{A2}, v{DT}")
    a(f"v_mul_f32 v{W}, {hex(INV2PI)}, v{W}")
    a(f"v_mul_f32 v{A2}, {hex(NLOG2E)}, v{A2}")
    a(f"v_rndne_f32 v{T0}, v{W}")
    a(f"v_mul_f32 v{Y}, v{PR+2}, v{DT}\nv_mul_f32 v{Y+1}, v{PR+3}, v{DT}")
    a(f"v_sub_f32 v{W}, v{W}, v{T0}")
    a(f"v_mul_f32 v{Y}, 2.0, v{Y}\nv_mul_f32 v{Y+1}, -2.0, v{Y+1}")

    def base(dst, mult, conj, T):
        m = {1: "1.0", 8: hex(0x41000000), 128: hex(0x43000000)}[mult]
        a(f"v_mul_f32 v{T}, {m}, v{A2}\nv_mul_f32 v{T+1}, {m}, v{W}")
        a(f"v_exp_f32 v{T}, v{T}\nv_cos_f32 v{dst}, v{T+1}\nv_sin_f32 v{dst+1}, v{T+1}\ns_nop 0")
        a(f"v_mul_f32 v{dst}, v{dst}, v{T}")
        a(f"v_mul_f32 v{dst+1}, {'-' if conj else ''}v{dst+1}, v{T}")

    base(E[1], 1, False, T0)
    base(Z8, 8, True, T1)
    base(G1, 128, False, T2)
    put(0, "1.0", "0")
    putp(1, E[1])
    putp(41, Y)
    cmul(a, E[2], E[1], E[1], T0)
    putp(8, G1)
    cmul(a, E[3], E[2], E[1], T0)
    cmul(a, E[4], E[2], E[2], T1)
    putp(2, E[2])
    cmul(a, E[5], E[4], E[1], T0)
    cmul(a, E[6], E[4], E[2], T1)
    cmul(a, E[7], E[4], E[3], T2)
    for e in range(3, 8):
        putp(e, E[e])
    ops = []
    for e in range(1, 8):
        ops.append(("x", 8 + e, G1, E[e]))
    for g in range(2, 17):
        ops.append(("g", g))
        if g in (2, 3):
            for i, e in enumerate((2, 4, 6)):
                ops.append(("x", 16 + (g - 2) * 4 + 1 + i, GC, E[e]))
        elif g < 8:
            ops.append(("x", 24 + (g - 4) * 2 + 1, GC, E[4]))
    yb = 1
    for k, op in enumerate(ops):
        if op[0] == "x":
            x = XT if (k & 1) else T2
            cmul(a, x, op[2], op[3], x)
            putp(op[1], x)
        else:
            g = op[1]
            cmul(a, GC, G1 if g == 2 else GC, G1, T1)
            row = 16 + (g - 2) * 4 if g < 4 else (24 + (g - 4) * 2 if g < 8 else 32 + (g - 8))
            putp(row, GC)
        if (k & 1) and yb < 16:
            cmul(a, Y, Y, Z8, T0)
            putp(41 + yb, Y)
            yb += 1
    assert yb == 16
    FR = 16
    a("s_waitcnt lgkmcnt(0)")
    for st in range(4):
        f = FR + 16 * st
        if st == 3:
            a("s_waitcnt lgkmcnt(8)")
        a(f"ds_read_b128 {q(f)}, v{VR} offset:{41*TB_RS + 64*st}")
        for t in range(3):
            a(f"ds_read_b128 {q(f+4+4*t)}, v{VR} offset:{16*t*TB_RS + 64*st}")
    a("s_waitcnt vmcnt(0)")
    for i in range(4):
        a(f"v_mov_b32 v{PR+i}, v{PR2+i}")
    for st in range(4):
        f = FR + 16 * st
        a(f"s_waitcnt lgkmcnt({12 - 4*st})")
        for t in range(3):
            a(f"v_mfma_f32_16x16x32_bf16 {q(DK+4*t)}, {q(f+4+4*t)}, {q(f)}, {q(DK+4*t)}")
    a("s_add_u32 s54, s54, 1\ns_cmp_lt_u32 s54, 2\ns_cbranch_scc1 L_kgen")
    a.vm = []


R_SC = 100
R_AD = 110
R_SP, R_ZH, R_GW, R_PT = 122, 123, 124, 125
R_DA, R_DL, R_DN, R_DD = 126, 127, 128, 129
VA, VF, VB2, VB3, VW2, VW3, VUX, VHO = 168, 169, 170, 171, 172, 173, 174, 175


def conv_main_pre(a):
    a(f"s_mul_i32 s57, s7, {CV_WAVE}\ns_mul_i32 s62, s7, 4224\ns_add_u32 s62, s62, {KP_BASE}")
    a(f"s_mul_i32 s63, s7, 3072\ns_add_u32 s63, s63, {PART_BASE}")
    a(f"v_lshlrev_b32 v140, 4, v1\nv_add_u32 v{R_PT}, s63, v140\nv_add_u32 v{R_GW}, s57, v140")
    a("v_lshlrev_b32 v141, 4, v4\nv_add_u32 v141, s62, v141")
    a("v_lshrrev_b32 v142, 1, v3\nv_and_b32 v143, 1, v3\nv_cmp_gt_u32 vcc, 2, v3")
    a(f"v_lshlrev_b32 v144, 8, v142\nv_lshl_add_u32 v144, v143, 3, v144\nv_add_u32 v{R_SC}, v144, v141")
    a("v_lshlrev_b32 v144, 8, v3\nv_add_u32 v144, 512, v144\nv_lshlrev_b32 v145, 9, v3")
    a(f"v_cndmask_b32 v144, v145, v144, vcc\nv_add_u32 v{R_SC+1}, v144, v141")
    for i in range(1, 4):
        a(f"v_mov_b32 v144, {4*i}\nv_mov_b32 v145, {256*(i>>1) + 8*(i&1)}")
        a(f"v_cndmask_b32 v144, v145, v144, vcc\nv_add_u32 v{R_SC+1+i}, v{R_SC+1}, v144")
    a("v_lshlrev_b32 v144, 10, v3\nv_lshl_add_u32 v144, v4, 4, v144\nv_add_u32 v144, 2048, v144\ns_movk_i32 s63, 4112")
    for i in range(4):
        r = R_SC + 5 + i
        a(f"v_add_u32 v{r}, {256*i}, v144\nv_min_u32 v{r}, s63, v{r}\nv_add_u32 v{r}, s62, v{r}")
    a("v_cmp_eq_u32 s[58:59], 63, v1")
    a(f"v_mul_u32_u24 v144, 43691, v1\nv_lshrrev_b32 v144, 19, v144\nv_mul_u32_u24 v144, {CV_CS - 192}, v144\nv_add_u32 v{R_ZH}, v144, v{R_GW}")
    a("v_add_u32 v144, 509, v3\nv_add_u32 v144, v144, v4\nv_add_u32 v145, 1015, v4\nv_cmp_lt_u32 vcc, 11, v4")
    a("s_movk_i32 s63, 517\nv_cmp_ge_u32 s[60:61], s63, v144\nv_cndmask_b32 v144, v144, v145, vcc")
    a("v_subrev_u32 v145, 12, v4\nv_cmp_gt_u32 s[82:83], 2, v145")
    a(f"v_mov_b32 v145, {128 + 1080}\nv_mov_b32 v146, 2104\nv_cndmask_b32 v145, v145, v146, vcc\ns_or_b64 s[60:61], s[60:61], s[82:83]")
    a(f"v_mul_u32_u24 v146, {CV_CS + 2}, v3\nv_add3_u32 v145, v145, v146, s57\nv_lshlrev_b32 v144, 1, v144\nv_sub_u32 v{R_SP}, v145, v144\nv_cvt_f32_u32 v144, v144")
    a("v_sub_u32 v145, 1022, v140\nv_cvt_f32_u32 v145, v145")
    for m in range(0, 12, 2):
        f0 = R_AD + m
        a(f"v_add_f32 v{f0}, {hex(f32bits(-2.0*m))}, v145")
        a(f"v_add_f32 v{f0+1}, {hex(f32bits(-2.0*(m+1)))}, v145" if m < 10 else f"v_mov_b32 v{f0+1}, v144")
        a(f"v_cvt_pk_bf16_f32 v{f0}, v{f0}, v{f0+1}")
        a.unpack(f0, f0)
        a(f"v_cvt_u32_f32 v{f0}, v{f0}\nv_cvt_u32_f32 v{f0+1}, v{f0+1}")
        a(f"v_add_u32 v{f0}, s62, v{f0}\nv_add_u32 v{f0+1}, s62, v{f0+1}")
    a("v_cmp_gt_u32 vcc, 32, v1\nv_cmp_le_u32 s[82:83], 42, v1\nv_subrev_u32 v144, 32, v1\nv_lshrrev_b32 v146, 3, v1")
    a("v_cndmask_b32 v145, 0, 1, s[82:83]\nv_cndmask_b32 v145, v145, v146, vcc")
    a("v_mul_u32_u24 v146, 10, v145\nv_sub_u32 v144, v144, v146\nv_and_b32 v146, 7, v1\nv_cndmask_b32 v144, v144, v146, vcc")
    a("v_mov_b32 v146, 127\nv_mov_b32 v147, 79\nv_cndmask_b32 v146, v146, v147, vcc\nv_lshlrev_b32 v147, 3, v144\nv_sub_u32 v146, v146, v147")
    a("v_add_u32 v147, 1, v145\nv_lshlrev_b32 v148, 4, v147\nv_lshlrev_b32 v147, 3, v147\nv_cndmask_b32 v147, v148, v147, vcc")
    a(f"v_lshl_add_u32 v147, v146, 5, v147\nv_add_u32 v147, s62, v147\nv_subrev_u32 v{R_DA}, 320, v147")
    a(f"v_cmp_gt_u32 s[82:83], 8, v1\nv_mov_b32 v147, 64\nv_cndmask_b32 v147, v147, 32, vcc")
    a(f"v_cndmask_b32 v{R_DN}, v147, 31, s[82:83]\nv_cndmask_b32 v147, v147, 33, s[82:83]\nv_sub_u32 v{R_DL}, v146, v147")
    a(f"v_mov_b32 v146, 160\nv_mov_b32 v147, 128\nv_cndmask_b32 v146, v146, v147, vcc\nv_mov_b32 v147, {CV_D3}\nv_mov_b32 v148, {CV_D2}\nv_cndmask_b32 v147, v147, v148, vcc")
    a(f"v_mul_u32_u24 v148, v146, v145\nv_lshl_add_u32 v147, v148, 2, v147\nv_lshl_add_u32 v147, v144, 4, v147\nv_add_u32 v{R_DD}, s57, v147")
    for k in range(1, 4):
        a(f"v_add_u32 v{R_DD+k}, v{R_DD+k-1}, v146")
    a("v_and_b32 v144, 3, v4\nv_lshrrev_b32 v145, 2, v4\nv_lshlrev_b32 v145, 3, v145\nv_lshlrev_b32 v146, 4, v3")
    a(f"v_mul_u32_u24 v{VA}, {CV_CS}, v144\nv_sub_u32 v{VA}, v{VA}, v145\nv_sub_u32 v{VA}, v{VA}, v146\nv_add_u32 v{VA}, {CV_A + 72}, v{VA}\nv_add_u32 v{VA}, s57, v{VA}")
    a(f"v_lshlrev_b32 v{VF}, 5, v4\nv_sub_u32 v{VF}, v{VF}, v146\nv_add_u32 v{VF}, {CV_U + 496 - 448}, v{VF}\nv_add_u32 v{VF}, s57, v{VF}")
    a("v_lshl_add_u32 v144, v142, 2, v144\nv_lshlrev_b32 v146, 3, v143\nv_sub_u32 v146, v146, v145\nv_add3_u32 v146, v146, 24, s57")
    a(f"v_lshl_add_u32 v{VB2}, v144, 7, v146\nv_add_u32 v{VB2}, {CV_D2}, v{VB2}\nv_mul_u32_u24 v{VB3}, 160, v144\nv_add_u32 v{VB3}, v{VB3}, v146\nv_add_u32 v{VB3}, {CV_D3}, v{VB3}")
    a("v_bfe_u32 v144, v1, 2, 2\nv_lshl_add_u32 v144, v143, 2, v144\nv_lshlrev_b32 v144, 5, v144\nv_and_b32 v145, 3, v1\nv_lshl_add_u32 v144, v145, 3, v144\nv_add_u32 v144, s57, v144")
    a(f"v_mul_u32_u24 v{VW2}, {CV_W5 - CV_W3 - 8}, v142\nv_add3_u32 v{VW2}, v{VW2}, v144, 8\nv_add_u32 v{VW2}, {CV_W3}, v{VW2}")
    a(f"v_mul_u32_u24 v{VW3}, {CV_W9 - CV_W7 - 16}, v142\nv_add3_u32 v{VW3}, v{VW3}, v144, 16\nv_add_u32 v{VW3}, {CV_W7}, v{VW3}")
    a(f"v_lshlrev_b32 v144, 5, v4\nv_lshl_add_u32 v144, v3, 3, v144\nv_add_u32 v{VUX}, s57, v144")
    for i in range(4):
        a(f"v_mov_b32 v{136+i}, 0")


def conv_main(a):
    DK = 80
    delay(a, "a")
    a.stamp(2)
    a("s_barrier")
    for t in range(3):
        a(f"ds_read_b128 {q(40+4*t)}, v{R_PT} offset:{1024*t}")
    a(f"s_mov_b32 s82, -1\ns_mov_b32 s83, 0xffff\ns_mov_b64 exec, s[82:83]\nds_write_b128 v{R_ZH}, v[136:139]\ns_mov_b64 exec, -1")
    a("s_waitcnt lgkmcnt(1)")
    for i in range(6):
        a(f"v_pk_add_f32 {q(DK+2*i,2)}, {q(DK+2*i,2)}, {q(40+2*i,2)}")
    for i in range(6):
        a(f"v_cvt_pk_bf16_f32 v{32+i}, v{DK+2*i}, v{DK+2*i+1}")
    a(f"ds_write_b64 v{R_SC}, v[32:33]")
    for i in range(4):
        a(f"ds_write_b16 v{R_SC+1+2*i}, v{34+i}\nds_write_b16_d16_hi v{R_SC+2+2*i}, v{34+i}")
    D, H, E = 16, 52, 64
    for m in range(6):
        a(f"ds_read_u16 v{D+m}, v{R_AD+2*m}")
        a(f"ds_read_u16 v{H+m}, v{R_AD+2*m+1}")
        if m == 1:
            a("s_waitcnt lgkmcnt(4)")
    for m in range(11):
        if m == 3:
            a("s_waitcnt lgkmcnt(3)")
        a(f"ds_read_u16 v{E+m}, v{R_DA} offset:{32*(10-m)}")
    a("s_mov_b64 exec, s[60:61]")
    a(f"ds_write_b16 v{R_SP}, v{H+5}")
    a("s_mov_b64 exec, -1")

    def windows(D, dst, C):
        C1, C2, C0 = C, C + 4, C + 8
        for m in range(4):
            a(f"v_mov_b32 v{C1+m}, v{D+1+m}")
            a(f"v_alignbit_b32 v{C2+m}, v{D+m+1}, v{D+m}, 16")
            a(f"v_alignbit_b32 v{C0+m}, v{D+m+2}, v{D+m+1}, 16")
        for k, c in enumerate((C0, C1, C2, D)):
            a(f"ds_write_b128 {dst(k)}".replace("DATA", q(c)))

    for m in range(5):
        a(f"v_lshl_or_b32 v{D+m}, v{H+m}, 16, v{D+m}")
    a(f"v_cndmask_b32 v{D+4}, v{D+4}, 0, s[58:59]\nv_cndmask_b32 v{D+5}, v{D+5}, 0, s[58:59]")
    windows(D, lambda k: f"v{R_GW}, DATA offset:{CV_A + k*CV_CS + 192}", 24)
    for m in range(11):
        a(f"v_subrev_u32 v{40+m}, {m}, v{R_DL}")
    a("s_waitcnt lgkmcnt(5)")
    for m in range(0, 11, 2):
        a(f"v_cmp_lt_u32 vcc, v{40+m}, v{R_DN}")
        if m < 10:
            a(f"v_cmp_lt_u32 s[82:83], v{41+m}, v{R_DN}")
        a(f"s_nop {0 if m < 10 else 1}\nv_cndmask_b32 v{E+m}, 0, v{E+m}, vcc")
        if m < 10:
            a(f"v_cndmask_b32 v{E+m+1}, 0, v{E+m+1}, s[82:83]")
    D2 = 76
    for m in range(5):
        a(f"v_lshl_or_b32 v{D2+m}, v{E+2*m+1}, 16, v{E+2*m}")
    a(f"v_mov_b32 v{D2+5}, v{E+10}")
    a("s_mov_b32 s82, -1\ns_mov_b32 s83, 0xfffff\ns_mov_b64 exec, s[82:83]")
    windows(D2, lambda k: f"v{R_DD+k}, DATA", 84)
    a("s_mov_b64 exec, -1")
    ACC = 16
    AS, FS, AX = [48, 88], [56, 96], 128
    T1, XF, DSV = 176, 208, 240
    a(f"v_lshlrev_b32 v{DSV}, 16, v{DSV}")
    a(f"v_lshrrev_b32 v144, 3, v4\ns_mov_b32 s63, 163840\nv_mul_lo_u32 v144, v144, s63")
    a(f"v_and_b32 v145, 7, v4\nv_lshl_add_u32 v144, v145, 5, v144\nv_lshl_add_u32 v{VHO}, v3, 3, v144")
    a.srd(36, 4, WS_HT, SZ_T)
    a("s_lshl_b32 s55, s52, 8")
    a("s_waitcnt lgkmcnt(0)")
    a.stamp(3)
    a("s_barrier")
    a.stamp(4)

    def rdA(r, qq):
        off = 1152 - 64 * qq if qq <= 16 else 0
        return [f"ds_read_b64 {q(r,2)}, v{VA} offset:{off}", f"ds_read_b64 {q(r+2,2)}, v{VA} offset:{off+8}"]

    def reads(s, c):
        o = rdA(AS[s], c)
        o += [f"ds_read_b128 {q(FS[s]+4*k)}, v{VF} offset:{512*k + 64*(7-c)}" for k in range(8)]
        return o + rdA(AS[s] + 4, 8 + c)

    def rd2(r, v, off, second):
        return [f"{'ds_read_b64_tr_b16' if second == 256 else 'ds_read_b64'} {q(r,2)}, v{v} offset:{off}",
                f"{'ds_read_b64_tr_b16' if second == 256 else 'ds_read_b64'} {q(r+2,2)}, v{v} offset:{off+second}"]

    def mf(nb, A, B, zero=False):
        return f"v_mfma_f32_16x16x32_bf16 {q(ACC+4*nb)}, {q(A)}, {q(B)}, {0 if zero else q(ACC+4*nb)}"

    def emit(mfs, extra):
        extra = list(extra)
        n = len(mfs)
        for i, m in enumerate(mfs):
            a(m)
            k = (len(extra) + (n - i) - 1) // (n - i)
            for _ in range(min(k, 3)):
                a(extra.pop(0))
        for x in extra:
            a(x)

    for i, r in enumerate(reads(0, 0) + rdA(AX, 16) + rdA(AX + 4, 32)):
        a(r)
        if i == 11:
            a("s_waitcnt lgkmcnt(6)")
    fu, fx = [], []
    for nb in range(8):
        for hh in range(2):
            p, src = T1 + 4 * nb + 2 * hh, T1 + 4 * nb + 2 + hh
            fu += [f"v_lshlrev_b32 v{p}, 16, v{src}", f"v_and_b32 v{p+1}, 0xffff0000, v{src}",
                   f"v_pk_mul_f32 {q(p,2)}, {q(p,2)}, {q(DSV,2)} op_sel_hi:[1,0]",
                   f"v_cvt_pk_bf16_f32 v{p}, v{p}, v{p+1}",
                   f"v_and_b32 v{p+1}, 0xffff0000, v{p}", f"v_lshlrev_b32 v{p}, 16, v{p}"]
            p, src = XF + 4 * nb + 2 * hh, XF + 4 * nb + 2 + hh
            fx += [f"v_lshlrev_b32 v{p}, 16, v{src}", f"v_and_b32 v{p+1}, 0xffff0000, v{src}"]
    ux = [f"ds_read_b64 {q(T1+4*nb+2,2)}, v{VUX} offset:{CV_U + 480 + 512*nb}" for nb in range(8)]
    ux += [f"ds_read_b64 {q(XF+4*nb+2,2)}, v{VUX} offset:{CV_X + 512*nb}" for nb in range(8)]
    B2 = {(p, d): 128 + 4 * (3 * p + d - 2) for p in range(2) for d in (2, 3, 4)}
    B3 = {d: 152 + 4 * (d - 4) for d in (4, 5, 6, 7)}
    WA = {g: 48 + 4 * g for g in range(6)}
    W3r = {g: 72 + 4 * g for g in range(4)}
    WB = {g: 88 + 4 * g for g in range(6)}
    far1 = []
    for d in (2, 3, 4):
        far1 += rd2(B2[0, d], VB2, 32 * (4 - d), 16)
    for g in range(6):
        far1 += rd2(WA[g], VW2, 512 * g + 16, 256)
    for d in (2, 3, 4):
        far1 += rd2(B2[1, d], VB2, 1024 + 32 * (4 - d), 16)
    far2 = []
    for g in range(6):
        far2 += rd2(WB[g], VW2, 512 * g, 256)
    far3 = []
    for g in range(4):
        far3 += rd2(W3r[g], VW3, 512 * g, 256) + rd2(B3[4 + g], VB3, 32 * (3 - g), 16)
    for c in range(8):
        s_ = c & 1
        a("s_waitcnt lgkmcnt(0)")
        mfs = [mf(m, AS[s_], FS[s_] + 4 * m, c == 0) for m in range(8)] + [mf(m + 1, AS[s_] + 4, FS[s_] + 4 * m) for m in range(7)]
        if c == 0:
            mfs += [mf(m + 2, AX, FS[0] + 4 * m) for m in range(6)] + [mf(m + 4, AX + 4, FS[0] + 4 * m) for m in range(4)]
            emit(mfs, reads(1, 1) + ["s_waitcnt lgkmcnt(4)"] + ux[:8] + ["s_waitcnt lgkmcnt(6)"] + ux[8:])
        elif c < 7:
            emit(mfs, reads(1 - s_, c + 1) + fu[16 * (c - 1):16 * c])
        else:
            a("s_barrier")
            emit(mfs, far1[:12] + ["s_waitcnt lgkmcnt(4)"] + far1[12:])
    a("s_waitcnt lgkmcnt(0)")
    emit([mf(g + d, WA[g], B2[0, d]) for d in (2, 3, 4) for g in range(8 - d) if g < 6], far2 + ["s_waitcnt lgkmcnt(2)"] + far3[:12])
    a("s_waitcnt lgkmcnt(12)")
    emit([mf(g + d, WB[g], B2[1, d]) for d in (2, 3, 4) for g in range(8 - d) if g < 6], far3[12:] + fx[:20])
    a("s_waitcnt lgkmcnt(0)")
    emit([mf(g + d, W3r[g], B3[d]) for d in (4, 5, 6, 7) for g in range(8 - d)], fx[20:])
    delay(a, "e")
    a.stamp(5)
    a("s_nop 4")
    for nb in range(8):
        y = ACC + 4 * nb
        o = 112 + 2 * nb
        for hh in range(2):
            t = y + 2 * hh
            a(f"v_cvt_pk_bf16_f32 v{t}, v{t}, v{t+1}")
            a.unpack(t, t)
            a(f"v_pk_add_f32 {q(t,2)}, {q(t,2)}, {q(T1+4*nb+2*hh,2)}")
            a(f"v_cvt_pk_bf16_f32 v{t}, v{t}, v{t+1}")
            a.unpack(t, t)
            a(f"v_pk_add_f32 {q(t,2)}, {q(t,2)}, {q(XF+4*nb+2*hh,2)}")
            a(f"v_cvt_pk_bf16_f32 v{o+hh}, v{t}, v{t+1}")
        a.vmem(f"buffer_store_dwordx2 {q(o,2)}, v{VHO}, s[36:39], s55 offen {SC}")
        a(f"s_add_u32 s55, s55, {2*163840}")
    a.stamp(6)
    a("s_waitcnt vmcnt(0)")
    last_of4_publish(a, LDS_CNT, F_C, 2, 120)


def conv_partner(a):
    DK = 80
    a(f"s_mul_i32 s53, s7, {CV_WAVE}")
    a(f"s_mul_i32 s55, s7, 3072\ns_add_u32 s55, s55, {PART_BASE}")
    a("v_lshlrev_b32 v7, 4, v1\nv_add_u32 v5, s55, v7")
    a("v_mov_b32 v20, 0\nv_mov_b32 v21, 0\nv_mov_b32 v22, 0\nv_mov_b32 v23, 0")
    a("v_add_u32 v9, s53, v7")
    a(f"v_lshrrev_b32 v16, 1, v1\nv_mul_u32_u24 v16, {CV_CS}, v16\nv_and_b32 v17, 1, v1\nv_lshl_add_u32 v16, v17, 4, v16\nv_add_u32 v16, {CV_A + 1216}, v16")
    for k, ad in enumerate([CV_W3, CV_W5, CV_W7, CV_W9, CV_W5 - 16, CV_W7 - 16, CV_W9 - 16, CV_WAVE - 16]):
        a(f"v_mov_b32 v17, {ad}\nv_cmp_eq_u32 vcc, {8+k}, v1\ns_nop 1\nv_cndmask_b32 v16, v16, v17, vcc")
    a("v_add_u32 v16, s53, v16")
    for t in range(3):
        a(f"ds_write_b128 v5, {q(DK+4*t)} offset:{1024*t}")
    a.stamp(2)
    a.srd(32, 4, WS_XT, SZ_TP)
    a.srd(36, 4, WS_ST, 16384)
    a(f"s_lshl_b32 s54, s2, 8\ns_mul_i32 s61, s7, {16*T_BLK}\ns_add_u32 s54, s54, s61\ns_lshl_b32 s61, s7, 11\ns_add_u32 s62, s61, 8192")
    a(f"v_lshrrev_b32 v8, 2, v1\nv_mul_u32_u24 v8, {T_BLK}, v8\nv_and_b32 v14, 3, v1\nv_lshl_add_u32 v8, v14, 4, v8")
    a("v_lshlrev_b32 v14, 5, v1\ns_lshl_b32 s63, s7, 10\nv_add_u32 v15, s63, v7")
    a("s_waitcnt lgkmcnt(0)\ns_barrier")
    a("s_mov_b64 exec, 0x3fffffff")
    a(f"ds_write_b128 v9, v[20:23] offset:{CV_U}")
    a("s_mov_b64 exec, 0xffff")
    a(f"ds_write_b128 v16, v[20:23]")
    a("s_mov_b64 exec, -1")
    a(f"s_mul_i32 s60, s7, {16*FS_}")
    a.poll(F_L, 16, 24, "s60", fast=True)
    a.stamp(3)
    XR, NM, RI, U = 32, 48, 56, 64
    for k in range(2):
        a.vmem(f"buffer_load_dwordx4 {q(NM+4*k)}, v14, s[36:39], s61 offen offset:{16*k} {SC}", "st")
        a.vmem(f"buffer_load_dwordx4 {q(RI+4*k)}, v14, s[36:39], s62 offen offset:{16*k} {SC}", "st")
    for ch in range(4):
        a.vmem(f"buffer_load_dwordx4 {q(XR+4*ch)}, v8, s[32:35], s54 offen offset:{64*ch} {SC}", ("x", ch))
    for ch in range(4):
        a.wait_vm(("x", ch))
        for i in range(4):
            t = 80 + 2 * i
            a.unpack(t, XR + 4 * ch + i)
            a(f"v_pk_add_f32 {q(t,2)}, {q(t,2)}, {q(NM+2*i,2)}")
            a(f"v_cvt_pk_bf16_f32 v{t}, v{t}, v{t+1}")
            a.unpack(t, t)
            a(f"v_pk_mul_f32 {q(t,2)}, {q(t,2)}, {q(RI+2*i,2)}")
            a(f"v_cvt_pk_bf16_f32 v{U+4*ch+i}, v{t}, v{t+1}")
        if ch == 2:
            a(f"v_add_u32 v15, {2*CV_WAVE}, v15")
        a(f"ds_write_b128 v15, {q(U+4*ch)} offset:{CV_U + 480 + CV_WAVE*(ch&1)}")
        a(f"ds_write_b128 v15, {q(XR+4*ch)} offset:{CV_X + CV_WAVE*(ch&1)}")
    a("s_waitcnt lgkmcnt(0)")
    a.stamp(4)
    a("s_barrier")
    for r in range(3):
        P = 32 + 8 * r
        a(f"ds_read_b64 {q(P,2)}, v9 offset:{CV_U + 480 - 16 - 8 + 1024*r}")
        a(f"ds_read_b128 {q(P+2)}, v9 offset:{CV_U + 480 - 16 + 1024*r}")
        a(f"ds_read_b64 {q(P+6,2)}, v9 offset:{CV_U + 480 + 1024*r}")
    Ef, S_, O_ = 64, 80, 96
    for r in range(3):
        P = 32 + 8 * r
        a(f"s_waitcnt lgkmcnt({[6, 7, 8][r]})")
        for i in range(8):
            a.unpack(Ef + 2 * i, P + i)
        e = lambda k: Ef + 4 + k
        for h in range(1, 5 if r < 2 else 3):
            if h & 1:
                for i in range(8):
                    a(f"v_add_f32 v{88+i}, v{e(i-h)}, v{e(i+h)}")
            else:
                for i in range(0, 8, 2):
                    a(f"v_pk_add_f32 {q(88+i,2)}, {q(e(i-h),2)}, {q(e(i+h),2)}")
            for i in range(0, 8, 2):
                a(f"v_pk_add_f32 {q(S_+i,2)}, {q(88+i,2)}, {q(e(i) if h == 1 else S_+i,2)}")
            O = O_ + 4 * (h - 1)
            for i in range(4):
                a(f"v_cvt_pk_bf16_f32 v{O+i}, v{S_+2*i}, v{S_+2*i+1}")
            a(f"ds_write_b128 v9, {q(O)} offset:{[CV_W3, CV_W5, CV_W7, CV_W9][h-1] + 16 + 1024*r}")
    a("s_waitcnt lgkmcnt(0)\ns_barrier")


G1_H = 5120
G1_HN = 5
G1_W = 87040
G1_WN = 3
G1_CONST = 0
G1_CS = 2048
G1_SP = 3072
G2_W = 5120
G2_SLOT = [0, 1, 2, 6, 3, 4, 5]
LDS_TOTAL = 163840


def tile_ids(a):
    a("s_and_b32 s12, s2, 7\ns_lshr_b32 s13, s2, 3\ns_and_b32 s14, s13, 7\ns_lshr_b32 s15, s13, 3")
    a("s_and_b32 s8, s12, 1\ns_lshl_b32 s8, s8, 3\ns_add_u32 s8, s8, s14")
    a("s_lshr_b32 s9, s12, 1\ns_lshl_b32 s10, s9, 3\ns_lshl_b32 s9, s9, 2\ns_add_u32 s9, s9, s15")
    a("s_add_u32 s10, s10, s14")
    a("s_and_b32 s11, s12, 1\ns_lshl_b32 s11, s11, 2\ns_add_u32 s11, s11, s15")
    if G2MAP == 1:
        a("s_lshl_b32 s10, s12, 2\ns_and_b32 s11, s13, 3\ns_add_u32 s10, s10, s11\ns_lshr_b32 s11, s13, 2")
    if G2MAP == 2:
        a("s_and_b32 s10, s12, 1\ns_lshl_b32 s10, s10, 4\ns_and_b32 s11, s13, 15\ns_add_u32 s10, s10, s11\ns_lshr_b32 s11, s12, 1\ns_lshl_b32 s11, s11, 1\ns_lshr_b32 s14, s13, 4\ns_add_u32 s11, s11, s14")
    a("v_bfe_u32 v5, v1, 2, 2")
    a("v_lshl_add_u32 v6, v3, 2, v5\nv_lshlrev_b32 v6, 8, v6")
    a("v_and_b32 v7, 3, v1\nv_lshl_add_u32 v6, v7, 3, v6")
    a("v_and_b32 v7, 1, v3\nv_lshl_add_u32 v5, v7, 2, v5")


def gemm_mfma_waves(a, done):
    tile_ids(a)
    if EXP & 16:
        sk = a.newlabel("L_nowarm")
        a(f"s_cmp_lt_u32 s2, 160\ns_cbranch_scc1 {sk}")
        a("s_sub_u32 s16, s13, 20\ns_lshl_b32 s16, s16, 2\ns_add_u32 s16, s16, s7\ns_mul_i32 s16, s16, 20480")
        a("v_lshlrev_b32 v8, 4, v1")
        for which in range(2):
            if which == 0:
                a(f"s_lshr_b32 s17, s12, 1\ns_mul_i32 s18, s17, {80*FS_}\ns_mul_i32 s17, s17, 983040")
                a.srd(32, 4, WS_W13, SZ_W13)
                a.poll(F_R, 80, 120, "s18")
            else:
                a("s_and_b32 s17, s12, 1\ns_mul_i32 s17, s17, 983040")
                a.srd(32, 4, WS_W2, SZ_W2)
                a.poll(F_R2, 32, 120)
            a("s_add_u32 s17, s17, s16")
            for i in range(20):
                a(f"buffer_load_dwordx4 {q(24+4*i)}, v8, s[32:35], s17 offen offset:{1024*(i%4)}")
                if i % 4 == 3:
                    a("s_add_u32 s17, s17, 4096")
        a("s_waitcnt vmcnt(0)")
        a.label(sk)
    a("s_barrier")
    if EXP & 1024:
        a("s_setprio 2")
    elif EXP & 512:
        a("s_setprio 0")
    a("s_and_b32 s16, s7, 1\ns_lshr_b32 s17, s7, 1")
    a("s_lshl_b32 s18, s16, 2\nv_xor_b32 v5, s18, v5")
    for nt in range(4):
        a(f"v_xor_b32 v7, {nt}, v5\nv_lshl_add_u32 v{12+nt}, v7, 5, v6")
    a("v_lshlrev_b32 v16, 4, v1\ns_mul_i32 s18, s17, 6144\nv_add_u32 v16, s18, v16")
    ACC, HS, AD = 24, [120, 160], 17
    for i in range(96):
        a(f"v_mov_b32 v{ACC+i}, 0")

    def reads(s, half):
        o = []
        for nt in range(4):
            r = HS[s] + 4 * nt
            o.append(f"ds_read_b64_tr_b16 {q(r,2)}, v{AD+nt} offset:{8192*half}")
            o.append(f"ds_read_b64_tr_b16 {q(r+2,2)}, v{AD+nt} offset:{8192*half + 4096}")
        for t in range(6):
            o.append(f"ds_read_b128 {q(HS[s]+16+4*t)}, v{AD+4} offset:{12288*half + 1024*t}")
        return o

    def setad(hs, ws):
        return [f"v_add_u32 v{AD+i}, {hs}, v{12+i}" for i in range(4)] + [f"v_add_u32 v{AD+4}, {ws}, v16"]

    for x in setad(G1_H, G1_W):
        a(x)
    a(f"s_mov_b32 s19, {G1_H}\ns_mov_b32 s20, {G1_W}\ns_mov_b32 s21, 0")
    a.srd(32, 4, WS_HM, SZ_HM)
    a.stamp(7)
    sk = a.newlabel("L_nopoll")
    a(f"s_cmp_lg_u32 s6, 0\ns_cbranch_scc1 {sk}")
    a.poll(F_R2, 32, 120)
    a.poll(F_C, 160, 120, fast=True)
    a(f"s_cmp_lg_u32 s2, 0\ns_cbranch_scc1 {sk}")
    a("v_mov_b32 v120, s3\nv_mov_b32 v121, 0\ns_mov_b64 exec, 1")
    a("buffer_store_dword v120, v121, s[92:95], 0 offen\ns_mov_b64 exec, -1")
    a.label(sk)
    a("s_barrier")
    a.stamp(8)
    a("s_waitcnt vmcnt(0)\ns_barrier")
    a.stamp(9)
    for x in reads(0, 0):
        a(x)
    a.label("L_g1")
    for s in range(2):
        if s == 0:
            a(f"s_add_u32 s19, s19, 16384\ns_cmp_eq_u32 s19, {G1_H + G1_HN*16384}\ns_cselect_b32 s19, {G1_H}, s19")
            a(f"s_add_u32 s20, s20, 24576\ns_cmp_eq_u32 s20, {G1_W + G1_WN*24576}\ns_cselect_b32 s20, {G1_W}, s20")
            a("s_waitcnt lgkmcnt(0)")
            rest = reads(1, 1) + setad("s19", "s20")
        else:
            a("s_waitcnt lgkmcnt(0)\ns_barrier")
            rest = reads(0, 0)
        i = 0
        for t in range(6):
            for nt in range(4):
                ac = ACC + 4 * (t * 4 + nt)
                a(f"v_mfma_f32_16x16x32_bf16 {q(ac)}, {q(HS[s]+16+4*t)}, {q(HS[s]+4*nt)}, {q(ac)}")
                if i < len(rest):
                    a(rest[i])
                i += 1
    a("s_add_u32 s21, s21, 1\ns_cmp_lt_u32 s21, 10\ns_cbranch_scc1 L_g1")
    a.stamp(10)
    a("s_lshl_b32 s18, s16, 10\nv_lshlrev_b32 v5, 4, v4\nv_add_u32 v5, s18, v5")
    a("s_mul_i32 s18, s17, 384\nv_lshlrev_b32 v6, 4, v3\nv_add_u32 v6, s18, v6")
    a("s_lshl_b32 s22, s8, 1\ns_add_u32 s22, s22, s16\ns_mul_i32 s22, s22, 48")
    a("s_mul_i32 s23, s9, 3\ns_add_u32 s22, s22, s23")
    a("s_lshl_b32 s23, s17, 1\ns_add_u32 s23, s23, s22\ns_lshl_b32 s23, s23, 12")
    a("s_add_u32 s22, s22, 1\ns_lshl_b32 s22, s22, 12\ns_lshl_b32 s18, s17, 9\ns_add_u32 s22, s22, s18")
    a("v_and_b32 v7, 1, v3\nv_lshlrev_b32 v7, 10, v7\nv_lshrrev_b32 v8, 1, v3\nv_lshl_add_u32 v7, v8, 8, v7\nv_lshl_add_u32 v7, v4, 4, v7")
    a("s_waitcnt lgkmcnt(0)\ns_barrier")
    KC, CSR = 184, 160
    for nt in range(4):
        a(f"ds_read_b128 {q(KC+4*nt)}, v5 offset:{G1_CONST + 256*nt}")
    for t in range(6):
        a(f"ds_read_b128 {q(CSR+4*t)}, v6 offset:{G1_CS + 64*t}")
    a("v_lshlrev_b32 v5, 4, v1")
    a("s_waitcnt lgkmcnt(0)")
    delay(a, "f")
    a.stamp(11)
    T = 120
    for nt in range(4):
        O = 144 + 4 * (nt & 1)
        k = KC + 4 * nt
        for jj in range(3):
            g = ACC + 4 * (jj * 4 + nt)
            u = ACC + 4 * ((3 + jj) * 4 + nt)
            for hh in range(2):
                g2, u2 = g + 2 * hh, u + 2 * hh
                a(f"v_pk_fma_f32 {q(g2,2)}, {q(CSR+4*jj+2*hh,2)}, {q(k,2)}, {q(g2,2)} op_sel_hi:[1,0,1]")
                a(f"v_pk_fma_f32 {q(u2,2)}, {q(CSR+4*(3+jj)+2*hh,2)}, {q(k,2)}, {q(u2,2)} op_sel_hi:[1,0,1]")
            for hh in range(2):
                a(f"v_pk_mul_f32 {q(T+2*hh,2)}, {q(g+2*hh,2)}, {q(k,2)} op_sel:[0,1] op_sel_hi:[1,1]")
            for i in range(4):
                a(f"v_exp_f32 v{T+i}, v{T+i}")
            for hh in range(2):
                a(f"v_pk_mul_f32 {q(g+2*hh,2)}, {q(g+2*hh,2)}, {q(u+2*hh,2)}")
            for hh in range(2):
                a(f"v_pk_fma_f32 {q(T+2*hh,2)}, {q(T+2*hh,2)}, {q(k+2,2)}, {q(k+2,2)} op_sel_hi:[1,0,0]")
            for i in range(4):
                a(f"v_rcp_f32 v{T+i}, v{T+i}")
            a("s_nop 0")
            for hh in range(2):
                a(f"v_pk_mul_f32 {q(g+2*hh,2)}, {q(g+2*hh,2)}, {q(T+2*hh,2)}")
            for hh in range(2):
                d = O + 2 * jj + hh if jj < 2 else 152 + 4 * (nt >> 1) + 2 * (nt & 1) + hh
                a(f"v_cvt_pk_bf16_f32 v{d}, v{g+2*hh}, v{g+2*hh+1}")
            if jj == 1:
                a(f"buffer_store_dwordx4 {q(O)}, v5, s[32:35], s23 offen offset:{1024*nt} {SC}")
        if nt & 1:
            S = 152 + 4 * (nt >> 1)
            a(f"s_nop 1\nv_permlane16_swap_b32 v{S}, v{S+2}\nv_permlane16_swap_b32 v{S+1}, v{S+3}")
            a(f"buffer_store_dwordx4 {q(S)}, v7, s[32:35], s22 offen offset:{1024*(nt-1)} {SC}")
    a.stamp(12)
    a.vm = []
    ACC, FS, RES, VW, VH, HR, PD = 16, [56, 76], 96, 116, 120, 144, 12
    a("s_lshl_b32 s22, s16, 1\ns_add_u32 s22, s22, s17")
    a("s_lshr_b32 s18, s10, 1\ns_mul_i32 s18, s18, 163840\ns_mul_i32 s19, s11, 20480\ns_add_u32 s18, s18, s19")
    a("s_and_b32 s19, s10, 1\ns_lshl_b32 s19, s19, 7\ns_add_u32 s18, s18, s19\ns_lshl_b32 s19, s22, 5\ns_add_u32 s18, s18, s19")
    a("v_lshlrev_b32 v10, 1, v4\nv_lshl_add_u32 v11, v3, 10, v10\nv_lshl_add_u32 v10, v3, 11, v10")
    a("s_add_u32 s19, s18, 8192\ns_add_u32 s20, s18, 16384")
    a.srd(36, 4, WS_HT, SZ_T)
    a.srd(40, 30, 0, SZ_T)
    a("s_lshl_b32 s21, s8, 4\ns_add_u32 s21, s21, s9")
    a("s_waitcnt vmcnt(0)")
    last_of4_publish(a, LDS_CNT2, F_G, 21, 140)
    a.stamp(13)
    for p in range(2):
        for e in range(8):
            a.vmem(f"buffer_load_ushort v{RES+8*p+e}, v10, s[36:39], s{18+p} offen offset:{256*e} {SC}", "res")
    for e in range(4):
        a.vmem(f"buffer_load_ushort v{RES+16+e}, v11, s[36:39], s20 offen offset:{256*e} {SC}", "res")
    for i in range(40):
        a(f"v_mov_b32 v{ACC+i}, 0")
    a(f"s_lshl_b32 s19, s17, 12\ns_lshl_b32 s21, s22, 10\ns_add_u32 s19, s19, s21\nv_add_u32 v{VH}, s19, v5\nv_xor_b32 v{VH+1}, 1024, v{VH}")
    a(f"s_mul_i32 s19, s17, 5120\nv_add_u32 v{VW}, s19, v5\nv_add_u32 v{VW+1}, 61440, v{VW}\nv_add_u32 v{VW+2}, 122880, v{VW}")
    a("s_lshl_b32 s18, s10, 6\ns_lshl_b32 s19, s22, 4\ns_add_u32 s18, s18, s19\ns_mul_i32 s18, s18, 1280\ns_mul_i32 s19, s11, 160\ns_add_u32 s18, s18, s19")
    a("v_mul_u32_u24 v10, 1280, v4\nv_lshl_add_u32 v11, v3, 3, v10\nv_lshl_add_u32 v10, v3, 4, v10")
    a(f"s_mul_i32 s19, s7, 5120\ns_add_u32 s19, s19, {G2_W + 4*20480}\nv_add_u32 v6, s19, v5")
    a(f"s_xor_b32 s19, s7, 2\ns_mul_i32 s19, s19, 5120\ns_add_u32 s19, s19, {G2_W + 4*20480}\nv_add_u32 v7, s19, v5")
    a(f"s_mul_i32 s24, s10, {48*4096}\ns_add_u32 s25, s24, {48*4096}\ns_mul_i32 s23, s15, {3*16384 if EXP & 2 else 0}\ns_add_u32 s23, s23, s24")
    sk = a.newlabel("L_nopub")
    a(f"s_cmp_lg_u32 s6, 0\ns_cbranch_scc1 {sk}")
    a(f"s_lshr_b32 s21, s10, 1\ns_mul_i32 s21, s21, {16*FS_}")
    vm_save = list(a.vm)
    a.poll(F_G, 16, 140, "s21", fast=True)
    a.vm = vm_save
    a.label(sk)
    a("s_barrier")

    def hload(n):
        return [("v", f"buffer_load_dwordx4 {q(HR + 8*(n % PD) + 4*j)}, v{VH+j}, s[32:35], s23 offen {SC}", ("hm", n)) for j in range(2)] + [("a", "s_add_u32 s23, s23, 8192\ns_cmp_eq_u32 s23, s25\ns_cselect_b32 s23, s24, s23" if EXP & 2 else "s_add_u32 s23, s23, 8192", None)]

    def wreads(n, s):
        st, kk = divmod(n, 2)
        off = G2_W + G2_SLOT[st % 7] * 20480 + kk * 10240
        return [("a", f"ds_read_b128 {q(FS[s]+4*t)}, v{VW + off // 61440} offset:{off % 61440 + 1024*t}", None) for t in range(5)]

    def put(x):
        if x[0] == "v":
            a.vmem(x[1], x[2])
        else:
            a(x[1])

    for x in wreads(0, 0):
        put(x)
    nxt = PD0
    for n in range(PD0):
        for x in hload(n):
            put(x)
    for n in range(24):
        s = n & 1
        a.wait_vm(("hm", n))
        if n == 0:
            a.stamp(14)
        a("s_waitcnt lgkmcnt(0)")
        if n in (5, 9, 13, 19):
            a("s_barrier")
        ex = wreads(n + 1, 1 - s) if n < 23 else []
        for _ in range(3):
            if nxt < 24 and nxt <= n - 1 + PD:
                ex += hload(nxt)
                nxt += 1
        for t in range(5):
            for j in range(2):
                ac = ACC + 4 * (5 * j + t)
                a(f"v_mfma_f32_16x16x32_bf16 {q(ac)}, {q(FS[s]+4*t)}, {q(HR + 8*(n % PD) + 4*j)}, {q(ac)}")
                if ex:
                    put(ex.pop(0))
        for x in ex:
            put(x)
    a("s_nop 3")
    a("s_nop 5")
    for t in range(5):
        a(f"ds_write_b128 v6, {q(ACC+20+4*t)} offset:{1024*t}")
    a("s_waitcnt lgkmcnt(0)\ns_barrier")
    for t in range(5):
        a(f"ds_read_b128 {q(ACC+20+4*t)}, v7 offset:{1024*t}")
    delay(a, "g")
    a.wait_vm("res")
    for i in range(20):
        a(f"v_lshlrev_b32 v{RES+i}, 16, v{RES+i}")
    a("s_waitcnt lgkmcnt(0)")
    O = 56
    for i in range(10):
        y = ACC + 2 * i
        a(f"v_pk_add_f32 {q(y,2)}, {q(y,2)}, {q(y+20,2)}")
        a(f"v_cvt_pk_bf16_f32 v{y}, v{y}, v{y+1}")
        a.unpack(y, y)
        a(f"v_pk_add_f32 {q(y,2)}, {q(y,2)}, {q(RES+2*i,2)}")
        a(f"v_cvt_pk_bf16_f32 v{O+i}, v{y}, v{y+1}")
        if i == 3:
            a(f"buffer_store_dwordx4 {q(O)}, v10, s[40:43], s18 offen {SCO}")
        if i == 7:
            a(f"buffer_store_dwordx4 {q(O+4)}, v10, s[40:43], s18 offen offset:64 {SCO}")
    a(f"buffer_store_dwordx2 {q(O+8,2)}, v11, s[40:43], s18 offen offset:128 {SCO}")
    a(f"s_branch {done}")


def gemm_loader_waves(a, done):
    a.vm = []
    tile_ids(a)
    a("s_mul_i32 s22, s8, 163840\ns_add_u32 s23, s22, 163840")
    a(f"s_mul_i32 s24, s9, {20*12288}\ns_add_u32 s25, s24, {20*12288}")
    a("s_lshr_b32 s20, s9, 3\ns_mul_i32 s20, s20, 5")
    a("s_lshl_b32 s16, s20, 14\ns_add_u32 s16, s16, s22\ns_mul_i32 s17, s20, 24576\ns_add_u32 s17, s17, s24")
    a("s_lshl_b32 s18, s7, 12\ns_mul_i32 s19, s7, 6144")
    a("v_lshrrev_b32 v12, 1, v4\nv_xor_b32 v12, v12, v3\nv_lshlrev_b32 v12, 5, v12")
    a("v_and_b32 v7, 1, v4\nv_lshlrev_b32 v7, 4, v7\nv_lshl_add_u32 v7, v3, 8, v7\nv_add_u32 v7, s18, v7")
    a("v_add_u32 v8, v7, v12\nv_xor_b32 v12, 128, v12\nv_add_u32 v9, v7, v12")
    if EXP & 2048:
        a("v_lshlrev_b32 v8, 4, v1\nv_add_u32 v8, s18, v8\nv_mov_b32 v9, v8")
    a("v_lshlrev_b32 v10, 4, v1\nv_add_u32 v10, s19, v10\nv_add_u32 v11, 4096, v10")
    a.srd(32, 4, WS_HT, SZ_T)
    a.srd(36, 4, WS_W13, SZ_W13)
    a.srd(40, 4, WS_CSP, SZ_CSP)
    a(f"s_mul_i32 s20, s9, {20*FS_}")
    a.poll(F_R, 20, 20, "s20")
    a.stamp(5)

    def issue_w(st):
        slot = G1_W + (st % G1_WN) * 24576
        if EXP & 4096 and st > 2:
            a.vm.append(("w", st))
            return
        a(f"s_add_u32 m0, s19, {slot}\ns_nop 0")
        for i in range(4):
            a.vmem(f"buffer_load_dwordx4 v10, s[36:39], s17 offen offset:{1024*i} {SCL} lds", ("w", st))
        a(f"s_add_u32 m0, s19, {slot + 4096}\ns_nop 0")
        for i in range(2):
            a.vmem(f"buffer_load_dwordx4 v11, s[36:39], s17 offen offset:{1024*i} {SCL} lds", ("w", st))
        a("s_add_u32 s17, s17, 24576\ns_cmp_eq_u32 s17, s25\ns_cselect_b32 s17, s24, s17")

    def issue_h(st):
        slot = G1_H + (st % G1_HN) * 16384
        if EXP & 8192 and st > 0:
            a.vm.append(("h", st))
            return
        a(f"s_add_u32 m0, s18, {slot}\ns_nop 0")
        for i in range(4):
            a.vmem(f"buffer_load_dwordx4 v{8 + (i&1)}, s[32:35], s16 offen offset:{1024*i} {SCL} lds", ("h", st))
        a("s_add_u32 s16, s16, 16384\ns_cmp_eq_u32 s16, s23\ns_cselect_b32 s16, s22, s16")

    CS = 40
    a("v_and_b32 v13, 255, v0\nv_lshlrev_b32 v13, 2, v13\ns_mul_i32 s20, s9, 15360")
    for ks in range(20):
        if ks and ks % 5 == 0:
            a("s_add_u32 s20, s20, 3840")
        a.vmem(f"buffer_load_dword v{CS+ks}, v13, s[40:43], s20 offen offset:{768*(ks % 5)} {SC}", "cs")
    SA = 14
    a("s_and_b32 s20, s9, 7\nv_xor_b32 v5, s20, v5\nv_lshl_add_u32 v14, v5, 5, v6\nv_add_u32 v15, 49152, v14")
    ONE, SACC, SF = 20, 24, 32
    for i in range(4):
        a(f"v_mov_b32 v{ONE+i}, {hex(ONES_BF)}")
    for i in range(8):
        a(f"v_mov_b32 v{SACC+i}, 0")
    a.wait_vm("cs")
    for ks in range(1, 20):
        a(f"v_add_f32 v{CS}, v{CS}, v{CS+ks}")
    a("v_and_b32 v7, 3, v4\nv_cmp_eq_u32 s[52:53], 1, v7\nv_cmp_eq_u32 s[54:55], 2, v7\nv_cmp_eq_u32 s[56:57], 3, v7")
    a("v_lshrrev_b32 v7, 2, v4\nv_cmp_eq_u32 s[58:59], v7, v3")
    a(f"s_mul_i32 s60, s11, {48*5120}\ns_mul_i32 s62, s10, {48*4096}\ns_mul_i32 s28, s7, 5120")
    a(f"s_add_u32 s61, s60, {48*5120}\ns_add_u32 s63, s62, {48*4096}")
    a(f"s_mul_i32 s26, s15, {3*20480 if EXP & 2 else 0}\ns_add_u32 s26, s26, s60\ns_mul_i32 s27, s15, {3*16384 if EXP & 2 else 0}\ns_add_u32 s27, s27, s62")
    a("v_lshlrev_b32 v60, 4, v1\nv_add_u32 v61, s18, v60\nv_add_u32 v60, s28, v60\nv_add_u32 v62, 4096, v60")
    a.srd(40, 4, WS_W2, SZ_W2)
    a.srd(44, 4, WS_HM, SZ_HM)
    a.stamp(6)
    a("s_barrier")
    for st in range(G1_WN):
        issue_w(st)
    a.stamp(7)
    a("s_barrier")
    a(f"ds_write_b32 v13, v{CS} offset:{G1_CS}")
    a(f"v_mov_b32 v16, 0\nds_write_b32 v16, v16 offset:{LDS_CNT2}")
    issue_h(0); issue_h(1)
    a.wait_vm(("h", 0))
    a.stamp(8)
    a("s_barrier")
    issue_h(2); issue_h(3); issue_h(4)

    def issue_w2(st):
        slot = G2_W + G2_SLOT[st % 7] * 20480
        if EXP & 128 and st > 2:
            a.vm.append(("w2", st))
            return
        a(f"s_add_u32 m0, s28, {slot}\ns_nop 0")
        for i in range(4):
            a.vmem(f"buffer_load_dwordx4 v60, s[40:43], s26 offen offset:{1024*i} {SCL} lds", ("w2", st))
        a(f"s_add_u32 m0, s28, {slot + 4096}\ns_nop 0")
        a.vmem(f"buffer_load_dwordx4 v62, s[40:43], s26 offen {SCL} lds", ("w2", st))
        a("s_add_u32 s26, s26, 20480\ns_cmp_eq_u32 s26, s61\ns_cselect_b32 s26, s60, s26")

    a.srd(48, 4, WS_GR, 16 * 4096)
    a("s_and_b32 s20, s7, 1\ns_lshl_b32 s20, s20, 13\nv_add_u32 v14, s20, v14\nv_add_u32 v15, s20, v15")
    for s in range(10):
        slot = s % G1_HN
        dostat = s < 5
        if dostat:
            sk = a.newlabel("L_nost")
            a(f"s_lshr_b32 s20, s7, 1\ns_cmp_lg_u32 s20, {s & 1}\ns_cbranch_scc1 {sk}")
            off = G1_H + (slot % 3) * 16384
            a(f"ds_read_b64_tr_b16 {q(SF,2)}, v{SA + slot//3} offset:{off}")
            a(f"ds_read_b64_tr_b16 {q(SF+2,2)}, v{SA + slot//3} offset:{off + 4096}")
            a("s_waitcnt lgkmcnt(0)")
            a(f"v_mfma_f32_16x16x32_bf16 {q(SACC)}, {q(ONE)}, {q(SF)}, {q(SACC)}")
            a(f"v_mfma_f32_16x16x32_bf16 {q(SACC+4)}, {q(SF)}, {q(SF)}, {q(SACC+4)}")
            a.label(sk)
        if s == 8:
            a("s_lshl_b32 s20, s8, 12\ns_lshl_b32 s21, s7, 9\ns_add_u32 s20, s20, s21")
            a("v_and_b32 v7, 31, v1\nv_lshlrev_b32 v7, 4, v7\nv_lshrrev_b32 v36, 5, v1\nv_lshl_add_u32 v36, v36, 11, v7\nv_add_u32 v7, s21, v7\ns_mov_b32 s84, 0")
            L, D = a.newlabel("L_gp"), a.newlabel("L_gpd")
            a.label(L)
            a(f"buffer_load_dwordx4 {q(40)}, v36, s[48:51], s20 offen {SC}")
            a(f"s_add_u32 s84, s84, 1\ns_waitcnt vmcnt(0)\nv_cmp_ne_u32 vcc, s3, v42\ns_cbranch_vccz {D}")
            a(f"s_sleep 2\ns_cmp_lt_u32 s84, {POLL_MAX}\ns_cbranch_scc1 {L}")
            a.label(D)
            a("v_mov_b32 v44, v40\nv_mov_b32 v45, v41\ns_nop 1\nv_permlane32_swap_b32 v40, v44\nv_permlane32_swap_b32 v41, v45")
            a("v_add_f32 v40, v40, v44\nv_add_f32 v41, v41, v45")
            ln_finish(a, 40, 41, 42, 44, 45)
            a(f"v_mul_f32 v45, {hex(NLOG2E)}, v45\nv_mul_f32 v46, v42, v42\nv_mov_b32 v47, 0")
            a(f"ds_write_b128 v7, {q(44)} offset:{G1_CONST}")
        if s >= 1:
            if s + 2 < 10:
                issue_w(s + 2)
            if s in (7, 8):
                issue_w2(s - 7)
            elif s == 9:
                issue_w2(2); issue_w2(3)
            if s + 4 < 10:
                issue_h(s + 4)
        if s == 4:
            sq = SACC + 4
            a("s_nop 4")
            a(f"v_cndmask_b32 v{sq}, v{sq}, v{sq+1}, s[52:53]\nv_cndmask_b32 v{sq}, v{sq}, v{sq+2}, s[54:55]\nv_cndmask_b32 v{SACC+1}, v{sq}, v{sq+3}, s[56:57]")
            a(f"s_lshl_b32 s20, s7, 7\nv_lshlrev_b32 v7, 3, v4\nv_add_u32 v7, s20, v7\ns_mov_b64 exec, s[58:59]")
            a(f"ds_write_b64 v7, {q(SACC,2)} offset:{G1_SP}\ns_mov_b64 exec, -1\ns_waitcnt lgkmcnt(0)")
        if s == 5:
            sk = a.newlabel("L_nogr")
            a(f"s_cmp_lg_u32 s7, 3\ns_cbranch_scc1 {sk}")
            a("v_lshlrev_b32 v7, 3, v4")
            for w in range(4):
                a(f"ds_read_b64 {q(SF+2*w,2)}, v7 offset:{G1_SP + 128*w}")
            a("s_lshl_b32 s20, s8, 1\ns_lshr_b32 s21, s9, 3\ns_add_u32 s20, s20, s21\ns_lshl_b32 s20, s20, 3\ns_and_b32 s21, s9, 7\ns_add_u32 s20, s20, s21\ns_lshl_b32 s20, s20, 8")
            a(f"v_lshlrev_b32 v7, 4, v4\nv_mov_b32 v{SF+10}, s3\nv_mov_b32 v{SF+11}, s3\ns_waitcnt lgkmcnt(0)")
            a(f"v_pk_add_f32 {q(SF,2)}, {q(SF,2)}, {q(SF+2,2)}\nv_pk_add_f32 {q(SF+4,2)}, {q(SF+4,2)}, {q(SF+6,2)}\nv_pk_add_f32 {q(SF+8,2)}, {q(SF,2)}, {q(SF+4,2)}")
            a("s_mov_b64 exec, 0xffff")
            a(f"buffer_store_dwordx4 {q(SF+8)}, v7, s[48:51], s20 offen {SC}")
            a("s_mov_b64 exec, -1")
            a.label(sk)
        if s + 1 < 10:
            a.wait_vm(("h", s + 1))
            if s + 1 >= G1_WN:
                a.wait_vm(("w", s + 1))
        a("s_barrier")
    issue_w2(4); issue_w2(5); issue_w2(6)
    if W2WARM:
        nsh = {0: 8, 1: 4}[G2MAP]
        per = 102400 // (4 * nsh)
        a(f"s_and_b32 s20, s13, {nsh-1}\ns_lshl_b32 s20, s20, 2\ns_add_u32 s20, s20, s7\ns_mul_i32 s20, s20, {per}\ns_add_u32 s20, s20, s26\nv_lshlrev_b32 v64, 4, v1")
        for i in range((per + 1023) // 1024):
            a.vmem(f"buffer_load_dwordx4 {q(68+4*i)}, v64, s[40:43], s20 offen offset:{1024*(i%4)} {SCL}", "warm")
            if i % 4 == 3:
                a("s_add_u32 s20, s20, 4096")
    a("s_waitcnt lgkmcnt(0)")
    a.stamp(10)
    a("s_barrier")
    a.stamp(13)
    a("s_waitcnt vmcnt(0)\ns_barrier")
    a("s_barrier")
    issue_w2(7); issue_w2(8); issue_w2(9)
    a("s_barrier")
    issue_w2(10); issue_w2(11)
    a.wait_vm(("w2", 9))
    a("s_barrier\ns_waitcnt vmcnt(0)\ns_barrier")
    a("s_barrier")


def main():
    a = Asm()
    hdr = open(f"cdna_kernels/{NAME}.s.ref").read().split("\n")
    for line in hdr:
        if line.startswith("; Override") or line.startswith("; grid=") or "@launch" in line:
            continue
        if not line.startswith(";"):
            break
        a.raw(line)
    if STAMPS == 1:
        a.raw(f"; @launch kernel={KNAME} grid=(256,1,1) block=(512,1,1) lds={LDS_TOTAL}")
    else:
        a.raw(f"; @launch grid=(256,1,1) block=(512,1,1) lds={LDS_TOTAL}")
    a.raw('.amdgcn_target "amdgcn-amd-amdhsa--gfx950"\n.text')
    a.raw(f".globl {KNAME}\n.p2align 8\n.type {KNAME},@function\n{KNAME}:")
    done = "L_done"
    a("s_cmp_ge_u32 s2, 256\ns_cbranch_scc1 L_exit")
    if STAMPS:
        for i in range(16):
            a(f"s_mov_b32 s{64+i}, 0")
        a.stamp(0)
    a(f"s_load_dwordx2 s[4:5], s[0:1], {KA_WS}\ns_load_dwordx16 s[8:23], s[0:1], 0\ns_load_dwordx8 s[24:31], s[0:1], 64")
    a("v_and_b32 v1, 63, v0\nv_lshrrev_b32 v2, 6, v0\nv_lshrrev_b32 v3, 4, v1\nv_and_b32 v4, 15, v1")
    a("v_readfirstlane_b32 s6, v2")
    a("s_waitcnt lgkmcnt(0)")
    a("s_load_dword s3, s[4:5], 0")
    a("s_and_b32 s7, s6, 3")
    a.srd(92, 4, WS_FLG, SZ_FLG)
    a(f"v_mov_b32 v5, {LDS_CNT}\nv_mov_b32 v6, 0\nv_mov_b32 v7, 0\nv_mov_b32 v8, 0\nv_mov_b32 v9, 0\nds_write_b128 v5, v[6:9]")
    delay(a, "h")
    a("s_cmp_ge_u32 s2, 160\ns_cbranch_scc1 L_aux")
    a("s_lshl_b32 s52, s2, 2\ns_add_u32 s52, s52, s7")
    kgen(a)
    a("s_cmp_ge_u32 s6, 4\ns_cbranch_scc1 L_partner")
    conv_main(a)
    a("s_branch L_mfma")
    a.label("L_partner")
    conv_partner(a)
    a("s_branch L_loader")
    a.label("L_aux")
    a.vm = []
    a("s_cmp_ge_u32 s2, 224\ns_cbranch_scc1 L_aux_rp")
    a("s_sub_u32 s52, s2, 160")
    role_ln1(a)
    a("s_branch L_aux_go")
    a.label("L_aux_rp")
    a("s_sub_u32 s52, s2, 224")
    if not EXP & 256:
        a("s_cmp_lt_u32 s6, 6\ns_cbranch_scc1 L_aux_rp1")
        a("s_getpc_b64 s[54:55]")
        a.label("L_pc")
        a(f"s_sub_u32 s54, s54, L_pc-{KNAME}\ns_subb_u32 s55, s55, 0")
        a(f"v_lshlrev_b32 v5, 4, v1\ns_and_b32 s56, s6, 1\ns_mul_i32 s56, s56, {CODE_KB*512}\nv_add_u32 v5, s56, v5")
        for i in range(CODE_KB // 2):
            a(f"global_load_dwordx4 {q(16+4*i)}, v5, s[54:55] offset:{1024*(i%4)}")
            if i % 4 == 3:
                a("v_add_u32 v5, 4096, v5")
        if TLBW:
            a("v_lshlrev_b32 v5, 16, v1")
            a.srd(32, 4, 0, 0x1720000)
            for i in range(6):
                a(f"s_mov_b32 s56, {i << 22}")
                a(f"buffer_load_dword v{100+i}, v5, s[32:35], s56 offen {SC}")
            for k, (lo, sz) in enumerate([(24, 640*3072), (26, 640*3072), (28, 1536*1280), (30, SZ_T)]):
                a.srd(36, lo, 0, sz)
                a(f"buffer_load_dword v{106+k}, v5, s[36:39], 0 offen {SC}")
        a.label("L_aux_rp1")
    epoch_ready(a)
    a("s_cmp_ge_u32 s6, 6\ns_cbranch_scc1 L_aux_end")
    a("s_mul_i32 s53, s52, 6\ns_add_u32 s53, s53, s6")
    if W2LATE:
        a.poll(F_L, 64, 26)
    role_rp2(a)
    a.label("L_aux_end")
    a("s_waitcnt vmcnt(0)\ns_barrier")
    a("s_cmp_lg_u32 s6, 4\ns_cbranch_scc1 L_aux_go")
    delay(a, "d")
    a.publish(F_R2, 52, 10)
    a.label("L_aux_go")
    a.stamp(4)
    a("s_cmp_ge_u32 s6, 4\ns_cbranch_scc1 L_loader\ns_branch L_mfma")
    a.label("L_loader")
    gemm_loader_waves(a, done)
    a(f"s_branch {done}")
    a.label("L_mfma")
    gemm_mfma_waves(a, done)
    a.label(done)
    if STAMPS:
        a("s_waitcnt vmcnt(0)")
        a.stamp(15)
        if STAMPS == 2:
            a(f"s_cmp_lg_u32 s2, {int(os.environ.get('DBGWG', '0'))}\ns_cbranch_scc1 L_exit\ns_cmp_lg_u32 s6, {int(os.environ.get('DBGWV', '0'))}\ns_cbranch_scc1 L_exit")
            a("s_load_dwordx2 s[82:83], s[0:1], 96\ns_waitcnt lgkmcnt(0)")
            a.srd(88, 82, 0, 256)
            for i in range(15, -1, -1):
                a(f"s_sub_u32 s{64+i}, s{64+i}, s64")
            for i in range(16):
                a(f"v_mov_b32 v{4+i}, s{64+i}")
            a("v_mov_b32 v1, 0\ns_mov_b64 exec, 1")
            for i in range(4):
                a(f"buffer_store_dwordx4 {q(4+4*i)}, v1, s[88:91], 0 offen offset:{16*i}")
            a("s_branch L_exit")
        a.srd(88, 4, WS_STAMP, 262144)
        a("v_lshrrev_b32 v1, 6, v0\nv_lshlrev_b32 v1, 6, v1\ns_lshl_b32 s82, s2, 9\nv_add_u32 v1, s82, v1")
        for i in range(16):
            a(f"v_mov_b32 v{4+i}, s{64+i}")
        a("s_mov_b64 exec, 1")
        for i in range(4):
            a(f"buffer_store_dwordx4 {q(4+4*i)}, v1, s[88:91], 0 offen offset:{16*i}")
    a.label("L_exit")
    a("s_endpgm")
    a.raw(f".fill ({CODE_KB*1024} - (. - {KNAME})) / 4, 4, 0xbf800000")
    a.raw(f""".section .rodata,"a"
.p2align 6
.amdhsa_kernel {KNAME}
  .amdhsa_next_free_vgpr 244
  .amdhsa_next_free_sgpr 96
  .amdhsa_accum_offset 244
  .amdhsa_group_segment_fixed_size 0
  .amdhsa_kernarg_size 112
  .amdhsa_user_sgpr_count 2
  .amdhsa_user_sgpr_kernarg_segment_ptr 1
  .amdhsa_system_sgpr_workgroup_id_x 1
.end_amdhsa_kernel""")
    out = sys.argv[1] if len(sys.argv) > 1 else f"cdna_kernels/{NAME}.s"
    open(out, "w").write("\n".join(a.l) + "\n")


if __name__ == "__main__":
    main()
```
